```python
import torch

def _softmax(x, axis=-1):
    return torch.softmax(x, dim=axis)
def _gelu(x):
    return torch.nn.functional.gelu(x, approximate="tanh")
def _silu(x):
    return torch.nn.functional.silu(x)
def _sigmoid(x):
    return torch.sigmoid(x)
def _layernorm(x, axis=-1, eps=1e-5):
    m = x.mean(dim=axis, keepdim=True)
    v = x.var(dim=axis, keepdim=True, unbiased=False)
    return (x - m) / torch.sqrt(v + eps)
def _scatter_add(tgt, idx, src, axis=0):
    return tgt.clone().index_add_(axis, idx, src)
def _segment_sum(src, seg, n):
    out = torch.zeros((n,) + src.shape[1:], dtype=src.dtype)
    return out.index_add_(0, seg, src)
def _pad(x, pw):
    flat = tuple(v for pair in reversed(pw) for v in pair)
    return torch.nn.functional.pad(x, flat)

kernel_name = 'standalone__deep_cross_wide_deep__recsys'

def setup_inputs():

    _w = (lambda a: (lambda t: t.to(torch.bfloat16) if t.is_floating_point() else t)(torch.as_tensor(a)))
    B, F, D = 16384, 100, 64
    V, Nd = min(1000, 100000), 13
    Din = F * D
    H = 4 * D
    return {
        "idx": _w((lambda lo, hi, *s: torch.randint(lo, hi, s))(0, V, B, F).to(torch.int64)),
        "table": _w((lambda *s: torch.randn(*s, dtype=torch.bfloat16) * 1.6)(V, D) * 0.05),
        "x_wide": _w((lambda *s: torch.randn(*s, dtype=torch.bfloat16) * 0.8)(B, Nd)),
        "w_wide": _w((lambda *s: torch.randn(*s, dtype=torch.bfloat16) * 0.8)(Nd) * 0.05),
        "b_wide": _w((lambda *s: torch.randn(*s, dtype=torch.bfloat16) * 0.8)(1) * 0.01),
        "W1": _w((lambda *s: torch.randn(*s, dtype=torch.bfloat16) * 1.6)(Din, H) * (2.0 / Din) ** 0.5),
        "b1": _w((lambda *s: torch.randn(*s, dtype=torch.bfloat16) * 1.6)(H) * 0.01),
        "W2": _w((lambda *s: torch.randn(*s, dtype=torch.bfloat16) * 1.6)(H) * (1.0 / H) ** 0.5),
        "b2": _w((lambda *s: torch.randn(*s, dtype=torch.bfloat16) * 1.6)(1) * 0.01),
    }

def reference(idx, table, x_wide, w_wide, b_wide, W1, b1, W2, b2):
    emb = table[idx]
    deep_in = emb.reshape(emb.shape[0], -1)
    h = deep_in @ W1 + b1
    h = h * (lambda x, dt: x.to(dt))(h > 0, h.dtype)
    deep_logit = h @ W2 + b2
    wide_logit = x_wide @ w_wide + b_wide
    return _sigmoid(wide_logit + deep_logit)
```

```python
HEADER_COMMENT = """; Kernarg layout for this problem (96 bytes, ptrs only, base s[0:1]):
"""
MAIN = "standalone__deep_cross_wide_deep__recsys_kernel"

class Asm:
    def __init__(self):
        self.lines = []
    def __call__(self, s):
        for l in s.strip("\n").split("\n"):
            self.lines.append("    " + l.strip() if not l.strip().endswith(":") else l.strip())
    def raw(self, s):
        self.lines.append(s)
    def text(self):
        return "\n".join(self.lines) + "\n"

def kernel_begin(a, name):
    a.raw(".text")
    a.raw(f".globl {name}")
    a.raw(".p2align 8")
    a.raw(f".type {name},@function")
    a.raw(f"{name}:")

def kernel_desc(name, vgpr, sgpr, accum):
    return f""".section .rodata,"a"
.p2align 6
.amdhsa_kernel {name}
  .amdhsa_next_free_vgpr {vgpr}
  .amdhsa_next_free_sgpr {sgpr}
  .amdhsa_accum_offset {accum}
  .amdhsa_group_segment_fixed_size 0
  .amdhsa_kernarg_size 96
  .amdhsa_user_sgpr_count 2
  .amdhsa_user_sgpr_kernarg_segment_ptr 1
  .amdhsa_system_sgpr_workgroup_id_x 1
.end_amdhsa_kernel
"""
def srd(a, d, b, nbytes):
    a(f"s_mov_b32 s{d}, s{b}")
    a(f"s_and_b32 s{d+1}, s{b+1}, 0xffff")
    a(f"s_mov_b32 s{d+2}, {nbytes}")
    a(f"s_mov_b32 s{d+3}, 0x00020000")
```

```python
import re
def regs_of(op):
    op = op.strip()
    m = re.fullmatch(r"([va])\[(\d+):(\d+)\]", op)
    if m: return {(m.group(1), i) for i in range(int(m.group(2)), int(m.group(3)) + 1)}
    m = re.fullmatch(r"-?([va])(\d+)", op)
    if m: return {(m.group(1), int(m.group(2)))}
    return set()
def sregs_of(op):
    op = op.strip()
    m = re.fullmatch(r"s\[(\d+):(\d+)\]", op)
    if m: return {i for i in range(int(m.group(1)), int(m.group(2)) + 1)}
    m = re.fullmatch(r"s(\d+)", op)
    if m: return {int(m.group(1))}
    if op == "vcc": return {"vcc"}
    return set()
def parse(line):
    line = line.split(";")[0].strip()
    if not line or line.endswith(":") or line.startswith("."): return None
    p = line.split(None, 1)
    mn = p[0]
    ops = []
    if len(p) > 1:
        ops = [x.strip().split(" ")[0] for x in p[1].split(",")]
    return mn, ops
def passes(mn):
    if "32x32x16" in mn or "32x32x32" in mn: return 8
    if "16x16x32" in mn or "16x16x64" in mn: return 4
    if "4x4x4" in mn: return 2
    raise Exception(mn)
def check(lines, name=""):
    ins = []
    for l in lines:
        p = parse(l)
        if p: ins.append((p[0], p[1], l.strip()))
    pos = []; c = 0
    for mn, ops, l in ins:
        pos.append(c)
        c += (int(ops[0], 0) + 1) if mn == "s_nop" else 1
    errs = []
    def info(mn, ops):
        is_mfma = mn.startswith("v_mfma") or mn.startswith("v_smfmac")
        is_valu = mn.startswith("v_") and not is_mfma
        is_mem = mn.startswith(("ds_", "buffer_", "global_"))
        w = set(); r = set(); sw = set(); sr = set()
        if is_mfma:
            w = regs_of(ops[0]); r = set().union(*[regs_of(o) for o in ops[1:]])
            if mn.startswith("v_smfmac"): r |= w
        elif is_valu:
            if mn.startswith("v_cmp") or mn.startswith("v_readfirstlane") or mn.startswith("v_readlane"):
                sw = sregs_of(ops[0]); r = set().union(*[regs_of(o) for o in ops[1:]])
            else:
                w = regs_of(ops[0]); r = set().union(*[regs_of(o) for o in ops[1:]]) if len(ops) > 1 else set()
                if "swap" in mn: w |= regs_of(ops[1]); r |= regs_of(ops[0])
                if mn.startswith(("v_fmac", "v_dot2c")): r |= w
            for o in ops[1:]: sr |= sregs_of(o)
        elif is_mem:
            st = ("write" in mn) or ("store" in mn) or ("atomic" in mn)
            allr = [regs_of(o) for o in ops]
            if st or " lds" in mn: r = set().union(*allr)
            else:
                w = allr[0]; r = set().union(*allr[1:]) if len(allr) > 1 else set()
            for o in ops: sr |= sregs_of(o)
        return is_mfma, is_valu, is_mem, w, r, sw, sr
    I = [info(mn, ops) for mn, ops, l in ins]
    for j in range(len(ins)):
        mj = ins[j][0]; fj, vj, memj, wj, rj, swj, srj = I[j]
        if " lds" in ins[j][2] and memj:
            rj = rj | wj; wj = set()
        for i in range(j - 1, max(-1, j - 24), -1):
            d = pos[j] - pos[i] - ((int(ins[i][1][0], 0) + 1) if ins[i][0] == "s_nop" else 1)
            if d > 20: break
            mi = ins[i][0]; fi, vi, memi, wi, ri, swi, sri = I[i]
            need = 0
            if vi and fj and (wi & rj): need = max(need, 2)
            if fi:
                ps = passes(mi)
                if fj:
                    opsj = ins[j][1]
                    cj = regs_of(opsj[0]) if mj.startswith("v_smfmac") else regs_of(opsj[3])
                    ab = regs_of(opsj[1]) | regs_of(opsj[2]) | (regs_of(opsj[3]) if mj.startswith("v_smfmac") else set())
                    if wi & ab: need = max(need, {2:5,4:8,8:12}[ps])
                    if wi & cj:
                        if wi == cj and passes(mj) == ps: need = max(need, 2 if ps == 2 else 0)
                        else: need = max(need, {2:4,4:6,8:10}[ps])
                    elif wi & wj: need = max(need, {2:4,4:6,8:10}[ps])
                elif (vj or memj) and (wi & (rj | wj)): need = max(need, {2:5,4:8,8:12}[ps])
                if vj:
                    opsi = ins[i][1]
                    ci = regs_of(opsi[0]) if mi.startswith("v_smfmac") else regs_of(opsi[3])
                    if ci & wj: need = max(need, {2:1,4:3,8:7}[ps])
            if vi and vj and (wi & rj):
                if "permlane" in mj or "dpp" in ins[j][2] or "row_" in ins[j][2] or "quad_perm" in ins[j][2]: need = max(need, 2)
                if mj.startswith(("v_readlane", "v_readfirstlane")): need = max(need, 1)
                if mi.startswith(("v_exp", "v_rcp", "v_log", "v_rsq", "v_sqrt")): need = max(need, 1)
                if "sdwa" in mi and "dst_sel:DWORD" not in ins[i][2]: need = max(need, 1)
            if vi and swi:
                if vj and ((swi & srj) or ("vcc" in swi and mj.startswith("v_cndmask") and "vcc" in ins[j][2])): need = max(need, 2)
                if memj and (swi & srj): need = max(need, 5)
            if memi and ("store" in mi) and ("x3" in mi or "x4" in mi) and vj and (ri & wj): need = max(need, 2)
            if mi == "s_mov_b32" and ins[i][1][0] == "m0" and memj and ("addtid" in mj or " lds" in ins[j][2]): need = max(need, 1)
            if d < need: errs.append(f"{name}: need {need} have {d}: [{ins[i][2]}] -> [{ins[j][2]}]")
    return errs
```

```python
import sys
from common import *
import hazard
opts = dict(x.split("=") for x in sys.argv[2:])
AHEAD = int(opts.get("ahead", 8)); STAMP = int(opts.get("stamp", 0))
WS_BYTES = 268435456
IDX16 = 0; WFR = 4 << 20; PART = 8 << 20; TFR = 12 << 20
a = Asm()
a.raw(HEADER_COMMENT.rstrip("\n"))
a.raw("; @launch kernel=prep_kernel grid=(488,1,1) block=(256,1,1) lds=26624")
a.raw("; @launch kernel=main_kernel grid=(256,1,1) block=(512,1,1) lds=163840")
a.raw("; @launch kernel=final_kernel grid=(256,1,1) block=(64,1,1) lds=0")
a.raw('.amdgcn_target "amdgcn-amd-amdhsa--gfx950"')

kernel_begin(a, "prep_kernel")
st = len(a.lines)
a("s_cmp_ge_u32 s2, 488\ns_cbranch_scc1 P_end")
a("s_load_dwordx4 s[4:7], s[0:1], 0\ns_load_dwordx2 s[8:9], s[0:1], 40\ns_load_dwordx2 s[10:11], s[0:1], 88")
a("v_and_b32 v1, 63, v0\nv_lshrrev_b32 v2, 6, v0\ns_nop 0\nv_readfirstlane_b32 s22, v2")
a("s_waitcnt lgkmcnt(0)")
srd(a, 12, 10, WS_BYTES)
a("s_cmp_ge_u32 s2, 456\ns_cbranch_scc1 P_tab")
a("s_cmp_ge_u32 s2, 256\ns_cbranch_scc1 P_w1")
srd(a, 16, 4, 16384*400)
a("s_mul_i32 s20, s2, 25600")
a("v_lshlrev_b32 v3, 4, v0")
a("s_cmp_lg_u32 s22, 0\ns_cbranch_scc1 P_skip6\ns_add_u32 s21, s20, 24576")
a("buffer_load_dwordx4 v[32:35], v3, s[16:19], s21 offen")
a("P_skip6:")
for r in range(6):
    a(f"buffer_load_dwordx4 v[{8+4*r}:{11+4*r}], v3, s[16:19], s20 offen")
    a("s_add_u32 s20, s20, 4096")
a("v_and_b32 v4, 7, v1\nv_lshrrev_b32 v5, 3, v1")
a("s_and_b32 s23, s2, 7\ns_lshl_b32 s23, s23, 3")
a("v_add_u32 v6, s23, v4")
a("v_lshl_add_u32 v7, v4, 3, v5\nv_mul_u32_u24 v7, 400, v7")
a("v_and_b32 v40, 15, v6")
a("s_lshr_b32 s24, s2, 3\ns_mul_i32 s24, s24, 102400")
a("v_lshlrev_b32 v41, 11, v5\nv_lshl_add_u32 v41, v6, 4, v41")
for r in range(6):
    a(f"s_waitcnt vmcnt({5-r})")
    a(f"ds_write_b128 v3, v[{8+4*r}:{11+4*r}] offset:{4096*r}")
a("s_cmp_lg_u32 s22, 0\ns_cbranch_scc1 P_skip7")
a("ds_write_b128 v3, v[32:35] offset:24576")
a("P_skip7:")
a("s_waitcnt lgkmcnt(0)\ns_barrier")
a("s_and_b32 s25, s22, 1\ns_lshr_b32 s26, s22, 1")
a("s_lshl_b32 s27, s25, 3\nv_xor_b32 v42, s27, v40")
a("s_lshl_b32 s28, s26, 6\nv_add_u32 v7, s28, v7")
for u in range(8):
    a(f"v_xor_b32 v{44+u}, {u}, v42")
    a(f"v_lshl_add_u32 v{52+u}, v{44+u}, 2, v7")
for k in range(3):
    for u in range(8):
        a(f"ds_read_b32 v{60+8*k+u}, v{52+u} offset:{128*k}")
a("s_lshl_b32 s28, s26, 14\ns_lshl_b32 s29, s25, 10\ns_add_u32 s28, s28, s29\ns_add_u32 s28, s28, s24")
for k in range(3):
    a(f"s_waitcnt lgkmcnt({min(15, 16-8*k)})" if k < 2 else "s_waitcnt lgkmcnt(0)")
    for u in range(8):
        a(f"v_lshl_add_u32 v{60+8*k+u}, v{60+8*k+u}, 4, v{44+u}")
    for d in range(4):
        a(f"v_lshl_or_b32 v{84+4*k+d}, v{60+8*k+2*d+1}, 16, v{60+8*k+2*d}")
    a(f"buffer_store_dwordx4 v[{84+4*k}:{87+4*k}], v41, s[12:15], s28 offen")
    a("s_add_u32 s28, s28, 32768")
a("s_cmp_lg_u32 s22, 0\ns_cbranch_scc1 P_end")
a("v_and_b32 v42, 3, v6")
for u in range(4):
    a(f"v_xor_b32 v{44+u}, {u}, v42\nv_lshl_add_u32 v{52+u}, v{44+u}, 2, v7\nds_read_b32 v{60+u}, v{52+u} offset:384")
    a(f"v_add_u32 v{44+u}, 16384, v{44+u}")
a("v_lshrrev_b32 v43, 1, v5\nv_lshlrev_b32 v43, 10, v43\nv_lshl_add_u32 v43, v6, 4, v43\nv_and_b32 v48, 1, v5\nv_lshl_add_u32 v43, v48, 3, v43")
a("s_add_u32 s28, s24, 98304\ns_waitcnt lgkmcnt(0)")
for u in range(4):
    a(f"v_lshl_add_u32 v{60+u}, v{60+u}, 2, v{44+u}")
a("v_lshl_or_b32 v64, v61, 16, v60\nv_lshl_or_b32 v65, v63, 16, v62")
a("buffer_store_dwordx2 v[64:65], v43, s[12:15], s28 offen")
a("s_endpgm")
a("P_w1:")
srd(a, 16, 8, 6400*512)
a("s_sub_u32 s20, s2, 256\ns_lshr_b32 s21, s20, 3\ns_and_b32 s20, s20, 7")
a("s_lshl_b32 s23, s21, 2\ns_add_u32 s23, s23, s22")
a("s_lshl_b32 s24, s23, 15\ns_lshl_b32 s25, s20, 12\ns_add_u32 s24, s24, s25")
a("v_lshlrev_b32 v3, 3, v1")
for j8 in range(8):
    a(f"buffer_load_dwordx2 v[{8+2*j8}:{9+2*j8}], v3, s[16:19], s24 offen offset:{512*j8}")
a("s_mov_b32 s30, 0x05040100\ns_mov_b32 s31, 0x07060302")
a("v_lshlrev_b32 v4, 16, v1")
a("s_lshr_b32 s26, s20, 1\ns_lshl_b32 s26, s26, 10\ns_and_b32 s27, s20, 1\ns_lshl_b32 s27, s27, 9\ns_add_u32 s26, s26, s27")
a(f"s_lshr_b32 s27, s23, 4\ns_lshl_b32 s27, s27, 13\ns_add_u32 s26, s26, s27\ns_add_u32 s26, s26, {WFR}")
a("s_waitcnt vmcnt(0)")
for c in range(4):
    for d in range(4):
        a(f"v_perm_b32 v{24+4*c+d}, v{8+2*(2*d+1)+(c>>1)}, v{8+2*(2*d)+(c>>1)}, s{30+(c&1)}")
a("s_cmp_eq_u32 s21, 24\ns_cbranch_scc1 P_w1s")
a("s_and_b32 s27, s23, 15\ns_lshl_b32 s27, s27, 5\ns_add_u32 s26, s26, s27\ns_add_u32 s28, s26, 4096")
for c in range(4):
    a(f"buffer_store_dwordx4 v[{24+4*c}:{27+4*c}], v4, s[12:15], s{26 + 2*(c&1)} offen offset:{16*(c>>1)}")
a("s_endpgm")
a("P_w1s:")
a("s_and_b32 s27, s22, 1\ns_lshl_b32 s27, s27, 7\ns_add_u32 s26, s26, s27\ns_lshr_b32 s27, s22, 1\ns_lshl_b32 s27, s27, 6\ns_add_u32 s26, s26, s27")
for c in range(4):
    a(f"buffer_store_dwordx4 v[{24+4*c}:{27+4*c}], v4, s[12:15], s26 offen offset:{16*c}")
    a(f"buffer_store_dwordx4 v[{24+4*c}:{27+4*c}], v4, s[12:15], s26 offen offset:{16*c+256}")
a("s_endpgm")
a("P_tab:")
srd(a, 16, 6, 128000)
a("s_sub_u32 s20, s2, 456\ns_lshr_b32 s21, s20, 2\ns_and_b32 s23, s20, 3")
a("s_lshl_b32 s24, s21, 6\ns_and_b32 s25, s23, 1\ns_lshl_b32 s25, s25, 5\ns_add_u32 s24, s24, s25\ns_lshr_b32 s25, s23, 1\ns_lshl_b32 s25, s25, 9\ns_add_u32 s24, s24, s25")
a("s_lshl_b32 s24, s24, 7\ns_lshl_b32 s25, s22, 5\ns_add_u32 s24, s24, s25")
a("v_and_b32 v3, 24, v1\nv_and_b32 v4, 3, v1\nv_lshl_add_u32 v3, v4, 1, v3\nv_bfe_u32 v4, v1, 2, 1\nv_add_u32 v3, v3, v4")
a("v_lshlrev_b32 v3, 7, v3\nv_lshrrev_b32 v4, 5, v1\nv_lshl_add_u32 v3, v4, 4, v3")
a("buffer_load_dwordx4 v[8:11], v3, s[16:19], s24 offen")
a(f"s_lshl_b32 s26, s20, 12\ns_add_u32 s26, s26, {TFR}\nv_lshlrev_b32 v5, 4, v0")
a("s_waitcnt vmcnt(0)\nbuffer_store_dwordx4 v[8:11], v5, s[12:15], s26 offen")
a("P_end:\ns_endpgm")
errs = hazard.check(a.lines[st:], "prep")

kernel_begin(a, "main_kernel")
TAB=4; ACC=68; WF=100; POOL=132; GD=196; NGD=32; IX=228; AD=244; SEL=248; SIDX=252
VL16=1
st = len(a.lines)
a("s_cmp_ge_u32 s2, 256\ns_cbranch_scc1 M_end")
if STAMP: a("s_memtime s[80:81]\ns_memrealtime s[96:97]")
a("s_load_dwordx2 s[10:11], s[0:1], 88\ns_load_dwordx4 s[4:7], s[0:1], 48")
a("v_and_b32 v2, 63, v0\nv_lshrrev_b32 v3, 6, v0\nv_lshlrev_b32 v1, 4, v2\nv_readfirstlane_b32 s22, v3")
a("s_and_b32 s20, s2, 7\ns_lshr_b32 s21, s2, 3\ns_lshr_b32 s24, s20, 1\ns_and_b32 s20, s20, 1\ns_lshl_b32 s20, s20, 5\ns_add_u32 s25, s20, s21")
a("s_waitcnt lgkmcnt(0)")
srd(a, 12, 10, WS_BYTES)
a("s_lshl_b32 s20, s25, 3\ns_add_u32 s4, s4, s20\ns_addc_u32 s5, s5, 0\ns_add_u32 s6, s6, s20\ns_addc_u32 s7, s7, 0")
a("s_load_dwordx2 s[40:41], s[4:5], 0\ns_load_dwordx2 s[42:43], s[6:7], 0")
a(f"s_lshl_b32 s26, s25, 16\ns_add_u32 s26, s26, {WFR}")
a(f"s_lshl_b32 s27, s22, 14\ns_add_u32 s27, s27, {TFR}")
a("s_lshl_b32 s28, s24, 3\ns_add_u32 s28, s28, s22\ns_mul_i32 s28, s28, 102400")
def load_wf():
    a("s_add_u32 s29, s26, 4096")
    for x in range(8):
        a(f"buffer_load_dwordx4 v[{WF+4*x}:{WF+4*x+3}], v{VL16}, s[12:15], s{26 if x < 4 else 29} offen offset:{1024*(x&3)}")
    a("s_add_u32 s26, s26, 8192")
load_wf()
for x in range(16):
    a(f"buffer_load_dwordx4 v[{TAB+4*x}:{TAB+4*x+3}], v{VL16}, s[12:15], s27 offen offset:{1024*(x&3)}")
    if x & 3 == 3: a("s_add_u32 s27, s27, 4096")
for x in range(4):
    a(f"buffer_load_dwordx4 v[{IX+4*x}:{IX+4*x+3}], v{VL16}, s[12:15], s28 offen offset:{1024*x}")
a("s_add_u32 s28, s28, 4096")
a(f"v_bfe_u32 v3, v2, 4, 1\nv_lshlrev_b32 v3, 1, v3\nv_bfe_u32 v{AD}, v2, 2, 2\nv_mov_b32 v{AD+1}, 0x3f80")
a(f"v_cmp_eq_u32 vcc, v3, v{AD}\nv_add_u32 v3, 1, v3\ns_nop 0\nv_cndmask_b32 v{SEL}, 0, v{AD+1}, vcc\nv_cmp_eq_u32 vcc, v3, v{AD}")
a(f"v_mov_b32 v{SEL+1}, v{SEL}\nv_and_b32 v3, 3, v2\nv_cndmask_b32 v{SEL+2}, 0, v{AD+1}, vcc\nv_mul_u32_u24 v{SIDX}, 0x5555, v3\nv_mov_b32 v{SEL+3}, v{SEL+2}")
a("s_lshl_b32 s23, s22, 13\ns_add_u32 s30, s23, 8064")
a("s_waitcnt lgkmcnt(0)")
a("s_lshl_b32 s44, s40, 16\ns_and_b32 s45, s40, 0xffff0000\ns_lshl_b32 s46, s41, 16\ns_and_b32 s47, s41, 0xffff0000")
for s in range(8):
    for c in range(4): a(f"v_mov_b32 v{ACC+4*s+c}, s{44+c}")
def rg(b, n): return f"v[{b}:{b+n-1}]"
def tg_mfma(mt, ks, e, d):
    c = "0" if ks == 0 else rg(d, 16)
    return f"v_mfma_f32_32x32x16_bf16 {rg(d,16)}, {rg(TAB+16*mt+4*ks,4)}, {rg(WF+16*e+4*ks,4)}, {c}"
D0, D1 = POOL+32, POOL+48
def tgen_groups():
    g = []
    for mt in range(3):
        for ks in range(4):
            for e in range(2):
                g.append([tg_mfma(mt, ks, e, D0 if e == 0 else D1)])
        g.append([])
        for r in range(0, 16, 4):
            g.append([f"v_cvt_pk_bf16_f32 v{POOL+16*mt+r+x}, v{D0+r+x}, v{D1+r+x}" for x in range(4)])
    return g
k = 0
for gi, g in enumerate(tgen_groups()):
    if g and g[0].startswith("v_mfma"):
        if k % 8 == 0: a(f"s_waitcnt vmcnt({16 - 4*(k//8)})")
        k += 1
    if not g: a("s_nop 11")
    for o in g: a(o)
a("s_waitcnt vmcnt(4)")
a("s_mov_b32 s21, 0")
if STAMP: a("s_memtime s[82:83]")
pro_end = len(a.lines)
a("L_W:")
a("s_mov_b32 m0, s23")
def wr(r, reg):
    if r == 32: a("s_mov_b32 m0, s30\ns_nop 0")
    off = r*256 if r < 32 else 57472 + (r-32)*256
    a(f"ds_write_addtid_b32 v{reg} offset:{off}")
E0, E1 = POOL+48, GD
r = 0
for ks in range(4):
    for e in range(2):
        a(tg_mfma(3, ks, e, E0 if e == 0 else E1))
        for _ in range(6): wr(r, POOL+r); r += 1
load_wf()
for r in range(16):
    a(f"v_cvt_pk_bf16_f32 v{E0+r}, v{E0+r}, v{E1+r}")
for r in range(48, 64): wr(r, POOL+r)
a("s_waitcnt lgkmcnt(0)\ns_barrier")
a("s_cmp_eq_u32 s21, 5\ns_cbranch_scc1 L_Glast")
w_end = len(a.lines)

def gather_phase(nunits, side, acc_of, mid=None):
    NG = nunits * 8
    def issue(g):
        u = g // 8
        if g % 8 == 0: a(f"s_waitcnt vmcnt({11 if u < 4 else 3})")
        ad = AD + (g & 3)
        d = IX + 4*(u & 3) + (g % 8)//2
        a(f"v_lshlrev_b32_sdwa v{ad}, 3, v{d} dst_sel:DWORD dst_unused:UNUSED_PAD src0_sel:DWORD src1_sel:WORD_{g&1}")
        q = GD + (2*g) % NGD
        a(f"ds_read_b64 {rg(q,2)}, v{ad}")
        if g % 8 == 7:
            a(f"buffer_load_dwordx4 {rg(IX+4*(u&3),4)}, v{VL16}, s[12:15], s28 offen offset:{1024*(u&3)}")
            if u & 3 == 3: a("s_add_u32 s28, s28, 4096")
    extra = 0
    for g in range(AHEAD): issue(g)
    for g in range(NG):
        if g + AHEAD < NG: issue(g + AHEAD)
        if g % 4 == 3:
            a(f"s_waitcnt lgkmcnt({min(AHEAD, NG-1-g)})")
            q = GD + (2*(g-3)) % NGD
            s = acc_of(g // 4)
            a(f"v_smfmac_f32_16x16x64_bf16 {rg(ACC+4*s,4)}, {rg(SEL,4)}, {rg(q,8)}, v{SIDX}")
        for o in side.get(g, []): a(o)
def spread(groups, g0, g1):
    side = {}
    for i, o in enumerate(groups):
        g = g0 + (i * (g1 - g0)) // len(groups)
        side.setdefault(g, []).extend(o)
    return side
g_start = len(a.lines)
gather_phase(16, spread(tgen_groups(), 32 - AHEAD + 1, 126), lambda o: o // 4)
a("s_add_u32 s21, s21, 1\ns_barrier\ns_branch L_W")
g_end = len(a.lines)
a("L_Glast:")
sp = []
sp.append([f"v_and_b32 v3, 24, v2", f"v_and_b32 v{POOL}, 3, v2", f"v_lshl_add_u32 v3, v{POOL}, 1, v3", f"v_bfe_u32 v{POOL}, v2, 2, 1"])
sp.append([f"v_add_u32 v3, v3, v{POOL}", f"v_lshlrev_b32 v3, 5, v3", f"v_lshrrev_b32 v{POOL}, 5, v2", f"v_lshl_add_u32 v3, v{POOL}, 4, v3"])
sp.append(["s_lshl_b32 s31, s22, 11", "s_add_u32 s31, s31, 131072", "v_add_u32 v3, s31, v3"])
for mt in range(4):
    d = POOL + 16*mt
    for ks in range(4):
        c = "0" if ks == 0 else rg(d, 16)
        sp.append([f"v_mfma_f32_32x32x16_bf16 {rg(d,16)}, {rg(WF+4*ks,4)}, {rg(TAB+16*mt+4*ks,4)}, {c}"])
sp.append([]); sp.append([])
for mt in range(4):
    d = POOL + 16*mt
    sp.append([f"v_cvt_pk_bf16_f32 v{d+x}, v{d+2*x}, v{d+2*x+1}" for x in range(4)])
wr_ops = []
for mt in range(4):
    d = POOL + 16*mt
    off = (32*(mt & 1) + 512*(mt >> 1)) * 32
    wr_ops.append(f"ds_write_b128 v3, {rg(d,4)} offset:{off}")
sp.append(wr_ops + ["s_waitcnt lgkmcnt(0)", "s_barrier"])
gl_start = len(a.lines)
gather_phase(20, spread(sp, 32 - AHEAD + 1, 100), lambda o: o // 4 if o < 32 else o - 32)
if STAMP: a("s_memtime s[84:85]")
a("s_nop 7")
a(f"s_lshl_b32 s31, s24, 6\ns_lshl_b32 s33, s22, 3\ns_add_u32 s31, s31, s33\ns_lshl_b32 s31, s31, 6\ns_add_u32 s31, s31, s25\ns_lshl_b32 s31, s31, 8\ns_add_u32 s31, s31, {PART}")
a("v_lshrrev_b32 v3, 3, v2\nv_lshlrev_b32 v3, 14, v3\nv_and_b32 v2, 7, v2\nv_lshl_add_u32 v3, v2, 5, v3")
for s in range(8):
    a(f"v_cvt_pk_bf16_f32 v{POOL+2*s}, v{ACC+4*s}, v{ACC+4*s+1}\nv_cvt_pk_bf16_f32 v{POOL+2*s+1}, v{ACC+4*s+2}, v{ACC+4*s+3}")
for x in range(16):
    a(f"v_pk_max_i16 v{POOL+x}, v{POOL+x}, 0")
for s in range(8):
    a(f"v_dot2_f32_bf16 v{POOL+16+s}, v{POOL+2*s}, s42, 0")
for s in range(8):
    a(f"v_dot2_f32_bf16 v{POOL+16+s}, v{POOL+2*s+1}, s43, v{POOL+16+s}")
a("s_nop 2")
a(f"buffer_store_dwordx4 {rg(POOL+16,4)}, v3, s[12:15], s31 offen\nbuffer_store_dwordx4 {rg(POOL+20,4)}, v3, s[12:15], s31 offen offset:16")
if STAMP:
    a("s_waitcnt vmcnt(0)\ns_memtime s[86:87]\ns_memrealtime s[98:99]\ns_waitcnt lgkmcnt(0)")
    a("s_cmp_lg_u32 s22, 0\ns_cbranch_scc1 M_end")
    a("s_mul_i32 s31, s2, 32\ns_add_u32 s31, s31, 0x8000000\nv_mov_b32 v2, 0\nv_mov_b32 v5, 0")
    for k, (x, y) in enumerate([(82, 80), (84, 82), (86, 84), (98, 96)]):
        a(f"s_sub_u32 s33, s{x}, s{y}\nv_mov_b32 v4, s33\nbuffer_store_dwordx2 v[4:5], v2, s[12:15], s31 offen offset:{8*k}\ns_waitcnt vmcnt(0)")
a("M_end:\ns_endpgm")
L = a.lines
errs += hazard.check(L[st:w_end] + L[g_start:g_end] + L[pro_end:w_end] + L[g_end:], "main")

kernel_begin(a, "final_kernel")
st = len(a.lines)
a("s_cmp_ge_u32 s2, 256\ns_cbranch_scc1 F_end")
a("s_load_dwordx2 s[10:11], s[0:1], 88\ns_load_dwordx4 s[4:7], s[0:1], 16\ns_load_dwordx2 s[8:9], s[0:1], 32\ns_load_dwordx4 s[36:39], s[0:1], 64")
a("v_lshlrev_b32 v1, 4, v0")
a("v_and_b32 v2, 15, v0\nv_lshrrev_b32 v3, 4, v0\nv_lshl_add_u32 v2, v2, 2, v3\ns_lshl_b32 s20, s2, 6\nv_add_u32 v2, s20, v2")
a("v_mul_u32_u24 v3, 26, v2\nv_lshlrev_b32 v4, 1, v0\nv_lshlrev_b32 v2, 1, v2\nv_mov_b32 v5, 0")
a("s_waitcnt lgkmcnt(0)")
srd(a, 12, 10, WS_BYTES)
a(f"s_lshl_b32 s21, s2, 14\ns_add_u32 s21, s21, {PART}")
for k in range(16):
    a(f"buffer_load_dwordx4 v[{32+4*k}:{35+4*k}], v1, s[12:15], s21 offen offset:{1024*(k&3)}")
    if k & 3 == 3: a("s_add_u32 s21, s21, 4096")
srd(a, 16, 4, 16384*26)
srd(a, 24, 6, 26)
srd(a, 28, 8, 2)
srd(a, 40, 36, 2)
srd(a, 44, 38, 32768)
a("buffer_load_ushort v6, v4, s[24:27], 0 offen\nbuffer_load_ushort v7, v5, s[28:31], 0 offen\nbuffer_load_ushort v8, v5, s[40:43], 0 offen")
for k in range(13):
    a(f"buffer_load_ushort v{12+k}, v3, s[16:19], 0 offen offset:{2*k}")
for k in range(1, 16):
    a(f"s_waitcnt vmcnt({16 + 15 - k})")
    for x in range(4): a(f"v_add_f32 v{32+x}, v{32+x}, v{32+4*k+x}")
a("s_nop 1\nv_permlane32_swap_b32 v32, v34\nv_permlane32_swap_b32 v33, v35\ns_nop 1\nv_add_f32 v32, v32, v34\nv_add_f32 v33, v33, v35\ns_nop 1\nv_permlane16_swap_b32 v32, v33\ns_nop 1\nv_add_f32 v32, v32, v33")
a("s_waitcnt vmcnt(0)")
a("v_lshlrev_b32 v6, 16, v6\nv_lshlrev_b32 v7, 16, v7\nv_lshlrev_b32 v8, 16, v8")
for k in range(13):
    a(f"v_readlane_b32 s{48+k}, v6, {k}\nv_lshlrev_b32 v{12+k}, 16, v{12+k}")
a("v_mul_f32 v9, s48, v12")
for k in range(1, 13):
    a(f"v_fmac_f32 v9, s{48+k}, v{12+k}")
def rnd(r): a(f"v_cvt_pk_bf16_f32 v{r}, v{r}, v{r}\nv_lshlrev_b32 v{r}, 16, v{r}")
rnd(9); a("v_add_f32 v9, v9, v7"); rnd(9)
rnd(32); a("v_add_f32 v32, v32, v8"); rnd(32)
a("v_add_f32 v9, v9, v32"); rnd(9)
a("v_mul_f32 v9, 0xbfb8aa3b, v9\nv_exp_f32 v9, v9\ns_nop 0\nv_add_f32 v9, 1.0, v9\nv_rcp_f32 v9, v9\ns_nop 0\nv_cvt_pk_bf16_f32 v9, v9, v9")
a("buffer_store_short v9, v2, s[44:47], 0 offen")
a("F_end:\ns_endpgm")
errs += hazard.check(a.lines[st:], "final")
a.raw(kernel_desc("prep_kernel", 96, 48, 96))
a.raw(kernel_desc("main_kernel", 256, 102, 256))
a.raw(kernel_desc("final_kernel", 96, 72, 96))
for e in errs: print("HAZARD", e)
open(sys.argv[1], "w").write(a.text())
```

```python
import sys
from common import *
import hazard
opts = dict(x.split("=") for x in sys.argv[2:])
AHEAD = int(opts.get("ahead", 8)); STAMP = int(opts.get("stamp", 0)); SW = int(opts.get("sw", 5))
SC = "sc1"
SLEEP = int(opts.get("sleep", 1)); RSLEEP = int(opts.get("rsleep", 2))
TG0 = int(opts.get("tg0", 4)); TG1 = int(opts.get("tg1", 122)); RAWAT = int(opts.get("rawat", 40))
WS_BYTES = 268435456
IDX16 = 0; WFR = 4 << 20; PART = 8 << 20; FI = 16 << 20; FW = FI + 65536; F2 = FI + 131072
STG = 131072; XWL = STG + 25600; XB = 131072; PADR = 128000
a = Asm()
a.raw(HEADER_COMMENT.rstrip("\n"))
a.raw("; @launch grid=(256,1,1) block=(512,1,1) lds=163840")
a.raw('.amdgcn_target "amdgcn-amd-amdhsa--gfx950"')
kernel_begin(a, MAIN)
TAB=4; ACC=68; WF=100; POOL=132; GD=196; NGD=24; IX=220; AD=236; SEL=240; SIDX=244
RAW=248; VXW=246; VXR=247; VWIDE=252; VSP=253
VL16=1
T = POOL; U = GD
FIN = 5; POLLW = 7
def rg(b, n): return f"v[{b}:{b+n-1}]"
nst = [0]
def stamp():
    if STAMP:
        k = nst[0]; nst[0] += 1
        assert k < 13
        a(f"s_memrealtime s[{76+2*k}:{77+2*k}]")
def rnd(r): a(f"v_cvt_pk_bf16_f32 v{r}, v{r}, v{r}\nv_lshlrev_b32 v{r}, 16, v{r}")
lab = [0]
def newlab(p):
    lab[0] += 1; return f"{p}{lab[0]}"
st = len(a.lines)
a("s_cmp_ge_u32 s2, 256\ns_cbranch_scc1 M_end")
stamp()
a("s_load_dwordx16 s[36:51], s[0:1], 0\ns_load_dwordx8 s[52:59], s[0:1], 64")
a("v_and_b32 v2, 63, v0\nv_lshrrev_b32 v3, 6, v0\nv_lshlrev_b32 v1, 4, v2\nv_readfirstlane_b32 s22, v3")
a("s_and_b32 s20, s2, 7\ns_lshr_b32 s29, s2, 3\ns_lshr_b32 s24, s20, 1\ns_and_b32 s20, s20, 1\ns_lshl_b32 s20, s20, 5\ns_add_u32 s25, s20, s29")
a("s_lshl_b32 s34, s24, 6\ns_add_u32 s34, s34, s25")
a("s_lshl_b32 s35, s22, 8\ns_add_u32 s35, s35, s34")
a(f"v_lshrrev_b32 v{U}, 4, v2\nv_and_b32 v{U+1}, 15, v2\nv_lshlrev_b32 v{U+2}, 15, v{U}\nv_lshl_add_u32 v{U+2}, v{U+1}, 3, v{U+2}")
a("s_lshr_b32 s20, s35, 5\ns_lshl_b32 s20, s20, 17\ns_bfe_u32 s21, s35, 0x30002\ns_lshl_b32 s21, s21, 12\ns_add_u32 s20, s20, s21\ns_and_b32 s21, s35, 3\ns_lshl_b32 s21, s21, 7\ns_add_u32 s31, s20, s21")
a(f"v_and_b32 v{T+3}, 7, v2\nv_xor_b32 v{T+3}, v{T+3}, v{U}\nv_lshrrev_b32 v{T+2}, 3, v2\nv_lshlrev_b32 v{T+2}, 7, v{T+2}\nv_lshl_add_u32 v{T+2}, v{T+3}, 4, v{T+2}\nv_xor_b32 v{T+3}, 64, v{T+2}")
a(f"s_mul_i32 s20, s34, 25600\ns_mul_i32 s21, s22, 3200\ns_add_u32 s20, s20, s21\ns_add_u32 s33, s21, {STG}\ns_mov_b32 m0, s33")
a("s_lshl_b32 s23, s22, 13\ns_add_u32 s30, s23, 8064")
a("s_waitcnt lgkmcnt(0)")
stamp()
srd(a, 16, 46, 6400*512)
WR_ = U + 8
a("s_cmp_ge_u32 s35, 800\ns_cbranch_scc1 P_now1")
for j8 in range(8):
    a(f"buffer_load_dwordx2 {rg(WR_+2*j8,2)}, v{U+2}, s[16:19], s31 offen offset:{512*j8}")
a("P_now1:")
srd(a, 4, 36, 16384*400)
for r in range(3):
    a(f"buffer_load_dwordx4 v1, s[4:7], s20 offen offset:{1024*r} lds")
a("s_mov_b64 exec, 0xff\nbuffer_load_dwordx4 v1, s[4:7], s20 offen offset:3072 lds\ns_mov_b64 exec, -1")
srd(a, 60, 56, 256)
a("s_cmp_lg_u32 s22, 6\ns_cbranch_scc1 P_x1")
a("s_cmp_lg_u32 s2, 0\ns_cbranch_scc1 P_skip")
a(f"s_memrealtime s[64:65]\ns_waitcnt lgkmcnt(0)\ns_or_b32 s65, s65, 0x80000000\nv_mov_b32 v{T+4}, s64\nv_mov_b32 v{T+5}, s65\nv_mov_b32 v{T+6}, 0")
a(f"s_mov_b64 exec, 1\nbuffer_store_dwordx2 {rg(T+4,2)}, v{T+6}, s[60:63], 0 offen {SC}\ns_mov_b64 exec, -1\ns_branch P_skip")
a("P_x1:")
a(f"s_cmp_lg_u32 s22, {FIN}\ns_cbranch_scc1 P_skip")
srd(a, 8, 40, 16384*26)
a(f"s_mov_b32 m0, {XWL}\ns_mul_i32 s20, s34, 1664\nbuffer_load_dwordx4 v1, s[8:11], s20 offen lds\nbuffer_load_dwordx4 v1, s[8:11], s20 offen offset:1024 lds")
srd(a, 8, 42, 26)
a(f"v_lshlrev_b32 v{T+4}, 1, v2\nv_mov_b32 v{T+5}, 0\nbuffer_load_ushort v{VWIDE}, v{T+4}, s[8:11], 0 offen")
srd(a, 8, 44, 2)
a(f"buffer_load_ushort v245, v{T+5}, s[8:11], 0 offen")
srd(a, 8, 52, 2)
a(f"buffer_load_ushort v255, v{T+5}, s[8:11], 0 offen")
a("P_skip:")
srd(a, 8, 38, 128000)
srd(a, 12, 58, WS_BYTES)
a("s_mov_b32 s66, 0x05040100\ns_mov_b32 s67, 0x07060302")
a("s_lshl_b32 s20, s25, 3\ns_add_u32 s48, s48, s20\ns_addc_u32 s49, s49, 0\ns_add_u32 s50, s50, s20\ns_addc_u32 s51, s51, 0")
a("s_load_dwordx2 s[70:71], s[48:49], 0\ns_load_dwordx2 s[72:73], s[50:51], 0")
def table_dma():
    a("s_mov_b32 s20, s29")
    for x in range(8):
        a("s_and_b32 s21, s20, 3\ns_lshl_b32 s21, s21, 11\ns_bfe_u32 s27, s20, 0x10002\ns_lshl_b32 s27, s27, 16\ns_add_u32 s27, s27, s21\ns_add_u32 s27, s27, s23\ns_mov_b32 m0, s27\ns_add_u32 s20, s20, 1")
        a(f"buffer_load_dwordx4 v{T+2}, s[8:11], s27 offen lds\nbuffer_load_dwordx4 v{T+3}, s[8:11], s27 offen offset:1024 lds")
def nonce_load(): a(f"v_mov_b32 v{AD}, 0\nbuffer_load_dwordx2 {rg(AD+2,2)}, v{AD}, s[60:63], 0 offen {SC}")
def nonce_get():
    l = newlab("N_")
    a("s_mov_b32 s20, 0")
    a(f"{l}:")
    a(f"v_readfirstlane_b32 s64, v{AD+2}\nv_readfirstlane_b32 s65, v{AD+3}\ns_add_u32 s20, s20, 1\ns_cmp_lg_u32 s65, 0\ns_cbranch_scc1 {l}ok")
    a(f"s_sleep 1\nbuffer_load_dwordx2 {rg(AD+2,2)}, v{AD}, s[60:63], 0 offen {SC}\ns_waitcnt vmcnt(0)\ns_cmp_lt_u32 s20, 0x40000\ns_cbranch_scc1 {l}")
    a(f"{l}ok:")
def flag_store(sreg):
    a(f"v_mov_b32 v{AD}, 0\nv_mov_b32 v{AD+2}, s64\nv_mov_b32 v{AD+3}, s65\ns_mov_b64 exec, 1")
    a(f"buffer_store_dwordx2 {rg(AD+2,2)}, v{AD}, s[12:15], s{sreg} offen {SC}\ns_mov_b64 exec, -1")
def w1_process():
    PR = WF
    for c in range(4):
        for d in range(4):
            a(f"v_perm_b32 v{PR+4*c+d}, v{WR_+2*(2*d+1)+(c>>1)}, v{WR_+2*(2*d)+(c>>1)}, s{66+(c&1)}")
    a(f"v_mul_u32_u24 v{U+3}, 272, v{U+1}\nv_lshl_add_u32 v{U+3}, v{U}, 5, v{U+3}\nv_add_u32 v{U+3}, s23, v{U+3}")
    for c in range(4):
        a(f"ds_write_b128 v{U+3}, {rg(PR+4*c,4)} offset:{(c&1)*128 + (c>>1)*16}")
    a(f"v_mul_u32_u24 v{U+4}, 272, v{U}\nv_lshl_add_u32 v{U+4}, v{U+1}, 4, v{U+4}\nv_add_u32 v{U+4}, s23, v{U+4}")
    a(f"v_lshlrev_b32 v{U+5}, 16, v{U}\nv_bfe_u32 v{U+6}, v2, 3, 1\nv_lshl_add_u32 v{U+5}, v{U+6}, 12, v{U+5}\nv_and_b32 v{U+6}, 7, v2\nv_lshl_add_u32 v{U+5}, v{U+6}, 4, v{U+5}")
    a("s_and_b32 s20, s35, 3\ns_lshl_b32 s20, s20, 20\ns_lshr_b32 s21, s35, 7\ns_lshl_b32 s21, s21, 13\ns_add_u32 s20, s20, s21\ns_bfe_u32 s21, s35, 0x30002\ns_lshl_b32 s21, s21, 9\ns_add_u32 s20, s20, s21")
    a(f"s_bfe_u32 s21, s35, 0x20005\ns_lshl_b32 s21, s21, 7\ns_add_u32 s20, s20, s21\ns_add_u32 s20, s20, {WFR}")
    a("s_waitcnt lgkmcnt(0)")
    for r in range(4):
        a(f"ds_read_b128 {rg(PR+16+4*r,4)}, v{U+4} offset:{r*4*272}")
    for r in range(4):
        a(f"s_waitcnt lgkmcnt({3-r})\nbuffer_store_dwordx4 {rg(PR+16+4*r,4)}, v{U+5}, s[12:15], s20 offen {SC}\ns_add_u32 s20, s20, {4*65536}")
def w1_flag():
    a(f"s_and_b32 s31, s35, 3\ns_lshl_b32 s31, s31, 11\ns_lshr_b32 s21, s35, 2\ns_lshl_b32 s21, s21, 3\ns_add_u32 s31, s31, s21\ns_add_u32 s31, s31, {FW}")
    flag_store(31)
a("s_cmp_eq_u32 s22, 0\ns_cbranch_scc1 P_w0")
table_dma()
a("s_branch P_conv")
a("P_w0:")
a("s_waitcnt vmcnt(4)")
w1_process()
nonce_load()
a("s_waitcnt vmcnt(0)")
nonce_get()
w1_flag()
table_dma()
a("P_conv:")
a(f"v_and_b32 v{T+4}, 7, v2\nv_lshrrev_b32 v{T+5}, 3, v2")
a(f"s_and_b32 s20, s34, 1\ns_lshl_b32 s20, s20, 3\nv_add_u32 v{T+6}, s20, v{T+4}")
a(f"v_mul_u32_u24 v{T+7}, 400, v{T+4}\nv_add_u32 v{T+7}, s33, v{T+7}")
a(f"v_and_b32 v{T+8}, 1, v{T+5}\nv_lshrrev_b32 v{T+9}, 1, v{T+5}")
a(f"v_lshlrev_b32 v{T+10}, 3, v{T+8}\nv_xor_b32 v{T+10}, v{T+10}, v{T+6}")
a(f"v_lshl_add_u32 v{T+11}, v{T+9}, 6, v{T+7}")
a(f"v_lshlrev_b32 v{T+9}, 14, v{T+9}\nv_lshl_add_u32 v{T+9}, v{T+8}, 10, v{T+9}\nv_lshl_add_u32 v{T+9}, v{T+4}, 4, v{T+9}")
SL, LA_, RD, PK, SS = T+12, T+20, T+28, T+44, T+52
for u in range(8):
    a(f"v_xor_b32 v{SL+u}, {u}, v{T+10}")
    a(f"v_lshl_add_u32 v{LA_+u}, v{SL+u}, 2, v{T+11}")
a(f"v_and_b32 v{T+10}, 3, v{T+4}")
for u in range(4):
    a(f"v_xor_b32 v{SS+u}, {u}, v{T+10}\nv_lshl_add_u32 v{SS+4+u}, v{SS+u}, 2, v{T+7}\nv_add_u32 v{SS+u}, 16384, v{SS+u}")
a("s_lshr_b32 s27, s34, 3\ns_mul_i32 s27, s27, 102400\ns_lshl_b32 s20, s22, 11\ns_add_u32 s28, s27, s20\ns_and_b32 s21, s34, 7\ns_lshl_b32 s20, s21, 7\ns_add_u32 s28, s28, s20")
a(f"s_lshl_b32 s20, s22, 9\ns_add_u32 s27, s27, s20\ns_lshl_b32 s20, s21, 6\ns_add_u32 s27, s27, s20\ns_add_u32 s27, s27, 98304\nv_lshlrev_b32 v{T+8}, 3, v{T+4}")
a("s_waitcnt vmcnt(16)")
stamp()
for u in range(8): a(f"ds_read_b32 v{RD+u}, v{LA_+u}")
for u in range(8): a(f"ds_read_b32 v{RD+8+u}, v{LA_+u} offset:256")
for u in range(4): a(f"ds_read_b32 v{SS+8+u}, v{SS+4+u} offset:384")
def conv(k):
    for u in range(8):
        a(f"v_lshl_add_u32 v{RD+8*k+u}, v{RD+8*k+u}, 4, v{SL+u}")
    for d in range(4):
        a(f"v_lshl_or_b32 v{PK+4*k+d}, v{RD+8*k+2*d+1}, 16, v{RD+8*k+2*d}")
a("s_waitcnt lgkmcnt(0)")
conv(0)
a(f"buffer_store_dwordx4 {rg(PK,4)}, v{T+9}, s[12:15], s28 offen {SC}")
conv(1)
for u in range(4): a(f"v_lshl_add_u32 v{SS+8+u}, v{SS+8+u}, 2, v{SS+u}")
a(f"v_lshl_or_b32 v{SS+4}, v{SS+9}, 16, v{SS+8}\nv_lshl_or_b32 v{SS+5}, v{SS+11}, 16, v{SS+10}")
a(f"s_add_u32 s28, s28, 65536\ns_mov_b32 exec_hi, 0\nbuffer_store_dwordx4 {rg(PK+4,4)}, v{T+9}, s[12:15], s28 offen {SC}")
a(f"s_mov_b64 exec, 0xff\nbuffer_store_dwordx2 {rg(SS+4,2)}, v{T+8}, s[12:15], s27 offen {SC}\ns_mov_b64 exec, -1")
nonce_load()
stamp()
a(f"v_bfe_u32 v{T+2}, v2, 4, 1\nv_lshlrev_b32 v{T+2}, 1, v{T+2}\nv_bfe_u32 v{T}, v2, 2, 2\nv_mov_b32 v{T+1}, 0x3f80")
a(f"v_cmp_eq_u32 vcc, v{T+2}, v{T}\nv_add_u32 v{T+2}, 1, v{T+2}\ns_nop 0\nv_cndmask_b32 v{SEL}, 0, v{T+1}, vcc\nv_cmp_eq_u32 vcc, v{T+2}, v{T}")
a(f"v_mov_b32 v{SEL+1}, v{SEL}\nv_and_b32 v{T+2}, 3, v2\nv_cndmask_b32 v{SEL+2}, 0, v{T+1}, vcc\nv_mul_u32_u24 v{SIDX}, 0x5555, v{T+2}\nv_mov_b32 v{SEL+3}, v{SEL+2}")
a("s_lshl_b32 s28, s24, 3\ns_add_u32 s28, s28, s22\ns_mul_i32 s28, s28, 102400")
a("s_lshl_b32 s68, s70, 16\ns_and_b32 s69, s70, 0xffff0000\ns_lshl_b32 s70, s71, 16\ns_and_b32 s71, s71, 0xffff0000")
for s in range(8):
    for c in range(4): a(f"v_mov_b32 v{ACC+4*s+c}, s{68+c}")
a(f"v_and_b32 v3, 24, v2\nv_and_b32 v{T}, 3, v2\nv_lshl_add_u32 v3, v{T}, 1, v3\nv_bfe_u32 v{T}, v2, 2, 1\nv_add_u32 v3, v3, v{T}")
a(f"v_lshrrev_b32 v{T}, 5, v2\nv_lshlrev_b32 v{VSP}, 5, v3\nv_lshl_add_u32 v{VSP}, v{T}, 4, v{VSP}\ns_lshl_b32 s31, s22, 11\ns_add_u32 s31, s31, 131072\nv_add_u32 v{VSP}, s31, v{VSP}")
a(f"v_bfe_u32 v{T+1}, v3, 1, 3\nv_xor_b32 v{T+1}, v{T+1}, v{T}\nv_lshlrev_b32 v3, 7, v3\nv_lshl_add_u32 v3, v{T+1}, 4, v3\nv_add_u32 v3, s23, v3")
for ks in range(1, 4): a(f"v_xor_b32 v{T+ks}, {32*ks}, v3")
for ks in range(4): a(f"v_add_u32 v{T+4+ks}, 0x10000, v{T+ks if ks else 3}")
a(f"v_add_u32 v{VXR}, {XB}, v1\ns_lshl_b32 s31, s22, 10\nv_add_u32 v{VXW}, s31, v{VXR}")
a(f"s_lshl_b32 s26, s25, 16\ns_add_u32 s26, s26, {WFR}")
a(f"s_lshr_b32 s31, s34, 3\ns_lshl_b32 s31, s31, 9\ns_and_b32 s20, s34, 7\ns_lshl_b32 s20, s20, 6\ns_add_u32 s31, s31, s20\ns_lshl_b32 s20, s22, 3\ns_add_u32 s31, s31, s20\ns_add_u32 s31, s31, {FI}")
a("s_waitcnt vmcnt(0)")
stamp()
nonce_get()
flag_store(31)
for mt in range(4):
    for ks in range(4):
        ar = (T+ks if ks else 3) if mt < 2 else T+4+ks
        a(f"ds_read_b128 {rg(TAB+16*mt+4*ks,4)}, v{ar} offset:{4096*(mt&1)}")
a(f"s_lshl_b32 s75, s24, 6\ns_lshl_b32 s33, s22, 3\ns_add_u32 s75, s75, s33\ns_lshl_b32 s75, s75, 6\ns_add_u32 s75, s75, s25\ns_lshl_b32 s75, s75, 8\ns_add_u32 s75, s75, {PART}")
a(f"v_lshrrev_b32 v0, 3, v2\nv_lshlrev_b32 v0, 14, v0\nv_and_b32 v{T+8}, 7, v2\nv_lshl_add_u32 v0, v{T+8}, 4, v0")
a("s_cmp_eq_u32 s22, 0\ns_cbranch_scc1 P_join\ns_cmp_ge_u32 s35, 800\ns_cbranch_scc1 P_r2")
a("s_waitcnt lgkmcnt(0)")
w1_process()
a("s_waitcnt vmcnt(0)")
w1_flag()
a("s_branch P_join")
a("P_r2:")
a(f"s_cmp_lg_u32 s22, {FIN}\ns_cbranch_scc1 P_r3")
X = T + 12
a(f"v_and_b32 v{X}, 7, v2\nv_bfe_u32 v{X+1}, v2, 3, 1\nv_lshl_add_u32 v{X}, v{X+1}, 5, v{X}\nv_lshrrev_b32 v{X+1}, 4, v2\nv_lshl_add_u32 v{X}, v{X+1}, 3, v{X}\nv_mul_u32_u24 v{X}, 26, v{X}\nv_add_u32 v{X}, {XWL}, v{X}")
for k in range(13): a(f"ds_read_u16 v{X+2+k}, v{X} offset:{2*k}")
a(f"v_lshlrev_b32 v{X+1}, 16, v{VWIDE}\nv_lshlrev_b32 v245, 16, v245\nv_lshlrev_b32 v255, 16, v255")
for k in range(13): a(f"v_readlane_b32 s{36+k}, v{X+1}, {k}")
a("v_readfirstlane_b32 s74, v255\ns_waitcnt lgkmcnt(0)")
for k in range(13): a(f"v_lshlrev_b32 v{X+2+k}, 16, v{X+2+k}")
a(f"v_mul_f32 v{VWIDE}, s36, v{X+2}")
for k in range(1, 13): a(f"v_fmac_f32 v{VWIDE}, s{36+k}, v{X+2+k}")
rnd(VWIDE); a(f"v_add_f32 v{VWIDE}, v{VWIDE}, v245"); rnd(VWIDE)
a("s_branch P_join")
a("P_r3:")
a(f"s_cmp_lg_u32 s22, {POLLW}\ns_cbranch_scc1 P_join")
def poll(nload, sreg, tmp, lanemask_last=None, addr=AD, sleep=SLEEP):
    l = newlab("Q_")
    a("s_mov_b32 s20, 0")
    a(f"{l}:")
    for k in range(nload):
        a(f"buffer_load_dwordx2 {rg(tmp+2*k,2)}, v{addr}, s[12:15], s{sreg} offen offset:{512*k} {SC}")
    a("s_add_u32 s20, s20, 1\ns_waitcnt vmcnt(0)")
    for k in range(nload):
        a(f"v_cmp_ne_u64 vcc, s[64:65], {rg(tmp+2*k,2)}")
        if k == nload - 1 and lanemask_last is not None: a(f"s_and_b64 vcc, vcc, {lanemask_last:#x}")
        a("s_mov_b64 s[32:33], vcc" if k == 0 else "s_or_b64 s[32:33], s[32:33], vcc")
    a(f"s_cmp_eq_u64 s[32:33], 0\ns_cbranch_scc1 {l}ok")
    a(f"s_sleep {sleep}\ns_cmp_lt_u32 s20, 0x40000\ns_cbranch_scc1 {l}")
    a(f"{l}ok:")
a(f"s_lshr_b32 s31, s25, 4\ns_lshl_b32 s31, s31, 11\ns_add_u32 s31, s31, {FW}\nv_and_b32 v{AD}, 31, v2\nv_lshlrev_b32 v{AD}, 3, v{AD}")
poll(1, 31, AD+2)
a("P_join:")
stamp()
a("s_waitcnt lgkmcnt(0)\ns_barrier")
stamp()
def wf_load():
    a("s_add_u32 s27, s26, 4096")
    for x in range(8):
        a(f"buffer_load_dwordx4 {rg(WF+4*x,4)}, v{VL16}, s[12:15], s{26 if x < 4 else 27} offen offset:{1024*(x&3)} {SC}")
    a("s_add_u32 s26, s26, 8192")
wf_load()
for x in range(4): a(f"v_mov_b32 v{RAW+x}, -1")
a(f"buffer_store_dwordx4 {rg(RAW,4)}, v0, s[12:15], s75 offen {SC}\nbuffer_store_dwordx4 {rg(RAW,4)}, v0, s[12:15], s75 offen offset:128 {SC}")
def tg_mfma(mt, ks, e, d):
    c = "0" if ks == 0 else rg(d, 16)
    return f"v_mfma_f32_32x32x16_bf16 {rg(d,16)}, {rg(TAB+16*mt+4*ks,4)}, {rg(WF+16*e+4*ks,4)}, {c}"
D0, D1 = POOL+32, POOL+48
def tgen_groups():
    g = []
    for mt in range(3):
        for ks in range(4):
            for e in range(2):
                g.append([tg_mfma(mt, ks, e, D0 if e == 0 else D1)])
        g.append([]); g.append([])
        for r in range(0, 16, 4):
            g.append([f"v_cvt_pk_bf16_f32 v{POOL+16*mt+r+x}, v{D0+r+x}, v{D1+r+x}" for x in range(4)])
    for ks in range(4): g.append([tg_mfma(3, ks, 0, D1)])
    for ks in range(4): g.append([tg_mfma(3, ks, 1, WF)])
    g.append([]); g.append([])
    for r in range(0, 16, 4):
        g.append([f"v_cvt_pk_bf16_f32 v{D1+r+x}, v{D1+r+x}, v{WF+r+x}" for x in range(4)])
    return g
def wr_op(r):
    off = r*256 if r < 32 else 57472 + (r-32)*256
    pre = ["s_mov_b32 m0, s30", "s_nop 0"] if r == 32 else []
    return pre + [f"ds_write_addtid_b32 v{POOL+r} offset:{off}"]
a("s_mov_b32 m0, s23\ns_waitcnt vmcnt(2)")
stamp()
def pro_d(mt): return [(GD, GD+16), (D0, D1), (GD, GD+16), (D1, WF)][mt]
pend = []
for mt in range(4):
    d0, d1 = pro_d(mt)
    seq = [(ks, e) for ks in range(4) for e in range(2)] if mt < 3 else [(ks, 0) for ks in range(4)] + [(ks, 1) for ks in range(4)]
    for n, (ks, e) in enumerate(seq):
        a(tg_mfma(mt, ks, e, d0 if e == 0 else d1))
        if n >= 2:
            take = (len(pend) + (7 - n)) // (8 - n)
            for o in pend[:take]: a(o)
            pend = pend[take:]
        elif mt > 0: a("s_nop 4")
    assert not pend
    for r in range(16):
        pend.append(f"v_cvt_pk_bf16_f32 v{POOL+16*mt+r}, v{d0+r}, v{d1+r}")
    for r in range(16): pend.extend(wr_op(16*mt + r))
a(f"s_lshr_b32 s31, s25, 4\ns_lshl_b32 s31, s31, 11\ns_add_u32 s31, s31, {FW}\nv_lshlrev_b32 v{AD}, 3, v2")
a("s_nop 7")
for o in pend: a(o)
poll(4, 31, IX+8, lanemask_last=0xff)
wf_load()
a(f"s_lshl_b32 s31, s22, 10\ns_add_u32 s26, s26, s31")
a(f"s_lshl_b32 s31, s24, 3\ns_add_u32 s31, s31, s22\ns_lshl_b32 s31, s31, 9\ns_add_u32 s31, s31, {FI}")
a("s_waitcnt lgkmcnt(0)\ns_barrier")
stamp()
poll(1, 31, AD+2)
stamp()
for x in range(4):
    a(f"buffer_load_dwordx4 {rg(IX+4*x,4)}, v{VL16}, s[12:15], s28 offen offset:{1024*x} {SC}")
a("s_add_u32 s28, s28, 4096\ns_mov_b32 s21, 0")

def gather_phase(nunits, side, acc_of):
    NG = nunits * 8
    log = [("ix", u) for u in range(4)]
    def vm_wait(tag):
        idx = len(log) - 1 - log[::-1].index(tag)
        a(f"s_waitcnt vmcnt({len(log) - 1 - idx})")
    def issue(g):
        u = g // 8
        if g % 8 == 0: vm_wait(("ix", u))
        ad = AD + (g & 3)
        d = IX + 4*(u & 3) + (g % 8)//2
        a(f"v_lshlrev_b32_sdwa v{ad}, 3, v{d} dst_sel:DWORD dst_unused:UNUSED_PAD src0_sel:DWORD src1_sel:WORD_{g&1}")
        q = GD + (2*g) % NGD
        a(f"ds_read_b64 {rg(q,2)}, v{ad}")
        if g % 8 == 7 and (nunits == 16 or u + 4 < nunits):
            if u + 4 >= 16 and nunits == 20:
                for h in range(2):
                    a(f"buffer_load_dwordx2 {rg(IX+4*(u&3)+2*h,2)}, v{VXW}, s[12:15], s28 offen offset:{1024*(u&3)+512*h} {SC}")
                    log.append(("ix", u + 4))
            else:
                a(f"buffer_load_dwordx4 {rg(IX+4*(u&3),4)}, v{VL16}, s[12:15], s28 offen offset:{1024*(u&3)} {SC}")
                log.append(("ix", u + 4))
            if u & 3 == 3: a("s_add_u32 s28, s28, 4096")
    for g in range(AHEAD): issue(g)
    for g in range(NG):
        if g + AHEAD < NG: issue(g + AHEAD)
        if g % 4 == 3:
            a(f"s_waitcnt lgkmcnt({min(AHEAD, NG-1-g)})")
            q = GD + (2*(g-3)) % NGD
            s = acc_of(g // 4)
            a(f"v_smfmac_f32_16x16x64_bf16 {rg(ACC+4*s,4)}, {rg(SEL,4)}, {rg(q,8)}, v{SIDX}")
        for o in side.get(g, []):
            if isinstance(o, tuple):
                a(o[0]); log.append(o[1])
            else: a(o)
    return log, vm_wait
def spread(groups, g0, g1):
    side = {}
    for i, o in enumerate(groups):
        g = g0 + (i * (g1 - g0)) // len(groups)
        side.setdefault(g, []).extend(o)
    return side
a("L_G:")
g_start = len(a.lines)
side = spread(tgen_groups(), TG0, TG1)
side.setdefault(RAWAT, []).extend([(f"buffer_load_dwordx4 {rg(RAW,4)}, v{VL16}, s[12:15], s26 offen {SC}", ("raw", 0)), "s_add_u32 s26, s26, 8192"])
log, vm_wait = gather_phase(16, side, lambda o: o // 4)
vm_wait(("raw", 0))
a(f"ds_write_b128 v{VXW}, {rg(RAW,4)}")
a("s_mov_b32 m0, s23\ns_add_u32 s21, s21, 1\ns_waitcnt lgkmcnt(0)\ns_barrier")
for r in range(64):
    for o in wr_op(r): a(o)
a("s_cmp_eq_u32 s21, 5\ns_cbranch_scc1 L_Wlast")
for x in range(8):
    a(f"ds_read_b128 {rg(WF+4*x,4)}, v{VXR} offset:{1024*x}")
a("s_waitcnt vmcnt(0) lgkmcnt(8)\ns_barrier\ns_branch L_G")
g_end = len(a.lines)
a("L_Wlast:")
a(f"v_and_b32 v{AD}, 1, v2\nv_lshlrev_b32 v{AD}, 12, v{AD}\nv_bfe_u32 v{AD+1}, v2, 1, 1\nv_lshl_add_u32 v{AD}, v{AD+1}, 4, v{AD}")
a(f"v_bfe_u32 v{AD+1}, v2, 3, 1\nv_lshl_add_u32 v{AD}, v{AD+1}, 5, v{AD}\nv_bfe_u32 v{AD+1}, v2, 2, 1\nv_lshl_add_u32 v{AD}, v{AD+1}, 6, v{AD}")
a(f"v_lshrrev_b32 v{AD+1}, 5, v2\nv_lshl_add_u32 v{AD}, v{AD+1}, 9, v{AD}\nv_add_u32 v{AD}, {XB}, v{AD}")
for x in range(4): a(f"ds_read_b128 {rg(WF+4*x,4)}, v{AD} offset:{1024*x}")
a(f"v_lshlrev_b32 v{VXW}, 3, v2")
a("s_cmp_lg_u32 s22, 0\ns_cbranch_scc1 L_Glast")
a(f"s_lshl_b32 s31, s34, 3\ns_add_u32 s31, s31, {F2}")
flag_store(31)
a("L_Glast:")
a("s_waitcnt lgkmcnt(0)\ns_barrier")
sp = []
for mt in range(4):
    d = POOL + 16*mt
    for ks in range(4):
        c = "0" if ks == 0 else rg(d, 16)
        sp.append([f"v_mfma_f32_32x32x16_bf16 {rg(d,16)}, {rg(WF+4*ks,4)}, {rg(TAB+16*mt+4*ks,4)}, {c}"])
sp.append([]); sp.append([])
for mt in range(4):
    d = POOL + 16*mt
    sp.append([f"v_cvt_pk_bf16_f32 v{d+x}, v{d+2*x}, v{d+2*x+1}" for x in range(4)])
wr_ops = []
for mt in range(4):
    d = POOL + 16*mt
    off = (32*(mt & 1) + 512*(mt >> 1)) * 32
    wr_ops.append(f"ds_write_b128 v{VSP}, {rg(d,4)} offset:{off}")
sp.append(wr_ops + ["s_waitcnt lgkmcnt(0)", "s_barrier"])
side = spread(sp, 4, 100)
side.setdefault(130, []).extend(["s_lshl_b32 s31, s24, 9", f"s_add_u32 s31, s31, {F2}",
                                 (f"buffer_load_dwordx2 {rg(RAW,2)}, v{VXW}, s[12:15], s31 offen {SC}", ("f2", 0))])
gather_phase(20, side, lambda o: o // 4 if o < 32 else o - 32)
stamp()
a("s_mov_b32 s20, 0\ns_mov_b32 s33, -2\ns_nop 5")
for s in range(8):
    a(f"v_cvt_pk_bf16_f32 v{POOL+2*s}, v{ACC+4*s}, v{ACC+4*s+1}\nv_cvt_pk_bf16_f32 v{POOL+2*s+1}, v{ACC+4*s+2}, v{ACC+4*s+3}")
for x in range(16):
    a(f"v_pk_max_i16 v{POOL+x}, v{POOL+x}, 0")
for s in range(8):
    a(f"v_dot2_f32_bf16 v{POOL+16+s}, v{POOL+2*s}, s72, 0")
for s in range(8):
    a(f"v_dot2_f32_bf16 v{POOL+16+s}, v{POOL+2*s+1}, s73, v{POOL+16+s}")
for s in range(8):
    a(f"v_min_u32 v{POOL+16+s}, s33, v{POOL+16+s}")
a("R_f2:")
a(f"s_waitcnt vmcnt(0)\nv_cmp_ne_u64 vcc, s[64:65], {rg(RAW,2)}\ns_cbranch_vccz R_f2ok")
a(f"s_sleep 1\nbuffer_load_dwordx2 {rg(RAW,2)}, v{VXW}, s[12:15], s31 offen {SC}\ns_add_u32 s20, s20, 1\ns_cmp_lt_u32 s20, 0x40000\ns_cbranch_scc1 R_f2")
a("R_f2ok:")
a(f"buffer_store_dwordx4 {rg(POOL+16,4)}, v0, s[12:15], s75 offen {SC}\nbuffer_store_dwordx4 {rg(POOL+20,4)}, v0, s[12:15], s75 offen offset:128 {SC}")
a(f"s_lshl_b32 s31, s34, 14\ns_lshl_b32 s33, s22, 11\ns_add_u32 s31, s31, s33\ns_add_u32 s31, s31, {PART}\ns_mov_b32 s20, 0")
if int(opts.get("rack", 1)): a("s_waitcnt vmcnt(0)")
Y = TAB
a("R_poll:")
a(f"buffer_load_dwordx4 {rg(Y,4)}, v1, s[12:15], s31 offen {SC}\nbuffer_load_dwordx4 {rg(Y+4,4)}, v1, s[12:15], s31 offen offset:1024 {SC}")
a("s_add_u32 s20, s20, 1\ns_waitcnt vmcnt(0)")
a(f"v_max3_u32 v{Y+8}, v{Y}, v{Y+1}, v{Y+2}\nv_max3_u32 v{Y+9}, v{Y+3}, v{Y+4}, v{Y+5}\nv_max3_u32 v{Y+8}, v{Y+8}, v{Y+6}, v{Y+7}\nv_max_u32 v{Y+8}, v{Y+8}, v{Y+9}")
a(f"v_cmp_eq_u32 vcc, -1, v{Y+8}\ns_cbranch_vccz R_ok")
a(f"s_sleep {RSLEEP}\ns_cmp_lt_u32 s20, 0x40000\ns_cbranch_scc1 R_poll")
a("R_ok:")
stamp()
for x in range(4): a(f"v_add_f32 v{Y+x}, v{Y+x}, v{Y+4+x}")
a(f"s_lshl_b32 s33, s22, 8\nv_lshlrev_b32 v{Y+8}, 2, v2\nv_permlane32_swap_b32 v{Y}, v{Y+2}\nv_permlane32_swap_b32 v{Y+1}, v{Y+3}\nv_add_u32 v{Y+9}, s33, v{Y+8}\nv_add_f32 v{Y}, v{Y}, v{Y+2}\nv_add_f32 v{Y+1}, v{Y+1}, v{Y+3}\ns_nop 1\nv_permlane16_swap_b32 v{Y}, v{Y+1}\ns_nop 1\nv_add_f32 v{Y}, v{Y}, v{Y+1}")
a(f"v_add_u32 v{Y+9}, {PADR}, v{Y+9}\nv_add_u32 v{Y+8}, {PADR}, v{Y+8}\nds_write_b32 v{Y+9}, v{Y}\ns_waitcnt lgkmcnt(0)\ns_barrier")
a(f"s_cmp_lg_u32 s22, {FIN}\ns_cbranch_scc1 M_fin")
for k in range(8): a(f"ds_read_b32 v{Y+k}, v{Y+8} offset:{256*k}")
srd(a, 8, 54, 32768)
a(f"v_and_b32 v{Y+10}, 7, v2\nv_bfe_u32 v{Y+11}, v2, 3, 1\nv_lshl_add_u32 v{Y+10}, v{Y+11}, 5, v{Y+10}\nv_lshrrev_b32 v{Y+11}, 4, v2\nv_lshl_add_u32 v{Y+10}, v{Y+11}, 3, v{Y+10}\ns_lshl_b32 s20, s34, 6\nv_add_u32 v{Y+10}, s20, v{Y+10}\nv_lshlrev_b32 v{Y+10}, 1, v{Y+10}")
a("s_waitcnt lgkmcnt(0)")
a(f"v_add_f32 v{Y}, v{Y}, v{Y+1}\nv_add_f32 v{Y+2}, v{Y+2}, v{Y+3}\nv_add_f32 v{Y+4}, v{Y+4}, v{Y+5}\nv_add_f32 v{Y+6}, v{Y+6}, v{Y+7}\nv_add_f32 v{Y}, v{Y}, v{Y+2}\nv_add_f32 v{Y+4}, v{Y+4}, v{Y+6}\nv_add_f32 v{Y}, v{Y}, v{Y+4}")
rnd(Y); a(f"v_add_f32 v{Y}, s74, v{Y}"); rnd(Y)
a(f"v_add_f32 v{Y}, v{Y}, v{VWIDE}"); rnd(Y)
a(f"v_mul_f32 v{Y}, 0xbfb8aa3b, v{Y}\nv_exp_f32 v{Y}, v{Y}\ns_nop 0\nv_add_f32 v{Y}, 1.0, v{Y}\nv_rcp_f32 v{Y}, v{Y}\ns_nop 0\nv_cvt_pk_bf16_f32 v{Y}, v{Y}, v{Y}")
a(f"buffer_store_short v{Y}, v{Y+10}, s[8:11], 0 offen")
a("M_fin:")
if STAMP:
    a(f"s_cmp_lg_u32 s22, {SW}\ns_cbranch_scc1 M_end")
    a("s_waitcnt vmcnt(0)")
    stamp()
    a("s_waitcnt lgkmcnt(0)")
    n = nst[0]
    a(f"s_mul_i32 s31, s2, {8*n}\ns_add_u32 s31, s31, 0x8000000\nv_mov_b32 v2, 0")
    for k in range(n):
        a(f"v_mov_b32 v4, s{76+2*k}\nv_mov_b32 v5, s{77+2*k}\nbuffer_store_dwordx2 v[4:5], v2, s[12:15], s31 offen offset:{8*k}\ns_waitcnt vmcnt(0)")
    print("nstamps", n)
a("M_end:\ns_endpgm")
L = a.lines
errs = hazard.check(L[st:g_end] + L[g_start:], "main")
a.raw(kernel_desc(MAIN, 256, 102, 256))
for e in sorted(set(errs)): print("HAZARD", e)
open(sys.argv[1], "w").write(a.text())
```

```python
import sys
from common import *
import hazard
opts = dict(x.split("=") for x in sys.argv[2:])
AHEAD = int(opts.get("ahead", 8)); STAMP = int(opts.get("stamp", 0)); SW = int(opts.get("sw", 5))
SC = "sc1"
SLEEP = int(opts.get("sleep", 1)); RSLEEP = int(opts.get("rsleep", 2))
TG0 = int(opts.get("tg0", 4)); TG1 = int(opts.get("tg1", 122)); RAWAT = int(opts.get("rawat", 40))
WS_BYTES = 268435456
IDX16 = 0; WFR = 4 << 20; PART = 8 << 20; FI = 16 << 20; FW = FI + 65536; F2 = FI + 131072
STG = 131072; XWL = STG + 25600; XB = 131072; XS = 3200; PADR = 128000
PF = int(opts.get('pf', 1))
a = Asm()
a.raw(HEADER_COMMENT.rstrip("\n"))
a.raw("; @launch grid=(256,1,1) block=(512,1,1) lds=163840")
a.raw('.amdgcn_target "amdgcn-amd-amdhsa--gfx950"')
kernel_begin(a, MAIN)
TAB=4; ACC=68; WF=100; POOL=132; GD=196; NGD=24; IX=220; AD=236; SEL=240; SIDX=244
RAW=248; VXW=246; VXR=247; VWIDE=252; VSP=253
VL16=1
T = POOL; U = GD
FIN = 5; POLLW = 7
def rg(b, n): return f"v[{b}:{b+n-1}]"
nst = [0]
def stamp():
    if STAMP:
        k = nst[0]; nst[0] += 1
        assert k < 13
        a(f"s_memrealtime s[{76+2*k}:{77+2*k}]")
def rnd(r): a(f"v_cvt_pk_bf16_f32 v{r}, v{r}, v{r}\nv_lshlrev_b32 v{r}, 16, v{r}")
lab = [0]
def newlab(p):
    lab[0] += 1; return f"{p}{lab[0]}"
st = len(a.lines)
a("s_cmp_ge_u32 s2, 256\ns_cbranch_scc1 M_end")
stamp()
a("s_load_dwordx16 s[36:51], s[0:1], 0\ns_load_dwordx8 s[52:59], s[0:1], 64\ns_memrealtime s[64:65]")
a("v_and_b32 v2, 63, v0\nv_lshrrev_b32 v3, 6, v0\nv_lshlrev_b32 v1, 4, v2\nv_readfirstlane_b32 s22, v3")
a("s_and_b32 s20, s2, 7\ns_lshr_b32 s29, s2, 3\ns_lshr_b32 s24, s20, 1\ns_and_b32 s20, s20, 1\ns_lshl_b32 s20, s20, 5\ns_add_u32 s25, s20, s29")
a("s_lshl_b32 s34, s24, 6\ns_add_u32 s34, s34, s25")
a("s_lshl_b32 s35, s22, 8\ns_add_u32 s35, s35, s34")
a(f"v_lshrrev_b32 v{U}, 4, v2\nv_and_b32 v{U+1}, 15, v2\nv_lshlrev_b32 v{U+2}, 15, v{U}\nv_lshl_add_u32 v{U+2}, v{U+1}, 3, v{U+2}")
a("s_lshr_b32 s20, s35, 5\ns_lshl_b32 s20, s20, 17\ns_bfe_u32 s21, s35, 0x30002\ns_lshl_b32 s21, s21, 12\ns_add_u32 s20, s20, s21\ns_and_b32 s21, s35, 3\ns_lshl_b32 s21, s21, 7\ns_add_u32 s31, s20, s21")
a(f"s_mul_i32 s20, s34, 25600\ns_mul_i32 s21, s22, 3200\ns_add_u32 s20, s20, s21\ns_add_u32 s33, s21, {STG}\ns_mov_b32 m0, s33")
a("s_lshl_b32 s23, s22, 13\ns_add_u32 s30, s23, 8064")
a("s_waitcnt lgkmcnt(0)")
stamp()
srd(a, 16, 46, 6400*512)
srd(a, 4, 36, 16384*400)
WR_ = U + 8
def w1_loads():
    for j8 in range(8):
        a(f"buffer_load_dwordx2 {rg(WR_+2*j8,2)}, v{U+2}, s[16:19], s31 offen offset:{512*j8}")
a("s_cmp_ge_u32 s35, 128\ns_cbranch_scc1 P_now1")
w1_loads()
a("P_now1:")
for r in range(3):
    a(f"buffer_load_dwordx4 v1, s[4:7], s20 offen offset:{1024*r} lds")
a("s_mov_b64 exec, 0xff\nbuffer_load_dwordx4 v1, s[4:7], s20 offen offset:3072 lds\ns_mov_b64 exec, -1")
srd(a, 60, 56, 256)
a("s_lshl_b32 s20, s25, 3\ns_add_u32 s48, s48, s20\ns_addc_u32 s49, s49, 0\ns_add_u32 s50, s50, s20\ns_addc_u32 s51, s51, 0")
a("s_cmp_ge_u32 s22, 4\ns_cbranch_scc1 P_hi")
a("s_cmp_lt_u32 s35, 128\ns_cbranch_scc1 P_skip\ns_cmp_ge_u32 s35, 800\ns_cbranch_scc1 P_skip")
if PF:
    a("s_add_u32 s8, s46, s31\ns_addc_u32 s9, s47, 0")
    for j8 in (5, 6, 7):
        for f4 in range(4): a(f"s_load_dword s10, s[8:9], {f4*32768 + j8*512}")
w1_loads()
a("s_branch P_skip")
a("P_hi:")
if PF:
    a("s_lshl_b32 s20, s29, 2\ns_add_u32 s20, s20, s22\ns_sub_u32 s20, s20, 4\ns_min_u32 s20, s20, 124\ns_lshl_b32 s20, s20, 10\ns_add_u32 s8, s38, s20\ns_addc_u32 s9, s39, 0")
    for x in range(8): a(f"s_load_dword s10, s[8:9], {128*x}")
a("s_cmp_lg_u32 s22, 6\ns_cbranch_scc1 P_x1")
a("s_cmp_lg_u32 s2, 0\ns_cbranch_scc1 P_skip")
a(f"v_mov_b32 v{T+4}, s64\nv_mov_b32 v{T+5}, s65\nv_mov_b32 v{T+6}, 0\nv_or_b32 v{T+5}, 0x80000000, v{T+5}")
a(f"s_mov_b64 exec, 1\nbuffer_store_dwordx2 {rg(T+4,2)}, v{T+6}, s[60:63], 0 offen {SC}\ns_mov_b64 exec, -1\ns_branch P_skip")
a("P_x1:")
a(f"s_cmp_lg_u32 s22, {FIN}\ns_cbranch_scc1 P_skip")
srd(a, 12, 40, 16384*26)
a(f"s_mov_b32 m0, {XWL}\ns_mul_i32 s20, s34, 1664\nbuffer_load_dwordx4 v1, s[12:15], s20 offen lds\nbuffer_load_dwordx4 v1, s[12:15], s20 offen offset:1024 lds")
srd(a, 12, 42, 26)
a(f"v_lshlrev_b32 v{T+4}, 1, v2\nv_mov_b32 v{T+5}, 0\nbuffer_load_ushort v{VWIDE}, v{T+4}, s[12:15], 0 offen")
srd(a, 12, 44, 2)
a(f"buffer_load_ushort v245, v{T+5}, s[12:15], 0 offen")
srd(a, 12, 52, 2)
a(f"buffer_load_ushort v255, v{T+5}, s[12:15], 0 offen")
a("P_skip:")
a("s_load_dwordx2 s[70:71], s[48:49], 0")
srd(a, 12, 58, WS_BYTES)
a("s_mov_b32 s66, 0x05040100\ns_mov_b32 s67, 0x07060302")
def nonce_load(): a(f"v_mov_b32 v{AD}, 0\nbuffer_load_dwordx2 {rg(AD+2,2)}, v{AD}, s[60:63], 0 offen {SC}")
def nonce_get():
    l = newlab("N_")
    a("s_mov_b32 s20, 0")
    a(f"{l}:")
    a(f"v_readfirstlane_b32 s64, v{AD+2}\nv_readfirstlane_b32 s65, v{AD+3}\ns_add_u32 s20, s20, 1\ns_cmp_lg_u32 s65, 0\ns_cbranch_scc1 {l}ok")
    a(f"s_sleep 1\nbuffer_load_dwordx2 {rg(AD+2,2)}, v{AD}, s[60:63], 0 offen {SC}\ns_waitcnt vmcnt(0)\ns_cmp_lt_u32 s20, 0x40000\ns_cbranch_scc1 {l}")
    a(f"{l}ok:")
def flag_store(sreg):
    a(f"v_mov_b32 v{AD}, 0\nv_mov_b32 v{AD+2}, s64\nv_mov_b32 v{AD+3}, s65\ns_mov_b64 exec, 1")
    a(f"buffer_store_dwordx2 {rg(AD+2,2)}, v{AD}, s[12:15], s{sreg} offen {SC}\ns_mov_b64 exec, -1")
a(f"v_mul_u32_u24 v{U+3}, 272, v{U+1}\nv_lshl_add_u32 v{U+3}, v{U}, 5, v{U+3}\nv_add_u32 v{U+3}, s23, v{U+3}")
a(f"v_mul_u32_u24 v{U+4}, 272, v{U}\nv_lshl_add_u32 v{U+4}, v{U+1}, 4, v{U+4}\nv_add_u32 v{U+4}, s23, v{U+4}")
a(f"v_lshlrev_b32 v{U+5}, 16, v{U}\nv_bfe_u32 v{U+6}, v2, 3, 1\nv_lshl_add_u32 v{U+5}, v{U+6}, 12, v{U+5}\nv_and_b32 v{U+6}, 7, v2\nv_lshl_add_u32 v{U+5}, v{U+6}, 4, v{U+5}")
a("s_and_b32 s26, s35, 3\ns_lshl_b32 s26, s26, 20\ns_lshr_b32 s21, s35, 7\ns_lshl_b32 s21, s21, 13\ns_add_u32 s26, s26, s21\ns_bfe_u32 s21, s35, 0x30002\ns_lshl_b32 s21, s21, 9\ns_add_u32 s26, s26, s21")
a(f"s_bfe_u32 s21, s35, 0x20005\ns_lshl_b32 s21, s21, 7\ns_add_u32 s26, s26, s21\ns_add_u32 s26, s26, {WFR}")
a(f"s_and_b32 s75, s35, 3\ns_lshl_b32 s75, s75, 11\ns_bfe_u32 s21, s35, 0x20003\ns_lshl_b32 s21, s21, 9\ns_add_u32 s75, s75, s21\ns_lshr_b32 s21, s35, 5\ns_lshl_b32 s21, s21, 4\ns_add_u32 s75, s75, s21\ns_bfe_u32 s21, s35, 0x10002\ns_lshl_b32 s21, s21, 3\ns_add_u32 s75, s75, s21\ns_add_u32 s75, s75, {FW}")
def w1_process():
    PR = WF
    for c in range(4):
        for d in range(4):
            a(f"v_perm_b32 v{PR+4*c+d}, v{WR_+2*(2*d+1)+(c>>1)}, v{WR_+2*(2*d)+(c>>1)}, s{66+(c&1)}")
    for c in range(4):
        a(f"ds_write_b128 v{U+3}, {rg(PR+4*c,4)} offset:{(c&1)*128 + (c>>1)*16}")
    a("s_waitcnt lgkmcnt(0)")
    for r in range(4):
        a(f"ds_read_b128 {rg(PR+16+4*r,4)}, v{U+4} offset:{r*4*272}")
    for r in range(4):
        a(f"s_waitcnt lgkmcnt({3-r})\nbuffer_store_dwordx4 {rg(PR+16+4*r,4)}, v{U+5}, s[12:15], s26 offen {SC}\ns_add_u32 s26, s26, {4*65536}")
a(f"v_and_b32 v{T+4}, 7, v2\nv_lshrrev_b32 v{T+5}, 3, v2")
a(f"s_and_b32 s20, s34, 1\ns_lshl_b32 s20, s20, 3\nv_add_u32 v{T+6}, s20, v{T+4}")
a(f"v_mul_u32_u24 v{T+7}, 400, v{T+4}\nv_add_u32 v{T+7}, s33, v{T+7}")
a(f"v_and_b32 v{T+8}, 1, v{T+5}\nv_lshrrev_b32 v{T+9}, 1, v{T+5}")
a(f"v_lshlrev_b32 v{T+10}, 3, v{T+8}\nv_xor_b32 v{T+10}, v{T+10}, v{T+6}")
a(f"v_lshl_add_u32 v{T+11}, v{T+9}, 6, v{T+7}")
a(f"v_lshlrev_b32 v{T+9}, 14, v{T+9}\nv_lshl_add_u32 v{T+9}, v{T+8}, 10, v{T+9}\nv_lshl_add_u32 v{T+9}, v{T+4}, 4, v{T+9}")
SL, LA_, RD, PK, SS = T+12, T+20, T+28, T+44, T+52
for u in range(8):
    a(f"v_xor_b32 v{SL+u}, {u}, v{T+10}")
    a(f"v_lshl_add_u32 v{LA_+u}, v{SL+u}, 2, v{T+11}")
a(f"v_and_b32 v{T+10}, 3, v{T+4}")
for u in range(4):
    a(f"v_xor_b32 v{SS+u}, {u}, v{T+10}\nv_lshl_add_u32 v{SS+4+u}, v{SS+u}, 2, v{T+7}\nv_add_u32 v{SS+u}, 16384, v{SS+u}")
a("s_lshr_b32 s27, s34, 3\ns_mul_i32 s27, s27, 102400\ns_lshl_b32 s20, s22, 11\ns_add_u32 s28, s27, s20\ns_and_b32 s21, s34, 7\ns_lshl_b32 s20, s21, 7\ns_add_u32 s28, s28, s20")
a(f"s_lshl_b32 s20, s22, 9\ns_add_u32 s27, s27, s20\ns_lshl_b32 s20, s21, 6\ns_add_u32 s27, s27, s20\ns_add_u32 s27, s27, 98304\nv_lshlrev_b32 v{T+8}, 3, v{T+4}")
TD = IX + 8
TR = IX
a(f"v_and_b32 v{TD+1}, 7, v2\nv_xor_b32 v{TD+1}, v{TD+1}, v{U}\nv_lshrrev_b32 v{TD}, 3, v2\nv_lshlrev_b32 v{TD}, 7, v{TD}\nv_lshl_add_u32 v{TD}, v{TD+1}, 4, v{TD}\nv_xor_b32 v{TD+1}, 64, v{TD}")
a(f"v_bfe_u32 v{T+2}, v2, 4, 1\nv_lshlrev_b32 v{T+2}, 1, v{T+2}\nv_bfe_u32 v{T}, v2, 2, 2\nv_mov_b32 v{T+1}, 0x3f80")
a(f"v_cmp_eq_u32 vcc, v{T+2}, v{T}\nv_add_u32 v{T+2}, 1, v{T+2}\ns_nop 0\nv_cndmask_b32 v{SEL}, 0, v{T+1}, vcc\nv_cmp_eq_u32 vcc, v{T+2}, v{T}")
a(f"v_mov_b32 v{SEL+1}, v{SEL}\nv_and_b32 v{T+2}, 3, v2\nv_cndmask_b32 v{SEL+2}, 0, v{T+1}, vcc\nv_mul_u32_u24 v{SIDX}, 0x5555, v{T+2}\nv_mov_b32 v{SEL+3}, v{SEL+2}")
a(f"v_and_b32 v3, 24, v2\nv_and_b32 v{T}, 3, v2\nv_lshl_add_u32 v3, v{T}, 1, v3\nv_bfe_u32 v{T}, v2, 2, 1\nv_add_u32 v3, v3, v{T}")
a(f"v_lshrrev_b32 v{T}, 5, v2\nv_lshlrev_b32 v{VSP}, 5, v3\nv_lshl_add_u32 v{VSP}, v{T}, 4, v{VSP}\ns_lshl_b32 s31, s22, 11\ns_add_u32 s31, s31, 131072\nv_add_u32 v{VSP}, s31, v{VSP}")
a(f"v_bfe_u32 v{T+1}, v3, 1, 3\nv_xor_b32 v{T+1}, v{T+1}, v{T}\nv_lshlrev_b32 v3, 7, v3\nv_lshl_add_u32 v3, v{T+1}, 4, v3\nv_add_u32 v{IX+12}, s23, v3")
for ks in range(1, 4): a(f"v_xor_b32 v{IX+12+ks}, {32*ks}, v{IX+12}")
a(f"v_add_u32 v{VXR}, {XB}, v1\nv_add_u32 v{VXW}, s33, v1")
a(f"v_lshrrev_b32 v0, 3, v2\nv_lshlrev_b32 v0, 14, v0\nv_lshl_add_u32 v0, v{T+4}, 4, v0")
a(f"s_lshr_b32 s31, s34, 3\ns_lshl_b32 s31, s31, 9\ns_and_b32 s20, s34, 7\ns_lshl_b32 s20, s20, 6\ns_add_u32 s31, s31, s20\ns_lshl_b32 s20, s22, 3\ns_add_u32 s31, s31, s20\ns_add_u32 s31, s31, {FI}")
srd(a, 4, 38, 128000)
a("s_cmp_ge_u32 s35, 128\ns_cbranch_scc1 P_conv")
a("s_waitcnt vmcnt(4)")
w1_process()
nonce_load()
a("s_waitcnt vmcnt(0)")
nonce_get()
flag_store(75)
a("s_mov_b32 s35, 1000\ns_branch P_c8")
a("P_conv:")
a("s_cmp_lt_u32 s35, 800\ns_cbranch_scc1 P_c8\ns_waitcnt vmcnt(0)\nP_c8:\ns_waitcnt vmcnt(8)")
stamp()
for u in range(8): a(f"ds_read_b32 v{RD+u}, v{LA_+u}")
for u in range(8): a(f"ds_read_b32 v{RD+8+u}, v{LA_+u} offset:256")
for u in range(4): a(f"ds_read_b32 v{SS+8+u}, v{SS+4+u} offset:384")
def conv(k):
    for u in range(8):
        a(f"v_lshl_add_u32 v{RD+8*k+u}, v{RD+8*k+u}, 4, v{SL+u}")
    for d in range(4):
        a(f"v_lshl_or_b32 v{PK+4*k+d}, v{RD+8*k+2*d+1}, 16, v{RD+8*k+2*d}")
a("s_waitcnt lgkmcnt(0)")
a("s_load_dwordx2 s[72:73], s[50:51], 0")
conv(0)
a(f"buffer_store_dwordx4 {rg(PK,4)}, v{T+9}, s[12:15], s28 offen {SC}")
conv(1)
for u in range(4): a(f"v_lshl_add_u32 v{SS+8+u}, v{SS+8+u}, 2, v{SS+u}")
a(f"v_lshl_or_b32 v{SS+4}, v{SS+9}, 16, v{SS+8}\nv_lshl_or_b32 v{SS+5}, v{SS+11}, 16, v{SS+10}")
a(f"s_add_u32 s28, s28, 65536\ns_mov_b32 exec_hi, 0\nbuffer_store_dwordx4 {rg(PK+4,4)}, v{T+9}, s[12:15], s28 offen {SC}")
a(f"s_mov_b64 exec, 0xff\nbuffer_store_dwordx2 {rg(SS+4,2)}, v{T+8}, s[12:15], s27 offen {SC}\ns_mov_b64 exec, -1")
a("s_cmp_ge_u32 s35, 800\ns_cbranch_scc1 P_d")
a("s_waitcnt vmcnt(3)")
w1_process()
a("P_d:")
nonce_load()
def table_dma(mt):
    off = 4096*(mt & 1) + 65536*(mt >> 1)
    a(f"s_add_u32 s27, s23, {off}\ns_mov_b32 m0, s27\ns_nop 0")
    for x in range(4):
        a(f"buffer_load_dwordx4 v{TD+(x&1)}, s[4:7], s27 offen offset:{1024*x} lds")
table_dma(0)
stamp()
a("s_lshl_b32 s68, s70, 16\ns_and_b32 s69, s70, 0xffff0000\ns_lshl_b32 s70, s71, 16\ns_and_b32 s71, s71, 0xffff0000")
for s in range(8):
    for c in range(4): a(f"v_mov_b32 v{ACC+4*s+c}, s{68+c}")
a("s_lshl_b32 s28, s24, 3\ns_add_u32 s28, s28, s22\ns_mul_i32 s28, s28, 102400")
a(f"s_lshl_b32 s26, s25, 16\ns_lshl_b32 s20, s22, 10\ns_add_u32 s26, s26, s20\ns_add_u32 s26, s26, {WFR}")
a("s_waitcnt vmcnt(4)")
stamp()
nonce_get()
flag_store(31)
a("s_cmp_ge_u32 s35, 800\ns_cbranch_scc1 P_e")
a(f"s_mov_b64 exec, 1\nbuffer_store_dwordx2 {rg(AD+2,2)}, v{AD}, s[12:15], s75 offen {SC}\ns_mov_b64 exec, -1")
a("P_e:")
table_dma(1)
a(f"s_cmp_lg_u32 s22, {FIN}\ns_cbranch_scc1 P_f")
X = T + 12
a(f"v_and_b32 v{X}, 7, v2\nv_bfe_u32 v{X+1}, v2, 3, 1\nv_lshl_add_u32 v{X}, v{X+1}, 5, v{X}\nv_lshrrev_b32 v{X+1}, 4, v2\nv_lshl_add_u32 v{X}, v{X+1}, 3, v{X}\nv_mul_u32_u24 v{X}, 26, v{X}\nv_add_u32 v{X}, {XWL}, v{X}")
for k in range(13): a(f"ds_read_u16 v{X+2+k}, v{X} offset:{2*k}")
a(f"v_lshlrev_b32 v{X+1}, 16, v{VWIDE}\nv_lshlrev_b32 v245, 16, v245\nv_lshlrev_b32 v255, 16, v255")
for k in range(13): a(f"v_readlane_b32 s{36+k}, v{X+1}, {k}")
a("v_readfirstlane_b32 s74, v255\ns_waitcnt lgkmcnt(0)")
for k in range(13): a(f"v_lshlrev_b32 v{X+2+k}, 16, v{X+2+k}")
a(f"v_mul_f32 v{VWIDE}, s36, v{X+2}")
for k in range(1, 13): a(f"v_fmac_f32 v{VWIDE}, s{36+k}, v{X+2+k}")
rnd(VWIDE); a(f"v_add_f32 v{VWIDE}, v{VWIDE}, v245"); rnd(VWIDE)
a("P_f:")
def poll_load(sreg, tmp, addr): a(f"buffer_load_dwordx2 {rg(tmp,2)}, v{addr}, s[12:15], s{sreg} offen {SC}")
def poll_check(sreg, tmp, addr, first_wait=0, sleep=SLEEP):
    l = newlab("Q_")
    a(f"s_mov_b32 s20, 0\ns_waitcnt vmcnt({first_wait})")
    a(f"{l}:")
    a(f"v_cmp_ne_u64 vcc, s[64:65], {rg(tmp,2)}\ns_cbranch_vccz {l}ok")
    a(f"s_sleep {sleep}")
    poll_load(sreg, tmp, addr)
    a(f"s_add_u32 s20, s20, 1\ns_waitcnt vmcnt(0)\ns_cmp_lt_u32 s20, 0x40000\ns_cbranch_scc1 {l}")
    a(f"{l}ok:")
a(f"s_lshr_b32 s31, s25, 4\ns_lshl_b32 s31, s31, 11\ns_and_b32 s20, s22, 3\ns_lshl_b32 s20, s20, 9\ns_add_u32 s31, s31, s20\ns_add_u32 s31, s31, {FW}")
a(f"v_and_b32 v{AD}, 7, v2\nv_lshlrev_b32 v{AD}, 3, v{AD}\nv_min_u32 v{AD+1}, 49, v2\nv_lshlrev_b32 v{AD+1}, 3, v{AD+1}")
poll_load(31, AD+2, AD)
poll_check(31, AD+2, AD)
stamp()
def piece_load(): a(f"buffer_load_dwordx4 {rg(RAW,4)}, v{VL16}, s[12:15], s26 offen {SC}\ns_add_u32 s26, s26, 8192")
piece_load()
table_dma(2)
def frag_read(mt):
    for ks in range(4):
        a(f"ds_read_b128 {rg(TAB+16*mt+4*ks,4)}, v{IX+12+ks} offset:{4096*(mt&1)}")
frag_read(0); frag_read(1)
a("s_waitcnt vmcnt(4)")
a(f"ds_write_b128 v{VXW}, {rg(RAW,4)} offset:1024")
table_dma(3)
for ks in range(4): a(f"v_add_u32 v{IX+12+ks}, 0x10000, v{IX+12+ks}")
a("s_waitcnt lgkmcnt(0)\ns_barrier")
stamp()
def wf_read(off=0):
    for x in range(8):
        a(f"ds_read_b128 {rg(WF+4*x,4)}, v{VXR} offset:{XS*x + off}")
wf_read(1024)
poll_load(31, AD+2, AD+1)
a(f"s_lshl_b32 s75, s24, 6\ns_lshl_b32 s33, s22, 3\ns_add_u32 s75, s75, s33\ns_lshl_b32 s75, s75, 6\ns_add_u32 s75, s75, s25\ns_lshl_b32 s75, s75, 8\ns_add_u32 s75, s75, {PART}")
def tg_mfma(mt, ks, e, d):
    c = "0" if ks == 0 else rg(d, 16)
    return f"v_mfma_f32_32x32x16_bf16 {rg(d,16)}, {rg(TAB+16*mt+4*ks,4)}, {rg(WF+16*e+4*ks,4)}, {c}"
D0, D1 = POOL+32, POOL+48
def tgen_groups():
    g = []
    for mt in range(3):
        for ks in range(4):
            for e in range(2):
                g.append([tg_mfma(mt, ks, e, D0 if e == 0 else D1)])
        g.append([]); g.append([])
        for r in range(0, 16, 4):
            g.append([f"v_cvt_pk_bf16_f32 v{POOL+16*mt+r+x}, v{D0+r+x}, v{D1+r+x}" for x in range(4)])
    for ks in range(4): g.append([tg_mfma(3, ks, 0, D1)])
    for ks in range(4): g.append([tg_mfma(3, ks, 1, WF)])
    g.append([]); g.append([])
    for r in range(0, 16, 4):
        g.append([f"v_cvt_pk_bf16_f32 v{D1+r+x}, v{D1+r+x}, v{WF+r+x}" for x in range(4)])
    return g
def wr_op(r):
    off = r*256 if r < 32 else 57472 + (r-32)*256
    pre = ["s_mov_b32 m0, s30", "s_nop 0"] if r == 32 else []
    return pre + [f"ds_write_addtid_b32 v{POOL+r} offset:{off}"]
a("s_mov_b32 m0, s23\ns_waitcnt lgkmcnt(0)")
def pro_d(mt): return [(GD, GD+16), (D0, D1), (GD, GD+16), (D1, WF)][mt]
pend = []
for mt in range(4):
    d0, d1 = pro_d(mt)
    seq = [(ks, e) for ks in range(4) for e in range(2)] if mt < 3 else [(ks, 0) for ks in range(4)] + [(ks, 1) for ks in range(4)]
    if mt == 1:
        poll_check(31, AD+2, AD+1)
        piece_load()
        for x in range(4): a(f"v_mov_b32 v{IX+8+x}, -1")
        a(f"buffer_store_dwordx4 {rg(IX+8,4)}, v0, s[12:15], s75 offen {SC}\nbuffer_store_dwordx4 {rg(IX+8,4)}, v0, s[12:15], s75 offen offset:128 {SC}")
        frag_read(2); frag_read(3)
        a(f"s_lshl_b32 s31, s24, 3\ns_add_u32 s31, s31, s22\ns_lshl_b32 s31, s31, 9\ns_add_u32 s31, s31, {FI}\nv_lshlrev_b32 v{AD}, 3, v2")
    if mt == 2:
        a("s_waitcnt lgkmcnt(0)")
        poll_load(31, AD+2, AD)
    for n, (ks, e) in enumerate(seq):
        a(tg_mfma(mt, ks, e, d0 if e == 0 else d1))
        if n >= 2:
            take = (len(pend) + (7 - n)) // (8 - n)
            for o in pend[:take]: a(o)
            pend = pend[take:]
        elif mt > 0: a("s_nop 4")
    assert not pend
    for r in range(16):
        pend.append(f"v_cvt_pk_bf16_f32 v{POOL+16*mt+r}, v{d0+r}, v{d1+r}")
    for r in range(16): pend.extend(wr_op(16*mt + r))
stamp()
poll_check(31, AD+2, AD)
stamp()
for x in range(4):
    a(f"buffer_load_dwordx4 {rg(IX+4*x,4)}, v{VL16}, s[12:15], s28 offen offset:{1024*x} {SC}")
a(f"ds_write_b128 v{VXW}, {rg(RAW,4)}")
a("s_add_u32 s28, s28, 4096\ns_mov_b32 s21, 0\ns_nop 2")
for o in pend: a(o)
a("s_waitcnt lgkmcnt(0)\ns_barrier")
wf_read()
stamp()

def gather_phase(nunits, side, acc_of):
    NG = nunits * 8
    log = [("ix", u) for u in range(4)]
    def vm_wait(tag):
        idx = len(log) - 1 - log[::-1].index(tag)
        a(f"s_waitcnt vmcnt({len(log) - 1 - idx})")
    def issue(g):
        u = g // 8
        if g % 8 == 0: vm_wait(("ix", u))
        ad = AD + (g & 3)
        d = IX + 4*(u & 3) + (g % 8)//2
        a(f"v_lshlrev_b32_sdwa v{ad}, 3, v{d} dst_sel:DWORD dst_unused:UNUSED_PAD src0_sel:DWORD src1_sel:WORD_{g&1}")
        q = GD + (2*g) % NGD
        a(f"ds_read_b64 {rg(q,2)}, v{ad}")
        if g % 8 == 7 and (nunits == 16 or u + 4 < nunits):
            if u + 4 >= 16 and nunits == 20:
                for h in range(2):
                    a(f"buffer_load_dwordx2 {rg(IX+4*(u&3)+2*h,2)}, v{VXW}, s[12:15], s28 offen offset:{1024*(u&3)+512*h} {SC}")
                    log.append(("ix", u + 4))
            else:
                a(f"buffer_load_dwordx4 {rg(IX+4*(u&3),4)}, v{VL16}, s[12:15], s28 offen offset:{1024*(u&3)} {SC}")
                log.append(("ix", u + 4))
            if u & 3 == 3: a("s_add_u32 s28, s28, 4096")
    for g in range(AHEAD): issue(g)
    for g in range(NG):
        if g + AHEAD < NG: issue(g + AHEAD)
        if g % 4 == 3:
            a(f"s_waitcnt lgkmcnt({min(AHEAD, NG-1-g)})")
            q = GD + (2*(g-3)) % NGD
            s = acc_of(g // 4)
            a(f"v_smfmac_f32_16x16x64_bf16 {rg(ACC+4*s,4)}, {rg(SEL,4)}, {rg(q,8)}, v{SIDX}")
        for o in side.get(g, []):
            if isinstance(o, tuple):
                a(o[0]); log.append(o[1])
            else: a(o)
    return log, vm_wait
def spread(groups, g0, g1):
    side = {}
    for i, o in enumerate(groups):
        g = g0 + (i * (g1 - g0)) // len(groups)
        side.setdefault(g, []).extend(o)
    return side
a("L_G:")
g_start = len(a.lines)
side = spread(tgen_groups(), TG0, TG1)
side.setdefault(RAWAT, []).extend([(f"buffer_load_dwordx4 {rg(RAW,4)}, v{VL16}, s[12:15], s26 offen {SC}", ("raw", 0)), "s_add_u32 s26, s26, 8192"])
log, vm_wait = gather_phase(16, side, lambda o: o // 4)
vm_wait(("raw", 0))
a(f"ds_write_b128 v{VXW}, {rg(RAW,4)}")
a("s_mov_b32 m0, s23\ns_add_u32 s21, s21, 1\ns_waitcnt lgkmcnt(0)\ns_barrier")
for r in range(64):
    for o in wr_op(r): a(o)
a("s_cmp_eq_u32 s21, 5\ns_cbranch_scc1 L_Wlast")
wf_read()
a("s_waitcnt vmcnt(0) lgkmcnt(8)\ns_barrier\ns_branch L_G")
g_end = len(a.lines)
a("L_Wlast:")
a(f"v_and_b32 v{AD}, 1, v2\nv_mul_u32_u24 v{AD}, {4*XS}, v{AD}\nv_bfe_u32 v{AD+1}, v2, 1, 1\nv_lshl_add_u32 v{AD}, v{AD+1}, 4, v{AD}")
a(f"v_bfe_u32 v{AD+1}, v2, 3, 1\nv_lshl_add_u32 v{AD}, v{AD+1}, 5, v{AD}\nv_bfe_u32 v{AD+1}, v2, 2, 1\nv_lshl_add_u32 v{AD}, v{AD+1}, 6, v{AD}")
a(f"v_lshrrev_b32 v{AD+1}, 5, v2\nv_lshl_add_u32 v{AD}, v{AD+1}, 9, v{AD}\nv_add_u32 v{AD}, {XB}, v{AD}")
for x in range(4): a(f"ds_read_b128 {rg(WF+4*x,4)}, v{AD} offset:{XS*x}")
a(f"v_lshlrev_b32 v{VXW}, 3, v2")
a("s_cmp_lg_u32 s22, 0\ns_cbranch_scc1 L_Glast")
a(f"s_lshl_b32 s31, s34, 3\ns_add_u32 s31, s31, {F2}")
flag_store(31)
a("L_Glast:")
a("s_waitcnt lgkmcnt(0)\ns_barrier")
sp = []
for mt in range(4):
    d = POOL + 16*mt
    for ks in range(4):
        c = "0" if ks == 0 else rg(d, 16)
        sp.append([f"v_mfma_f32_32x32x16_bf16 {rg(d,16)}, {rg(WF+4*ks,4)}, {rg(TAB+16*mt+4*ks,4)}, {c}"])
sp.append([]); sp.append([])
for mt in range(4):
    d = POOL + 16*mt
    sp.append([f"v_cvt_pk_bf16_f32 v{d+x}, v{d+2*x}, v{d+2*x+1}" for x in range(4)])
wr_ops = []
for mt in range(4):
    d = POOL + 16*mt
    off = (32*(mt & 1) + 512*(mt >> 1)) * 32
    wr_ops.append(f"ds_write_b128 v{VSP}, {rg(d,4)} offset:{off}")
sp.append(wr_ops + ["s_waitcnt lgkmcnt(0)", "s_barrier"])
side = spread(sp, 4, 100)
side.setdefault(130, []).extend(["s_lshl_b32 s31, s24, 9", f"s_add_u32 s31, s31, {F2}",
                                 (f"buffer_load_dwordx2 {rg(RAW,2)}, v{VXW}, s[12:15], s31 offen {SC}", ("f2", 0))])
gather_phase(20, side, lambda o: o // 4 if o < 32 else o - 32)
stamp()
a("s_mov_b32 s20, 0\ns_mov_b32 s33, -2\ns_nop 5")
for s in range(8):
    a(f"v_cvt_pk_bf16_f32 v{POOL+2*s}, v{ACC+4*s}, v{ACC+4*s+1}\nv_cvt_pk_bf16_f32 v{POOL+2*s+1}, v{ACC+4*s+2}, v{ACC+4*s+3}")
for x in range(16):
    a(f"v_pk_max_i16 v{POOL+x}, v{POOL+x}, 0")
for s in range(8):
    a(f"v_dot2_f32_bf16 v{POOL+16+s}, v{POOL+2*s}, s72, 0")
for s in range(8):
    a(f"v_dot2_f32_bf16 v{POOL+16+s}, v{POOL+2*s+1}, s73, v{POOL+16+s}")
for s in range(8):
    a(f"v_min_u32 v{POOL+16+s}, s33, v{POOL+16+s}")
a("R_f2:")
a(f"s_waitcnt vmcnt(0)\nv_cmp_ne_u64 vcc, s[64:65], {rg(RAW,2)}\ns_cbranch_vccz R_f2ok")
a(f"s_sleep 1\nbuffer_load_dwordx2 {rg(RAW,2)}, v{VXW}, s[12:15], s31 offen {SC}\ns_add_u32 s20, s20, 1\ns_cmp_lt_u32 s20, 0x40000\ns_cbranch_scc1 R_f2")
a("R_f2ok:")
a(f"buffer_store_dwordx4 {rg(POOL+16,4)}, v0, s[12:15], s75 offen {SC}\nbuffer_store_dwordx4 {rg(POOL+20,4)}, v0, s[12:15], s75 offen offset:128 {SC}")
a(f"s_lshl_b32 s31, s34, 14\ns_lshl_b32 s33, s22, 11\ns_add_u32 s31, s31, s33\ns_add_u32 s31, s31, {PART}\ns_mov_b32 s20, 0")
if int(opts.get("rack", 1)): a("s_waitcnt vmcnt(0)")
Y = TAB
a("R_poll:")
a(f"buffer_load_dwordx4 {rg(Y,4)}, v1, s[12:15], s31 offen {SC}\nbuffer_load_dwordx4 {rg(Y+4,4)}, v1, s[12:15], s31 offen offset:1024 {SC}")
a("s_add_u32 s20, s20, 1\ns_waitcnt vmcnt(0)")
a(f"v_max3_u32 v{Y+8}, v{Y}, v{Y+1}, v{Y+2}\nv_max3_u32 v{Y+9}, v{Y+3}, v{Y+4}, v{Y+5}\nv_max3_u32 v{Y+8}, v{Y+8}, v{Y+6}, v{Y+7}\nv_max_u32 v{Y+8}, v{Y+8}, v{Y+9}")
a(f"v_cmp_eq_u32 vcc, -1, v{Y+8}\ns_cbranch_vccz R_ok")
a(f"s_sleep {RSLEEP}\ns_cmp_lt_u32 s20, 0x40000\ns_cbranch_scc1 R_poll")
a("R_ok:")
stamp()
for x in range(4): a(f"v_add_f32 v{Y+x}, v{Y+x}, v{Y+4+x}")
a(f"s_lshl_b32 s33, s22, 8\nv_lshlrev_b32 v{Y+8}, 2, v2\nv_permlane32_swap_b32 v{Y}, v{Y+2}\nv_permlane32_swap_b32 v{Y+1}, v{Y+3}\nv_add_u32 v{Y+9}, s33, v{Y+8}\nv_add_f32 v{Y}, v{Y}, v{Y+2}\nv_add_f32 v{Y+1}, v{Y+1}, v{Y+3}\ns_nop 1\nv_permlane16_swap_b32 v{Y}, v{Y+1}\ns_nop 1\nv_add_f32 v{Y}, v{Y}, v{Y+1}")
a(f"v_add_u32 v{Y+9}, {PADR}, v{Y+9}\nv_add_u32 v{Y+8}, {PADR}, v{Y+8}\nds_write_b32 v{Y+9}, v{Y}\ns_waitcnt lgkmcnt(0)\ns_barrier")
a(f"s_cmp_lg_u32 s22, {FIN}\ns_cbranch_scc1 M_fin")
for k in range(8): a(f"ds_read_b32 v{Y+k}, v{Y+8} offset:{256*k}")
srd(a, 8, 54, 32768)
a(f"v_and_b32 v{Y+10}, 7, v2\nv_bfe_u32 v{Y+11}, v2, 3, 1\nv_lshl_add_u32 v{Y+10}, v{Y+11}, 5, v{Y+10}\nv_lshrrev_b32 v{Y+11}, 4, v2\nv_lshl_add_u32 v{Y+10}, v{Y+11}, 3, v{Y+10}\ns_lshl_b32 s20, s34, 6\nv_add_u32 v{Y+10}, s20, v{Y+10}\nv_lshlrev_b32 v{Y+10}, 1, v{Y+10}")
a("s_waitcnt lgkmcnt(0)")
a(f"v_add_f32 v{Y}, v{Y}, v{Y+1}\nv_add_f32 v{Y+2}, v{Y+2}, v{Y+3}\nv_add_f32 v{Y+4}, v{Y+4}, v{Y+5}\nv_add_f32 v{Y+6}, v{Y+6}, v{Y+7}\nv_add_f32 v{Y}, v{Y}, v{Y+2}\nv_add_f32 v{Y+4}, v{Y+4}, v{Y+6}\nv_add_f32 v{Y}, v{Y}, v{Y+4}")
rnd(Y); a(f"v_add_f32 v{Y}, s74, v{Y}"); rnd(Y)
a(f"v_add_f32 v{Y}, v{Y}, v{VWIDE}"); rnd(Y)
a(f"v_mul_f32 v{Y}, 0xbfb8aa3b, v{Y}\nv_exp_f32 v{Y}, v{Y}\ns_nop 0\nv_add_f32 v{Y}, 1.0, v{Y}\nv_rcp_f32 v{Y}, v{Y}\ns_nop 0\nv_cvt_pk_bf16_f32 v{Y}, v{Y}, v{Y}")
a(f"buffer_store_short v{Y}, v{Y+10}, s[8:11], 0 offen")
a("M_fin:")
if STAMP:
    a(f"s_cmp_lg_u32 s22, {SW}\ns_cbranch_scc1 M_end")
    a("s_waitcnt vmcnt(0)")
    stamp()
    a("s_waitcnt lgkmcnt(0)")
    n = nst[0]
    a(f"s_mul_i32 s31, s2, {8*n}\ns_add_u32 s31, s31, 0x8000000\nv_mov_b32 v2, 0")
    for k in range(n):
        a(f"v_mov_b32 v4, s{76+2*k}\nv_mov_b32 v5, s{77+2*k}\nbuffer_store_dwordx2 v[4:5], v2, s[12:15], s31 offen offset:{8*k}\ns_waitcnt vmcnt(0)")
    print("nstamps", n)
a("M_end:\ns_endpgm")
L = a.lines
errs = hazard.check(L[st:g_end] + L[g_start:], "main")
a.raw(kernel_desc(MAIN, 256, 102, 256))
for e in sorted(set(errs)): print("HAZARD", e)
open(sys.argv[1], "w").write(a.text())
```

```python
import sys
from common import *
import hazard
opts = dict(x.split("=") for x in sys.argv[2:])
AHEAD = int(opts.get("ahead", 8)); STAMP = int(opts.get("stamp", 0)); SW = int(opts.get("sw", 5))
SC = "sc1"
NT = "nt" if int(opts.get("nt", 1)) else ""
SST = opts.get("sst", "sc1").replace("_", " ")
SLEEP = int(opts.get("sleep", 1)); RSLEEP = int(opts.get("rsleep", 2))
TG0 = int(opts.get("tg0", 4)); TG1 = int(opts.get("tg1", 122)); RAWAT = int(opts.get("rawat", 40))
WS_BYTES = 268435456
IDX16 = 0; WFR = 4 << 20; PART = 8 << 20; FI = 16 << 20; FW = FI + 16384; F2 = FI + 24576
LDELAY = int(opts.get('ldelay', 0)); M1 = int(opts.get('m1', 1)); M2 = int(opts.get('m2', 2))
STG = 131072; XWL = STG + 25600; XB = 131072; XS = 3200; PADR = 128000
ETAB = 0; WT = 12 << 20; MID = int(opts.get('mid', 2)); TOUCH = int(opts.get('touch', 1))
a = Asm()
a.raw(HEADER_COMMENT.rstrip("\n"))
a.raw("; @launch grid=(256,1,1) block=(512,1,1) lds=163840")
a.raw('.amdgcn_target "amdgcn-amd-amdhsa--gfx950"')
kernel_begin(a, MAIN)
TAB=4; ACC=68; WF=100; POOL=132; GD=196; NGD=24; IX=220; AD=236; SEL=240; SIDX=244
RAW=248; VXW=246; VXR=247; VWIDE=252; VSP=253
VL16=1
T = POOL; U = GD
FIN = 5; POLLW = 7
def rg(b, n): return f"v[{b}:{b+n-1}]"
nst = [0]
def stamp():
    if STAMP:
        k = nst[0]; nst[0] += 1
        assert k < 13
        a(f"s_memrealtime s[{76+2*k}:{77+2*k}]")
def rnd(r): a(f"v_cvt_pk_bf16_f32 v{r}, v{r}, v{r}\nv_lshlrev_b32 v{r}, 16, v{r}")
PADEND = int(opts.get("padend", 0)); PADPRO = int(opts.get("padpro", 0))
def pad(ticks):
    if not ticks: return
    l = newlab("PAD_")
    a(f"{l}:\ns_memrealtime s[32:33]\ns_waitcnt lgkmcnt(0)\ns_sub_u32 s32, s32, s64\ns_cmp_lt_i32 s32, {ticks}\ns_cbranch_scc1 {l}")
lab = [0]
def newlab(p):
    lab[0] += 1; return f"{p}{lab[0]}"
st = len(a.lines)
a("s_cmp_ge_u32 s2, 256\ns_cbranch_scc1 M_end")
stamp()
a("s_load_dwordx16 s[36:51], s[0:1], 0\ns_load_dwordx8 s[52:59], s[0:1], 64\ns_memrealtime s[64:65]")
a("v_and_b32 v2, 63, v0\nv_lshrrev_b32 v3, 6, v0\nv_lshlrev_b32 v1, 4, v2\nv_readfirstlane_b32 s22, v3")
a("s_and_b32 s20, s2, 7\ns_lshr_b32 s29, s2, 3\ns_lshr_b32 s24, s20, 1\ns_and_b32 s20, s20, 1\ns_lshl_b32 s20, s20, 5\ns_add_u32 s25, s20, s29")
a("s_lshl_b32 s34, s24, 6\ns_add_u32 s34, s34, s25")
a("s_lshl_b32 s35, s22, 8\ns_add_u32 s35, s35, s34\ns_add_u32 s35, s35, 128")
a(f"v_lshrrev_b32 v{U}, 4, v2\nv_and_b32 v{U+1}, 15, v2\nv_lshlrev_b32 v{U+2}, 15, v{U}\nv_lshl_add_u32 v{U+2}, v{U+1}, 3, v{U+2}")
a("s_lshr_b32 s20, s35, 5\ns_lshl_b32 s20, s20, 17\ns_bfe_u32 s21, s35, 0x30002\ns_lshl_b32 s21, s21, 12\ns_add_u32 s20, s20, s21\ns_and_b32 s21, s35, 3\ns_lshl_b32 s21, s21, 7\ns_add_u32 s31, s20, s21")
a(f"s_mul_i32 s20, s34, 25600\ns_mul_i32 s21, s22, 3200\ns_add_u32 s20, s20, s21\ns_add_u32 s33, s21, {STG}\ns_mov_b32 m0, s33")
a("s_lshl_b32 s23, s22, 13\ns_add_u32 s30, s23, 8064")
a("s_waitcnt lgkmcnt(0)")
stamp()
srd(a, 60, 56, 256)
a("s_lshl_b32 s21, s2, 3\ns_add_u32 s21, s21, s22\ns_cmp_lg_u32 s21, 6\ns_cbranch_scc1 P_nn")
a(f"v_mov_b32 v{T+4}, s64\nv_mov_b32 v{T+5}, s65\nv_mov_b32 v{T+6}, 0\nv_or_b32 v{T+5}, 0x80000000, v{T+5}")
a(f"s_mov_b64 exec, 1\nbuffer_store_dwordx2 {rg(T+4,2)}, v{T+6}, s[60:63], 0 offen {SC}\ns_mov_b64 exec, -1")
a("P_nn:")
srd(a, 16, 46, 6400*512)
srd(a, 4, 36, 16384*400)
WR_ = U + 8
def w1_loads():
    for j8 in range(8):
        a(f"buffer_load_dwordx2 {rg(WR_+2*j8,2)}, v{U+2}, s[16:19], s31 offen offset:{512*j8} {NT}")
for r in range(3):
    a(f"buffer_load_dwordx4 v1, s[4:7], s20 offen offset:{1024*r} {NT} lds")
a(f"s_mov_b64 exec, 0xff\nbuffer_load_dwordx4 v1, s[4:7], s20 offen offset:3072 {NT} lds\ns_mov_b64 exec, -1")
srd(a, 8, 38, 128000)
srd(a, 12, 58, WS_BYTES)
if int(opts.get("b0", 1)): a("s_barrier")
TNT = "nt" if int(opts.get("tnt", 0)) else ""
a("s_cmp_lt_u32 s22, 3\ns_cbranch_scc1 P_lo\ns_cmp_lg_u32 s22, 3\ns_cbranch_scc1 P_n3")
a(f"v_lshrrev_b32 v254, 1, v2\nv_lshlrev_b32 v254, 9, v254\nv_and_b32 v255, 1, v2\nv_lshl_add_u32 v254, v255, 7, v254\ns_lshl_b32 s21, s29, 14\ns_lshr_b32 s20, s25, 5\ns_lshl_b32 s20, s20, 8\ns_add_u32 s21, s21, s20\nbuffer_load_dword v254, v254, s[16:19], s21 offen {TNT}\ns_branch P_skip")
a("P_n3:")
a(f"s_cmp_eq_u32 s22, {FIN}\ns_cbranch_scc1 P_fin\ns_cmp_eq_u32 s22, 4\ns_cbranch_scc1 P_w4")
a(f"v_and_b32 v254, 15, v2\nv_lshlrev_b32 v254, 7, v254\ns_lshl_b32 s21, s29, 1\ns_add_u32 s21, s21, s22\ns_sub_u32 s21, s21, 6\ns_lshl_b32 s21, s21, 11\nbuffer_load_dword v254, v254, s[8:11], s21 offen {TNT}\ns_branch P_skip")
a("P_w4:")
a(f"v_mov_b32 v254, 0\ns_lshl_b32 s21, s34, 7\ns_add_u32 s21, s21, {FI}\ns_mov_b64 exec, 1\nbuffer_load_dword v254, v254, s[12:15], s21 offen {SC}\ns_mov_b64 exec, -1\ns_branch P_skip")
a("P_fin:")
srd(a, 4, 40, 16384*26)
a(f"s_mov_b32 m0, {XWL}\ns_mul_i32 s20, s34, 1664\nbuffer_load_dwordx4 v1, s[4:7], s20 offen {NT} lds\nbuffer_load_dwordx4 v1, s[4:7], s20 offen offset:1024 {NT} lds")
srd(a, 4, 42, 26)
a(f"v_lshlrev_b32 v{T+4}, 1, v2\nv_mov_b32 v{T+5}, 0\nbuffer_load_ushort v{VWIDE}, v{T+4}, s[4:7], 0 offen")
srd(a, 4, 44, 2)
a(f"buffer_load_ushort v245, v{T+5}, s[4:7], 0 offen")
srd(a, 4, 52, 2)
a(f"buffer_load_ushort v255, v{T+5}, s[4:7], 0 offen")
a("s_branch P_skip")
a("P_lo:")
a("s_cmp_ge_u32 s35, 800\ns_cbranch_scc1 P_skip")
if LDELAY: a(f"s_sleep {LDELAY}")
w1_loads()
a("P_skip:")
a("s_lshl_b32 s20, s25, 3\ns_add_u32 s48, s48, s20\ns_addc_u32 s49, s49, 0\ns_add_u32 s50, s50, s20\ns_addc_u32 s51, s51, 0")
a("s_load_dwordx2 s[70:71], s[48:49], 0\ns_load_dwordx2 s[72:73], s[50:51], 0")
TD = IX + 8
a(f"v_and_b32 v{TD+1}, 7, v2\nv_xor_b32 v{TD+1}, v{TD+1}, v{U}\nv_lshrrev_b32 v{TD}, 3, v2\nv_lshlrev_b32 v{TD}, 7, v{TD}\nv_lshl_add_u32 v{TD}, v{TD+1}, 4, v{TD}\nv_xor_b32 v{TD+1}, 64, v{TD}")
def table_dma(mt):
    off = 4096*(mt & 1) + 65536*(mt >> 1)
    a(f"s_add_u32 s27, s23, {off}\ns_mov_b32 m0, s27\ns_nop 0")
    for x in range(4):
        a(f"buffer_load_dwordx4 v{TD+(x&1)}, s[8:11], s27 offen offset:{1024*x} lds")
a("s_mov_b32 s66, 0x05040100\ns_mov_b32 s67, 0x07060302")
def nonce_load(): a(f"v_mov_b32 v{AD}, 0\nbuffer_load_dwordx2 {rg(AD+2,2)}, v{AD}, s[60:63], 0 offen {SC}")
def nonce_get():
    l = newlab("N_")
    a("s_mov_b32 s20, 0")
    a(f"{l}:")
    a(f"v_readfirstlane_b32 s64, v{AD+2}\nv_readfirstlane_b32 s65, v{AD+3}\ns_add_u32 s20, s20, 1\ns_cmp_lg_u32 s65, 0\ns_cbranch_scc1 {l}ok")
    a(f"s_sleep 1\nbuffer_load_dwordx2 {rg(AD+2,2)}, v{AD}, s[60:63], 0 offen {SC}\ns_waitcnt vmcnt(0)\ns_cmp_lt_u32 s20, 0x8000\ns_cbranch_scc1 {l}")
    a(f"{l}ok:")
def flag_store(sreg):
    a(f"v_mov_b32 v{AD}, 0\nv_mov_b32 v{AD+2}, s64\nv_mov_b32 v{AD+3}, s65\ns_mov_b64 exec, 1")
    a(f"buffer_store_dwordx2 {rg(AD+2,2)}, v{AD}, s[12:15], s{sreg} offen {SC}\ns_mov_b64 exec, -1")
a(f"v_mul_u32_u24 v{U+3}, 272, v{U+1}\nv_lshl_add_u32 v{U+3}, v{U}, 5, v{U+3}\nv_add_u32 v{U+3}, s23, v{U+3}\nv_add_u32 v{U+3}, 0x10000, v{U+3}")
a(f"v_mul_u32_u24 v{U+4}, 272, v{U}\nv_lshl_add_u32 v{U+4}, v{U+1}, 4, v{U+4}\nv_add_u32 v{U+4}, s23, v{U+4}\nv_add_u32 v{U+4}, 0x10000, v{U+4}")
a(f"v_lshlrev_b32 v{U+5}, 16, v{U}\nv_bfe_u32 v{U+6}, v2, 3, 1\nv_lshl_add_u32 v{U+5}, v{U+6}, 12, v{U+5}\nv_and_b32 v{U+6}, 7, v2\nv_lshl_add_u32 v{U+5}, v{U+6}, 4, v{U+5}")
a("s_and_b32 s26, s35, 3\ns_lshl_b32 s26, s26, 20\ns_lshr_b32 s21, s35, 7\ns_lshl_b32 s21, s21, 13\ns_add_u32 s26, s26, s21\ns_bfe_u32 s21, s35, 0x30002\ns_lshl_b32 s21, s21, 9\ns_add_u32 s26, s26, s21")
a(f"s_bfe_u32 s21, s35, 0x20005\ns_lshl_b32 s21, s21, 7\ns_add_u32 s26, s26, s21\ns_add_u32 s26, s26, {WFR}")
a(f"s_and_b32 s75, s35, 3\ns_lshl_b32 s75, s75, 11\ns_bfe_u32 s21, s35, 0x20003\ns_lshl_b32 s21, s21, 9\ns_add_u32 s75, s75, s21\ns_lshr_b32 s21, s35, 5\ns_lshl_b32 s21, s21, 4\ns_add_u32 s75, s75, s21\ns_bfe_u32 s21, s35, 0x10002\ns_lshl_b32 s21, s21, 3\ns_add_u32 s75, s75, s21\ns_add_u32 s75, s75, {FW}")
def w1_process():
    PR = WF
    for c in range(4):
        for d in range(4):
            a(f"v_perm_b32 v{PR+4*c+d}, v{WR_+2*(2*d+1)+(c>>1)}, v{WR_+2*(2*d)+(c>>1)}, s{66+(c&1)}")
    for c in range(4):
        a(f"ds_write_b128 v{U+3}, {rg(PR+4*c,4)} offset:{(c&1)*128 + (c>>1)*16}")
    a("s_waitcnt lgkmcnt(0)")
    for r in range(4):
        a(f"ds_read_b128 {rg(PR+16+4*r,4)}, v{U+4} offset:{r*4*272}")
    for r in range(4):
        a(f"s_waitcnt lgkmcnt({3-r})\nbuffer_store_dwordx4 {rg(PR+16+4*r,4)}, v{U+5}, s[12:15], s26 offen {SC}\ns_add_u32 s26, s26, {4*65536}")
a(f"v_and_b32 v{T+4}, 7, v2\nv_lshrrev_b32 v{T+5}, 3, v2")
a(f"s_and_b32 s20, s34, 1\ns_lshl_b32 s20, s20, 3\nv_add_u32 v{T+6}, s20, v{T+4}")
a(f"v_mul_u32_u24 v{T+7}, 400, v{T+4}\nv_add_u32 v{T+7}, s33, v{T+7}")
a(f"v_and_b32 v{T+8}, 1, v{T+5}\nv_lshrrev_b32 v{T+9}, 1, v{T+5}")
a(f"v_lshlrev_b32 v{T+10}, 3, v{T+8}\nv_xor_b32 v{T+10}, v{T+10}, v{T+6}")
a(f"v_lshl_add_u32 v{T+11}, v{T+9}, 6, v{T+7}")
a(f"v_lshlrev_b32 v{T+9}, 14, v{T+9}\nv_lshl_add_u32 v{T+9}, v{T+8}, 10, v{T+9}\nv_lshl_add_u32 v{T+9}, v{T+4}, 4, v{T+9}")
SL, LA_, RD, PK, SS = T+12, T+20, T+28, T+44, T+52
for u in range(8):
    a(f"v_xor_b32 v{SL+u}, {u}, v{T+10}")
    a(f"v_lshl_add_u32 v{LA_+u}, v{SL+u}, 2, v{T+11}")
a(f"v_and_b32 v{T+10}, 3, v{T+4}")
for u in range(4):
    a(f"v_xor_b32 v{SS+u}, {u}, v{T+10}\nv_lshl_add_u32 v{SS+4+u}, v{SS+u}, 2, v{T+7}\nv_add_u32 v{SS+u}, 16384, v{SS+u}")
a("s_lshr_b32 s27, s34, 3\ns_mul_i32 s27, s27, 102400\ns_lshl_b32 s20, s22, 11\ns_add_u32 s28, s27, s20\ns_and_b32 s21, s34, 7\ns_lshl_b32 s20, s21, 7\ns_add_u32 s28, s28, s20")
a(f"s_lshl_b32 s20, s22, 9\ns_add_u32 s27, s27, s20\ns_lshl_b32 s20, s21, 6\ns_add_u32 s27, s27, s20\ns_add_u32 s27, s27, 98304\nv_lshlrev_b32 v{T+8}, 3, v{T+4}")
a(f"v_bfe_u32 v{T+2}, v2, 4, 1\nv_lshlrev_b32 v{T+2}, 1, v{T+2}\nv_bfe_u32 v{T}, v2, 2, 2\nv_mov_b32 v{T+1}, 0x3f80")
a(f"v_cmp_eq_u32 vcc, v{T+2}, v{T}\nv_add_u32 v{T+2}, 1, v{T+2}\ns_nop 0\nv_cndmask_b32 v{SEL}, 0, v{T+1}, vcc\nv_cmp_eq_u32 vcc, v{T+2}, v{T}")
a(f"v_mov_b32 v{SEL+1}, v{SEL}\nv_and_b32 v{T+2}, 3, v2\nv_cndmask_b32 v{SEL+2}, 0, v{T+1}, vcc\nv_mul_u32_u24 v{SIDX}, 0x5555, v{T+2}\nv_mov_b32 v{SEL+3}, v{SEL+2}")
a(f"v_and_b32 v3, 24, v2\nv_and_b32 v{T}, 3, v2\nv_lshl_add_u32 v3, v{T}, 1, v3\nv_bfe_u32 v{T}, v2, 2, 1\nv_add_u32 v3, v3, v{T}")
a(f"v_lshrrev_b32 v{T}, 5, v2\nv_lshlrev_b32 v{VSP}, 5, v3\nv_lshl_add_u32 v{VSP}, v{T}, 4, v{VSP}\ns_lshl_b32 s31, s22, 11\ns_add_u32 s31, s31, 131072\nv_add_u32 v{VSP}, s31, v{VSP}")
a(f"v_bfe_u32 v{T+1}, v3, 1, 3\nv_xor_b32 v{T+1}, v{T+1}, v{T}\nv_lshlrev_b32 v3, 7, v3\nv_lshl_add_u32 v3, v{T+1}, 4, v3\nv_add_u32 v{IX+12}, s23, v3")
for ks in range(1, 4): a(f"v_xor_b32 v{IX+12+ks}, {32*ks}, v{IX+12}")
a(f"v_add_u32 v{VXR}, {XB}, v1\nv_add_u32 v{VXW}, s33, v1")
a(f"v_lshrrev_b32 v0, 3, v2\nv_lshlrev_b32 v0, 14, v0\nv_lshl_add_u32 v0, v{T+4}, 4, v0")
a(f"s_lshr_b32 s31, s34, 3\ns_lshl_b32 s31, s31, 9\ns_and_b32 s20, s34, 7\ns_lshl_b32 s20, s20, 6\ns_add_u32 s31, s31, s20\ns_lshl_b32 s20, s22, 3\ns_add_u32 s31, s31, s20\ns_add_u32 s31, s31, {FI}")
NV, NXW, NXR = IX+10, IX+11, IX+7
a(f"v_lshrrev_b32 v{T}, 2, v2\nv_and_b32 v{T+1}, 3, v2\nv_lshlrev_b32 v{NV}, 15, v{T}\nv_lshl_add_u32 v{NV}, v{T+1}, 10, v{NV}")
a(f"v_lshlrev_b32 v{NXW}, 5, v{T}\nv_lshl_add_u32 v{NXW}, v{T+1}, 2, v{NXW}\nv_add_u32 v{NXW}, s33, v{NXW}")
a(f"v_lshrrev_b32 v{T}, 5, v2\nv_mul_u32_u24 v{NXR}, {XS}, v{T}\nv_and_b32 v{T}, 31, v2\nv_lshl_add_u32 v{NXR}, v{T}, 4, v{NXR}\nv_add_u32 v{NXR}, {XB}, v{NXR}")
a("s_lshl_b32 s29, s22, 12\ns_lshl_b32 s20, s25, 3\ns_add_u32 s29, s29, s20")
a(f"s_cmp_lt_u32 s35, 800\ns_cbranch_scc1 P_c8\ns_cmp_eq_u32 s22, {FIN}\ns_cbranch_scc1 P_c5\ns_cmp_lg_u32 s22, 2\ns_cbranch_scc1 P_c1\ns_waitcnt vmcnt(0)\nP_c1:\ns_waitcnt vmcnt(1)\nP_c5:\ns_waitcnt vmcnt(5)\nP_c8:\ns_waitcnt vmcnt(8)")
nonce_load()
stamp()
for u in range(8): a(f"ds_read_b32 v{RD+u}, v{LA_+u}")
for u in range(8): a(f"ds_read_b32 v{RD+8+u}, v{LA_+u} offset:256")
for u in range(4): a(f"ds_read_b32 v{SS+8+u}, v{SS+4+u} offset:384")
def conv(k):
    for u in range(8):
        a(f"v_lshl_add_u32 v{RD+8*k+u}, v{RD+8*k+u}, 4, v{SL+u}")
    for d in range(4):
        a(f"v_lshl_or_b32 v{PK+4*k+d}, v{RD+8*k+2*d+1}, 16, v{RD+8*k+2*d}")
a("s_waitcnt lgkmcnt(0)")
conv(0)
a(f"buffer_store_dwordx4 {rg(PK,4)}, v{T+9}, s[12:15], s28 offen {SC}")
conv(1)
for u in range(4): a(f"v_lshl_add_u32 v{SS+8+u}, v{SS+8+u}, 2, v{SS+u}")
a(f"v_lshl_or_b32 v{SS+4}, v{SS+9}, 16, v{SS+8}\nv_lshl_or_b32 v{SS+5}, v{SS+11}, 16, v{SS+10}")
a(f"s_add_u32 s28, s28, 65536\ns_mov_b32 exec_hi, 0\nbuffer_store_dwordx4 {rg(PK+4,4)}, v{T+9}, s[12:15], s28 offen {SC}")
a(f"s_mov_b64 exec, 0xff\nbuffer_store_dwordx2 {rg(SS+4,2)}, v{T+8}, s[12:15], s27 offen {SC}\ns_mov_b64 exec, -1")
def nat_loads():
    a(f"buffer_load_dwordx2 {rg(RAW,2)}, v{NV}, s[16:19], s29 offen\nbuffer_load_dwordx2 {rg(RAW+2,2)}, v{NV}, s[16:19], s29 offen offset:512")
NATFIRST = int(opts.get("natfirst", 1))
if NATFIRST: nat_loads()
a("s_cmp_ge_u32 s35, 800\ns_cbranch_scc1 P_d")
a(f"s_waitcnt vmcnt({4 + 2*NATFIRST})")
w1_process()
a("P_d:")
if not NATFIRST: nat_loads()
for mt in range(M1): table_dma(mt)
stamp()
a("s_lshl_b32 s68, s70, 16\ns_and_b32 s69, s70, 0xffff0000\ns_lshl_b32 s70, s71, 16\ns_and_b32 s71, s71, 0xffff0000")
for s in range(8):
    for c in range(4): a(f"v_mov_b32 v{ACC+4*s+c}, s{68+c}")
a("s_lshl_b32 s28, s24, 3\ns_add_u32 s28, s28, s22\ns_mul_i32 s28, s28, 102400")
a(f"s_lshl_b32 s26, s25, 16\ns_lshl_b32 s20, s22, 10\ns_add_u32 s26, s26, s20\ns_add_u32 s26, s26, {WFR + 8192}")
NL = 4*M1 + 2
a(f"s_cmp_lt_u32 s35, 800\ns_cbranch_scc1 P_a4\ns_waitcnt vmcnt({NL})\nP_a4:\ns_waitcnt vmcnt({NL+4})")
stamp()
nonce_get()
flag_store(31)
for mt in range(M1, M2): table_dma(mt)
a(f"s_waitcnt vmcnt({4*M2+1})")
a("s_cmp_ge_u32 s35, 800\ns_cbranch_scc1 P_e")
a(f"s_mov_b64 exec, 1\nbuffer_store_dwordx2 {rg(AD+2,2)}, v{AD}, s[12:15], s75 offen {SC}\ns_mov_b64 exec, -1")
a("P_e:")
for c in range(4):
    a(f"v_perm_b32 v{T+c}, v{RAW+2+(c>>1)}, v{RAW+(c>>1)}, s{66+(c&1)}")
for c in range(4):
    a(f"ds_write_b32 v{NXW}, v{T+c} offset:{1024 + (c&1)*512 + (c>>1)*16}")
for mt in range(M2, 4): table_dma(mt)
a(f"s_cmp_lg_u32 s22, {FIN}\ns_cbranch_scc1 P_f")
X = T + 12
a(f"v_and_b32 v{X}, 7, v2\nv_bfe_u32 v{X+1}, v2, 3, 1\nv_lshl_add_u32 v{X}, v{X+1}, 5, v{X}\nv_lshrrev_b32 v{X+1}, 4, v2\nv_lshl_add_u32 v{X}, v{X+1}, 3, v{X}\nv_mul_u32_u24 v{X}, 26, v{X}\nv_add_u32 v{X}, {XWL}, v{X}")
for k in range(13): a(f"ds_read_u16 v{X+2+k}, v{X} offset:{2*k}")
a(f"v_lshlrev_b32 v{X+1}, 16, v{VWIDE}\nv_lshlrev_b32 v245, 16, v245\nv_lshlrev_b32 v255, 16, v255")
for k in range(13): a(f"v_readlane_b32 s{36+k}, v{X+1}, {k}")
a("v_readfirstlane_b32 s74, v255\ns_waitcnt lgkmcnt(0)")
for k in range(13): a(f"v_lshlrev_b32 v{X+2+k}, 16, v{X+2+k}")
a(f"v_mul_f32 v{VWIDE}, s36, v{X+2}")
for k in range(1, 13): a(f"v_fmac_f32 v{VWIDE}, s{36+k}, v{X+2+k}")
rnd(VWIDE); a(f"v_add_f32 v{VWIDE}, v{VWIDE}, v245"); rnd(VWIDE)
a("P_f:")
def poll_load(sreg, tmp, addr): a(f"buffer_load_dwordx2 {rg(tmp,2)}, v{addr}, s[12:15], s{sreg} offen {SC}")
def poll_check(sreg, tmp, addr, first_wait=0, sleep=SLEEP):
    l = newlab("Q_")
    a(f"s_mov_b32 s20, 0\ns_waitcnt vmcnt({first_wait})")
    a(f"{l}:")
    a(f"v_cmp_ne_u64 vcc, s[64:65], {rg(tmp,2)}\ns_cbranch_vccz {l}ok")
    a(f"s_sleep {sleep}")
    poll_load(sreg, tmp, addr)
    a(f"s_add_u32 s20, s20, 1\ns_waitcnt vmcnt(0)\ns_cmp_lt_u32 s20, 0x8000\ns_cbranch_scc1 {l}")
    a(f"{l}ok:")
def frag_read(mt):
    for ks in range(4):
        a(f"ds_read_b128 {rg(TAB+16*mt+4*ks,4)}, v{IX+12+ks} offset:{4096*(mt&1)}")
a(f"s_lshr_b32 s29, s25, 4\ns_lshl_b32 s29, s29, 11\ns_and_b32 s20, s22, 3\ns_lshl_b32 s20, s20, 9\ns_add_u32 s29, s29, s20\ns_add_u32 s29, s29, {FW + 64}")
a(f"v_and_b32 v{AD+1}, 7, v2\nv_lshlrev_b32 v{AD+1}, 3, v{AD+1}")
def piece_load(): a(f"buffer_load_dwordx4 {rg(RAW,4)}, v{VL16}, s[12:15], s26 offen {SC}\ns_add_u32 s26, s26, 8192")
a(f"s_lshl_b32 s31, s24, 3\ns_add_u32 s31, s31, s22\ns_lshl_b32 s31, s31, 9\ns_add_u32 s31, s31, {FI}\nv_lshlrev_b32 v{AD}, 3, v2")
a(f"s_lshl_b32 s75, s24, 6\ns_lshl_b32 s33, s22, 3\ns_add_u32 s75, s75, s33\ns_lshl_b32 s75, s75, 6\ns_add_u32 s75, s75, s25\ns_lshl_b32 s75, s75, 8\ns_add_u32 s75, s75, {PART}")
stamp()
a("s_waitcnt vmcnt(8)")
frag_read(0); frag_read(1)
for ks in range(4): a(f"v_add_u32 v{IX+12+ks}, 0x10000, v{IX+12+ks}")
a("s_waitcnt lgkmcnt(8)\ns_barrier")
stamp()
def wf_read(off=0):
    for x in range(8):
        a(f"ds_read_b128 {rg(WF+4*x,4)}, v{VXR} offset:{XS*x + off}")
for x in range(8):
    a(f"ds_read_b128 {rg(WF+4*x,4)}, v{NXR} offset:{1024 + 2*(x&3)*XS + (x>>2)*512}")
poll_load(29, RAW, AD+1)
def tg_mfma(mt, ks, e, d):
    c = "0" if ks == 0 else rg(d, 16)
    return f"v_mfma_f32_32x32x16_bf16 {rg(d,16)}, {rg(TAB+16*mt+4*ks,4)}, {rg(WF+16*e+4*ks,4)}, {c}"
D0, D1 = POOL+32, POOL+48
def tgen_groups():
    g = []
    for mt in range(3):
        for ks in range(4):
            for e in range(2):
                g.append([tg_mfma(mt, ks, e, D0 if e == 0 else D1)])
        g.append([]); g.append([])
        for r in range(0, 16, 4):
            g.append([f"v_cvt_pk_bf16_f32 v{POOL+16*mt+r+x}, v{D0+r+x}, v{D1+r+x}" for x in range(4)])
    for ks in range(4): g.append([tg_mfma(3, ks, 0, D1)])
    for ks in range(4): g.append([tg_mfma(3, ks, 1, WF)])
    g.append([]); g.append([])
    for r in range(0, 16, 4):
        g.append([f"v_cvt_pk_bf16_f32 v{D1+r+x}, v{D1+r+x}, v{WF+r+x}" for x in range(4)])
    return g
def wr_op(r):
    off = r*256 if r < 32 else 57472 + (r-32)*256
    pre = ["s_mov_b32 m0, s30", "s_nop 0"] if r == 32 else []
    return pre + [f"ds_write_addtid_b32 v{POOL+r} offset:{off}"]
a("s_mov_b32 m0, s23\ns_waitcnt lgkmcnt(0)")
def pro_d(mt): return [(GD, GD+16), (D0, D1), (GD, GD+16), (D1, WF)][mt]
pend = []
for mt in range(4):
    d0, d1 = pro_d(mt)
    seq = [(ks, e) for ks in range(4) for e in range(2)] if mt < 3 else [(ks, 0) for ks in range(4)] + [(ks, 1) for ks in range(4)]
    if mt == 1:
        a("s_waitcnt vmcnt(1)")
        frag_read(2); frag_read(3)
        poll_check(29, RAW, AD+1)
        piece_load()
        a(f"v_min_u32 v{AD+1}, 41, v2\nv_lshlrev_b32 v{AD+1}, 3, v{AD+1}")
    if mt == 2:
        a("s_waitcnt lgkmcnt(0)")
        poll_load(31, AD+2, AD)
        poll_load(29, IX+8, AD+1)
    for n, (ks, e) in enumerate(seq):
        a(tg_mfma(mt, ks, e, d0 if e == 0 else d1))
        if n >= 2:
            take = (len(pend) + (7 - n)) // (8 - n)
            for o in pend[:take]: a(o)
            pend = pend[take:]
        elif mt > 0: a("s_nop 4")
    assert not pend
    for r in range(16):
        pend.append(f"v_cvt_pk_bf16_f32 v{POOL+16*mt+r}, v{d0+r}, v{d1+r}")
    for r in range(16): pend.extend(wr_op(16*mt + r))
stamp()
poll_check(31, AD+2, AD, 1)
poll_check(29, IX+8, AD+1)
stamp()
for x in range(4):
    a(f"buffer_load_dwordx4 {rg(IX+4*x,4)}, v{VL16}, s[12:15], s28 offen offset:{1024*x} {SC}")
a("s_add_u32 s28, s28, 4096\ns_mov_b32 s21, 0\ns_nop 3")
a(f"ds_write_b128 v{VXW}, {rg(RAW,4)}")
for o in pend: a(o)
a("s_waitcnt lgkmcnt(0)\ns_barrier")
wf_read()
stamp()

def gather_phase(nunits, side, acc_of):
    NG = nunits * 8
    log = [("ix", u) for u in range(4)]
    def vm_wait(tag):
        idx = len(log) - 1 - log[::-1].index(tag)
        a(f"s_waitcnt vmcnt({len(log) - 1 - idx})")
    def issue(g):
        u = g // 8
        if g % 8 == 0: vm_wait(("ix", u))
        ad = AD + (g & 3)
        d = IX + 4*(u & 3) + (g % 8)//2
        a(f"v_lshlrev_b32_sdwa v{ad}, 3, v{d} dst_sel:DWORD dst_unused:UNUSED_PAD src0_sel:DWORD src1_sel:WORD_{g&1}")
        q = GD + (2*g) % NGD
        a(f"ds_read_b64 {rg(q,2)}, v{ad}")
        if g % 8 == 7 and (nunits == 16 or u + 4 < nunits):
            if u + 4 >= 16 and nunits == 20:
                for h in range(2):
                    a(f"buffer_load_dwordx2 {rg(IX+4*(u&3)+2*h,2)}, v{VXW}, s[12:15], s28 offen offset:{1024*(u&3)+512*h} {SC}")
                    log.append(("ix", u + 4))
            else:
                a(f"buffer_load_dwordx4 {rg(IX+4*(u&3),4)}, v{VL16}, s[12:15], s28 offen offset:{1024*(u&3)} {SC}")
                log.append(("ix", u + 4))
            if u & 3 == 3: a("s_add_u32 s28, s28, 4096")
    for g in range(AHEAD): issue(g)
    for g in range(NG):
        if g + AHEAD < NG: issue(g + AHEAD)
        if g % 4 == 3:
            a(f"s_waitcnt lgkmcnt({min(AHEAD, NG-1-g)})")
            q = GD + (2*(g-3)) % NGD
            s = acc_of(g // 4)
            a(f"v_smfmac_f32_16x16x64_bf16 {rg(ACC+4*s,4)}, {rg(SEL,4)}, {rg(q,8)}, v{SIDX}")
        for o in side.get(g, []):
            if isinstance(o, tuple):
                a(o[0]); log.append(o[1])
            else: a(o)
    return log, vm_wait
def spread(groups, g0, g1):
    side = {}
    for i, o in enumerate(groups):
        g = g0 + (i * (g1 - g0)) // len(groups)
        side.setdefault(g, []).extend(o)
    return side
pad(PADPRO)
a("L_G:")
g_start = len(a.lines)
side = spread(tgen_groups(), TG0, TG1)
side.setdefault(RAWAT, []).extend([(f"buffer_load_dwordx4 {rg(RAW,4)}, v{VL16}, s[12:15], s26 offen {SC}", ("raw", 0)), "s_add_u32 s26, s26, 8192"])
log, vm_wait = gather_phase(16, side, lambda o: o // 4)
vm_wait(("raw", 0))
a(f"ds_write_b128 v{VXW}, {rg(RAW,4)}")
a("s_mov_b32 m0, s23\ns_add_u32 s21, s21, 1\ns_waitcnt lgkmcnt(0)\ns_barrier")
for r in range(64):
    for o in wr_op(r): a(o)
a("s_cmp_eq_u32 s21, 5\ns_cbranch_scc1 L_Wlast")
wf_read()
a("s_waitcnt vmcnt(0)\ns_cmp_lg_u32 s21, 1\ns_cbranch_scc1 L_nosent")
for x in range(4): a(f"v_mov_b32 v{RAW+x}, -1")
a(f"buffer_store_dwordx4 {rg(RAW,4)}, v0, s[12:15], s75 offen {SC}\nbuffer_store_dwordx4 {rg(RAW,4)}, v0, s[12:15], s75 offen offset:128 {SC}")
a("L_nosent:")
a("s_waitcnt lgkmcnt(8)\ns_barrier\ns_branch L_G")
g_end = len(a.lines)
a("L_Wlast:")
a(f"v_and_b32 v{AD}, 1, v2\nv_mul_u32_u24 v{AD}, {4*XS}, v{AD}\nv_bfe_u32 v{AD+1}, v2, 1, 1\nv_lshl_add_u32 v{AD}, v{AD+1}, 4, v{AD}")
a(f"v_bfe_u32 v{AD+1}, v2, 3, 1\nv_lshl_add_u32 v{AD}, v{AD+1}, 5, v{AD}\nv_bfe_u32 v{AD+1}, v2, 2, 1\nv_lshl_add_u32 v{AD}, v{AD+1}, 6, v{AD}")
a(f"v_lshrrev_b32 v{AD+1}, 5, v2\nv_lshl_add_u32 v{AD}, v{AD+1}, 9, v{AD}\nv_add_u32 v{AD}, {XB}, v{AD}")
for x in range(4): a(f"ds_read_b128 {rg(WF+4*x,4)}, v{AD} offset:{XS*x}")
a(f"v_lshlrev_b32 v{VXW}, 3, v2")
a("s_cmp_lg_u32 s22, 0\ns_cbranch_scc1 L_Glast")
a(f"s_lshl_b32 s31, s34, 3\ns_add_u32 s31, s31, {F2}")
flag_store(31)
a("L_Glast:")
a("s_waitcnt lgkmcnt(0)\ns_barrier")
sp = []
for mt in range(4):
    d = POOL + 16*mt
    for ks in range(4):
        c = "0" if ks == 0 else rg(d, 16)
        sp.append([f"v_mfma_f32_32x32x16_bf16 {rg(d,16)}, {rg(WF+4*ks,4)}, {rg(TAB+16*mt+4*ks,4)}, {c}"])
sp.append([]); sp.append([])
for mt in range(4):
    d = POOL + 16*mt
    sp.append([f"v_cvt_pk_bf16_f32 v{d+x}, v{d+2*x}, v{d+2*x+1}" for x in range(4)])
wr_ops = []
for mt in range(4):
    d = POOL + 16*mt
    off = (32*(mt & 1) + 512*(mt >> 1)) * 32
    wr_ops.append(f"ds_write_b128 v{VSP}, {rg(d,4)} offset:{off}")
sp.append(wr_ops + ["s_waitcnt lgkmcnt(0)", "s_barrier"])
side = spread(sp, 4, 100)
side.setdefault(130, []).extend(["s_lshl_b32 s31, s24, 9", f"s_add_u32 s31, s31, {F2}",
                                 (f"buffer_load_dwordx2 {rg(RAW,2)}, v{VXW}, s[12:15], s31 offen {SC}", ("f2", 0))])
gather_phase(20, side, lambda o: o // 4 if o < 32 else o - 32)
stamp()
a("s_mov_b32 s20, 0\ns_mov_b32 s33, -2\ns_nop 5")
for s in range(8):
    a(f"v_cvt_pk_bf16_f32 v{POOL+2*s}, v{ACC+4*s}, v{ACC+4*s+1}\nv_cvt_pk_bf16_f32 v{POOL+2*s+1}, v{ACC+4*s+2}, v{ACC+4*s+3}")
for x in range(16):
    a(f"v_pk_max_i16 v{POOL+x}, v{POOL+x}, 0")
for s in range(8):
    a(f"v_dot2_f32_bf16 v{POOL+16+s}, v{POOL+2*s}, s72, 0")
for s in range(8):
    a(f"v_dot2_f32_bf16 v{POOL+16+s}, v{POOL+2*s+1}, s73, v{POOL+16+s}")
for s in range(8):
    a(f"v_min_u32 v{POOL+16+s}, s33, v{POOL+16+s}")
a("R_f2:")
a(f"s_waitcnt vmcnt(0)\nv_cmp_ne_u64 vcc, s[64:65], {rg(RAW,2)}\ns_cbranch_vccz R_f2ok")
a(f"s_sleep 1\nbuffer_load_dwordx2 {rg(RAW,2)}, v{VXW}, s[12:15], s31 offen {SC}\ns_add_u32 s20, s20, 1\ns_cmp_lt_u32 s20, 0x8000\ns_cbranch_scc1 R_f2")
a("R_f2ok:")
a(f"buffer_store_dwordx4 {rg(POOL+16,4)}, v0, s[12:15], s75 offen {SC}\nbuffer_store_dwordx4 {rg(POOL+20,4)}, v0, s[12:15], s75 offen offset:128 {SC}")
a(f"s_lshl_b32 s31, s34, 14\ns_lshl_b32 s33, s22, 11\ns_add_u32 s31, s31, s33\ns_add_u32 s31, s31, {PART}\ns_mov_b32 s20, 0")
if int(opts.get("rack", 1)): a("s_waitcnt vmcnt(0)")
Y = TAB
a("R_poll:")
a(f"buffer_load_dwordx4 {rg(Y,4)}, v1, s[12:15], s31 offen {SC}\nbuffer_load_dwordx4 {rg(Y+4,4)}, v1, s[12:15], s31 offen offset:1024 {SC}")
a("s_add_u32 s20, s20, 1\ns_waitcnt vmcnt(0)")
a(f"v_max3_u32 v{Y+8}, v{Y}, v{Y+1}, v{Y+2}\nv_max3_u32 v{Y+9}, v{Y+3}, v{Y+4}, v{Y+5}\nv_max3_u32 v{Y+8}, v{Y+8}, v{Y+6}, v{Y+7}\nv_max_u32 v{Y+8}, v{Y+8}, v{Y+9}")
a(f"v_cmp_eq_u32 vcc, -1, v{Y+8}\ns_cbranch_vccz R_ok")
a(f"s_sleep {RSLEEP}\ns_cmp_lt_u32 s20, 0x8000\ns_cbranch_scc1 R_poll")
a("R_ok:")
stamp()
for x in range(4): a(f"v_add_f32 v{Y+x}, v{Y+x}, v{Y+4+x}")
a(f"s_lshl_b32 s33, s22, 8\nv_lshlrev_b32 v{Y+8}, 2, v2\nv_permlane32_swap_b32 v{Y}, v{Y+2}\nv_permlane32_swap_b32 v{Y+1}, v{Y+3}\nv_add_u32 v{Y+9}, s33, v{Y+8}\nv_add_f32 v{Y}, v{Y}, v{Y+2}\nv_add_f32 v{Y+1}, v{Y+1}, v{Y+3}\ns_nop 1\nv_permlane16_swap_b32 v{Y}, v{Y+1}\ns_nop 1\nv_add_f32 v{Y}, v{Y}, v{Y+1}")
a(f"v_add_u32 v{Y+9}, {PADR}, v{Y+9}\nv_add_u32 v{Y+8}, {PADR}, v{Y+8}\nds_write_b32 v{Y+9}, v{Y}\ns_waitcnt lgkmcnt(0)\ns_barrier")
a(f"s_cmp_lg_u32 s22, {FIN}\ns_cbranch_scc1 M_fin")
for k in range(8): a(f"ds_read_b32 v{Y+k}, v{Y+8} offset:{256*k}")
srd(a, 8, 54, 32768)
a(f"v_and_b32 v{Y+10}, 7, v2\nv_bfe_u32 v{Y+11}, v2, 3, 1\nv_lshl_add_u32 v{Y+10}, v{Y+11}, 5, v{Y+10}\nv_lshrrev_b32 v{Y+11}, 4, v2\nv_lshl_add_u32 v{Y+10}, v{Y+11}, 3, v{Y+10}\ns_lshl_b32 s20, s34, 6\nv_add_u32 v{Y+10}, s20, v{Y+10}\nv_lshlrev_b32 v{Y+10}, 1, v{Y+10}")
a("s_waitcnt lgkmcnt(0)")
a(f"v_add_f32 v{Y}, v{Y}, v{Y+1}\nv_add_f32 v{Y+2}, v{Y+2}, v{Y+3}\nv_add_f32 v{Y+4}, v{Y+4}, v{Y+5}\nv_add_f32 v{Y+6}, v{Y+6}, v{Y+7}\nv_add_f32 v{Y}, v{Y}, v{Y+2}\nv_add_f32 v{Y+4}, v{Y+4}, v{Y+6}\nv_add_f32 v{Y}, v{Y}, v{Y+4}")
rnd(Y); a(f"v_add_f32 v{Y}, s74, v{Y}"); rnd(Y)
a(f"v_add_f32 v{Y}, v{Y}, v{VWIDE}"); rnd(Y)
a(f"v_mul_f32 v{Y}, 0xbfb8aa3b, v{Y}\nv_exp_f32 v{Y}, v{Y}\ns_nop 0\nv_add_f32 v{Y}, 1.0, v{Y}\nv_rcp_f32 v{Y}, v{Y}\ns_nop 0\nv_cvt_pk_bf16_f32 v{Y}, v{Y}, v{Y}")
a(f"buffer_store_short v{Y}, v{Y+10}, s[8:11], 0 offen")
a("M_fin:")
pad(PADEND)
if STAMP:
    a(f"s_cmp_lg_u32 s22, {SW}\ns_cbranch_scc1 M_end")
    a("s_waitcnt vmcnt(0)")
    stamp()
    a("s_waitcnt lgkmcnt(0)")
    n = nst[0]
    a(f"s_mul_i32 s31, s2, {8*n}\ns_add_u32 s31, s31, 0x8000000\nv_mov_b32 v2, 0")
    for k in range(n):
        a(f"v_mov_b32 v4, s{76+2*k}\nv_mov_b32 v5, s{77+2*k}\nbuffer_store_dwordx2 v[4:5], v2, s[12:15], s31 offen offset:{8*k}\ns_waitcnt vmcnt(0)")
    print("nstamps", n)
a("M_end:\ns_endpgm")
L = a.lines
errs = hazard.check(L[st:g_end] + L[g_start:], "main")
a.raw(kernel_desc(MAIN, 256, 102, 256))
for e in sorted(set(errs)): print("HAZARD", e)
open(sys.argv[1], "w").write(a.text())
```

```python
import sys
from common import *
import hazard
opts = dict(x.split("=") for x in sys.argv[2:])
AHEAD = int(opts.get("ahead", 8)); STAMP = int(opts.get("stamp", 0)); SW = int(opts.get("sw", 3))
SC = "sc1"
NT = "nt" if int(opts.get("nt", 0)) else ""
SST = opts.get("sst", "sc1").replace("_", " ")
SLEEP = int(opts.get("sleep", 1)); RSLEEP = int(opts.get("rsleep", 2))
TG0 = int(opts.get("tg0", 4)); TG1 = int(opts.get("tg1", 122)); RAWAT = int(opts.get("rawat", 40))
WS_BYTES = 268435456
IDX16 = 0; WFR = 4 << 20; PART = 8 << 20; FI = 16 << 20; FW = FI + 16384; F2 = FI + 24576; FE = FI + 28672
LDELAY = int(opts.get('ldelay', 0)); M1 = int(opts.get('m1', 1)); M2 = int(opts.get('m2', 2))
STG = 131072; XWL = STG + 25600; XB = 131072; XS = 3200; PADR = 128000
ETAB = 0; WT = 12 << 20; MID = int(opts.get('mid', 2)); TOUCH = int(opts.get('touch', 1))
a = Asm()
a.raw(HEADER_COMMENT.rstrip("\n"))
a.raw("; @launch grid=(256,1,1) block=(512,1,1) lds=163840")
a.raw('.amdgcn_target "amdgcn-amd-amdhsa--gfx950"')
kernel_begin(a, MAIN)
TAB=4; ACC=68; WF=100; POOL=132; GD=196; NGD=24; IX=220; AD=236; SEL=240; SIDX=244
RAW=248; VXW=246; VXR=247; VWIDE=252; VSP=253
VL16=1
T = POOL; U = GD
FIN = 3; POLLW = 7
def rg(b, n): return f"v[{b}:{b+n-1}]"
nst = [0]
SKIP = set(opts.get("skip", "x1,x2,x3,x4,z1").split(","))
def stamp(name=""):
    if STAMP and name not in SKIP:
        k = nst[0]; nst[0] += 1
        assert k < 13
        a(f"s_memrealtime s[{76+2*k}:{77+2*k}]")
def rnd(r): a(f"v_cvt_pk_bf16_f32 v{r}, v{r}, v{r}\nv_lshlrev_b32 v{r}, 16, v{r}")
PADEND = int(opts.get("padend", 0)); PADPRO = int(opts.get("padpro", 0))
def pad(ticks):
    if not ticks: return
    l = newlab("PAD_")
    a(f"{l}:\ns_memrealtime s[32:33]\ns_waitcnt lgkmcnt(0)\ns_sub_u32 s32, s32, s64\ns_cmp_lt_i32 s32, {ticks}\ns_cbranch_scc1 {l}")
lab = [0]
def newlab(p):
    lab[0] += 1; return f"{p}{lab[0]}"
st = len(a.lines)
a("s_cmp_ge_u32 s2, 256\ns_cbranch_scc1 M_end")
stamp()
if int(opts.get("prio", 0)): a("s_setprio 2")
a("s_load_dwordx16 s[36:51], s[0:1], 0\ns_load_dwordx8 s[52:59], s[0:1], 64\ns_memrealtime s[64:65]")
a("s_getpc_b64 s[32:33]\nC_base:\ns_lshr_b32 s29, s2, 3\ns_lshl_b32 s20, s29, 9\nv_lshl_add_u32 v254, v0, 7, s20\nv_min_u32 v254, M_end-C_base, v254")
a("v_cmp_gt_u32 vcc, 4, v0\ns_and_saveexec_b64 s[20:21], vcc\ns_cbranch_execz C_skip\nglobal_load_dword v254, v254, s[32:33]\nC_skip:\ns_mov_b64 exec, -1")
a("v_and_b32 v2, 63, v0\nv_lshrrev_b32 v3, 6, v0\nv_lshlrev_b32 v1, 4, v2\nv_readfirstlane_b32 s22, v3")
a("s_and_b32 s20, s2, 7\ns_lshr_b32 s24, s20, 1\ns_and_b32 s20, s20, 1\ns_lshl_b32 s20, s20, 5\ns_add_u32 s25, s20, s29")
a("s_lshl_b32 s34, s24, 6\ns_add_u32 s34, s34, s25")
a("s_lshl_b32 s35, s22, 8\ns_add_u32 s35, s35, s34")
a(f"v_lshrrev_b32 v{U}, 4, v2\nv_and_b32 v{U+1}, 15, v2\nv_lshlrev_b32 v{U+2}, 15, v{U}\nv_lshl_add_u32 v{U+2}, v{U+1}, 3, v{U+2}\nv_mov_b32 v{U+5}, 0")
a("s_lshr_b32 s20, s35, 5\ns_lshl_b32 s20, s20, 17\ns_bfe_u32 s21, s35, 0x30002\ns_lshl_b32 s21, s21, 12\ns_add_u32 s20, s20, s21\ns_and_b32 s21, s35, 3\ns_lshl_b32 s21, s21, 7\ns_add_u32 s31, s20, s21")
a(f"s_mul_i32 s20, s34, 25600\ns_mul_i32 s21, s22, 3200\ns_add_u32 s20, s20, s21\ns_add_u32 s33, s21, {STG}\ns_mov_b32 m0, s33")
a("s_lshl_b32 s23, s22, 13\ns_add_u32 s30, s23, 8064")
a("s_mov_b32 s18, 3276800\ns_mov_b32 s19, 0x00020000\ns_mov_b32 s6, 6553600\ns_mov_b32 s7, 0x00020000")
a("s_waitcnt lgkmcnt(0)")
stamp()
a("s_mov_b32 s16, s46\ns_and_b32 s17, s47, 0xffff\ns_mov_b32 s4, s36\ns_and_b32 s5, s37, 0xffff")
srd(a, 60, 56, 256)
srd(a, 12, 58, WS_BYTES)
CNT = 163836
a("s_lshl_b32 s21, s2, 3\ns_add_u32 s21, s21, s22\ns_cmp_lg_u32 s21, 6\ns_cbranch_scc1 P_n0")
a(f"v_mov_b32 v{T+4}, s64\nv_mov_b32 v{T+5}, s65\nv_mov_b32 v{T+6}, 0\nv_or_b32 v{T+5}, 0x80000000, v{T+5}\ns_mov_b64 exec, 1")
a(f"buffer_store_dwordx2 {rg(T+4,2)}, v{T+6}, s[60:63], 0 offen {SC}\ns_mov_b64 exec, -1")
a("P_n0:")
WR_ = U + 8
def w1_loads():
    for j8 in range(8):
        a(f"buffer_load_dwordx2 {rg(WR_+2*j8,2)}, v{U+2}, s[16:19], s31 offen offset:{512*j8} {NT}")
a("s_cmp_lg_u32 s22, 0\ns_cbranch_scc1 P_now1")
w1_loads()
a("P_now1:")
for r in range(3):
    a(f"buffer_load_dwordx4 v1, s[4:7], s20 offen offset:{1024*r} {NT} lds")
a(f"s_mov_b64 exec, 0xff\nbuffer_load_dwordx4 v1, s[4:7], s20 offen offset:3072 {NT} lds\ns_mov_b64 exec, -1")
srd(a, 8, 38, 128000)
a(f"v_mov_b32 v{IX+1}, {CNT}\nds_write_b32 v{IX+1}, v{U+5}\ns_waitcnt lgkmcnt(0)\ns_barrier")
a(f"s_cmp_lt_u32 s22, 4\ns_cbranch_scc1 P_lo\ns_cmp_lg_u32 s22, 4\ns_cbranch_scc1 P_skip")
a(f"v_and_b32 v254, 31, v2\nv_lshlrev_b32 v254, 7, v254\ns_lshl_b32 s21, s29, 12\nbuffer_load_dword v254, v254, s[8:11], s21 offen\ns_branch P_skip")
def nonce_load(): a(f"v_mov_b32 v{AD}, 0\nbuffer_load_dwordx2 {rg(AD+2,2)}, v{AD}, s[60:63], 0 offen {SC}")
def nonce_get():
    l = newlab("N_")
    a("s_mov_b32 s20, 0")
    a(f"{l}:")
    a(f"v_readfirstlane_b32 s64, v{AD+2}\nv_readfirstlane_b32 s65, v{AD+3}\ns_add_u32 s20, s20, 1\ns_cmp_lg_u32 s65, 0\ns_cbranch_scc1 {l}ok")
    a(f"s_sleep 1\nbuffer_load_dwordx2 {rg(AD+2,2)}, v{AD}, s[60:63], 0 offen {SC}\ns_waitcnt vmcnt(0)\ns_cmp_lt_u32 s20, 0x8000\ns_cbranch_scc1 {l}")
    a(f"{l}ok:")
def flag_store(sreg):
    a(f"v_mov_b32 v{AD}, 0\nv_mov_b32 v{AD+2}, s64\nv_mov_b32 v{AD+3}, s65\ns_mov_b64 exec, 1")
    a(f"buffer_store_dwordx2 {rg(AD+2,2)}, v{AD}, s[12:15], s{sreg} offen {SC}\ns_mov_b64 exec, -1")
def w1_process():
    PR = WF
    for c in range(4):
        for d in range(4):
            a(f"v_perm_b32 v{PR+4*c+d}, v{WR_+2*(2*d+1)+(c>>1)}, v{WR_+2*(2*d)+(c>>1)}, s{66+(c&1)}")
    for c in range(4):
        a(f"ds_write_b128 v{U+3}, {rg(PR+4*c,4)} offset:{(c&1)*128 + (c>>1)*16}")
    a("s_waitcnt lgkmcnt(0)")
    for r in range(4):
        a(f"ds_read_b128 {rg(PR+16+4*r,4)}, v{U+4} offset:{r*4*272}")
    for r in range(4):
        a(f"s_waitcnt lgkmcnt({3-r})\nbuffer_store_dwordx4 {rg(PR+16+4*r,4)}, v{U+5}, s[12:15], s26 offen {SC}\ns_add_u32 s26, s26, {4*65536}")
a("P_lo:")
a("s_cmp_ge_u32 s35, 800\ns_cbranch_scc1 P_skip\ns_cmp_eq_u32 s22, 0\ns_cbranch_scc1 P_lo0")
w1_loads()
a("P_lo0:")
a("s_mov_b32 s66, 0x05040100\ns_mov_b32 s67, 0x07060302\ns_add_u32 s21, s23, 0x10000")
a(f"v_mul_u32_u24 v{U+3}, 272, v{U+1}\nv_lshl_add_u32 v{U+3}, v{U}, 5, v{U+3}\nv_add_u32 v{U+3}, s21, v{U+3}")
a(f"v_mul_u32_u24 v{U+4}, 272, v{U}\nv_lshl_add_u32 v{U+4}, v{U+1}, 4, v{U+4}\nv_add_u32 v{U+4}, s21, v{U+4}")
a(f"v_lshlrev_b32 v{U+5}, 16, v{U}\nv_bfe_u32 v{U+6}, v2, 3, 1\nv_lshl_add_u32 v{U+5}, v{U+6}, 12, v{U+5}\nv_and_b32 v{U+6}, 7, v2\nv_lshl_add_u32 v{U+5}, v{U+6}, 4, v{U+5}")
a("s_and_b32 s26, s35, 3\ns_lshl_b32 s26, s26, 20\ns_lshr_b32 s21, s35, 7\ns_lshl_b32 s21, s21, 13\ns_add_u32 s26, s26, s21\ns_bfe_u32 s21, s35, 0x30002\ns_lshl_b32 s21, s21, 9\ns_add_u32 s26, s26, s21")
a(f"s_bfe_u32 s21, s35, 0x20005\ns_lshl_b32 s21, s21, 7\ns_add_u32 s26, s26, s21\ns_add_u32 s26, s26, {WFR}")
a(f"s_and_b32 s75, s35, 3\ns_lshl_b32 s75, s75, 11\ns_bfe_u32 s21, s35, 0x20003\ns_lshl_b32 s21, s21, 9\ns_add_u32 s75, s75, s21\ns_lshr_b32 s21, s35, 5\ns_lshl_b32 s21, s21, 4\ns_add_u32 s75, s75, s21\ns_bfe_u32 s21, s35, 0x10002\ns_lshl_b32 s21, s21, 3\ns_add_u32 s75, s75, s21\ns_add_u32 s75, s75, {FW}")
a("s_cmp_lg_u32 s22, 0\ns_cbranch_scc1 P_skip")
a(f"s_and_b32 s75, s35, 3\ns_lshl_b32 s75, s75, 9\ns_lshr_b32 s21, s35, 2\ns_lshl_b32 s21, s21, 3\ns_add_u32 s75, s75, s21\ns_add_u32 s75, s75, {FE}")
a("s_waitcnt vmcnt(4)")
w1_process()
a("P_skip:")
stamp("x2")
a(f"v_and_b32 v{T+4}, 7, v2\nv_lshrrev_b32 v{T+5}, 3, v2")
a(f"s_and_b32 s20, s34, 1\ns_lshl_b32 s20, s20, 3\nv_add_u32 v{T+6}, s20, v{T+4}")
a(f"v_mul_u32_u24 v{T+7}, 400, v{T+4}\nv_add_u32 v{T+7}, s33, v{T+7}")
a(f"v_and_b32 v{T+8}, 1, v{T+5}\nv_lshrrev_b32 v{T+9}, 1, v{T+5}")
a(f"v_lshlrev_b32 v{T+10}, 3, v{T+8}\nv_xor_b32 v{T+10}, v{T+10}, v{T+6}")
a(f"v_lshl_add_u32 v{T+11}, v{T+9}, 6, v{T+7}")
a(f"v_lshlrev_b32 v{T+9}, 14, v{T+9}\nv_lshl_add_u32 v{T+9}, v{T+8}, 10, v{T+9}\nv_lshl_add_u32 v{T+9}, v{T+4}, 4, v{T+9}")
SL, LA_, RD, PK, SS = T+12, T+20, T+28, T+44, T+52
for u in range(8):
    a(f"v_xor_b32 v{SL+u}, {u}, v{T+10}")
    a(f"v_lshl_add_u32 v{LA_+u}, v{SL+u}, 2, v{T+11}")
a(f"v_and_b32 v{T+10}, 3, v{T+4}")
for u in range(4):
    a(f"v_xor_b32 v{SS+u}, {u}, v{T+10}\nv_lshl_add_u32 v{SS+4+u}, v{SS+u}, 2, v{T+7}\nv_add_u32 v{SS+u}, 16384, v{SS+u}")
a("s_lshr_b32 s27, s34, 3\ns_mul_i32 s27, s27, 102400\ns_lshl_b32 s20, s22, 11\ns_add_u32 s28, s27, s20\ns_and_b32 s21, s34, 7\ns_lshl_b32 s20, s21, 7\ns_add_u32 s28, s28, s20")
a(f"s_lshl_b32 s20, s22, 9\ns_add_u32 s27, s27, s20\ns_lshl_b32 s20, s21, 6\ns_add_u32 s27, s27, s20\ns_add_u32 s27, s27, 98304\nv_lshlrev_b32 v{T+8}, 3, v{T+4}")
TD = RAW
a(f"v_xor_b32 v{TD+1}, v{T+4}, v{U}\nv_lshlrev_b32 v{TD}, 7, v{T+5}\nv_lshl_add_u32 v{TD}, v{TD+1}, 4, v{TD}\nv_xor_b32 v{TD+1}, 64, v{TD}")
stamp("x1")
a(f"s_cmp_eq_u32 s22, 0\ns_cbranch_scc1 P_c4\ns_cmp_lt_u32 s35, 800\ns_cbranch_scc1 P_c8\ns_cmp_eq_u32 s22, 4\ns_cbranch_scc1 P_c1")
a("s_waitcnt vmcnt(0)\nP_c1:\ns_waitcnt vmcnt(1)\nP_c4:\ns_waitcnt vmcnt(4)\nP_c8:\ns_waitcnt vmcnt(8)")
nonce_load()
stamp()
for u in range(8): a(f"ds_read_b32 v{RD+u}, v{LA_+u}")
for u in range(8): a(f"ds_read_b32 v{RD+8+u}, v{LA_+u} offset:256")
for u in range(4): a(f"ds_read_b32 v{SS+8+u}, v{SS+4+u} offset:384")
def conv(k):
    for u in range(8):
        a(f"v_lshl_add_u32 v{RD+8*k+u}, v{RD+8*k+u}, 4, v{SL+u}")
    for d in range(4):
        a(f"v_lshl_or_b32 v{PK+4*k+d}, v{RD+8*k+2*d+1}, 16, v{RD+8*k+2*d}")
a("s_waitcnt lgkmcnt(12)")
conv(0)
a(f"buffer_store_dwordx4 {rg(PK,4)}, v{T+9}, s[12:15], s28 offen {SC}")
a("s_waitcnt lgkmcnt(0)")
conv(1)
for u in range(4): a(f"v_lshl_add_u32 v{SS+8+u}, v{SS+8+u}, 2, v{SS+u}")
a(f"v_lshl_or_b32 v{SS+4}, v{SS+9}, 16, v{SS+8}\nv_lshl_or_b32 v{SS+5}, v{SS+11}, 16, v{SS+10}")
a(f"s_add_u32 s28, s28, 65536\ns_mov_b32 exec_hi, 0\nbuffer_store_dwordx4 {rg(PK+4,4)}, v{T+9}, s[12:15], s28 offen {SC}")
a(f"s_mov_b64 exec, 0xff\nbuffer_store_dwordx2 {rg(SS+4,2)}, v{T+8}, s[12:15], s27 offen {SC}\ns_mov_b64 exec, -1")
stamp("x3")
BA = int(opts.get("ba", 0))
a(f"v_mov_b32 v{IX+2}, 1\ns_mov_b64 exec, 1\nds_add_u32 v{IX+1}, v{IX+2}\ns_mov_b64 exec, -1")
a("s_cmp_lg_u32 s22, 0\ns_cbranch_scc1 P_c")
a("s_waitcnt vmcnt(3)")
nonce_get()
flag_store(75)
a("s_mov_b32 s35, 4096")
a("P_c:")
if BA: a("s_barrier")
stamp("x4")
a("s_cmp_ge_u32 s35, 800\ns_cbranch_scc1 P_d")
a("s_waitcnt vmcnt(4)")
w1_process()
a("P_d:")
PRIO = int(opts.get("prio", 0))
def table_dma(mt):
    off = 4096*(mt & 1) + 65536*(mt >> 1)
    a(f"s_add_u32 s27, s23, {off}\ns_mov_b32 m0, s27\n{'s_setprio 0' if PRIO else 's_nop 0'}")
    for x in range(4):
        a(f"buffer_load_dwordx4 v{TD+(x&1)}, s[8:11], s27 offen offset:{1024*x} lds")
    if PRIO: a("s_setprio 2")
for mt in range(M1): table_dma(mt)
stamp()
a("s_lshl_b32 s20, s25, 3\ns_add_u32 s48, s48, s20\ns_addc_u32 s49, s49, 0\ns_add_u32 s50, s50, s20\ns_addc_u32 s51, s51, 0")
a("s_load_dwordx2 s[70:71], s[48:49], 0\ns_load_dwordx2 s[72:73], s[50:51], 0")
a(f"s_lshr_b32 s31, s34, 3\ns_lshl_b32 s31, s31, 9\ns_and_b32 s20, s34, 7\ns_lshl_b32 s20, s20, 6\ns_add_u32 s31, s31, s20\ns_lshl_b32 s20, s22, 3\ns_add_u32 s31, s31, s20\ns_add_u32 s31, s31, {FI}")
NL = 4*M1
a(f"s_cmp_lt_u32 s35, 800\ns_cbranch_scc1 P_a4\ns_cmp_eq_u32 s35, 4096\ns_cbranch_scc1 P_a1\ns_waitcnt vmcnt({NL})\nP_a1:\ns_waitcnt vmcnt({NL+1})\nP_a4:\ns_waitcnt vmcnt({NL+4})")
stamp()
nonce_get()
flag_store(31)
XM = int(opts.get("xm", 1))
for mt in range(M1, XM): table_dma(mt)
def poll_load(sreg, tmp, addr): a(f"buffer_load_dwordx2 {rg(tmp,2)}, v{addr}, s[12:15], s{sreg} offen {SC}")
def poll_check(sreg, tmp, addr, first_wait=0, sleep=SLEEP):
    l = newlab("Q_")
    a(f"s_mov_b32 s20, 0\ns_waitcnt vmcnt({first_wait})")
    a(f"{l}:")
    a(f"v_cmp_ne_u64 vcc, s[64:65], {rg(tmp,2)}\ns_cbranch_vccz {l}ok")
    a(f"s_sleep {sleep}")
    poll_load(sreg, tmp, addr)
    a(f"s_add_u32 s20, s20, 1\ns_waitcnt vmcnt(0)\ns_cmp_lt_u32 s20, 0x8000\ns_cbranch_scc1 {l}")
    a(f"{l}ok:")
a(f"s_cmp_lt_u32 s22, 6\ns_cbranch_scc1 P_g")
a(f"s_sub_u32 s21, 7, s22\ns_lshr_b32 s29, s25, 4\ns_lshl_b32 s29, s29, 9\ns_lshl_b32 s20, s21, 8\ns_add_u32 s29, s29, s20\ns_add_u32 s29, s29, {FE}")
a(f"v_and_b32 v{T}, 31, v2\nv_lshlrev_b32 v{T}, 3, v{T}")
poll_load(29, T+2, T)
a(f"s_lshl_b32 s26, s25, 16\ns_lshl_b32 s20, s21, 13\ns_add_u32 s26, s26, s20\ns_add_u32 s26, s26, {WFR}\ns_add_u32 s31, s26, 4096")
a(f"s_sub_u32 s20, s22, 6\ns_lshl_b32 s20, s20, 10\ns_add_u32 s20, s20, {XB}\nv_add_u32 v{IX}, s20, v1")
poll_check(29, T+2, T)
stamp("z1")
for x in range(8):
    a(f"buffer_load_dwordx4 {rg(WF+4*x,4)}, v{VL16}, s[12:15], s{26 + 5*(x>>2)} offen offset:{1024*(x&3)} {SC}")
a("P_g:")
for mt in range(max(M1, XM), 4): table_dma(mt)
a("s_cmp_ge_u32 s35, 800\ns_cbranch_scc1 P_e")
a(f"s_waitcnt vmcnt(17)")
a(f"s_mov_b64 exec, 1\nbuffer_store_dwordx2 {rg(AD+2,2)}, v{AD}, s[12:15], s75 offen {SC}\ns_mov_b64 exec, -1")
a("P_e:")
FR = GD
a(f"v_bfe_u32 v{T+2}, v2, 4, 1\nv_lshlrev_b32 v{T+2}, 1, v{T+2}\nv_bfe_u32 v{T}, v2, 2, 2\nv_mov_b32 v{T+1}, 0x3f80")
a(f"v_cmp_eq_u32 vcc, v{T+2}, v{T}\nv_add_u32 v{T+2}, 1, v{T+2}\ns_nop 0\nv_cndmask_b32 v{SEL}, 0, v{T+1}, vcc\nv_cmp_eq_u32 vcc, v{T+2}, v{T}")
a(f"v_mov_b32 v{SEL+1}, v{SEL}\nv_and_b32 v{T+2}, 3, v2\nv_cndmask_b32 v{SEL+2}, 0, v{T+1}, vcc\nv_mul_u32_u24 v{SIDX}, 0x5555, v{T+2}\nv_mov_b32 v{SEL+3}, v{SEL+2}")
a(f"v_and_b32 v3, 24, v2\nv_and_b32 v{T}, 3, v2\nv_lshl_add_u32 v3, v{T}, 1, v3\nv_bfe_u32 v{T}, v2, 2, 1\nv_add_u32 v3, v3, v{T}")
a(f"v_lshrrev_b32 v{T}, 5, v2\nv_lshlrev_b32 v{VSP}, 5, v3\nv_lshl_add_u32 v{VSP}, v{T}, 4, v{VSP}\ns_lshl_b32 s31, s22, 11\ns_add_u32 s31, s31, 131072\nv_add_u32 v{VSP}, s31, v{VSP}")
a(f"v_bfe_u32 v{T+1}, v3, 1, 3\nv_xor_b32 v{T+1}, v{T+1}, v{T}\nv_lshlrev_b32 v3, 7, v3\nv_lshl_add_u32 v3, v{T+1}, 4, v3\nv_add_u32 v{FR}, s23, v3")
for ks in range(1, 4): a(f"v_xor_b32 v{FR+ks}, {32*ks}, v{FR}")
for ks in range(4): a(f"v_add_u32 v{FR+4+ks}, 0x10000, v{FR+ks}")
a(f"v_add_u32 v{VXR}, {XB}, v1\nv_add_u32 v{VXW}, s33, v1")
a(f"v_lshrrev_b32 v0, 3, v2\nv_lshlrev_b32 v0, 14, v0\nv_lshl_add_u32 v0, v{T+4}, 4, v0")
a("s_lshl_b32 s28, s24, 3\ns_add_u32 s28, s28, s22\ns_mul_i32 s28, s28, 102400")
a(f"s_lshl_b32 s75, s24, 6\ns_lshl_b32 s33, s22, 3\ns_add_u32 s75, s75, s33\ns_lshl_b32 s75, s75, 6\ns_add_u32 s75, s75, s25\ns_lshl_b32 s75, s75, 8\ns_add_u32 s75, s75, {PART}")
a(f"v_lshlrev_b32 v{AD}, 3, v2\nv_min_u32 v{AD+1}, 33, v2\nv_lshlrev_b32 v{AD+1}, 3, v{AD+1}")
a(f"s_cmp_lg_u32 s22, {FIN}\ns_cbranch_scc1 P_f")
srd(a, 4, 40, 16384*26)
a(f"s_mov_b32 m0, {XWL}\ns_mul_i32 s20, s34, 1664\nbuffer_load_dwordx4 v1, s[4:7], s20 offen {NT} lds\nbuffer_load_dwordx4 v1, s[4:7], s20 offen offset:1024 {NT} lds")
srd(a, 4, 42, 26)
a(f"v_lshlrev_b32 v{T+10}, 1, v2\nv_mov_b32 v{T+11}, 0\nbuffer_load_ushort v{VWIDE}, v{T+10}, s[4:7], 0 offen")
srd(a, 4, 44, 2)
a(f"buffer_load_ushort v245, v{T+11}, s[4:7], 0 offen")
srd(a, 4, 52, 2)
a(f"buffer_load_ushort v255, v{T+11}, s[4:7], 0 offen")
a("P_f:")
a("s_cmp_lt_u32 s22, 6\ns_cbranch_scc1 P_h")
a(f"P_cnt:\nds_read_b32 v{IX+2}, v{IX+1}\ns_waitcnt lgkmcnt(0)\nv_readfirstlane_b32 s20, v{IX+2}\ns_cmp_lt_u32 s20, 8\ns_cbranch_scc1 P_cnt")
for x in range(8):
    a(f"s_waitcnt vmcnt({7-x + 4*(4-max(M1,XM))})\nds_write_b128 v{IX}, {rg(WF+4*x,4)} offset:{XS*x}")
a("P_h:")
a(f"s_lshr_b32 s29, s25, 4\ns_lshl_b32 s29, s29, 11\ns_and_b32 s20, s22, 3\ns_lshl_b32 s20, s20, 9\ns_add_u32 s29, s29, s20\ns_add_u32 s29, s29, {FW + 128}")
a(f"s_lshl_b32 s31, s24, 3\ns_add_u32 s31, s31, s22\ns_lshl_b32 s31, s31, 9\ns_add_u32 s31, s31, {FI}")
a(f"s_lshl_b32 s26, s25, 16\ns_lshl_b32 s20, s22, 10\ns_add_u32 s26, s26, s20\ns_add_u32 s26, s26, {WFR + 16384}")
a(f"s_cmp_eq_u32 s22, {FIN}\ns_cbranch_scc1 P_i\ns_waitcnt vmcnt(0)\nP_i:\ns_waitcnt vmcnt(5)")
stamp()
for mt in range(4):
    for ks in range(4):
        a(f"ds_read_b128 {rg(TAB+16*mt+4*ks,4)}, v{FR+4*(mt>>1)+ks} offset:{4096*(mt&1)}")
a("s_setprio 0\ns_waitcnt lgkmcnt(0)\ns_barrier")
stamp()
def wf_read(off=0):
    for x in range(8):
        a(f"ds_read_b128 {rg(WF+4*x,4)}, v{VXR} offset:{XS*x + off}")
wf_read(1024)
poll_load(31, AD+2, AD)
a("s_lshl_b32 s68, s70, 16\ns_and_b32 s69, s70, 0xffff0000\ns_lshl_b32 s70, s71, 16\ns_and_b32 s71, s71, 0xffff0000")
def tg_mfma(mt, ks, e, d):
    c = "0" if ks == 0 else rg(d, 16)
    return f"v_mfma_f32_32x32x16_bf16 {rg(d,16)}, {rg(TAB+16*mt+4*ks,4)}, {rg(WF+16*e+4*ks,4)}, {c}"
D0, D1 = POOL+32, POOL+48
def tgen_groups():
    g = []
    for mt in range(3):
        for ks in range(4):
            for e in range(2):
                g.append([tg_mfma(mt, ks, e, D0 if e == 0 else D1)])
        g.append([]); g.append([])
        for r in range(0, 16, 4):
            g.append([f"v_cvt_pk_bf16_f32 v{POOL+16*mt+r+x}, v{D0+r+x}, v{D1+r+x}" for x in range(4)])
    for ks in range(4): g.append([tg_mfma(3, ks, 0, D1)])
    for ks in range(4): g.append([tg_mfma(3, ks, 1, WF)])
    g.append([]); g.append([])
    for r in range(0, 16, 4):
        g.append([f"v_cvt_pk_bf16_f32 v{D1+r+x}, v{D1+r+x}, v{WF+r+x}" for x in range(4)])
    return g
def wr_op(r):
    off = r*256 if r < 32 else 57472 + (r-32)*256
    pre = ["s_mov_b32 m0, s30", "s_nop 0"] if r == 32 else []
    return pre + [f"ds_write_addtid_b32 v{POOL+r} offset:{off}"]
a("s_mov_b32 m0, s23\ns_waitcnt lgkmcnt(0)")
def pro_d(mt): return [(ACC, ACC+16), (D0, D1), (ACC, ACC+16), (D1, GD)][mt]
pend = []
for mt in range(4):
    d0, d1 = pro_d(mt)
    seq = [(ks, e) for ks in range(4) for e in range(2)]
    if mt == 2:
        poll_check(31, AD+2, AD)
        stamp("y1")
        for x in range(4):
            a(f"buffer_load_dwordx4 {rg(IX+4*x,4)}, v{VL16}, s[12:15], s28 offen offset:{1024*x} {SC}")
        poll_load(29, RAW, AD+1)
        a("s_add_u32 s28, s28, 4096\ns_mov_b32 s21, 0")
    for n, (ks, e) in enumerate(seq):
        a(tg_mfma(mt, ks, e, d0 if e == 0 else d1))
        if n >= 2:
            take = (len(pend) + (7 - n)) // (8 - n)
            for o in pend[:take]: a(o)
            pend = pend[take:]
        elif mt > 0: a("s_nop 4")
    assert not pend
    for r in range(16):
        pend.append(f"v_cvt_pk_bf16_f32 v{POOL+16*mt+r}, v{d0+r}, v{d1+r}")
    for r in range(16): pend.extend(wr_op(16*mt + r))
stamp("y2")
wf_read()
for s in range(8):
    for c in range(4): a(f"v_mov_b32 v{ACC+4*s+c}, s{68+c}")
for o in pend: a(o)
poll_check(29, RAW, AD+1)
a(f"s_cmp_lg_u32 s22, {FIN}\ns_cbranch_scc1 P_j")
X = T + 12
a(f"v_and_b32 v{X}, 7, v2\nv_bfe_u32 v{X+1}, v2, 3, 1\nv_lshl_add_u32 v{X}, v{X+1}, 5, v{X}\nv_lshrrev_b32 v{X+1}, 4, v2\nv_lshl_add_u32 v{X}, v{X+1}, 3, v{X}\nv_mul_u32_u24 v{X}, 26, v{X}\nv_add_u32 v{X}, {XWL}, v{X}")
for k in range(13): a(f"ds_read_u16 v{X+2+k}, v{X} offset:{2*k}")
a(f"v_lshlrev_b32 v{X+1}, 16, v{VWIDE}\nv_lshlrev_b32 v245, 16, v245\nv_lshlrev_b32 v255, 16, v255")
a("s_waitcnt lgkmcnt(0)")
for k in range(13): a(f"v_readlane_b32 s{36+k}, v{X+1}, {k}")
a("v_readfirstlane_b32 s74, v255")
for k in range(13): a(f"v_lshlrev_b32 v{X+2+k}, 16, v{X+2+k}")
a(f"v_mul_f32 v{VWIDE}, s36, v{X+2}")
for k in range(1, 13): a(f"v_fmac_f32 v{VWIDE}, s{36+k}, v{X+2+k}")
rnd(VWIDE); a(f"v_add_f32 v{VWIDE}, v{VWIDE}, v245"); rnd(VWIDE)
a("P_j:")
a("s_waitcnt lgkmcnt(0)\ns_barrier")
stamp()

def gather_phase(nunits, side, acc_of):
    NG = nunits * 8
    log = [("ix", u) for u in range(4)]
    def vm_wait(tag):
        idx = len(log) - 1 - log[::-1].index(tag)
        a(f"s_waitcnt vmcnt({len(log) - 1 - idx})")
    def issue(g):
        u = g // 8
        if g % 8 == 0: vm_wait(("ix", u))
        ad = AD + (g & 3)
        d = IX + 4*(u & 3) + (g % 8)//2
        a(f"v_lshlrev_b32_sdwa v{ad}, 3, v{d} dst_sel:DWORD dst_unused:UNUSED_PAD src0_sel:DWORD src1_sel:WORD_{g&1}")
        q = GD + (2*g) % NGD
        a(f"ds_read_b64 {rg(q,2)}, v{ad}")
        if g % 8 == 7 and (nunits == 16 or u + 4 < nunits):
            if u + 4 >= 16 and nunits == 20:
                for h in range(2):
                    a(f"buffer_load_dwordx2 {rg(IX+4*(u&3)+2*h,2)}, v{VXW}, s[12:15], s28 offen offset:{1024*(u&3)+512*h} {SC}")
                    log.append(("ix", u + 4))
            else:
                a(f"buffer_load_dwordx4 {rg(IX+4*(u&3),4)}, v{VL16}, s[12:15], s28 offen offset:{1024*(u&3)} {SC}")
                log.append(("ix", u + 4))
            if u & 3 == 3: a("s_add_u32 s28, s28, 4096")
    for g in range(AHEAD): issue(g)
    for g in range(NG):
        if g + AHEAD < NG: issue(g + AHEAD)
        if g % 4 == 3:
            a(f"s_waitcnt lgkmcnt({min(AHEAD, NG-1-g)})")
            q = GD + (2*(g-3)) % NGD
            s = acc_of(g // 4)
            a(f"v_smfmac_f32_16x16x64_bf16 {rg(ACC+4*s,4)}, {rg(SEL,4)}, {rg(q,8)}, v{SIDX}")
        for o in side.get(g, []):
            if isinstance(o, tuple):
                a(o[0]); log.append(o[1])
            else: a(o)
    return log, vm_wait
def spread(groups, g0, g1):
    side = {}
    for i, o in enumerate(groups):
        g = g0 + (i * (g1 - g0)) // len(groups)
        side.setdefault(g, []).extend(o)
    return side
pad(PADPRO)
a("L_G:")
g_start = len(a.lines)
side = spread(tgen_groups(), TG0, TG1)
side.setdefault(RAWAT, []).extend([(f"buffer_load_dwordx4 {rg(RAW,4)}, v{VL16}, s[12:15], s26 offen {SC}", ("raw", 0)), "s_add_u32 s26, s26, 8192"])
log, vm_wait = gather_phase(16, side, lambda o: o // 4)
vm_wait(("raw", 0))
a(f"ds_write_b128 v{VXW}, {rg(RAW,4)}")
a("s_mov_b32 m0, s23\ns_add_u32 s21, s21, 1\ns_waitcnt lgkmcnt(0)\ns_barrier")
for r in range(64):
    for o in wr_op(r): a(o)
a("s_cmp_eq_u32 s21, 5\ns_cbranch_scc1 L_Wlast")
wf_read()
a("s_waitcnt vmcnt(0)\ns_cmp_lg_u32 s21, 1\ns_cbranch_scc1 L_nosent")
for x in range(4): a(f"v_mov_b32 v{RAW+x}, -1")
a(f"buffer_store_dwordx4 {rg(RAW,4)}, v0, s[12:15], s75 offen {SC}\nbuffer_store_dwordx4 {rg(RAW,4)}, v0, s[12:15], s75 offen offset:128 {SC}")
a("L_nosent:")
a("s_waitcnt lgkmcnt(8)\ns_barrier\ns_branch L_G")
g_end = len(a.lines)
a("L_Wlast:")
a(f"v_and_b32 v{AD}, 1, v2\nv_mul_u32_u24 v{AD}, {4*XS}, v{AD}\nv_bfe_u32 v{AD+1}, v2, 1, 1\nv_lshl_add_u32 v{AD}, v{AD+1}, 4, v{AD}")
a(f"v_bfe_u32 v{AD+1}, v2, 3, 1\nv_lshl_add_u32 v{AD}, v{AD+1}, 5, v{AD}\nv_bfe_u32 v{AD+1}, v2, 2, 1\nv_lshl_add_u32 v{AD}, v{AD+1}, 6, v{AD}")
a(f"v_lshrrev_b32 v{AD+1}, 5, v2\nv_lshl_add_u32 v{AD}, v{AD+1}, 9, v{AD}\nv_add_u32 v{AD}, {XB}, v{AD}")
for x in range(4): a(f"ds_read_b128 {rg(WF+4*x,4)}, v{AD} offset:{XS*x}")
a(f"v_lshlrev_b32 v{VXW}, 3, v2")
a("s_cmp_lg_u32 s22, 0\ns_cbranch_scc1 L_Glast")
a(f"s_lshl_b32 s31, s34, 3\ns_add_u32 s31, s31, {F2}")
flag_store(31)
a("L_Glast:")
a("s_waitcnt lgkmcnt(0)\ns_barrier")
sp = []
for mt in range(4):
    d = POOL + 16*mt
    for ks in range(4):
        c = "0" if ks == 0 else rg(d, 16)
        sp.append([f"v_mfma_f32_32x32x16_bf16 {rg(d,16)}, {rg(WF+4*ks,4)}, {rg(TAB+16*mt+4*ks,4)}, {c}"])
sp.append([]); sp.append([])
for mt in range(4):
    d = POOL + 16*mt
    sp.append([f"v_cvt_pk_bf16_f32 v{d+x}, v{d+2*x}, v{d+2*x+1}" for x in range(4)])
wr_ops = []
for mt in range(4):
    d = POOL + 16*mt
    off = (32*(mt & 1) + 512*(mt >> 1)) * 32
    wr_ops.append(f"ds_write_b128 v{VSP}, {rg(d,4)} offset:{off}")
sp.append(wr_ops + ["s_waitcnt lgkmcnt(0)", "s_barrier"])
side = spread(sp, 4, 100)
side.setdefault(130, []).extend(["s_lshl_b32 s31, s24, 9", f"s_add_u32 s31, s31, {F2}",
                                 (f"buffer_load_dwordx2 {rg(RAW,2)}, v{VXW}, s[12:15], s31 offen {SC}", ("f2", 0))])
gather_phase(20, side, lambda o: o // 4 if o < 32 else o - 32)
stamp()
a("s_mov_b32 s20, 0\ns_mov_b32 s33, -2\ns_nop 5")
for s in range(8):
    a(f"v_cvt_pk_bf16_f32 v{POOL+2*s}, v{ACC+4*s}, v{ACC+4*s+1}\nv_cvt_pk_bf16_f32 v{POOL+2*s+1}, v{ACC+4*s+2}, v{ACC+4*s+3}")
for x in range(16):
    a(f"v_pk_max_i16 v{POOL+x}, v{POOL+x}, 0")
for s in range(8):
    a(f"v_dot2_f32_bf16 v{POOL+16+s}, v{POOL+2*s}, s72, 0")
for s in range(8):
    a(f"v_dot2_f32_bf16 v{POOL+16+s}, v{POOL+2*s+1}, s73, v{POOL+16+s}")
for s in range(8):
    a(f"v_min_u32 v{POOL+16+s}, s33, v{POOL+16+s}")
a("R_f2:")
a(f"s_waitcnt vmcnt(0)\nv_cmp_ne_u64 vcc, s[64:65], {rg(RAW,2)}\ns_cbranch_vccz R_f2ok")
a(f"s_sleep 1\nbuffer_load_dwordx2 {rg(RAW,2)}, v{VXW}, s[12:15], s31 offen {SC}\ns_add_u32 s20, s20, 1\ns_cmp_lt_u32 s20, 0x8000\ns_cbranch_scc1 R_f2")
a("R_f2ok:")
a(f"buffer_store_dwordx4 {rg(POOL+16,4)}, v0, s[12:15], s75 offen {SC}\nbuffer_store_dwordx4 {rg(POOL+20,4)}, v0, s[12:15], s75 offen offset:128 {SC}")
a(f"s_lshl_b32 s31, s34, 14\ns_lshl_b32 s33, s22, 11\ns_add_u32 s31, s31, s33\ns_add_u32 s31, s31, {PART}\ns_mov_b32 s20, 0")
if int(opts.get("rack", 1)): a("s_waitcnt vmcnt(0)")
Y = TAB
a("R_poll:")
a(f"buffer_load_dwordx4 {rg(Y,4)}, v1, s[12:15], s31 offen {SC}\nbuffer_load_dwordx4 {rg(Y+4,4)}, v1, s[12:15], s31 offen offset:1024 {SC}")
a("s_add_u32 s20, s20, 1\ns_waitcnt vmcnt(0)")
a(f"v_max3_u32 v{Y+8}, v{Y}, v{Y+1}, v{Y+2}\nv_max3_u32 v{Y+9}, v{Y+3}, v{Y+4}, v{Y+5}\nv_max3_u32 v{Y+8}, v{Y+8}, v{Y+6}, v{Y+7}\nv_max_u32 v{Y+8}, v{Y+8}, v{Y+9}")
a(f"v_cmp_eq_u32 vcc, -1, v{Y+8}\ns_cbranch_vccz R_ok")
a(f"s_sleep {RSLEEP}\ns_cmp_lt_u32 s20, 0x8000\ns_cbranch_scc1 R_poll")
a("R_ok:")
stamp("y3")
for x in range(4): a(f"v_add_f32 v{Y+x}, v{Y+x}, v{Y+4+x}")
a(f"s_lshl_b32 s33, s22, 8\nv_lshlrev_b32 v{Y+8}, 2, v2\nv_permlane32_swap_b32 v{Y}, v{Y+2}\nv_permlane32_swap_b32 v{Y+1}, v{Y+3}\nv_add_u32 v{Y+9}, s33, v{Y+8}\nv_add_f32 v{Y}, v{Y}, v{Y+2}\nv_add_f32 v{Y+1}, v{Y+1}, v{Y+3}\ns_nop 1\nv_permlane16_swap_b32 v{Y}, v{Y+1}\ns_nop 1\nv_add_f32 v{Y}, v{Y}, v{Y+1}")
a(f"v_add_u32 v{Y+9}, {PADR}, v{Y+9}\nv_add_u32 v{Y+8}, {PADR}, v{Y+8}\nds_write_b32 v{Y+9}, v{Y}\ns_waitcnt lgkmcnt(0)\ns_barrier")
a(f"s_cmp_lg_u32 s22, {FIN}\ns_cbranch_scc1 M_fin")
for k in range(8): a(f"ds_read_b32 v{Y+k}, v{Y+8} offset:{256*k}")
srd(a, 8, 54, 32768)
a(f"v_and_b32 v{Y+10}, 7, v2\nv_bfe_u32 v{Y+11}, v2, 3, 1\nv_lshl_add_u32 v{Y+10}, v{Y+11}, 5, v{Y+10}\nv_lshrrev_b32 v{Y+11}, 4, v2\nv_lshl_add_u32 v{Y+10}, v{Y+11}, 3, v{Y+10}\ns_lshl_b32 s20, s34, 6\nv_add_u32 v{Y+10}, s20, v{Y+10}\nv_lshlrev_b32 v{Y+10}, 1, v{Y+10}")
a("s_waitcnt lgkmcnt(0)")
a(f"v_add_f32 v{Y}, v{Y}, v{Y+1}\nv_add_f32 v{Y+2}, v{Y+2}, v{Y+3}\nv_add_f32 v{Y+4}, v{Y+4}, v{Y+5}\nv_add_f32 v{Y+6}, v{Y+6}, v{Y+7}\nv_add_f32 v{Y}, v{Y}, v{Y+2}\nv_add_f32 v{Y+4}, v{Y+4}, v{Y+6}\nv_add_f32 v{Y}, v{Y}, v{Y+4}")
rnd(Y); a(f"v_add_f32 v{Y}, s74, v{Y}"); rnd(Y)
a(f"v_add_f32 v{Y}, v{Y}, v{VWIDE}"); rnd(Y)
a(f"v_mul_f32 v{Y}, 0xbfb8aa3b, v{Y}\nv_exp_f32 v{Y}, v{Y}\ns_nop 0\nv_add_f32 v{Y}, 1.0, v{Y}\nv_rcp_f32 v{Y}, v{Y}\ns_nop 0\nv_cvt_pk_bf16_f32 v{Y}, v{Y}, v{Y}")
a(f"buffer_store_short v{Y}, v{Y+10}, s[8:11], 0 offen")
a("M_fin:")
pad(PADEND)
if STAMP:
    a(f"s_cmp_lg_u32 s22, {SW}\ns_cbranch_scc1 M_end")
    a("s_waitcnt vmcnt(0)")
    stamp()
    a("s_waitcnt lgkmcnt(0)")
    n = nst[0]
    a(f"s_mul_i32 s31, s2, {8*n}\ns_add_u32 s31, s31, 0x8000000\nv_mov_b32 v2, 0")
    for k in range(n):
        a(f"v_mov_b32 v4, s{76+2*k}\nv_mov_b32 v5, s{77+2*k}\nbuffer_store_dwordx2 v[4:5], v2, s[12:15], s31 offen offset:{8*k}\ns_waitcnt vmcnt(0)")
    print("nstamps", n)
a("M_end:\ns_endpgm")
L = a.lines
errs = hazard.check(L[st:g_end] + L[g_start:], "main")
a.raw(kernel_desc(MAIN, 256, 102, 256))
for e in sorted(set(errs)): print("HAZARD", e)
open(sys.argv[1], "w").write(a.text())
```

```python
import sys
from common import *
import hazard
opts = dict(x.split("=") for x in sys.argv[2:])
AHEAD = int(opts.get("ahead", 8)); STAMP = int(opts.get("stamp", 0)); SW = int(opts.get("sw", 3))
SC = "sc1"
NT = "nt" if int(opts.get("nt", 0)) else ""
SST = opts.get("sst", "sc1").replace("_", " ")
SLEEP = int(opts.get("sleep", 1)); RSLEEP = int(opts.get("rsleep", 2))
TG0 = int(opts.get("tg0", 4)); TG1 = int(opts.get("tg1", 122)); RAWAT = int(opts.get("rawat", 40))
WS_BYTES = 268435456
IDX16 = 0; WFR = 4 << 20; PART = 8 << 20; FI = 16 << 20; FW = FI + 16384; F2 = FI + 24576; FE = FI + 28672
LDELAY = int(opts.get('ldelay', 0)); M1 = int(opts.get('m1', 1)); M2 = int(opts.get('m2', 2))
STG = 131072; XWL = STG + 25600; XB = 131072; XS = 3200; PADR = 128000
ETAB = 0; WT = 12 << 20; MID = int(opts.get('mid', 2)); TOUCH = int(opts.get('touch', 1))
a = Asm()
a.raw(HEADER_COMMENT.rstrip("\n"))
a.raw("; @launch grid=(256,1,1) block=(512,1,1) lds=163840")
a.raw('.amdgcn_target "amdgcn-amd-amdhsa--gfx950"')
kernel_begin(a, MAIN)
TAB=4; ACC=68; WF=100; POOL=132; GD=196; NGD=24; IX=220; AD=236; SEL=240; SIDX=244
RAW=248; VXW=246; VXR=247; VWIDE=252; VSP=253
VL16=1
T = POOL; U = GD
FIN = 3; POLLW = 7
def rg(b, n): return f"v[{b}:{b+n-1}]"
nst = [0]
SKIP = set(opts.get("skip", "x1,x2,x3,x4,z1").split(","))
def stamp(name=""):
    if STAMP and name not in SKIP:
        k = nst[0]; nst[0] += 1
        assert k < 13
        a(f"s_memrealtime s[{76+2*k}:{77+2*k}]")
def rnd(r): a(f"v_cvt_pk_bf16_f32 v{r}, v{r}, v{r}\nv_lshlrev_b32 v{r}, 16, v{r}")
PADEND = int(opts.get("padend", 0)); PADPRO = int(opts.get("padpro", 0))
def pad(ticks):
    if not ticks: return
    l = newlab("PAD_")
    a(f"{l}:\ns_memrealtime s[32:33]\ns_waitcnt lgkmcnt(0)\ns_sub_u32 s32, s32, s64\ns_cmp_lt_i32 s32, {ticks}\ns_cbranch_scc1 {l}")
lab = [0]
def newlab(p):
    lab[0] += 1; return f"{p}{lab[0]}"
st = len(a.lines)
a("s_cmp_ge_u32 s2, 256\ns_cbranch_scc1 M_end")
stamp()
if int(opts.get("prio", 0)): a("s_setprio 2")
a("s_load_dwordx16 s[36:51], s[0:1], 0\ns_load_dwordx8 s[52:59], s[0:1], 64\ns_memrealtime s[64:65]")
a("s_getpc_b64 s[32:33]\nC_base:\ns_lshr_b32 s29, s2, 3\ns_lshl_b32 s20, s29, 9\nv_lshl_add_u32 v254, v0, 7, s20\nv_min_u32 v254, M_end-C_base, v254")
a("v_cmp_gt_u32 vcc, 4, v0\ns_and_saveexec_b64 s[20:21], vcc\ns_cbranch_execz C_skip\nglobal_load_dword v254, v254, s[32:33]\nC_skip:\ns_mov_b64 exec, -1")
a("v_and_b32 v2, 63, v0\nv_lshrrev_b32 v3, 6, v0\nv_lshlrev_b32 v1, 4, v2\nv_readfirstlane_b32 s22, v3")
a("s_and_b32 s20, s2, 7\ns_lshr_b32 s24, s20, 1\ns_and_b32 s20, s20, 1\ns_lshl_b32 s20, s20, 5\ns_add_u32 s25, s20, s29")
a("s_lshl_b32 s34, s24, 6\ns_add_u32 s34, s34, s25")
a("s_lshl_b32 s35, s22, 8\ns_add_u32 s35, s35, s34")
a(f"v_lshrrev_b32 v{U}, 4, v2\nv_and_b32 v{U+1}, 15, v2\nv_lshlrev_b32 v{U+2}, 15, v{U}\nv_lshl_add_u32 v{U+2}, v{U+1}, 3, v{U+2}\nv_mov_b32 v{U+5}, 0")
a("s_lshr_b32 s20, s35, 5\ns_lshl_b32 s20, s20, 17\ns_bfe_u32 s21, s35, 0x30002\ns_lshl_b32 s21, s21, 12\ns_add_u32 s20, s20, s21\ns_and_b32 s21, s35, 3\ns_lshl_b32 s21, s21, 7\ns_add_u32 s31, s20, s21")
a(f"s_mul_i32 s20, s34, 25600\ns_mul_i32 s21, s22, 3200\ns_add_u32 s20, s20, s21\ns_add_u32 s33, s21, {STG}\ns_mov_b32 m0, s33")
a("s_lshl_b32 s23, s22, 13\ns_add_u32 s30, s23, 8064")
a("s_mov_b32 s18, 3276800\ns_mov_b32 s19, 0x00020000\ns_mov_b32 s6, 6553600\ns_mov_b32 s7, 0x00020000")
a("s_waitcnt lgkmcnt(0)")
stamp()
a("s_mov_b32 s16, s46\ns_and_b32 s17, s47, 0xffff\ns_mov_b32 s4, s36\ns_and_b32 s5, s37, 0xffff")
srd(a, 60, 56, 256)
srd(a, 12, 58, WS_BYTES)
CNT = 163836
a("s_lshl_b32 s21, s2, 3\ns_add_u32 s21, s21, s22\ns_cmp_lg_u32 s21, 6\ns_cbranch_scc1 P_n0")
if int(opts.get("xcc", 0)):
    a("s_getreg_b32 s21, hwreg(HW_REG_XCC_ID)\ns_and_b32 s21, s21, 15\ns_lshl_b32 s21, s21, 24\ns_and_b32 s65, s65, 0xffffff\ns_or_b32 s65, s65, s21")
a(f"v_mov_b32 v{T+4}, s64\nv_mov_b32 v{T+5}, s65\nv_mov_b32 v{T+6}, 0\nv_or_b32 v{T+5}, 0x80000000, v{T+5}\ns_mov_b64 exec, 1")
a(f"buffer_store_dwordx2 {rg(T+4,2)}, v{T+6}, s[60:63], 0 offen {SC}\ns_mov_b64 exec, -1")
a("P_n0:")
WR_ = U + 8
def w1_loads():
    for j8 in range(8):
        a(f"buffer_load_dwordx2 {rg(WR_+2*j8,2)}, v{U+2}, s[16:19], s31 offen offset:{512*j8} {NT}")
a("s_cmp_lg_u32 s22, 0\ns_cbranch_scc1 P_now1")
w1_loads()
a("P_now1:")
for r in range(3):
    a(f"buffer_load_dwordx4 v1, s[4:7], s20 offen offset:{1024*r} {NT} lds")
a(f"s_mov_b64 exec, 0xff\nbuffer_load_dwordx4 v1, s[4:7], s20 offen offset:3072 {NT} lds\ns_mov_b64 exec, -1")
srd(a, 8, 38, 128000)
a(f"v_mov_b32 v{IX+1}, {CNT}\nds_write_b32 v{IX+1}, v{U+5}\ns_waitcnt lgkmcnt(0)\ns_barrier")
a(f"s_cmp_lt_u32 s22, 4\ns_cbranch_scc1 P_lo\ns_cmp_lg_u32 s22, 4\ns_cbranch_scc1 P_skip")
a(f"v_and_b32 v254, 31, v2\nv_lshlrev_b32 v254, 7, v254\ns_lshl_b32 s21, s29, 12\nbuffer_load_dword v254, v254, s[8:11], s21 offen\ns_branch P_skip")
def nonce_load(): a(f"v_mov_b32 v{AD}, 0\nbuffer_load_dwordx2 {rg(AD+2,2)}, v{AD}, s[60:63], 0 offen {SC}")
def nonce_get():
    l = newlab("N_")
    a("s_mov_b32 s20, 0")
    a(f"{l}:")
    a(f"v_readfirstlane_b32 s64, v{AD+2}\nv_readfirstlane_b32 s65, v{AD+3}\ns_add_u32 s20, s20, 1\ns_cmp_lg_u32 s65, 0\ns_cbranch_scc1 {l}ok")
    a(f"s_sleep 1\nbuffer_load_dwordx2 {rg(AD+2,2)}, v{AD}, s[60:63], 0 offen {SC}\ns_waitcnt vmcnt(0)\ns_cmp_lt_u32 s20, 0x8000\ns_cbranch_scc1 {l}")
    a(f"{l}ok:")
def flag_store(sreg):
    a(f"v_mov_b32 v{AD}, 0\nv_mov_b32 v{AD+2}, s64\nv_mov_b32 v{AD+3}, s65\ns_mov_b64 exec, 1")
    a(f"buffer_store_dwordx2 {rg(AD+2,2)}, v{AD}, s[12:15], s{sreg} offen {SC}\ns_mov_b64 exec, -1")
def w1_process():
    PR = WF
    for c in range(4):
        for d in range(4):
            a(f"v_perm_b32 v{PR+4*c+d}, v{WR_+2*(2*d+1)+(c>>1)}, v{WR_+2*(2*d)+(c>>1)}, s{66+(c&1)}")
    for c in range(4):
        a(f"ds_write_b128 v{U+3}, {rg(PR+4*c,4)} offset:{(c&1)*128 + (c>>1)*16}")
    a("s_waitcnt lgkmcnt(0)")
    for r in range(4):
        a(f"ds_read_b128 {rg(PR+16+4*r,4)}, v{U+4} offset:{r*4*272}")
    for r in range(4):
        a(f"s_waitcnt lgkmcnt({3-r})\nbuffer_store_dwordx4 {rg(PR+16+4*r,4)}, v{U+5}, s[12:15], s26 offen {SC}\ns_add_u32 s26, s26, {4*65536}")
a("P_lo:")
a("s_cmp_ge_u32 s35, 800\ns_cbranch_scc1 P_skip\ns_cmp_eq_u32 s22, 0\ns_cbranch_scc1 P_lo0")
w1_loads()
a("P_lo0:")
a("s_mov_b32 s66, 0x05040100\ns_mov_b32 s67, 0x07060302\ns_add_u32 s21, s23, 0x10000")
a(f"v_mul_u32_u24 v{U+3}, 272, v{U+1}\nv_lshl_add_u32 v{U+3}, v{U}, 5, v{U+3}\nv_add_u32 v{U+3}, s21, v{U+3}")
a(f"v_mul_u32_u24 v{U+4}, 272, v{U}\nv_lshl_add_u32 v{U+4}, v{U+1}, 4, v{U+4}\nv_add_u32 v{U+4}, s21, v{U+4}")
a(f"v_lshlrev_b32 v{U+5}, 16, v{U}\nv_bfe_u32 v{U+6}, v2, 3, 1\nv_lshl_add_u32 v{U+5}, v{U+6}, 12, v{U+5}\nv_and_b32 v{U+6}, 7, v2\nv_lshl_add_u32 v{U+5}, v{U+6}, 4, v{U+5}")
a("s_and_b32 s26, s35, 3\ns_lshl_b32 s26, s26, 20\ns_lshr_b32 s21, s35, 7\ns_lshl_b32 s21, s21, 13\ns_add_u32 s26, s26, s21\ns_bfe_u32 s21, s35, 0x30002\ns_lshl_b32 s21, s21, 9\ns_add_u32 s26, s26, s21")
a(f"s_bfe_u32 s21, s35, 0x20005\ns_lshl_b32 s21, s21, 7\ns_add_u32 s26, s26, s21\ns_add_u32 s26, s26, {WFR}")
a(f"s_and_b32 s75, s35, 3\ns_lshl_b32 s75, s75, 11\ns_bfe_u32 s21, s35, 0x20003\ns_lshl_b32 s21, s21, 9\ns_add_u32 s75, s75, s21\ns_lshr_b32 s21, s35, 5\ns_lshl_b32 s21, s21, 4\ns_add_u32 s75, s75, s21\ns_bfe_u32 s21, s35, 0x10002\ns_lshl_b32 s21, s21, 3\ns_add_u32 s75, s75, s21\ns_add_u32 s75, s75, {FW}")
a("s_cmp_lg_u32 s22, 0\ns_cbranch_scc1 P_skip")
a(f"s_and_b32 s75, s35, 3\ns_lshl_b32 s75, s75, 9\ns_lshr_b32 s21, s35, 2\ns_lshl_b32 s21, s21, 3\ns_add_u32 s75, s75, s21\ns_add_u32 s75, s75, {FE}")
a("s_waitcnt vmcnt(4)")
w1_process()
a("P_skip:")
stamp("x2")
a(f"v_and_b32 v{T+4}, 7, v2\nv_lshrrev_b32 v{T+5}, 3, v2")
a(f"s_and_b32 s20, s34, 1\ns_lshl_b32 s20, s20, 3\nv_add_u32 v{T+6}, s20, v{T+4}")
a(f"v_mul_u32_u24 v{T+7}, 400, v{T+4}\nv_add_u32 v{T+7}, s33, v{T+7}")
a(f"v_and_b32 v{T+8}, 1, v{T+5}\nv_lshrrev_b32 v{T+9}, 1, v{T+5}")
a(f"v_lshlrev_b32 v{T+10}, 3, v{T+8}\nv_xor_b32 v{T+10}, v{T+10}, v{T+6}")
a(f"v_lshl_add_u32 v{T+11}, v{T+9}, 6, v{T+7}")
a(f"v_lshlrev_b32 v{T+9}, 14, v{T+9}\nv_lshl_add_u32 v{T+9}, v{T+8}, 10, v{T+9}\nv_lshl_add_u32 v{T+9}, v{T+4}, 4, v{T+9}")
SL, LA_, RD, PK, SS = T+12, T+20, T+28, T+44, T+52
for u in range(8):
    a(f"v_xor_b32 v{SL+u}, {u}, v{T+10}")
    a(f"v_lshl_add_u32 v{LA_+u}, v{SL+u}, 2, v{T+11}")
a(f"v_and_b32 v{T+10}, 3, v{T+4}")
for u in range(4):
    a(f"v_xor_b32 v{SS+u}, {u}, v{T+10}\nv_lshl_add_u32 v{SS+4+u}, v{SS+u}, 2, v{T+7}\nv_add_u32 v{SS+u}, 16384, v{SS+u}")
a("s_lshr_b32 s27, s34, 3\ns_mul_i32 s27, s27, 102400\ns_lshl_b32 s20, s22, 11\ns_add_u32 s28, s27, s20\ns_and_b32 s21, s34, 7\ns_lshl_b32 s20, s21, 7\ns_add_u32 s28, s28, s20")
a(f"s_lshl_b32 s20, s22, 9\ns_add_u32 s27, s27, s20\ns_lshl_b32 s20, s21, 6\ns_add_u32 s27, s27, s20\ns_add_u32 s27, s27, 98304\nv_lshlrev_b32 v{T+8}, 3, v{T+4}")
TD = RAW
a(f"v_xor_b32 v{TD+1}, v{T+4}, v{U}\nv_lshlrev_b32 v{TD}, 7, v{T+5}\nv_lshl_add_u32 v{TD}, v{TD+1}, 4, v{TD}\nv_xor_b32 v{TD+1}, 64, v{TD}")
stamp("x1")
a(f"s_cmp_eq_u32 s22, 0\ns_cbranch_scc1 P_c4\ns_cmp_lt_u32 s35, 800\ns_cbranch_scc1 P_c8\ns_cmp_eq_u32 s22, 4\ns_cbranch_scc1 P_c1")
a("s_waitcnt vmcnt(0)\nP_c1:\ns_waitcnt vmcnt(1)\nP_c4:\ns_waitcnt vmcnt(4)\nP_c8:\ns_waitcnt vmcnt(8)")
nonce_load()
stamp()
for u in range(8): a(f"ds_read_b32 v{RD+u}, v{LA_+u}")
for u in range(8): a(f"ds_read_b32 v{RD+8+u}, v{LA_+u} offset:256")
for u in range(4): a(f"ds_read_b32 v{SS+8+u}, v{SS+4+u} offset:384")
def conv(k):
    for u in range(8):
        a(f"v_lshl_add_u32 v{RD+8*k+u}, v{RD+8*k+u}, 4, v{SL+u}")
    for d in range(4):
        a(f"v_lshl_or_b32 v{PK+4*k+d}, v{RD+8*k+2*d+1}, 16, v{RD+8*k+2*d}")
a("s_waitcnt lgkmcnt(12)")
conv(0)
a(f"buffer_store_dwordx4 {rg(PK,4)}, v{T+9}, s[12:15], s28 offen {SC}")
a("s_waitcnt lgkmcnt(0)")
conv(1)
for u in range(4): a(f"v_lshl_add_u32 v{SS+8+u}, v{SS+8+u}, 2, v{SS+u}")
a(f"v_lshl_or_b32 v{SS+4}, v{SS+9}, 16, v{SS+8}\nv_lshl_or_b32 v{SS+5}, v{SS+11}, 16, v{SS+10}")
a(f"s_add_u32 s28, s28, 65536\ns_mov_b32 exec_hi, 0\nbuffer_store_dwordx4 {rg(PK+4,4)}, v{T+9}, s[12:15], s28 offen {SC}")
a(f"s_mov_b64 exec, 0xff\nbuffer_store_dwordx2 {rg(SS+4,2)}, v{T+8}, s[12:15], s27 offen {SC}\ns_mov_b64 exec, -1")
stamp("x3")
BA = int(opts.get("ba", 0))
a(f"v_mov_b32 v{IX+2}, 1\ns_mov_b64 exec, 1\nds_add_u32 v{IX+1}, v{IX+2}\ns_mov_b64 exec, -1")
a("s_cmp_lg_u32 s22, 0\ns_cbranch_scc1 P_c")
a("s_waitcnt vmcnt(3)")
nonce_get()
flag_store(75)
a("s_mov_b32 s35, 4096")
a("P_c:")
if BA: a("s_barrier")
stamp("x4")
a("s_cmp_ge_u32 s35, 800\ns_cbranch_scc1 P_d")
a("s_waitcnt vmcnt(4)")
w1_process()
a("P_d:")
PRIO = int(opts.get("prio", 0))
def table_dma(mt):
    off = 4096*(mt & 1) + 65536*(mt >> 1)
    a(f"s_add_u32 s27, s23, {off}\ns_mov_b32 m0, s27\n{'s_setprio 0' if PRIO else 's_nop 0'}")
    for x in range(4):
        a(f"buffer_load_dwordx4 v{TD+(x&1)}, s[8:11], s27 offen offset:{1024*x} lds")
    if PRIO: a("s_setprio 2")
for mt in range(M1): table_dma(mt)
stamp()
a("s_lshl_b32 s20, s25, 3\ns_add_u32 s48, s48, s20\ns_addc_u32 s49, s49, 0\ns_add_u32 s50, s50, s20\ns_addc_u32 s51, s51, 0")
a("s_load_dwordx2 s[70:71], s[48:49], 0\ns_load_dwordx2 s[72:73], s[50:51], 0")
a(f"s_lshr_b32 s31, s34, 3\ns_lshl_b32 s31, s31, 9\ns_and_b32 s20, s34, 7\ns_lshl_b32 s20, s20, 6\ns_add_u32 s31, s31, s20\ns_lshl_b32 s20, s22, 3\ns_add_u32 s31, s31, s20\ns_add_u32 s31, s31, {FI}")
NL = 4*M1
a(f"s_cmp_lt_u32 s35, 800\ns_cbranch_scc1 P_a4\ns_cmp_eq_u32 s35, 4096\ns_cbranch_scc1 P_a1\ns_waitcnt vmcnt({NL})\nP_a1:\ns_waitcnt vmcnt({NL+1})\nP_a4:\ns_waitcnt vmcnt({NL+4})")
stamp()
nonce_get()
flag_store(31)
XM = int(opts.get("xm", 1))
for mt in range(M1, XM): table_dma(mt)
def poll_load(sreg, tmp, addr): a(f"buffer_load_dwordx2 {rg(tmp,2)}, v{addr}, s[12:15], s{sreg} offen {SC}")
def poll_check(sreg, tmp, addr, first_wait=0, sleep=SLEEP):
    l = newlab("Q_")
    a(f"s_mov_b32 s20, 0\ns_waitcnt vmcnt({first_wait})")
    a(f"{l}:")
    a(f"v_cmp_ne_u64 vcc, s[64:65], {rg(tmp,2)}\ns_cbranch_vccz {l}ok")
    a(f"s_sleep {sleep}")
    poll_load(sreg, tmp, addr)
    a(f"s_add_u32 s20, s20, 1\ns_waitcnt vmcnt(0)\ns_cmp_lt_u32 s20, 0x8000\ns_cbranch_scc1 {l}")
    a(f"{l}ok:")
a(f"s_cmp_lt_u32 s22, 6\ns_cbranch_scc1 P_g")
a(f"s_sub_u32 s21, 7, s22\ns_lshr_b32 s29, s25, 4\ns_lshl_b32 s29, s29, 9\ns_lshl_b32 s20, s21, 8\ns_add_u32 s29, s29, s20\ns_add_u32 s29, s29, {FE}")
a(f"v_and_b32 v{T}, 31, v2\nv_lshlrev_b32 v{T}, 3, v{T}")
poll_load(29, T+2, T)
a(f"s_lshl_b32 s26, s25, 16\ns_lshl_b32 s20, s21, 13\ns_add_u32 s26, s26, s20\ns_add_u32 s26, s26, {WFR}\ns_add_u32 s31, s26, 4096")
a(f"s_sub_u32 s20, s22, 6\ns_lshl_b32 s20, s20, 10\ns_add_u32 s20, s20, {XB}\nv_add_u32 v{IX}, s20, v1")
poll_check(29, T+2, T)
stamp("z1")
for x in range(8):
    a(f"buffer_load_dwordx4 {rg(WF+4*x,4)}, v{VL16}, s[12:15], s{26 + 5*(x>>2)} offen offset:{1024*(x&3)} {SC}")
a("P_g:")
for mt in range(max(M1, XM), 4): table_dma(mt)
a("s_cmp_ge_u32 s35, 800\ns_cbranch_scc1 P_e")
a(f"s_waitcnt vmcnt(17)")
a(f"s_mov_b64 exec, 1\nbuffer_store_dwordx2 {rg(AD+2,2)}, v{AD}, s[12:15], s75 offen {SC}\ns_mov_b64 exec, -1")
a("P_e:")
FR = GD
a(f"v_bfe_u32 v{T+2}, v2, 4, 1\nv_lshlrev_b32 v{T+2}, 1, v{T+2}\nv_bfe_u32 v{T}, v2, 2, 2\nv_mov_b32 v{T+1}, 0x3f80")
a(f"v_cmp_eq_u32 vcc, v{T+2}, v{T}\nv_add_u32 v{T+2}, 1, v{T+2}\ns_nop 0\nv_cndmask_b32 v{SEL}, 0, v{T+1}, vcc\nv_cmp_eq_u32 vcc, v{T+2}, v{T}")
a(f"v_mov_b32 v{SEL+1}, v{SEL}\nv_and_b32 v{T+2}, 3, v2\nv_cndmask_b32 v{SEL+2}, 0, v{T+1}, vcc\nv_mul_u32_u24 v{SIDX}, 0x5555, v{T+2}\nv_mov_b32 v{SEL+3}, v{SEL+2}")
a(f"v_and_b32 v3, 24, v2\nv_and_b32 v{T}, 3, v2\nv_lshl_add_u32 v3, v{T}, 1, v3\nv_bfe_u32 v{T}, v2, 2, 1\nv_add_u32 v3, v3, v{T}")
a(f"v_lshrrev_b32 v{T}, 5, v2\nv_lshlrev_b32 v{VSP}, 5, v3\nv_lshl_add_u32 v{VSP}, v{T}, 4, v{VSP}\ns_lshl_b32 s31, s22, 11\ns_add_u32 s31, s31, 131072\nv_add_u32 v{VSP}, s31, v{VSP}")
a(f"v_bfe_u32 v{T+1}, v3, 1, 3\nv_xor_b32 v{T+1}, v{T+1}, v{T}\nv_lshlrev_b32 v3, 7, v3\nv_lshl_add_u32 v3, v{T+1}, 4, v3\nv_add_u32 v{FR}, s23, v3")
for ks in range(1, 4): a(f"v_xor_b32 v{FR+ks}, {32*ks}, v{FR}")
for ks in range(4): a(f"v_add_u32 v{FR+4+ks}, 0x10000, v{FR+ks}")
a(f"v_add_u32 v{VXR}, {XB}, v1\nv_add_u32 v{VXW}, s33, v1")
a(f"v_lshrrev_b32 v0, 3, v2\nv_lshlrev_b32 v0, 14, v0\nv_lshl_add_u32 v0, v{T+4}, 4, v0")
a("s_lshl_b32 s28, s24, 3\ns_add_u32 s28, s28, s22\ns_mul_i32 s28, s28, 102400")
a(f"s_lshl_b32 s75, s24, 6\ns_lshl_b32 s33, s22, 3\ns_add_u32 s75, s75, s33\ns_lshl_b32 s75, s75, 6\ns_add_u32 s75, s75, s25\ns_lshl_b32 s75, s75, 8\ns_add_u32 s75, s75, {PART}")
a(f"v_lshlrev_b32 v{AD}, 3, v2\nv_min_u32 v{AD+1}, 33, v2\nv_lshlrev_b32 v{AD+1}, 3, v{AD+1}")
a(f"s_cmp_lg_u32 s22, {FIN}\ns_cbranch_scc1 P_f")
srd(a, 4, 40, 16384*26)
a(f"s_mov_b32 m0, {XWL}\ns_mul_i32 s20, s34, 1664\nbuffer_load_dwordx4 v1, s[4:7], s20 offen {NT} lds\nbuffer_load_dwordx4 v1, s[4:7], s20 offen offset:1024 {NT} lds")
srd(a, 4, 42, 26)
a(f"v_lshlrev_b32 v{T+10}, 1, v2\nv_mov_b32 v{T+11}, 0\nbuffer_load_ushort v{VWIDE}, v{T+10}, s[4:7], 0 offen")
srd(a, 4, 44, 2)
a(f"buffer_load_ushort v245, v{T+11}, s[4:7], 0 offen")
srd(a, 4, 52, 2)
a(f"buffer_load_ushort v255, v{T+11}, s[4:7], 0 offen")
a("P_f:")
a("s_cmp_lt_u32 s22, 6\ns_cbranch_scc1 P_h")
a(f"P_cnt:\nds_read_b32 v{IX+2}, v{IX+1}\ns_waitcnt lgkmcnt(0)\nv_readfirstlane_b32 s20, v{IX+2}\ns_cmp_lt_u32 s20, 8\ns_cbranch_scc1 P_cnt")
for x in range(8):
    a(f"s_waitcnt vmcnt({7-x + 4*(4-max(M1,XM))})\nds_write_b128 v{IX}, {rg(WF+4*x,4)} offset:{XS*x}")
a("P_h:")
a(f"s_lshr_b32 s29, s25, 4\ns_lshl_b32 s29, s29, 11\ns_and_b32 s20, s22, 3\ns_lshl_b32 s20, s20, 9\ns_add_u32 s29, s29, s20\ns_add_u32 s29, s29, {FW + 128}")
a(f"s_lshl_b32 s31, s24, 3\ns_add_u32 s31, s31, s22\ns_lshl_b32 s31, s31, 9\ns_add_u32 s31, s31, {FI}")
a(f"s_lshl_b32 s26, s25, 16\ns_lshl_b32 s20, s22, 10\ns_add_u32 s26, s26, s20\ns_add_u32 s26, s26, {WFR + 16384}")
a(f"s_cmp_eq_u32 s22, {FIN}\ns_cbranch_scc1 P_i\ns_waitcnt vmcnt(0)\nP_i:\ns_waitcnt vmcnt(5)")
stamp()
for mt in range(4):
    for ks in range(4):
        a(f"ds_read_b128 {rg(TAB+16*mt+4*ks,4)}, v{FR+4*(mt>>1)+ks} offset:{4096*(mt&1)}")
a("s_setprio 0\ns_waitcnt lgkmcnt(0)\ns_barrier")
stamp()
def wf_read(off=0):
    for x in range(8):
        a(f"ds_read_b128 {rg(WF+4*x,4)}, v{VXR} offset:{XS*x + off}")
wf_read(1024)
poll_load(31, AD+2, AD)
a("s_lshl_b32 s68, s70, 16\ns_and_b32 s69, s70, 0xffff0000\ns_lshl_b32 s70, s71, 16\ns_and_b32 s71, s71, 0xffff0000")
def tg_mfma(mt, ks, e, d):
    c = "0" if ks == 0 else rg(d, 16)
    return f"v_mfma_f32_32x32x16_bf16 {rg(d,16)}, {rg(TAB+16*mt+4*ks,4)}, {rg(WF+16*e+4*ks,4)}, {c}"
D0, D1 = POOL+32, POOL+48
def tgen_groups():
    g = []
    for mt in range(3):
        for ks in range(4):
            for e in range(2):
                g.append([tg_mfma(mt, ks, e, D0 if e == 0 else D1)])
        g.append([]); g.append([])
        for r in range(0, 16, 4):
            g.append([f"v_cvt_pk_bf16_f32 v{POOL+16*mt+r+x}, v{D0+r+x}, v{D1+r+x}" for x in range(4)])
    for ks in range(4): g.append([tg_mfma(3, ks, 0, D1)])
    for ks in range(4): g.append([tg_mfma(3, ks, 1, WF)])
    g.append([]); g.append([])
    for r in range(0, 16, 4):
        g.append([f"v_cvt_pk_bf16_f32 v{D1+r+x}, v{D1+r+x}, v{WF+r+x}" for x in range(4)])
    return g
def wr_op(r):
    off = r*256 if r < 32 else 57472 + (r-32)*256
    pre = ["s_mov_b32 m0, s30", "s_nop 0"] if r == 32 else []
    return pre + [f"ds_write_addtid_b32 v{POOL+r} offset:{off}"]
a("s_mov_b32 m0, s23\ns_waitcnt lgkmcnt(0)")
def pro_d(mt): return [(ACC, ACC+16), (D0, D1), (ACC, ACC+16), (D1, GD)][mt]
pend = []
for mt in range(4):
    d0, d1 = pro_d(mt)
    seq = [(ks, e) for ks in range(4) for e in range(2)]
    if mt == 2:
        poll_check(31, AD+2, AD)
        stamp("y1")
        for x in range(4):
            a(f"buffer_load_dwordx4 {rg(IX+4*x,4)}, v{VL16}, s[12:15], s28 offen offset:{1024*x} {SC}")
        poll_load(29, RAW, AD+1)
        a("s_add_u32 s28, s28, 4096\ns_mov_b32 s21, 0")
    for n, (ks, e) in enumerate(seq):
        a(tg_mfma(mt, ks, e, d0 if e == 0 else d1))
        if n >= 2:
            take = (len(pend) + (7 - n)) // (8 - n)
            for o in pend[:take]: a(o)
            pend = pend[take:]
        elif mt > 0: a("s_nop 4")
    assert not pend
    for r in range(16):
        pend.append(f"v_cvt_pk_bf16_f32 v{POOL+16*mt+r}, v{d0+r}, v{d1+r}")
    for r in range(16): pend.extend(wr_op(16*mt + r))
stamp("y2")
wf_read()
for s in range(8):
    for c in range(4): a(f"v_mov_b32 v{ACC+4*s+c}, s{68+c}")
for o in pend: a(o)
poll_check(29, RAW, AD+1)
a(f"s_cmp_lg_u32 s22, {FIN}\ns_cbranch_scc1 P_j")
X = T + 12
a(f"v_and_b32 v{X}, 7, v2\nv_bfe_u32 v{X+1}, v2, 3, 1\nv_lshl_add_u32 v{X}, v{X+1}, 5, v{X}\nv_lshrrev_b32 v{X+1}, 4, v2\nv_lshl_add_u32 v{X}, v{X+1}, 3, v{X}\nv_mul_u32_u24 v{X}, 26, v{X}\nv_add_u32 v{X}, {XWL}, v{X}")
for k in range(13): a(f"ds_read_u16 v{X+2+k}, v{X} offset:{2*k}")
a(f"v_lshlrev_b32 v{X+1}, 16, v{VWIDE}\nv_lshlrev_b32 v245, 16, v245\nv_lshlrev_b32 v255, 16, v255")
a("s_waitcnt lgkmcnt(0)")
for k in range(13): a(f"v_readlane_b32 s{36+k}, v{X+1}, {k}")
a("v_readfirstlane_b32 s74, v255")
for k in range(13): a(f"v_lshlrev_b32 v{X+2+k}, 16, v{X+2+k}")
a(f"v_mul_f32 v{VWIDE}, s36, v{X+2}")
for k in range(1, 13): a(f"v_fmac_f32 v{VWIDE}, s{36+k}, v{X+2+k}")
rnd(VWIDE); a(f"v_add_f32 v{VWIDE}, v{VWIDE}, v245"); rnd(VWIDE)
a("P_j:")
a("s_waitcnt lgkmcnt(0)\ns_barrier")
stamp()

def gather_phase(nunits, side, acc_of):
    NG = nunits * 8
    log = [("ix", u) for u in range(4)]
    def vm_wait(tag):
        idx = len(log) - 1 - log[::-1].index(tag)
        a(f"s_waitcnt vmcnt({len(log) - 1 - idx})")
    def issue(g):
        u = g // 8
        if g % 8 == 0: vm_wait(("ix", u))
        ad = AD + (g & 3)
        d = IX + 4*(u & 3) + (g % 8)//2
        a(f"v_lshlrev_b32_sdwa v{ad}, 3, v{d} dst_sel:DWORD dst_unused:UNUSED_PAD src0_sel:DWORD src1_sel:WORD_{g&1}")
        q = GD + (2*g) % NGD
        a(f"ds_read_b64 {rg(q,2)}, v{ad}")
        if g % 8 == 7 and (nunits == 16 or u + 4 < nunits):
            if u + 4 >= 16 and nunits == 20:
                for h in range(2):
                    a(f"buffer_load_dwordx2 {rg(IX+4*(u&3)+2*h,2)}, v{VXW}, s[12:15], s28 offen offset:{1024*(u&3)+512*h} {SC}")
                    log.append(("ix", u + 4))
            else:
                a(f"buffer_load_dwordx4 {rg(IX+4*(u&3),4)}, v{VL16}, s[12:15], s28 offen offset:{1024*(u&3)} {SC}")
                log.append(("ix", u + 4))
            if u & 3 == 3: a("s_add_u32 s28, s28, 4096")
    for g in range(AHEAD): issue(g)
    for g in range(NG):
        if g + AHEAD < NG: issue(g + AHEAD)
        if g % 4 == 3:
            a(f"s_waitcnt lgkmcnt({min(AHEAD, NG-1-g)})")
            q = GD + (2*(g-3)) % NGD
            s = acc_of(g // 4)
            a(f"v_smfmac_f32_16x16x64_bf16 {rg(ACC+4*s,4)}, {rg(SEL,4)}, {rg(q,8)}, v{SIDX}")
        for o in side.get(g, []):
            if isinstance(o, tuple):
                a(o[0]); log.append(o[1])
            else: a(o)
    return log, vm_wait
def spread(groups, g0, g1):
    side = {}
    for i, o in enumerate(groups):
        g = g0 + (i * (g1 - g0)) // len(groups)
        side.setdefault(g, []).extend(o)
    return side
pad(PADPRO)
a("L_G:")
g_start = len(a.lines)
side = spread(tgen_groups(), TG0, TG1)
side.setdefault(RAWAT, []).extend([(f"buffer_load_dwordx4 {rg(RAW,4)}, v{VL16}, s[12:15], s26 offen {SC}", ("raw", 0)), "s_add_u32 s26, s26, 8192"])
log, vm_wait = gather_phase(16, side, lambda o: o // 4)
vm_wait(("raw", 0))
a(f"ds_write_b128 v{VXW}, {rg(RAW,4)}")
a("s_mov_b32 m0, s23\ns_add_u32 s21, s21, 1\ns_waitcnt lgkmcnt(0)\ns_barrier")
for r in range(64):
    for o in wr_op(r): a(o)
a("s_cmp_eq_u32 s21, 5\ns_cbranch_scc1 L_Wlast")
wf_read()
a("s_waitcnt vmcnt(0)\ns_cmp_lg_u32 s21, 1\ns_cbranch_scc1 L_nosent")
for x in range(4): a(f"v_mov_b32 v{RAW+x}, -1")
a(f"buffer_store_dwordx4 {rg(RAW,4)}, v0, s[12:15], s75 offen {SC}\nbuffer_store_dwordx4 {rg(RAW,4)}, v0, s[12:15], s75 offen offset:128 {SC}")
a("L_nosent:")
a("s_waitcnt lgkmcnt(8)\ns_barrier\ns_branch L_G")
g_end = len(a.lines)
a("L_Wlast:")
a(f"v_and_b32 v{AD}, 1, v2\nv_mul_u32_u24 v{AD}, {4*XS}, v{AD}\nv_bfe_u32 v{AD+1}, v2, 1, 1\nv_lshl_add_u32 v{AD}, v{AD+1}, 4, v{AD}")
a(f"v_bfe_u32 v{AD+1}, v2, 3, 1\nv_lshl_add_u32 v{AD}, v{AD+1}, 5, v{AD}\nv_bfe_u32 v{AD+1}, v2, 2, 1\nv_lshl_add_u32 v{AD}, v{AD+1}, 6, v{AD}")
a(f"v_lshrrev_b32 v{AD+1}, 5, v2\nv_lshl_add_u32 v{AD}, v{AD+1}, 9, v{AD}\nv_add_u32 v{AD}, {XB}, v{AD}")
for x in range(4): a(f"ds_read_b128 {rg(WF+4*x,4)}, v{AD} offset:{XS*x}")
a(f"v_lshlrev_b32 v{VXW}, 3, v2")
a("s_cmp_lg_u32 s22, 0\ns_cbranch_scc1 L_Glast")
a(f"s_lshl_b32 s31, s34, 3\ns_add_u32 s31, s31, {F2}")
flag_store(31)
a("L_Glast:")
a("s_waitcnt lgkmcnt(0)\ns_barrier")
sp = []
for mt in range(4):
    d = POOL + 16*mt
    for ks in range(4):
        c = "0" if ks == 0 else rg(d, 16)
        sp.append([f"v_mfma_f32_32x32x16_bf16 {rg(d,16)}, {rg(WF+4*ks,4)}, {rg(TAB+16*mt+4*ks,4)}, {c}"])
sp.append([]); sp.append([])
for mt in range(4):
    d = POOL + 16*mt
    sp.append([f"v_cvt_pk_bf16_f32 v{d+x}, v{d+2*x}, v{d+2*x+1}" for x in range(4)])
wr_ops = []
for mt in range(4):
    d = POOL + 16*mt
    off = (32*(mt & 1) + 512*(mt >> 1)) * 32
    wr_ops.append(f"ds_write_b128 v{VSP}, {rg(d,4)} offset:{off}")
sp.append(wr_ops + ["s_waitcnt lgkmcnt(0)", "s_barrier"])
side = spread(sp, 4, 100)
side.setdefault(130, []).extend(["s_lshl_b32 s31, s24, 9", f"s_add_u32 s31, s31, {F2}",
                                 (f"buffer_load_dwordx2 {rg(RAW,2)}, v{VXW}, s[12:15], s31 offen {SC}", ("f2", 0))])
gather_phase(20, side, lambda o: o // 4 if o < 32 else o - 32)
stamp()
a("s_mov_b32 s20, 0\ns_mov_b32 s33, -2\ns_nop 5")
for s in range(8):
    a(f"v_cvt_pk_bf16_f32 v{POOL+2*s}, v{ACC+4*s}, v{ACC+4*s+1}\nv_cvt_pk_bf16_f32 v{POOL+2*s+1}, v{ACC+4*s+2}, v{ACC+4*s+3}")
for x in range(16):
    a(f"v_pk_max_i16 v{POOL+x}, v{POOL+x}, 0")
for s in range(8):
    a(f"v_dot2_f32_bf16 v{POOL+16+s}, v{POOL+2*s}, s72, 0")
for s in range(8):
    a(f"v_dot2_f32_bf16 v{POOL+16+s}, v{POOL+2*s+1}, s73, v{POOL+16+s}")
for s in range(8):
    a(f"v_min_u32 v{POOL+16+s}, s33, v{POOL+16+s}")
a("R_f2:")
a(f"s_waitcnt vmcnt(0)\nv_cmp_ne_u64 vcc, s[64:65], {rg(RAW,2)}\ns_cbranch_vccz R_f2ok")
a(f"s_sleep 1\nbuffer_load_dwordx2 {rg(RAW,2)}, v{VXW}, s[12:15], s31 offen {SC}\ns_add_u32 s20, s20, 1\ns_cmp_lt_u32 s20, 0x8000\ns_cbranch_scc1 R_f2")
a("R_f2ok:")
a(f"buffer_store_dwordx4 {rg(POOL+16,4)}, v0, s[12:15], s75 offen {SC}\nbuffer_store_dwordx4 {rg(POOL+20,4)}, v0, s[12:15], s75 offen offset:128 {SC}")
a(f"s_lshl_b32 s31, s34, 14\ns_lshl_b32 s33, s22, 11\ns_add_u32 s31, s31, s33\ns_add_u32 s31, s31, {PART}\ns_mov_b32 s20, 0")
if int(opts.get("rack", 1)): a("s_waitcnt vmcnt(0)")
Y = TAB
a("R_poll:")
a(f"buffer_load_dwordx4 {rg(Y,4)}, v1, s[12:15], s31 offen {SC}\nbuffer_load_dwordx4 {rg(Y+4,4)}, v1, s[12:15], s31 offen offset:1024 {SC}")
a("s_add_u32 s20, s20, 1\ns_waitcnt vmcnt(0)")
a(f"v_max3_u32 v{Y+8}, v{Y}, v{Y+1}, v{Y+2}\nv_max3_u32 v{Y+9}, v{Y+3}, v{Y+4}, v{Y+5}\nv_max3_u32 v{Y+8}, v{Y+8}, v{Y+6}, v{Y+7}\nv_max_u32 v{Y+8}, v{Y+8}, v{Y+9}")
a(f"v_cmp_eq_u32 vcc, -1, v{Y+8}\ns_cbranch_vccz R_ok")
a(f"s_sleep {RSLEEP}\ns_cmp_lt_u32 s20, 0x8000\ns_cbranch_scc1 R_poll")
a("R_ok:")
stamp("y3")
for x in range(4): a(f"v_add_f32 v{Y+x}, v{Y+x}, v{Y+4+x}")
a(f"s_lshl_b32 s33, s22, 8\nv_lshlrev_b32 v{Y+8}, 2, v2\nv_permlane32_swap_b32 v{Y}, v{Y+2}\nv_permlane32_swap_b32 v{Y+1}, v{Y+3}\nv_add_u32 v{Y+9}, s33, v{Y+8}\nv_add_f32 v{Y}, v{Y}, v{Y+2}\nv_add_f32 v{Y+1}, v{Y+1}, v{Y+3}\ns_nop 1\nv_permlane16_swap_b32 v{Y}, v{Y+1}\ns_nop 1\nv_add_f32 v{Y}, v{Y}, v{Y+1}")
a(f"v_add_u32 v{Y+9}, {PADR}, v{Y+9}\nv_add_u32 v{Y+8}, {PADR}, v{Y+8}\nds_write_b32 v{Y+9}, v{Y}\ns_waitcnt lgkmcnt(0)\ns_barrier")
a(f"s_cmp_lg_u32 s22, {FIN}\ns_cbranch_scc1 M_fin")
for k in range(8): a(f"ds_read_b32 v{Y+k}, v{Y+8} offset:{256*k}")
srd(a, 8, 54, 32768)
a(f"v_and_b32 v{Y+10}, 7, v2\nv_bfe_u32 v{Y+11}, v2, 3, 1\nv_lshl_add_u32 v{Y+10}, v{Y+11}, 5, v{Y+10}\nv_lshrrev_b32 v{Y+11}, 4, v2\nv_lshl_add_u32 v{Y+10}, v{Y+11}, 3, v{Y+10}\ns_lshl_b32 s20, s34, 6\nv_add_u32 v{Y+10}, s20, v{Y+10}\nv_lshlrev_b32 v{Y+10}, 1, v{Y+10}")
a("s_waitcnt lgkmcnt(0)")
a(f"v_add_f32 v{Y}, v{Y}, v{Y+1}\nv_add_f32 v{Y+2}, v{Y+2}, v{Y+3}\nv_add_f32 v{Y+4}, v{Y+4}, v{Y+5}\nv_add_f32 v{Y+6}, v{Y+6}, v{Y+7}\nv_add_f32 v{Y}, v{Y}, v{Y+2}\nv_add_f32 v{Y+4}, v{Y+4}, v{Y+6}\nv_add_f32 v{Y}, v{Y}, v{Y+4}")
rnd(Y); a(f"v_add_f32 v{Y}, s74, v{Y}"); rnd(Y)
a(f"v_add_f32 v{Y}, v{Y}, v{VWIDE}"); rnd(Y)
a(f"v_mul_f32 v{Y}, 0xbfb8aa3b, v{Y}\nv_exp_f32 v{Y}, v{Y}\ns_nop 0\nv_add_f32 v{Y}, 1.0, v{Y}\nv_rcp_f32 v{Y}, v{Y}\ns_nop 0\nv_cvt_pk_bf16_f32 v{Y}, v{Y}, v{Y}")
a(f"buffer_store_short v{Y}, v{Y+10}, s[8:11], 0 offen")
a("M_fin:")
if int(opts.get("xcc", 0)):
    a("s_and_b32 s20, s2, 7\ns_cmp_lg_u32 s20, 0\ns_cbranch_scc1 M_end\ns_getreg_b32 s21, hwreg(HW_REG_XCC_ID)\ns_and_b32 s21, s21, 15\ns_bfe_u32 s20, s65, 0x40018\ns_cmp_eq_u32 s20, s21\ns_cbranch_scc1 M_end")
pad(PADEND)
if STAMP:
    a(f"s_cmp_lg_u32 s22, {SW}\ns_cbranch_scc1 M_end")
    a("s_waitcnt vmcnt(0)")
    stamp()
    a("s_waitcnt lgkmcnt(0)")
    n = nst[0]
    a(f"s_mul_i32 s31, s2, {8*n}\ns_add_u32 s31, s31, 0x8000000\nv_mov_b32 v2, 0")
    for k in range(n):
        a(f"v_mov_b32 v4, s{76+2*k}\nv_mov_b32 v5, s{77+2*k}\nbuffer_store_dwordx2 v[4:5], v2, s[12:15], s31 offen offset:{8*k}\ns_waitcnt vmcnt(0)")
    print("nstamps", n)
a("M_end:\ns_endpgm")
L = a.lines
errs = hazard.check(L[st:g_end] + L[g_start:], "main")
a.raw(kernel_desc(MAIN, 256, 102, 256))
for e in sorted(set(errs)): print("HAZARD", e)
open(sys.argv[1], "w").write(a.text())
```

```python
import sys
from common import *
import hazard
opts = dict(x.split("=") for x in sys.argv[2:])
AHEAD = int(opts.get("ahead", 8)); STAMP = int(opts.get("stamp", 0)); SW = int(opts.get("sw", 3))
SC = "sc1"
NT = "nt" if int(opts.get("nt", 0)) else ""
SST = opts.get("sst", "sc1").replace("_", " ")
SLEEP = int(opts.get("sleep", 1)); RSLEEP = int(opts.get("rsleep", 2))
TG0 = int(opts.get("tg0", 4)); TG1 = int(opts.get("tg1", 122)); RAWAT = int(opts.get("rawat", 40))
WS_BYTES = 268435456
IDX16 = 0; WFR = 4 << 20; PART = 8 << 20; FI = 16 << 20; FW = FI + 16384; F2 = FI + 24576; FE = FI + 28672
LDELAY = int(opts.get('ldelay', 0)); M1 = int(opts.get('m1', 1)); M2 = int(opts.get('m2', 2))
STG = 131072; XWL = STG + 25600; XB = 131072; XS = 3200; PADR = 128000
ETAB = 0; WT = 12 << 20; MID = int(opts.get('mid', 2)); TOUCH = int(opts.get('touch', 1))
a = Asm()
a.raw(HEADER_COMMENT.rstrip("\n"))
a.raw("; @launch grid=(256,1,1) block=(512,1,1) lds=163840")
a.raw('.amdgcn_target "amdgcn-amd-amdhsa--gfx950"')
kernel_begin(a, MAIN)
TAB=4; ACC=68; WF=100; POOL=132; GD=196; NGD=32; IX=228; AD=GD+24; SEL=244; SIDX=252
RAW=248; VXW=253; VXR=254; VWIDE=3; VSP=255
Z0=GD+28; Z1=GD+29; Z2=GD+30; Z3=GD+31
VL16=1
T = POOL; U = GD
FIN = 3; POLLW = 7
def rg(b, n): return f"v[{b}:{b+n-1}]"
nst = [0]
SKIP = set(opts.get("skip", "x1,x2,x3,x4,z1").split(","))
def stamp(name=""):
    if STAMP and name not in SKIP and not (int(opts.get("cyc", 0)) and nst[0] >= 6):
        k = nst[0]; nst[0] += 1
        assert k < 13
        a(f"s_memrealtime s[{76+2*k}:{77+2*k}]")
def rnd(r): a(f"v_cvt_pk_bf16_f32 v{r}, v{r}, v{r}\nv_lshlrev_b32 v{r}, 16, v{r}")
PADEND = int(opts.get("padend", 0)); PADPRO = int(opts.get("padpro", 0))
def pad(ticks):
    if not ticks: return
    l = newlab("PAD_")
    a(f"{l}:\ns_memrealtime s[32:33]\ns_waitcnt lgkmcnt(0)\ns_sub_u32 s32, s32, s64\ns_cmp_lt_i32 s32, {ticks}\ns_cbranch_scc1 {l}")
lab = [0]
def newlab(p):
    lab[0] += 1; return f"{p}{lab[0]}"
st = len(a.lines)
a("s_cmp_ge_u32 s2, 256\ns_cbranch_scc1 M_end")
stamp()
if int(opts.get("prio", 0)): a("s_setprio 2")
a("s_load_dwordx16 s[36:51], s[0:1], 0\ns_load_dwordx8 s[52:59], s[0:1], 64\ns_memrealtime s[64:65]")
a("s_getpc_b64 s[32:33]\nC_base:\ns_lshr_b32 s29, s2, 3\ns_lshl_b32 s20, s29, 9\nv_lshl_add_u32 v224, v0, 7, s20\nv_min_u32 v224, M_end-C_base, v224")
a("v_cmp_gt_u32 vcc, 4, v0\ns_and_saveexec_b64 s[20:21], vcc\ns_cbranch_execz C_skip\nglobal_load_dword v224, v224, s[32:33]\nC_skip:\ns_mov_b64 exec, -1")
a("v_and_b32 v2, 63, v0\nv_lshrrev_b32 v227, 6, v0\nv_lshlrev_b32 v1, 4, v2\nv_readfirstlane_b32 s22, v227")
a("s_and_b32 s20, s2, 7\ns_lshr_b32 s24, s20, 1\ns_and_b32 s20, s20, 1\ns_lshl_b32 s20, s20, 5\ns_add_u32 s25, s20, s29")
a("s_lshl_b32 s34, s24, 6\ns_add_u32 s34, s34, s25")
a("s_lshl_b32 s35, s22, 8\ns_add_u32 s35, s35, s34")
a(f"v_lshrrev_b32 v{U}, 4, v2\nv_and_b32 v{U+1}, 15, v2\nv_lshlrev_b32 v{U+2}, 15, v{U}\nv_lshl_add_u32 v{U+2}, v{U+1}, 3, v{U+2}\nv_mov_b32 v{U+5}, 0")
a("s_lshr_b32 s20, s35, 5\ns_lshl_b32 s20, s20, 17\ns_bfe_u32 s21, s35, 0x30002\ns_lshl_b32 s21, s21, 12\ns_add_u32 s20, s20, s21\ns_and_b32 s21, s35, 3\ns_lshl_b32 s21, s21, 7\ns_add_u32 s31, s20, s21")
a(f"s_mul_i32 s20, s34, 25600\ns_mul_i32 s21, s22, 3200\ns_add_u32 s20, s20, s21\ns_add_u32 s33, s21, {STG}\ns_mov_b32 m0, s33")
a("s_lshl_b32 s23, s22, 13\ns_add_u32 s30, s23, 8064")
a("s_mov_b32 s18, 3276800\ns_mov_b32 s19, 0x00020000\ns_mov_b32 s6, 6553600\ns_mov_b32 s7, 0x00020000")
a("s_waitcnt lgkmcnt(0)")
stamp()
a("s_mov_b32 s16, s46\ns_and_b32 s17, s47, 0xffff\ns_mov_b32 s4, s36\ns_and_b32 s5, s37, 0xffff")
srd(a, 60, 56, 256)
srd(a, 12, 58, WS_BYTES)
CNT = 163836
a("s_lshl_b32 s21, s2, 3\ns_add_u32 s21, s21, s22\ns_cmp_lg_u32 s21, 6\ns_cbranch_scc1 P_n0")
if int(opts.get("xcc", 0)):
    a("s_getreg_b32 s21, hwreg(HW_REG_XCC_ID)\ns_and_b32 s21, s21, 15\ns_lshl_b32 s21, s21, 24\ns_and_b32 s65, s65, 0xffffff\ns_or_b32 s65, s65, s21")
a(f"v_mov_b32 v{T+4}, s64\nv_mov_b32 v{T+5}, s65\nv_mov_b32 v{T+6}, 0\nv_or_b32 v{T+5}, 0x80000000, v{T+5}\ns_mov_b64 exec, 1")
a(f"buffer_store_dwordx2 {rg(T+4,2)}, v{T+6}, s[60:63], 0 offen {SC}\ns_mov_b64 exec, -1")
a("P_n0:")
WR_ = U + 8
def w1_loads():
    for j8 in range(8):
        a(f"buffer_load_dwordx2 {rg(WR_+2*j8,2)}, v{U+2}, s[16:19], s31 offen offset:{512*j8} {NT}")
a("s_cmp_lg_u32 s22, 0\ns_cbranch_scc1 P_now1")
w1_loads()
a("P_now1:")
for r in range(3):
    a(f"buffer_load_dwordx4 v1, s[4:7], s20 offen offset:{1024*r} {NT} lds")
a(f"s_mov_b64 exec, 0xff\nbuffer_load_dwordx4 v1, s[4:7], s20 offen offset:3072 {NT} lds\ns_mov_b64 exec, -1")
srd(a, 8, 38, 128000)
a(f"v_mov_b32 v{IX+1}, {CNT}\nds_write_b32 v{IX+1}, v{U+5}\ns_waitcnt lgkmcnt(0)\ns_barrier")
if int(opts.get("dw", 1)): a("s_cmp_lg_u32 s22, 5\ns_cbranch_scc1 P_n5\ns_load_dword s74, s[56:57], 192\nP_n5:")
a(f"s_cmp_lt_u32 s22, 4\ns_cbranch_scc1 P_lo\ns_cmp_lg_u32 s22, 4\ns_cbranch_scc1 P_skip")
a(f"v_and_b32 v224, 31, v2\nv_lshlrev_b32 v224, 7, v224\ns_lshl_b32 s21, s29, 12\nbuffer_load_dword v224, v224, s[8:11], s21 offen\ns_branch P_skip")
def nonce_load(): a("s_load_dwordx2 s[64:65], s[56:57], 0")
def nonce_get():
    l = newlab("N_")
    a(f"s_waitcnt lgkmcnt(0)\ns_cmp_lt_i32 s65, 0\ns_cbranch_scc1 {l}ok\ns_mov_b32 s20, 0\nv_mov_b32 v{AD}, 0")
    a(f"{l}:")
    a(f"buffer_load_dwordx2 {rg(AD+2,2)}, v{AD}, s[60:63], 0 offen {SC}\ns_add_u32 s20, s20, 1\ns_waitcnt vmcnt(0)")
    a(f"v_readfirstlane_b32 s64, v{AD+2}\nv_readfirstlane_b32 s65, v{AD+3}\ns_cmp_lt_i32 s65, 0\ns_cbranch_scc1 {l}ok")
    a(f"s_sleep 1\ns_cmp_lt_u32 s20, 0x8000\ns_cbranch_scc1 {l}")
    a(f"{l}ok:")
def flag_store(sreg):
    a(f"v_mov_b32 v{AD}, 0\nv_mov_b32 v{AD+2}, s64\nv_mov_b32 v{AD+3}, s65\ns_mov_b64 exec, 1")
    a(f"buffer_store_dwordx2 {rg(AD+2,2)}, v{AD}, s[12:15], s{sreg} offen {SC}\ns_mov_b64 exec, -1")
def w1_process():
    PR = WF
    for c in range(4):
        for d in range(4):
            a(f"v_perm_b32 v{PR+4*c+d}, v{WR_+2*(2*d+1)+(c>>1)}, v{WR_+2*(2*d)+(c>>1)}, s{66+(c&1)}")
    for c in range(4):
        a(f"ds_write_b128 v{U+3}, {rg(PR+4*c,4)} offset:{(c&1)*128 + (c>>1)*16}")
    a("s_waitcnt lgkmcnt(0)")
    for r in range(4):
        a(f"ds_read_b128 {rg(PR+16+4*r,4)}, v{U+4} offset:{r*4*272}")
    for r in range(4):
        a(f"s_waitcnt lgkmcnt({3-r})\nbuffer_store_dwordx4 {rg(PR+16+4*r,4)}, v{U+5}, s[12:15], s26 offen {SC}\ns_add_u32 s26, s26, {4*65536}")
a("P_lo:")
a("s_cmp_ge_u32 s35, 800\ns_cbranch_scc1 P_skip")
a("s_mov_b32 s66, 0x05040100\ns_mov_b32 s67, 0x07060302\ns_add_u32 s21, s23, 0x10000")
a(f"v_mul_u32_u24 v{U+3}, 272, v{U+1}\nv_lshl_add_u32 v{U+3}, v{U}, 5, v{U+3}\nv_add_u32 v{U+3}, s21, v{U+3}")
a(f"v_mul_u32_u24 v{U+4}, 272, v{U}\nv_lshl_add_u32 v{U+4}, v{U+1}, 4, v{U+4}\nv_add_u32 v{U+4}, s21, v{U+4}")
a(f"v_lshlrev_b32 v{U+5}, 16, v{U}\nv_bfe_u32 v{U+6}, v2, 3, 1\nv_lshl_add_u32 v{U+5}, v{U+6}, 12, v{U+5}\nv_and_b32 v{U+6}, 7, v2\nv_lshl_add_u32 v{U+5}, v{U+6}, 4, v{U+5}")
a("s_and_b32 s26, s35, 3\ns_lshl_b32 s26, s26, 20\ns_lshr_b32 s21, s35, 7\ns_lshl_b32 s21, s21, 13\ns_add_u32 s26, s26, s21\ns_bfe_u32 s21, s35, 0x30002\ns_lshl_b32 s21, s21, 9\ns_add_u32 s26, s26, s21")
a(f"s_bfe_u32 s21, s35, 0x20005\ns_lshl_b32 s21, s21, 7\ns_add_u32 s26, s26, s21\ns_add_u32 s26, s26, {WFR}")
a(f"s_and_b32 s75, s35, 3\ns_lshl_b32 s75, s75, 11\ns_bfe_u32 s21, s35, 0x20003\ns_lshl_b32 s21, s21, 9\ns_add_u32 s75, s75, s21\ns_lshr_b32 s21, s35, 5\ns_lshl_b32 s21, s21, 4\ns_add_u32 s75, s75, s21\ns_bfe_u32 s21, s35, 0x10002\ns_lshl_b32 s21, s21, 3\ns_add_u32 s75, s75, s21\ns_add_u32 s75, s75, {FW}")
a("s_cmp_lg_u32 s22, 0\ns_cbranch_scc1 P_skip")
a(f"s_and_b32 s75, s35, 3\ns_lshl_b32 s75, s75, 9\ns_lshr_b32 s21, s35, 2\ns_lshl_b32 s21, s21, 3\ns_add_u32 s75, s75, s21\ns_add_u32 s75, s75, {FE}")
a("s_waitcnt vmcnt(4)")
w1_process()
a("P_skip:")
stamp("x2")
a(f"v_and_b32 v{T+4}, 7, v2\nv_lshrrev_b32 v{T+5}, 3, v2")
a(f"s_and_b32 s20, s34, 1\ns_lshl_b32 s20, s20, 3\nv_add_u32 v{T+6}, s20, v{T+4}")
a(f"v_mul_u32_u24 v{T+7}, 400, v{T+4}\nv_add_u32 v{T+7}, s33, v{T+7}")
a(f"v_and_b32 v{T+8}, 1, v{T+5}\nv_lshrrev_b32 v{T+9}, 1, v{T+5}")
a(f"v_lshlrev_b32 v{T+10}, 3, v{T+8}\nv_xor_b32 v{T+10}, v{T+10}, v{T+6}")
a(f"v_lshl_add_u32 v{T+11}, v{T+9}, 6, v{T+7}")
a(f"v_lshlrev_b32 v{T+9}, 14, v{T+9}\nv_lshl_add_u32 v{T+9}, v{T+8}, 10, v{T+9}\nv_lshl_add_u32 v{T+9}, v{T+4}, 4, v{T+9}")
SL, LA_, RD, PK, SS = T+12, T+20, T+28, T+44, T+52
for u in range(8):
    a(f"v_xor_b32 v{SL+u}, {u}, v{T+10}")
    a(f"v_lshl_add_u32 v{LA_+u}, v{SL+u}, 2, v{T+11}")
a(f"v_and_b32 v{T+10}, 3, v{T+4}")
for u in range(4):
    a(f"v_xor_b32 v{SS+u}, {u}, v{T+10}\nv_lshl_add_u32 v{SS+4+u}, v{SS+u}, 2, v{T+7}\nv_add_u32 v{SS+u}, 16384, v{SS+u}")
a("s_lshr_b32 s27, s34, 3\ns_mul_i32 s27, s27, 102400\ns_lshl_b32 s20, s22, 11\ns_add_u32 s28, s27, s20\ns_and_b32 s21, s34, 7\ns_lshl_b32 s20, s21, 7\ns_add_u32 s28, s28, s20")
a(f"s_lshl_b32 s20, s22, 9\ns_add_u32 s27, s27, s20\ns_lshl_b32 s20, s21, 6\ns_add_u32 s27, s27, s20\ns_add_u32 s27, s27, 98304\nv_lshlrev_b32 v{T+8}, 3, v{T+4}")
TD = RAW
a(f"v_xor_b32 v{TD+1}, v{T+4}, v{U}\nv_lshlrev_b32 v{TD}, 7, v{T+5}\nv_lshl_add_u32 v{TD}, v{TD+1}, 4, v{TD}\nv_xor_b32 v{TD+1}, 64, v{TD}")
stamp("x1")
a(f"s_cmp_eq_u32 s22, 0\ns_cbranch_scc1 P_c4\ns_cmp_eq_u32 s22, 4\ns_cbranch_scc1 P_c1")
a("s_waitcnt vmcnt(0)\nP_c1:\ns_waitcnt vmcnt(1)\nP_c4:\ns_waitcnt vmcnt(4)")
stamp()
for u in range(8): a(f"ds_read_b32 v{RD+u}, v{LA_+u}")
for u in range(8): a(f"ds_read_b32 v{RD+8+u}, v{LA_+u} offset:256")
for u in range(4): a(f"ds_read_b32 v{SS+8+u}, v{SS+4+u} offset:384")
def conv(k):
    for u in range(8):
        a(f"v_lshl_add_u32 v{RD+8*k+u}, v{RD+8*k+u}, 4, v{SL+u}")
    for d in range(4):
        a(f"v_lshl_or_b32 v{PK+4*k+d}, v{RD+8*k+2*d+1}, 16, v{RD+8*k+2*d}")
a("s_waitcnt lgkmcnt(12)")
conv(0)
a(f"buffer_store_dwordx4 {rg(PK,4)}, v{T+9}, s[12:15], s28 offen {SC}")
a("s_waitcnt lgkmcnt(0)")
nonce_load()
conv(1)
for u in range(4): a(f"v_lshl_add_u32 v{SS+8+u}, v{SS+8+u}, 2, v{SS+u}")
a(f"v_lshl_or_b32 v{SS+4}, v{SS+9}, 16, v{SS+8}\nv_lshl_or_b32 v{SS+5}, v{SS+11}, 16, v{SS+10}")
a(f"s_add_u32 s28, s28, 65536\ns_mov_b32 exec_hi, 0\nbuffer_store_dwordx4 {rg(PK+4,4)}, v{T+9}, s[12:15], s28 offen {SC}")
a(f"s_mov_b64 exec, 0xff\nbuffer_store_dwordx2 {rg(SS+4,2)}, v{T+8}, s[12:15], s27 offen {SC}\ns_mov_b64 exec, -1")
stamp("x3")
BA = int(opts.get("ba", 0))
a(f"v_mov_b32 v{IX+2}, 1\ns_mov_b64 exec, 1\nds_add_u32 v{IX+1}, v{IX+2}\ns_mov_b64 exec, -1")
a("s_cmp_lg_u32 s22, 0\ns_cbranch_scc1 P_c")
nonce_get()
a("s_waitcnt vmcnt(3)")
flag_store(75)
a("s_mov_b32 s35, 4096")
a("P_c:")
stamp("x4")
a("s_cmp_ge_u32 s35, 800\ns_cbranch_scc1 P_d")
w1_loads()
a("P_d:")
PRIO = int(opts.get("prio", 0))
def table_dma(mt):
    off = 4096*(mt & 1) + 65536*(mt >> 1)
    a(f"s_add_u32 s27, s23, {off}\ns_mov_b32 m0, s27\n{'s_setprio 0' if PRIO else 's_nop 0'}")
    for x in range(4):
        a(f"buffer_load_dwordx4 v{TD+(x&1)}, s[8:11], s27 offen offset:{1024*x} lds")
    if PRIO: a("s_setprio 2")
for mt in range(M1): table_dma(mt)
stamp()
a("s_lshl_b32 s20, s25, 3\ns_add_u32 s48, s48, s20\ns_addc_u32 s49, s49, 0\ns_add_u32 s50, s50, s20\ns_addc_u32 s51, s51, 0")
nonce_get()
a(f"s_lshr_b32 s31, s34, 3\ns_lshl_b32 s31, s31, 9\ns_and_b32 s20, s34, 7\ns_lshl_b32 s20, s20, 6\ns_add_u32 s31, s31, s20\ns_lshl_b32 s20, s22, 3\ns_add_u32 s31, s31, s20\ns_add_u32 s31, s31, {FI}")
NL = 4*M1
a(f"s_cmp_lt_u32 s35, 800\ns_cbranch_scc1 P_a4\ns_cmp_eq_u32 s35, 4096\ns_cbranch_scc1 P_a1\ns_waitcnt vmcnt({NL})\nP_a1:\ns_waitcnt vmcnt({NL+1})\nP_a4:\ns_waitcnt vmcnt({NL+8})")
stamp()
flag_store(31)
XM = int(opts.get("xm", 1))
for mt in range(M1, XM): table_dma(mt)
def poll_load(sreg, tmp, addr): a(f"buffer_load_dwordx2 {rg(tmp,2)}, v{addr}, s[12:15], s{sreg} offen {SC}")
def poll_check(sreg, tmp, addr, first_wait=0, sleep=SLEEP):
    l = newlab("Q_")
    a(f"s_mov_b32 s20, 0\ns_waitcnt vmcnt({first_wait})")
    a(f"{l}:")
    a(f"v_cmp_ne_u64 vcc, s[64:65], {rg(tmp,2)}\ns_cbranch_vccz {l}ok")
    a(f"s_sleep {sleep}")
    poll_load(sreg, tmp, addr)
    a(f"s_add_u32 s20, s20, 1\ns_waitcnt vmcnt(0)\ns_cmp_lt_u32 s20, 0x8000\ns_cbranch_scc1 {l}")
    a(f"{l}ok:")
a(f"s_cmp_lt_u32 s22, 6\ns_cbranch_scc1 P_g")
a(f"s_sub_u32 s21, 7, s22\ns_lshr_b32 s29, s25, 4\ns_lshl_b32 s29, s29, 9\ns_lshl_b32 s20, s21, 8\ns_add_u32 s29, s29, s20\ns_add_u32 s29, s29, {FE}")
a(f"v_and_b32 v{T}, 31, v2\nv_lshlrev_b32 v{T}, 3, v{T}")
poll_load(29, T+2, T)
a(f"s_lshl_b32 s26, s25, 16\ns_lshl_b32 s20, s21, 13\ns_add_u32 s26, s26, s20\ns_add_u32 s26, s26, {WFR}\ns_add_u32 s31, s26, 4096")
a(f"s_sub_u32 s20, s22, 6\ns_lshl_b32 s20, s20, 10\ns_add_u32 s20, s20, {XB}\nv_add_u32 v{IX}, s20, v1")
poll_check(29, T+2, T)
stamp("z1")
for x in range(8):
    a(f"buffer_load_dwordx4 {rg(WF+4*x,4)}, v{VL16}, s[12:15], s{26 + 5*(x>>2)} offen offset:{1024*(x&3)} {SC}")
a("P_g:")
for mt in range(max(M1, XM), 2): table_dma(mt)
a("s_cmp_ge_u32 s35, 800\ns_cbranch_scc1 P_d2")
a("s_waitcnt vmcnt(9)")
w1_process()
a("P_d2:")
a("s_load_dwordx2 s[70:71], s[48:49], 0\ns_load_dwordx2 s[72:73], s[50:51], 0")
table_dma(2); table_dma(3)
a("s_cmp_ge_u32 s35, 800\ns_cbranch_scc1 P_e")
a(f"s_waitcnt vmcnt(8)")
a(f"s_mov_b64 exec, 1\nbuffer_store_dwordx2 {rg(AD+2,2)}, v{AD}, s[12:15], s75 offen {SC}\ns_mov_b64 exec, -1")
a("P_e:")
FR = GD
a(f"v_bfe_u32 v{T+2}, v2, 4, 1\nv_lshlrev_b32 v{T+2}, 1, v{T+2}\nv_bfe_u32 v{T}, v2, 2, 2\nv_mov_b32 v{T+1}, 0x3f80")
a(f"v_cmp_eq_u32 vcc, v{T+2}, v{T}\nv_add_u32 v{T+2}, 1, v{T+2}\ns_nop 0\nv_cndmask_b32 v{SEL}, 0, v{T+1}, vcc\nv_cmp_eq_u32 vcc, v{T+2}, v{T}")
a(f"v_mov_b32 v{SEL+1}, v{SEL}\nv_and_b32 v{T+2}, 3, v2\nv_cndmask_b32 v{SEL+2}, 0, v{T+1}, vcc\nv_mul_u32_u24 v{SIDX}, 0x5555, v{T+2}\nv_mov_b32 v{SEL+3}, v{SEL+2}")
a(f"v_and_b32 v227, 24, v2\nv_and_b32 v{T}, 3, v2\nv_lshl_add_u32 v227, v{T}, 1, v227\nv_bfe_u32 v{T}, v2, 2, 1\nv_add_u32 v227, v227, v{T}")
a(f"v_lshrrev_b32 v{T}, 5, v2\nv_lshlrev_b32 v{VSP}, 5, v227\nv_lshl_add_u32 v{VSP}, v{T}, 4, v{VSP}\ns_lshl_b32 s31, s22, 11\ns_add_u32 s31, s31, 131072\nv_add_u32 v{VSP}, s31, v{VSP}")
a(f"v_bfe_u32 v{T+1}, v227, 1, 3\nv_xor_b32 v{T+1}, v{T+1}, v{T}\nv_lshlrev_b32 v227, 7, v227\nv_lshl_add_u32 v227, v{T+1}, 4, v227\nv_add_u32 v{FR}, s23, v227")
for ks in range(1, 4): a(f"v_xor_b32 v{FR+ks}, {32*ks}, v{FR}")
for ks in range(4): a(f"v_add_u32 v{FR+4+ks}, 0x10000, v{FR+ks}")
a(f"v_add_u32 v{VXR}, {XB}, v1\nv_add_u32 v{VXW}, s33, v1")
a(f"v_lshrrev_b32 v0, 3, v2\nv_lshlrev_b32 v0, 14, v0\nv_lshl_add_u32 v0, v{T+4}, 4, v0")
a("s_lshl_b32 s28, s24, 3\ns_add_u32 s28, s28, s22\ns_mul_i32 s28, s28, 102400")
a(f"s_lshl_b32 s75, s24, 6\ns_lshl_b32 s33, s22, 3\ns_add_u32 s75, s75, s33\ns_lshl_b32 s75, s75, 6\ns_add_u32 s75, s75, s25\ns_lshl_b32 s75, s75, 8\ns_add_u32 s75, s75, {PART}")
a(f"v_lshlrev_b32 v{AD}, 3, v2\nv_min_u32 v{AD+1}, 33, v2\nv_lshlrev_b32 v{AD+1}, 3, v{AD+1}")
a(f"s_cmp_lg_u32 s22, {FIN}\ns_cbranch_scc1 P_f")
srd(a, 4, 40, 16384*26)
a(f"s_mov_b32 m0, {XWL}\ns_mul_i32 s20, s34, 1664\nbuffer_load_dwordx4 v1, s[4:7], s20 offen {NT} lds\nbuffer_load_dwordx4 v1, s[4:7], s20 offen offset:1024 {NT} lds")
srd(a, 4, 42, 26)
a(f"v_lshlrev_b32 v{T+10}, 1, v2\nv_mov_b32 v{T+11}, 0\nbuffer_load_ushort v{VWIDE}, v{T+10}, s[4:7], 0 offen")
srd(a, 4, 44, 2)
a(f"buffer_load_ushort v225, v{T+11}, s[4:7], 0 offen")
srd(a, 4, 52, 2)
a(f"buffer_load_ushort v226, v{T+11}, s[4:7], 0 offen")
a("P_f:")
a("s_cmp_lt_u32 s22, 6\ns_cbranch_scc1 P_h")
a(f"P_cnt:\nds_read_b32 v{IX+2}, v{IX+1}\ns_waitcnt lgkmcnt(0)\nv_readfirstlane_b32 s20, v{IX+2}\ns_cmp_lt_u32 s20, 8\ns_cbranch_scc1 P_cnt")
for x in range(8):
    a(f"s_waitcnt vmcnt({7-x + 4*(4-max(M1,XM))})\nds_write_b128 v{IX}, {rg(WF+4*x,4)} offset:{XS*x}")
a("P_h:")
a(f"s_lshr_b32 s29, s25, 4\ns_lshl_b32 s29, s29, 11\ns_and_b32 s20, s22, 3\ns_lshl_b32 s20, s20, 9\ns_add_u32 s29, s29, s20\ns_add_u32 s29, s29, {FW + 128}")
a(f"s_lshl_b32 s31, s24, 3\ns_add_u32 s31, s31, s22\ns_lshl_b32 s31, s31, 9\ns_add_u32 s31, s31, {FI}")
a(f"s_lshl_b32 s26, s25, 16\ns_lshl_b32 s20, s22, 10\ns_add_u32 s26, s26, s20\ns_add_u32 s26, s26, {WFR + 16384}")
a(f"s_cmp_eq_u32 s22, {FIN}\ns_cbranch_scc1 P_i\ns_waitcnt vmcnt(0)\nP_i:\ns_waitcnt vmcnt(5)")
stamp()
for mt in range(4):
    for ks in range(4):
        a(f"ds_read_b128 {rg(TAB+16*mt+4*ks,4)}, v{FR+4*(mt>>1)+ks} offset:{4096*(mt&1)}")
a("s_setprio 0\ns_waitcnt lgkmcnt(0)\ns_barrier")
stamp()
def wf_read(off=0):
    for x in range(8):
        a(f"ds_read_b128 {rg(WF+4*x,4)}, v{VXR} offset:{XS*x + off}")
wf_read(1024)
poll_load(31, AD+2, AD)
a("s_lshl_b32 s68, s70, 16\ns_and_b32 s69, s70, 0xffff0000\ns_lshl_b32 s70, s71, 16\ns_and_b32 s71, s71, 0xffff0000")
def tg_mfma(mt, ks, e, d):
    c = "0" if ks == 0 else rg(d, 16)
    return f"v_mfma_f32_32x32x16_bf16 {rg(d,16)}, {rg(TAB+16*mt+4*ks,4)}, {rg(WF+16*e+4*ks,4)}, {c}"
D0, D1 = POOL+32, POOL+48
def tgen_groups():
    g = []
    for mt in range(3):
        for ks in range(4):
            for e in range(2):
                g.append([tg_mfma(mt, ks, e, D0 if e == 0 else D1)])
        g.extend([[] for _ in range(int(opts.get("gap", 3)))])
        for r in range(0, 16, 4):
            g.append([f"v_cvt_pk_bf16_f32 v{POOL+16*mt+r+x}, v{D0+r+x}, v{D1+r+x}" for x in range(4)])
    for ks in range(4): g.append([tg_mfma(3, ks, 0, D1)])
    for ks in range(4): g.append([tg_mfma(3, ks, 1, WF)])
    g.extend([[] for _ in range(int(opts.get("gap", 3)))])
    for r in range(0, 16, 4):
        g.append([f"v_cvt_pk_bf16_f32 v{D1+r+x}, v{D1+r+x}, v{WF+r+x}" for x in range(4)])
    return g
def wr_op(r):
    off = r*256 if r < 32 else 57472 + (r-32)*256
    pre = ["s_mov_b32 m0, s30", "s_nop 0"] if r == 32 else []
    return pre + [f"ds_write_addtid_b32 v{POOL+r} offset:{off}"]
a("s_mov_b32 m0, s23\ns_waitcnt lgkmcnt(0)")
def pro_d(mt): return [(ACC, ACC+16), (D0, D1), (ACC, ACC+16), (D1, GD)][mt]
pend = []
for mt in range(4):
    d0, d1 = pro_d(mt)
    seq = [(ks, e) for ks in range(4) for e in range(2)]
    if mt == 2:
        poll_check(31, AD+2, AD)
        stamp("y1")
        for x in range(4):
            a(f"buffer_load_dwordx4 {rg(IX+4*x,4)}, v{VL16}, s[12:15], s28 offen offset:{1024*x} {SC}")
        poll_load(29, RAW, AD+1)
        a("s_add_u32 s28, s28, 4096\ns_mov_b32 s21, 0")
    for n, (ks, e) in enumerate(seq):
        a(tg_mfma(mt, ks, e, d0 if e == 0 else d1))
        if n >= 2:
            take = (len(pend) + (7 - n)) // (8 - n)
            for o in pend[:take]: a(o)
            pend = pend[take:]
        elif mt > 0: a("s_nop 4")
    assert not pend
    for r in range(16):
        pend.append(f"v_cvt_pk_bf16_f32 v{POOL+16*mt+r}, v{d0+r}, v{d1+r}")
    for r in range(16): pend.extend(wr_op(16*mt + r))
stamp("y2")
wf_read()
for s in range(8):
    for c in range(4): a(f"v_mov_b32 v{ACC+4*s+c}, s{68+c}")
for o in pend: a(o)
poll_check(29, RAW, AD+1)
a(f"s_cmp_lg_u32 s22, {FIN}\ns_cbranch_scc1 P_j")
X = T + 12
a(f"v_and_b32 v{X}, 7, v2\nv_bfe_u32 v{X+1}, v2, 3, 1\nv_lshl_add_u32 v{X}, v{X+1}, 5, v{X}\nv_lshrrev_b32 v{X+1}, 4, v2\nv_lshl_add_u32 v{X}, v{X+1}, 3, v{X}\nv_mul_u32_u24 v{X}, 26, v{X}\nv_add_u32 v{X}, {XWL}, v{X}")
for k in range(13): a(f"ds_read_u16 v{X+2+k}, v{X} offset:{2*k}")
a(f"v_lshlrev_b32 v{X+1}, 16, v{VWIDE}\nv_lshlrev_b32 v225, 16, v225\nv_lshlrev_b32 v226, 16, v226")
a("s_waitcnt lgkmcnt(0)")
for k in range(13): a(f"v_readlane_b32 s{36+k}, v{X+1}, {k}")
a("v_readfirstlane_b32 s74, v226")
for k in range(13): a(f"v_lshlrev_b32 v{X+2+k}, 16, v{X+2+k}")
a(f"v_mul_f32 v{VWIDE}, s36, v{X+2}")
for k in range(1, 13): a(f"v_fmac_f32 v{VWIDE}, s{36+k}, v{X+2+k}")
rnd(VWIDE); a(f"v_add_f32 v{VWIDE}, v{VWIDE}, v225"); rnd(VWIDE)
a("P_j:")
a("s_waitcnt lgkmcnt(0)\ns_barrier")
stamp()

DWF = int(opts.get("dwf", 0)); DSC = opts.get("dsc", "sc1").replace("none", "")
def gather_phase(nunits, side, acc_of):
    NG = nunits * 8
    log = [("ix", u) for u in range(4)] + ([("wf", x) for x in range(8)] if DWF else [])
    def vm_wait(tag):
        idx = len(log) - 1 - log[::-1].index(tag)
        a(f"s_waitcnt vmcnt({len(log) - 1 - idx})")
    GS = int(opts.get("gs", 4))
    LA = int(opts.get("la", 2))
    assert (LA + 1) * GS * 2 <= NGD
    def addr(g):
        u = g // 8
        if g % 8 == 0: vm_wait(("ix", u))
        d = IX + 4*(u & 3) + (g % 8)//2
        a(f"v_lshlrev_b32_sdwa v{GD + (2*g) % NGD}, 3, v{d} dst_sel:DWORD dst_unused:UNUSED_PAD src0_sel:DWORD src1_sel:WORD_{g&1}")
    def refill(g):
        u = g // 8
        if g % 8 == 7 and (nunits == 16 or u + 4 < nunits):
            if u + 4 >= 16 and nunits == 20:
                for h in range(2):
                    a(f"buffer_load_dwordx2 {rg(IX+4*(u&3)+2*h,2)}, v{VXW}, s[12:15], s28 offen offset:{1024*(u&3)+512*h} {SC}")
                    log.append(("ix", u + 4))
            else:
                a(f"buffer_load_dwordx4 {rg(IX+4*(u&3),4)}, v{VL16}, s[12:15], s28 offen offset:{1024*(u&3)} {SC}")
                log.append(("ix", u + 4))
            if u & 3 == 3: a("s_add_u32 s28, s28, 4096")
    def read(g):
        q = GD + (2*g) % NGD
        a(f"ds_read_b64 {rg(q,2)}, v{q}")
    def smf(k, n):
        if n is not None: a(f"s_waitcnt lgkmcnt({min(n, 15)})")
        q = GD + (8*k) % NGD
        if not int(opts.get("nosmf", 0)): a(f"v_smfmac_f32_16x16x64_bf16 {rg(ACC+4*acc_of(k),4)}, {rg(SEL,4)}, {rg(q,8)}, v{SIDX}")
    def sideops(g):
        for o in side.get(g, []):
            if o == "WAITWF": vm_wait(("wf", 7))
            elif isinstance(o, tuple):
                a(o[0]); log.append(o[1])
            else: a(o)
    GP = int(opts.get("gp", 1)); RF = int(opts.get("rf", 0)); W1X = int(opts.get("w1x", 0))
    def prio(g):
        if GP == 1 and g % (NG // 4) == 0 and g: a(f"s_setprio {3 - g // (NG // 4)}")
    if GP: a("s_setprio 3")
    NB = NG // GS
    def batch(b):
        if b >= NB: return
        for g in range(GS*b, GS*b+GS): addr(g)
        if RF == 0: refill(GS*b+GS-1)
        for g in range(GS*b, GS*b+GS): read(g)
        if RF == 1: refill(GS*b+GS-1)
    for b in range(LA): batch(b)
    for b in range(NB):
        prio(GS*b)
        batch(b + LA)
        issued = min(NB, b + LA + 1) * GS
        for kk in range(GS // 4):
            k = b * (GS // 4) + kk
            if W1X: smf(k, issued - GS*(b+1) if kk == 0 else None)
            else: smf(k, issued - 4*(k+1))
        for g in range(GS*b, GS*b+GS): sideops(g)
    return log, vm_wait
def spread(groups, g0, g1):
    side = {}
    for i, o in enumerate(groups):
        g = g0 + (i * (g1 - g0)) // len(groups)
        side.setdefault(g, []).extend(o)
    return side
if DWF: a(f"s_lshl_b32 s20, s22, 10\ns_sub_u32 s26, s26, s20\nv_mov_b32 v{VXR}, v1\ns_waitcnt vmcnt(0)")
CYC = int(opts.get("cyc", 0))
def cyc(acc):
    if CYC: a(f"s_memtime s[98:99]\ns_waitcnt lgkmcnt(0)\ns_sub_u32 s100, s98, s96\ns_add_u32 s{acc}, s{acc}, s100\ns_mov_b32 s96, s98")
pad(PADPRO)
if CYC: a("s_memtime s[96:97]\ns_waitcnt lgkmcnt(0)\ns_mov_b32 s92, 0\ns_mov_b32 s93, 0\ns_mov_b32 s94, 0\ns_mov_b32 s95, 0\ns_mov_b32 s90, 0")
a("L_G:")
g_start = len(a.lines)
tgg = tgen_groups()
if int(opts.get("notg", 0)) == 1: tgg = [[]]
if int(opts.get("notg", 0)) == 2: tgg = [[o for o in x if "cvt" in o] for x in tgg]
if int(opts.get("notg", 0)) == 3: tgg = [[o for o in x if "mfma" in o] for x in tgg]
if DWF: tgg[0] = ["WAITWF"] + tgg[0]
side = spread(tgg, TG0, TG1)
if not DWF: side.setdefault(RAWAT, []).extend([(f"buffer_load_dwordx4 {rg(RAW,4)}, v{VL16}, s[12:15], s26 offen {SC}", ("raw", 0)), "s_add_u32 s26, s26, 8192"])
log, vm_wait = gather_phase(16, side, lambda o: o // 4)
if not DWF:
    vm_wait(("raw", 0))
    a(f"ds_write_b128 v{VXW}, {rg(RAW,4)}")
a("s_mov_b32 m0, s23\ns_add_u32 s21, s21, 1\ns_add_u32 s27, s26, 4096\ns_waitcnt lgkmcnt(0)")
cyc(92)
a("s_barrier")
cyc(93)
if DWF: a("s_waitcnt vmcnt(0)")
for r in range(64):
    for o in wr_op(r): a(o)
    if DWF and r % DWF == DWF - 1 and r // DWF < 8:
        x = r // DWF
        a(f"buffer_load_dwordx4 {rg(WF+4*x,4)}, v{VXR}, s[12:15], s{26 + (x>>2)} offen offset:{1024*(x&3)} {DSC}")
if DWF: a("s_add_u32 s26, s26, 8192")
a("s_cmp_eq_u32 s21, 5\ns_cbranch_scc1 L_Wlast")
if not DWF: wf_read()
a(("" if DWF else "s_waitcnt vmcnt(0)\n") + "s_cmp_lg_u32 s21, 1\ns_cbranch_scc1 L_nosent")
for x in range(4): a(f"v_mov_b32 v{RAW+x}, -1")
a(f"buffer_store_dwordx4 {rg(RAW,4)}, v0, s[12:15], s75 offen {SC}\nbuffer_store_dwordx4 {rg(RAW,4)}, v0, s[12:15], s75 offen offset:128 {SC}")
a("L_nosent:")
if DWF:
    a("s_cmp_lg_u32 s21, 4\ns_cbranch_scc1 L_nosw")
    a(f"v_and_b32 v{VXR}, 1, v2\nv_lshlrev_b32 v{VXR}, 12, v{VXR}\nv_bfe_u32 v{AD+1}, v2, 1, 1\nv_lshl_add_u32 v{VXR}, v{AD+1}, 4, v{VXR}")
    a(f"v_bfe_u32 v{AD+1}, v2, 3, 1\nv_lshl_add_u32 v{VXR}, v{AD+1}, 5, v{VXR}\nv_bfe_u32 v{AD+1}, v2, 2, 1\nv_lshl_add_u32 v{VXR}, v{AD+1}, 6, v{VXR}")
    a(f"v_lshrrev_b32 v{AD+1}, 5, v2\nv_lshl_add_u32 v{VXR}, v{AD+1}, 9, v{VXR}")
    a("L_nosw:")
a(f"s_waitcnt lgkmcnt({0 if DWF else 8})")
cyc(94)
a("s_barrier")
cyc(95)
a("s_branch L_G")
g_end = len(a.lines)
a("L_Wlast:")
if not DWF:
    a(f"v_and_b32 v{AD}, 1, v2\nv_mul_u32_u24 v{AD}, {4*XS}, v{AD}\nv_bfe_u32 v{AD+1}, v2, 1, 1\nv_lshl_add_u32 v{AD}, v{AD+1}, 4, v{AD}")
    a(f"v_bfe_u32 v{AD+1}, v2, 3, 1\nv_lshl_add_u32 v{AD}, v{AD+1}, 5, v{AD}\nv_bfe_u32 v{AD+1}, v2, 2, 1\nv_lshl_add_u32 v{AD}, v{AD+1}, 6, v{AD}")
    a(f"v_lshrrev_b32 v{AD+1}, 5, v2\nv_lshl_add_u32 v{AD}, v{AD+1}, 9, v{AD}\nv_add_u32 v{AD}, {XB}, v{AD}")
    for x in range(4): a(f"ds_read_b128 {rg(WF+4*x,4)}, v{AD} offset:{XS*x}")
a(f"v_lshlrev_b32 v{VXW}, 3, v2")
a("s_cmp_lg_u32 s22, 0\ns_cbranch_scc1 L_Glast")
a(f"s_lshl_b32 s31, s34, 3\ns_add_u32 s31, s31, {F2}")
flag_store(31)
a("L_Glast:")
a("s_waitcnt lgkmcnt(0)")
cyc(94)
a("s_barrier")
cyc(95)
sp = []
for mt in range(4):
    d = POOL + 16*mt
    for ks in range(4):
        c = "0" if ks == 0 else rg(d, 16)
        sp.append((["WAITWF"] if DWF and not sp else []) + [f"v_mfma_f32_32x32x16_bf16 {rg(d,16)}, {rg(WF+4*ks,4)}, {rg(TAB+16*mt+4*ks,4)}, {c}"])
sp.append([]); sp.append([])
for mt in range(4):
    d = POOL + 16*mt
    sp.append([f"v_cvt_pk_bf16_f32 v{d+x}, v{d+2*x}, v{d+2*x+1}" for x in range(4)])
wr_ops = []
for mt in range(4):
    d = POOL + 16*mt
    off = (32*(mt & 1) + 512*(mt >> 1)) * 32
    wr_ops.append(f"ds_write_b128 v{VSP}, {rg(d,4)} offset:{off}")
MB = int(opts.get("mb", 1))
sp.append(wr_ops + ([] if MB else ["s_waitcnt lgkmcnt(0)", "s_barrier"]))
side = spread(sp, 4, int(opts.get("sp1", 80)))
if MB: side.setdefault(int(opts.get("mbat", 104)), []).append("s_barrier")
side.setdefault(130, []).extend(["s_lshl_b32 s31, s24, 9", f"s_add_u32 s31, s31, {F2}",
                                 (f"buffer_load_dwordx2 {rg(RAW,2)}, v{VXW}, s[12:15], s31 offen {SC}", ("f2", 0))])
gather_phase(20, side, lambda o: o // 4 if o < 32 else o - 32)
cyc(90)
stamp()
a("s_mov_b32 s20, 0\ns_mov_b32 s33, -2\ns_nop 5")
for s in range(8):
    a(f"v_cvt_pk_bf16_f32 v{POOL+2*s}, v{ACC+4*s}, v{ACC+4*s+1}\nv_cvt_pk_bf16_f32 v{POOL+2*s+1}, v{ACC+4*s+2}, v{ACC+4*s+3}")
for x in range(16):
    a(f"v_pk_max_i16 v{POOL+x}, v{POOL+x}, 0")
for s in range(8):
    a(f"v_dot2_f32_bf16 v{POOL+16+s}, v{POOL+2*s}, s72, 0")
for s in range(8):
    a(f"v_dot2_f32_bf16 v{POOL+16+s}, v{POOL+2*s+1}, s73, v{POOL+16+s}")
for s in range(8):
    a(f"v_min_u32 v{POOL+16+s}, s33, v{POOL+16+s}")
a("R_f2:")
a(f"s_waitcnt vmcnt(0)\nv_cmp_ne_u64 vcc, s[64:65], {rg(RAW,2)}\ns_cbranch_vccz R_f2ok")
a(f"s_sleep 1\nbuffer_load_dwordx2 {rg(RAW,2)}, v{VXW}, s[12:15], s31 offen {SC}\ns_add_u32 s20, s20, 1\ns_cmp_lt_u32 s20, 0x8000\ns_cbranch_scc1 R_f2")
a("R_f2ok:")
a(f"buffer_store_dwordx4 {rg(POOL+16,4)}, v0, s[12:15], s75 offen {SC}\nbuffer_store_dwordx4 {rg(POOL+20,4)}, v0, s[12:15], s75 offen offset:128 {SC}")
a(f"s_lshl_b32 s31, s34, 14\ns_lshl_b32 s33, s22, 11\ns_add_u32 s31, s31, s33\ns_add_u32 s31, s31, {PART}\ns_mov_b32 s20, 0")
if int(opts.get("rack", 1)): a("s_waitcnt vmcnt(0)")
if int(opts.get("rbar", 0)): a("s_barrier")
if int(opts.get("rdelay", 0)): a(f"s_sleep {int(opts.get('rdelay', 0))}")
Y = TAB
a("R_poll:")
a(f"buffer_load_dwordx4 {rg(Y,4)}, v1, s[12:15], s31 offen {SC}\nbuffer_load_dwordx4 {rg(Y+4,4)}, v1, s[12:15], s31 offen offset:1024 {SC}")
a("s_add_u32 s20, s20, 1\ns_waitcnt vmcnt(0)")
a(f"v_max3_u32 v{Y+8}, v{Y}, v{Y+1}, v{Y+2}\nv_max3_u32 v{Y+9}, v{Y+3}, v{Y+4}, v{Y+5}\nv_max3_u32 v{Y+8}, v{Y+8}, v{Y+6}, v{Y+7}\nv_max_u32 v{Y+8}, v{Y+8}, v{Y+9}")
a(f"v_cmp_eq_u32 vcc, -1, v{Y+8}\ns_cbranch_vccz R_ok")
a(f"s_sleep {RSLEEP}\ns_cmp_lt_u32 s20, 0x8000\ns_cbranch_scc1 R_poll")
a("R_ok:")
stamp("y3")
for x in range(4): a(f"v_add_f32 v{Y+x}, v{Y+x}, v{Y+4+x}")
a(f"s_lshl_b32 s33, s22, 8\nv_lshlrev_b32 v{Y+8}, 2, v2\nv_permlane32_swap_b32 v{Y}, v{Y+2}\nv_permlane32_swap_b32 v{Y+1}, v{Y+3}\nv_add_u32 v{Y+9}, s33, v{Y+8}\nv_add_f32 v{Y}, v{Y}, v{Y+2}\nv_add_f32 v{Y+1}, v{Y+1}, v{Y+3}\ns_nop 1\nv_permlane16_swap_b32 v{Y}, v{Y+1}\ns_nop 1\nv_add_f32 v{Y}, v{Y}, v{Y+1}")
a(f"v_add_u32 v{Y+9}, {PADR}, v{Y+9}\nv_add_u32 v{Y+8}, {PADR}, v{Y+8}\nds_write_b32 v{Y+9}, v{Y}\ns_waitcnt lgkmcnt(0)\ns_barrier")
a(f"s_cmp_lg_u32 s22, {FIN}\ns_cbranch_scc1 M_fin")
for k in range(8): a(f"ds_read_b32 v{Y+k}, v{Y+8} offset:{256*k}")
srd(a, 8, 54, 32768)
a(f"v_and_b32 v{Y+10}, 7, v2\nv_bfe_u32 v{Y+11}, v2, 3, 1\nv_lshl_add_u32 v{Y+10}, v{Y+11}, 5, v{Y+10}\nv_lshrrev_b32 v{Y+11}, 4, v2\nv_lshl_add_u32 v{Y+10}, v{Y+11}, 3, v{Y+10}\ns_lshl_b32 s20, s34, 6\nv_add_u32 v{Y+10}, s20, v{Y+10}\nv_lshlrev_b32 v{Y+10}, 1, v{Y+10}")
a("s_waitcnt lgkmcnt(0)")
a(f"v_add_f32 v{Y}, v{Y}, v{Y+1}\nv_add_f32 v{Y+2}, v{Y+2}, v{Y+3}\nv_add_f32 v{Y+4}, v{Y+4}, v{Y+5}\nv_add_f32 v{Y+6}, v{Y+6}, v{Y+7}\nv_add_f32 v{Y}, v{Y}, v{Y+2}\nv_add_f32 v{Y+4}, v{Y+4}, v{Y+6}\nv_add_f32 v{Y}, v{Y}, v{Y+4}")
rnd(Y); a(f"v_add_f32 v{Y}, s74, v{Y}"); rnd(Y)
a(f"v_add_f32 v{Y}, v{Y}, v{VWIDE}"); rnd(Y)
a(f"v_mul_f32 v{Y}, 0xbfb8aa3b, v{Y}\nv_exp_f32 v{Y}, v{Y}\ns_nop 0\nv_add_f32 v{Y}, 1.0, v{Y}\nv_rcp_f32 v{Y}, v{Y}\ns_nop 0\nv_cvt_pk_bf16_f32 v{Y}, v{Y}, v{Y}")
a(f"buffer_store_short v{Y}, v{Y+10}, s[8:11], 0 offen")
a("M_fin:")
if int(opts.get("xcc", 0)):
    a("s_and_b32 s20, s2, 7\ns_cmp_lg_u32 s20, 0\ns_cbranch_scc1 M_end\ns_getreg_b32 s21, hwreg(HW_REG_XCC_ID)\ns_and_b32 s21, s21, 15\ns_bfe_u32 s20, s65, 0x40018\ns_cmp_eq_u32 s20, s21\ns_cbranch_scc1 M_end")
pad(PADEND)
if STAMP:
    a(f"s_cmp_lg_u32 s22, {SW}\ns_cbranch_scc1 M_end")
    a("s_waitcnt vmcnt(0)")
    stamp()
    a("s_waitcnt lgkmcnt(0)")
    n = nst[0]
    if CYC:
        for k, r in enumerate([92, 93, 94, 95, 90]): a(f"s_mov_b32 s{78+2*k}, s{r}\ns_mov_b32 s{79+2*k}, 0")
        a("s_mov_b32 s76, 0\ns_mov_b32 s77, 0")
    elif PADPRO: a("s_mov_b32 s76, s64\ns_and_b32 s77, s65, 0x7fffffff")
    a(f"s_mul_i32 s31, s2, {8*n}\ns_add_u32 s31, s31, 0x8000000\nv_mov_b32 v2, 0")
    for k in range(n):
        a(f"v_mov_b32 v4, s{76+2*k}\nv_mov_b32 v5, s{77+2*k}\nbuffer_store_dwordx2 v[4:5], v2, s[12:15], s31 offen offset:{8*k}\ns_waitcnt vmcnt(0)")
    print("nstamps", n)
a("M_end:\ns_endpgm")
L = a.lines
errs = hazard.check(L[st:g_end] + L[g_start:], "main")
a.raw(kernel_desc(MAIN, 256, 102, 256))
for e in sorted(set(errs)): print("HAZARD", e)
open(sys.argv[1], "w").write(a.text())
```

```python
import sys
from common import *
import hazard
opts = dict(x.split("=") for x in sys.argv[2:])
AHEAD = int(opts.get("ahead", 8)); STAMP = int(opts.get("stamp", 0)); SW = int(opts.get("sw", 3))
SC = "sc1"
NT = "nt" if int(opts.get("nt", 0)) else ""
SST = opts.get("sst", "sc1").replace("_", " ")
SLEEP = int(opts.get("sleep", 1)); RSLEEP = int(opts.get("rsleep", 2))
TG0 = int(opts.get("tg0", 4)); TG1 = int(opts.get("tg1", 122)); RAWAT = int(opts.get("rawat", 40))
WS_BYTES = 268435456
IDX16 = 0; WFR = 4 << 20; PART = 8 << 20; FI = 16 << 20; FW = FI + 16384; F2 = FI + 24576; FE = FI + 65536; FL = int(opts.get('fl', 1))
LDELAY = int(opts.get('ldelay', 0)); M1 = int(opts.get('m1', 1)); M2 = int(opts.get('m2', 2))
STG = 131072; XWL = STG + 25600; XB = 131072; XS = 3200; PADR = 128000
ETAB = 0; WT = 12 << 20; MID = int(opts.get('mid', 2)); TOUCH = int(opts.get('touch', 1))
a = Asm()
a.raw(HEADER_COMMENT.rstrip("\n"))
a.raw("; @launch grid=(256,1,1) block=(512,1,1) lds=163840")
a.raw('.amdgcn_target "amdgcn-amd-amdhsa--gfx950"')
kernel_begin(a, MAIN)
TAB=4; ACC=68; WF=100; POOL=132; GD=196; NGD=32; IX=228; AD=GD+24; SEL=244; SIDX=252
RAW=248; VXW=253; VXR=254; VWIDE=3; VSP=255
Z0=GD+28; Z1=GD+29; Z2=GD+30; Z3=GD+31
VL16=1
T = POOL; U = GD
FIN = 3; POLLW = 7
def rg(b, n): return f"v[{b}:{b+n-1}]"
nst = [0]
SKIP = set(opts.get("skip", "x1,x2,x3,x4,z1").split(","))
def stamp(name=""):
    if STAMP and name not in SKIP and not (int(opts.get("cyc", 0)) and nst[0] >= 6):
        k = nst[0]; nst[0] += 1
        assert k < 13
        a(f"{'s_memtime' if int(opts.get('mt', 0)) else 's_memrealtime'} s[{76+2*k}:{77+2*k}]")
def rnd(r): a(f"v_cvt_pk_bf16_f32 v{r}, v{r}, v{r}\nv_lshlrev_b32 v{r}, 16, v{r}")
PADEND = int(opts.get("padend", 0)); PADPRO = int(opts.get("padpro", 0))
def pad(ticks):
    if not ticks: return
    l = newlab("PAD_")
    a(f"{l}:\ns_memrealtime s[32:33]\ns_waitcnt lgkmcnt(0)\ns_sub_u32 s32, s32, s64\ns_cmp_lt_i32 s32, {ticks}\ns_cbranch_scc1 {l}")
lab = [0]
def newlab(p):
    lab[0] += 1; return f"{p}{lab[0]}"
st = len(a.lines)
a("s_cmp_ge_u32 s2, 256\ns_cbranch_scc1 M_end")
stamp()
if int(opts.get("prio", 0)): a("s_setprio 2")
a("s_load_dwordx16 s[36:51], s[0:1], 0\ns_load_dwordx8 s[52:59], s[0:1], 64\ns_memrealtime s[64:65]")
a("s_getpc_b64 s[32:33]\nC_base:\ns_lshr_b32 s29, s2, 3\ns_lshl_b32 s20, s29, 9\nv_lshl_add_u32 v224, v0, 7, s20\nv_min_u32 v224, M_end-C_base, v224")
a("v_cmp_gt_u32 vcc, 4, v0\ns_and_saveexec_b64 s[20:21], vcc\ns_cbranch_execz C_skip\nglobal_load_dword v224, v224, s[32:33]\nC_skip:\ns_mov_b64 exec, -1")
a("v_and_b32 v2, 63, v0\nv_lshrrev_b32 v227, 6, v0\nv_lshlrev_b32 v1, 4, v2\nv_readfirstlane_b32 s22, v227")
a("s_and_b32 s20, s2, 7\ns_lshr_b32 s24, s20, 1\ns_and_b32 s20, s20, 1\ns_lshl_b32 s20, s20, 5\ns_add_u32 s25, s20, s29")
a("s_lshl_b32 s34, s24, 6\ns_add_u32 s34, s34, s25")
a("s_lshl_b32 s35, s22, 8\ns_add_u32 s35, s35, s34")
a(f"v_lshrrev_b32 v{U}, 4, v2\nv_and_b32 v{U+1}, 15, v2\nv_lshlrev_b32 v{U+2}, 15, v{U}\nv_lshl_add_u32 v{U+2}, v{U+1}, 3, v{U+2}\nv_mov_b32 v{U+5}, 0")
a("s_lshr_b32 s20, s35, 5\ns_lshl_b32 s20, s20, 17\ns_bfe_u32 s21, s35, 0x30002\ns_lshl_b32 s21, s21, 12\ns_add_u32 s20, s20, s21\ns_and_b32 s21, s35, 3\ns_lshl_b32 s21, s21, 7\ns_add_u32 s31, s20, s21")
a(f"s_mul_i32 s20, s34, 25600\ns_mul_i32 s21, s22, 3200\ns_add_u32 s20, s20, s21\ns_add_u32 s33, s21, {STG}\ns_mov_b32 m0, s33")
a("s_lshl_b32 s23, s22, 13\ns_add_u32 s30, s23, 8064")
a("s_mov_b32 s18, 3276800\ns_mov_b32 s19, 0x00020000\ns_mov_b32 s6, 6553600\ns_mov_b32 s7, 0x00020000")
a("s_waitcnt lgkmcnt(0)")
stamp()
a("s_mov_b32 s16, s46\ns_and_b32 s17, s47, 0xffff\ns_mov_b32 s4, s36\ns_and_b32 s5, s37, 0xffff")
srd(a, 60, 56, 256)
srd(a, 12, 58, WS_BYTES)
CNT = 163836
a("s_lshl_b32 s21, s2, 3\ns_add_u32 s21, s21, s22\ns_cmp_lg_u32 s21, 6\ns_cbranch_scc1 P_n0")
if int(opts.get("xcc", 0)):
    a("s_getreg_b32 s21, hwreg(HW_REG_XCC_ID)\ns_and_b32 s21, s21, 15\ns_lshl_b32 s21, s21, 24\ns_and_b32 s65, s65, 0xffffff\ns_or_b32 s65, s65, s21")
a(f"v_mov_b32 v{T+4}, s64\nv_mov_b32 v{T+5}, s65\nv_mov_b32 v{T+6}, 0\nv_or_b32 v{T+5}, 0x80000000, v{T+5}\ns_mov_b64 exec, 1")
a(f"buffer_store_dwordx2 {rg(T+4,2)}, v{T+6}, s[60:63], 0 offen {SC}\ns_mov_b64 exec, -1")
a("P_n0:")
WR_ = U + 8
def w1_loads():
    for j8 in range(8):
        a(f"buffer_load_dwordx2 {rg(WR_+2*j8,2)}, v{U+2}, s[16:19], s31 offen offset:{512*j8} {NT}")
a("s_cmp_lg_u32 s22, 0\ns_cbranch_scc1 P_now1")
w1_loads()
a("P_now1:")
for r in range(3):
    a(f"buffer_load_dwordx4 v1, s[4:7], s20 offen offset:{1024*r} {NT} lds")
a(f"s_mov_b64 exec, 0xff\nbuffer_load_dwordx4 v1, s[4:7], s20 offen offset:3072 {NT} lds\ns_mov_b64 exec, -1")
srd(a, 8, 38, 128000)
a("s_barrier")
if int(opts.get("dw", 1)): a("s_cmp_lg_u32 s22, 5\ns_cbranch_scc1 P_n5\ns_load_dword s74, s[56:57], 192\nP_n5:")
a(f"s_cmp_lt_u32 s22, 4\ns_cbranch_scc1 P_lo\ns_cmp_lg_u32 s22, 4\ns_cbranch_scc1 P_skip")
a(f"v_and_b32 v224, 31, v2\nv_lshlrev_b32 v224, 7, v224\ns_lshl_b32 s21, s29, 12\nbuffer_load_dword v224, v224, s[8:11], s21 offen\ns_branch P_skip")
def nonce_load(): a("s_load_dwordx2 s[64:65], s[56:57], 0")
def nonce_get():
    l = newlab("N_")
    a(f"s_waitcnt lgkmcnt(0)\ns_cmp_lt_i32 s65, 0\ns_cbranch_scc1 {l}ok\ns_mov_b32 s20, 0\nv_mov_b32 v{AD}, 0")
    a(f"{l}:")
    a(f"buffer_load_dwordx2 {rg(AD+2,2)}, v{AD}, s[60:63], 0 offen {SC}\ns_add_u32 s20, s20, 1\ns_waitcnt vmcnt(0)")
    a(f"v_readfirstlane_b32 s64, v{AD+2}\nv_readfirstlane_b32 s65, v{AD+3}\ns_cmp_lt_i32 s65, 0\ns_cbranch_scc1 {l}ok")
    a(f"s_sleep 1\ns_cmp_lt_u32 s20, 0x8000\ns_cbranch_scc1 {l}")
    a(f"{l}ok:")
def flag_store(sreg):
    a(f"v_mov_b32 v{AD}, 0\nv_mov_b32 v{AD+2}, s64\nv_mov_b32 v{AD+3}, s65\ns_mov_b64 exec, 1")
    a(f"buffer_store_dwordx2 {rg(AD+2,2)}, v{AD}, s[12:15], s{sreg} offen {SC}\ns_mov_b64 exec, -1")
def w1_process():
    PR = WF
    for c in range(4):
        for d in range(4):
            a(f"v_perm_b32 v{PR+4*c+d}, v{WR_+2*(2*d+1)+(c>>1)}, v{WR_+2*(2*d)+(c>>1)}, s{66+(c&1)}")
    for c in range(4):
        a(f"ds_write_b128 v{U+3}, {rg(PR+4*c,4)} offset:{(c&1)*128 + (c>>1)*16}")
    a("s_waitcnt lgkmcnt(0)")
    for r in range(4):
        a(f"ds_read_b128 {rg(PR+16+4*r,4)}, v{U+4} offset:{r*4*272}")
    for r in range(4):
        a(f"s_waitcnt lgkmcnt({3-r})\nbuffer_store_dwordx4 {rg(PR+16+4*r,4)}, v{U+5}, s[12:15], s26 offen {SC}\ns_add_u32 s26, s26, {4*65536}")
a("P_lo:")
a("s_cmp_ge_u32 s35, 800\ns_cbranch_scc1 P_skip")
a("s_mov_b32 s66, 0x05040100\ns_mov_b32 s67, 0x07060302\ns_add_u32 s21, s23, 0x10000")
a(f"v_mul_u32_u24 v{U+3}, 272, v{U+1}\nv_lshl_add_u32 v{U+3}, v{U}, 5, v{U+3}\nv_add_u32 v{U+3}, s21, v{U+3}")
a(f"v_mul_u32_u24 v{U+4}, 272, v{U}\nv_lshl_add_u32 v{U+4}, v{U+1}, 4, v{U+4}\nv_add_u32 v{U+4}, s21, v{U+4}")
a(f"v_lshlrev_b32 v{U+5}, 16, v{U}\nv_bfe_u32 v{U+6}, v2, 3, 1\nv_lshl_add_u32 v{U+5}, v{U+6}, 12, v{U+5}\nv_and_b32 v{U+6}, 7, v2\nv_lshl_add_u32 v{U+5}, v{U+6}, 4, v{U+5}")
a("s_and_b32 s26, s35, 3\ns_lshl_b32 s26, s26, 20\ns_lshr_b32 s21, s35, 7\ns_lshl_b32 s21, s21, 13\ns_add_u32 s26, s26, s21\ns_bfe_u32 s21, s35, 0x30002\ns_lshl_b32 s21, s21, 9\ns_add_u32 s26, s26, s21")
a(f"s_bfe_u32 s21, s35, 0x20005\ns_lshl_b32 s21, s21, 7\ns_add_u32 s26, s26, s21\ns_add_u32 s26, s26, {WFR}")
a(f"s_and_b32 s75, s35, 3\ns_lshl_b32 s75, s75, 11\ns_bfe_u32 s21, s35, 0x20003\ns_lshl_b32 s21, s21, 9\ns_add_u32 s75, s75, s21\ns_lshr_b32 s21, s35, 5\ns_lshl_b32 s21, s21, 4\ns_add_u32 s75, s75, s21\ns_bfe_u32 s21, s35, 0x10002\ns_lshl_b32 s21, s21, 3\ns_add_u32 s75, s75, s21\ns_add_u32 s75, s75, {FW}")
a("s_cmp_lg_u32 s22, 0\ns_cbranch_scc1 P_skip")
H1, H2 = (3, 4) if FL else (0, 0)
a(f"s_and_b32 s75, s35, 3\ns_lshl_b32 s75, s75, {10+H1}\ns_lshr_b32 s21, s35, 7\ns_lshl_b32 s21, s21, {9+H1}\ns_add_u32 s75, s75, s21\ns_bfe_u32 s21, s35, 0x20003\ns_lshl_b32 s21, s21, {7+H1}\ns_add_u32 s75, s75, s21")
a(f"s_bfe_u32 s21, s35, 0x20005\ns_lshl_b32 s21, s21, {4+H2}\ns_add_u32 s75, s75, s21\ns_bfe_u32 s21, s35, 0x10002\ns_lshl_b32 s21, s21, {3+H2}\ns_add_u32 s75, s75, s21\ns_add_u32 s75, s75, {FE}")
a("s_waitcnt vmcnt(4)")
w1_process()
a("P_skip:")
stamp("x2")
a(f"v_and_b32 v{T+4}, 7, v2\nv_lshrrev_b32 v{T+5}, 3, v2")
a(f"s_and_b32 s20, s34, 1\ns_lshl_b32 s20, s20, 3\nv_add_u32 v{T+6}, s20, v{T+4}")
a(f"v_mul_u32_u24 v{T+7}, 400, v{T+4}\nv_add_u32 v{T+7}, s33, v{T+7}")
a(f"v_and_b32 v{T+8}, 1, v{T+5}\nv_lshrrev_b32 v{T+9}, 1, v{T+5}")
a(f"v_lshlrev_b32 v{T+10}, 3, v{T+8}\nv_xor_b32 v{T+10}, v{T+10}, v{T+6}")
a(f"v_lshl_add_u32 v{T+11}, v{T+9}, 6, v{T+7}")
a(f"v_lshlrev_b32 v{T+9}, 14, v{T+9}\nv_lshl_add_u32 v{T+9}, v{T+8}, 10, v{T+9}\nv_lshl_add_u32 v{T+9}, v{T+4}, 4, v{T+9}")
SL, LA_, RD, PK, SS = T+12, T+20, T+28, T+44, T+52
for u in range(8):
    a(f"v_xor_b32 v{SL+u}, {u}, v{T+10}")
    a(f"v_lshl_add_u32 v{LA_+u}, v{SL+u}, 2, v{T+11}")
a(f"v_and_b32 v{T+10}, 3, v{T+4}")
for u in range(4):
    a(f"v_xor_b32 v{SS+u}, {u}, v{T+10}\nv_lshl_add_u32 v{SS+4+u}, v{SS+u}, 2, v{T+7}\nv_add_u32 v{SS+u}, 16384, v{SS+u}")
a("s_lshr_b32 s27, s34, 3\ns_mul_i32 s27, s27, 102400\ns_lshl_b32 s20, s22, 11\ns_add_u32 s28, s27, s20\ns_and_b32 s21, s34, 7\ns_lshl_b32 s20, s21, 7\ns_add_u32 s28, s28, s20")
a(f"s_lshl_b32 s20, s22, 9\ns_add_u32 s27, s27, s20\ns_lshl_b32 s20, s21, 6\ns_add_u32 s27, s27, s20\ns_add_u32 s27, s27, 98304\nv_lshlrev_b32 v{T+8}, 3, v{T+4}")
TD = RAW
a(f"v_xor_b32 v{TD+1}, v{T+4}, v{U}\nv_lshlrev_b32 v{TD}, 7, v{T+5}\nv_lshl_add_u32 v{TD}, v{TD+1}, 4, v{TD}\nv_xor_b32 v{TD+1}, 64, v{TD}")
stamp("x1")
a(f"s_cmp_eq_u32 s22, 0\ns_cbranch_scc1 P_c4\ns_cmp_eq_u32 s22, 4\ns_cbranch_scc1 P_c1")
a("s_waitcnt vmcnt(0)\nP_c1:\ns_waitcnt vmcnt(1)\nP_c4:\ns_waitcnt vmcnt(4)")
stamp()
for u in range(8): a(f"ds_read_b32 v{RD+u}, v{LA_+u}")
for u in range(8): a(f"ds_read_b32 v{RD+8+u}, v{LA_+u} offset:256")
for u in range(4): a(f"ds_read_b32 v{SS+8+u}, v{SS+4+u} offset:384")
def conv(k):
    for u in range(8):
        a(f"v_lshl_add_u32 v{RD+8*k+u}, v{RD+8*k+u}, 4, v{SL+u}")
    for d in range(4):
        a(f"v_lshl_or_b32 v{PK+4*k+d}, v{RD+8*k+2*d+1}, 16, v{RD+8*k+2*d}")
a("s_waitcnt lgkmcnt(12)")
conv(0)
a(f"buffer_store_dwordx4 {rg(PK,4)}, v{T+9}, s[12:15], s28 offen {SC}")
a("s_waitcnt lgkmcnt(0)")
nonce_load()
conv(1)
for u in range(4): a(f"v_lshl_add_u32 v{SS+8+u}, v{SS+8+u}, 2, v{SS+u}")
a(f"v_lshl_or_b32 v{SS+4}, v{SS+9}, 16, v{SS+8}\nv_lshl_or_b32 v{SS+5}, v{SS+11}, 16, v{SS+10}")
a(f"s_add_u32 s28, s28, 65536\ns_mov_b32 exec_hi, 0\nbuffer_store_dwordx4 {rg(PK+4,4)}, v{T+9}, s[12:15], s28 offen {SC}")
a(f"s_mov_b64 exec, 0xff\nbuffer_store_dwordx2 {rg(SS+4,2)}, v{T+8}, s[12:15], s27 offen {SC}\ns_mov_b64 exec, -1")
stamp("x3")
BA = int(opts.get("ba", 0))
a("s_cmp_lg_u32 s22, 0\ns_cbranch_scc1 P_c")
nonce_get()
if FL:
    a(f"v_mov_b32 v{AD}, s64\nv_mov_b32 v{AD+1}, s65\nv_mov_b32 v{AD+2}, s64\nv_mov_b32 v{AD+3}, s65\ns_mov_b64 exec, 0xff\ns_waitcnt vmcnt(3)")
    a(f"buffer_store_dwordx4 {rg(AD,4)}, v1, s[12:15], s75 offen {SC}\ns_mov_b64 exec, -1")
else:
    a("s_waitcnt vmcnt(3)")
    flag_store(75)
a("s_mov_b32 s35, 4096")
a("P_c:")
stamp("x4")
a("s_cmp_ge_u32 s35, 800\ns_cbranch_scc1 P_d")
w1_loads()
a("P_d:")
PRIO = int(opts.get("prio", 0))
def table_dma(mt):
    off = 4096*(mt & 1) + 65536*(mt >> 1)
    a(f"s_add_u32 s27, s23, {off}\ns_mov_b32 m0, s27\n{'s_setprio 0' if PRIO else 's_nop 0'}")
    for x in range(4):
        a(f"buffer_load_dwordx4 v{TD+(x&1)}, s[8:11], s27 offen offset:{1024*x} lds")
    if PRIO: a("s_setprio 2")
for mt in range(M1): table_dma(mt)
stamp()
a("s_lshl_b32 s20, s25, 3\ns_add_u32 s48, s48, s20\ns_addc_u32 s49, s49, 0\ns_add_u32 s50, s50, s20\ns_addc_u32 s51, s51, 0")
nonce_get()
a(f"s_lshr_b32 s31, s34, 3\ns_lshl_b32 s31, s31, 9\ns_and_b32 s20, s34, 7\ns_lshl_b32 s20, s20, 6\ns_add_u32 s31, s31, s20\ns_lshl_b32 s20, s22, 3\ns_add_u32 s31, s31, s20\ns_add_u32 s31, s31, {FI}")
NL = 4*M1
a(f"s_cmp_lt_u32 s35, 800\ns_cbranch_scc1 P_a4\ns_cmp_eq_u32 s35, 4096\ns_cbranch_scc1 P_a1\ns_waitcnt vmcnt({NL})\nP_a1:\ns_waitcnt vmcnt({NL+1})\nP_a4:\ns_waitcnt vmcnt({NL+8})")
stamp()
flag_store(31)
XM = int(opts.get("xm", 1))
for mt in range(M1, XM): table_dma(mt)
PSC = opts.get("psc", "sc1").replace("_", " ")
def poll_load(sreg, tmp, addr): a(f"buffer_load_dwordx2 {rg(tmp,2)}, v{addr}, s[12:15], s{sreg} offen {PSC}")
def poll_check(sreg, tmp, addr, first_wait=0, sleep=SLEEP):
    l = newlab("Q_")
    a(f"s_mov_b32 s20, 0\ns_waitcnt vmcnt({first_wait})")
    a(f"{l}:")
    a(f"v_cmp_ne_u64 vcc, s[64:65], {rg(tmp,2)}\ns_cbranch_vccz {l}ok")
    a(f"s_sleep {sleep}")
    poll_load(sreg, tmp, addr)
    a(f"s_add_u32 s20, s20, 1\ns_waitcnt vmcnt(0)\ns_cmp_lt_u32 s20, 0x8000\ns_cbranch_scc1 {l}")
    a(f"{l}ok:")
a(f"s_lshr_b32 s21, s22, 2\ns_xor_b32 s21, s21, 1\ns_lshr_b32 s68, s25, 4\ns_lshl_b32 s68, s68, {10+H1}\ns_lshl_b32 s20, s21, {9+H1}\ns_add_u32 s68, s68, s20\ns_and_b32 s20, s22, 3\ns_lshl_b32 s20, s20, {7+H1}\ns_add_u32 s68, s68, s20\ns_add_u32 s68, s68, {FE}")
a(f"s_lshl_b32 s69, s25, 16\ns_lshl_b32 s21, s21, 13\ns_add_u32 s69, s69, s21\ns_lshl_b32 s20, s20, {3-H1}\ns_add_u32 s69, s69, s20\ns_add_u32 s69, s69, {WFR}\ns_add_u32 s74, s69, 4096")
a(f"v_and_b32 v{IX+8}, 7, v2\nv_lshlrev_b32 v{IX+8}, {3+H2}, v{IX+8}")
def x_load(): a(f"buffer_load_dwordx4 {rg(IX,4)}, v{VL16}, s[12:15], s69 offen {SC}\nbuffer_load_dwordx4 {rg(IX+4,4)}, v{VL16}, s[12:15], s74 offen {SC}")
def x_write(): a(f"ds_write_b128 v{VXW}, {rg(IX,4)} offset:1024\nds_write_b128 v{VXW}, {rg(IX+4,4)} offset:2048")
XA = int(opts.get("xa", 2))
X0_ = max(M1, XM)
a(f"s_cmp_lt_u32 s22, 4\ns_cbranch_scc1 P_g")
poll_load(68, IX+10, IX+8)
for mt in range(X0_, X0_ + XA): table_dma(mt)
poll_check(68, IX+10, IX+8, 4*XA)
stamp("z1")
x_load()
for mt in range(X0_ + XA, 4): table_dma(mt)
a("s_load_dwordx2 s[70:71], s[48:49], 0\ns_load_dwordx2 s[72:73], s[50:51], 0\ns_branch P_e")
a("P_g:")
for mt in range(X0_, 2): table_dma(mt)
a("s_cmp_ge_u32 s35, 800\ns_cbranch_scc1 P_d2")
a("s_waitcnt vmcnt(9)")
w1_process()
a("P_d2:")
a("s_load_dwordx2 s[70:71], s[48:49], 0\ns_load_dwordx2 s[72:73], s[50:51], 0")
table_dma(2); table_dma(3)
a("s_cmp_ge_u32 s35, 800\ns_cbranch_scc1 P_e")
a(f"s_waitcnt vmcnt(8)")
a(f"s_mov_b64 exec, 1\nbuffer_store_dwordx2 {rg(AD+2,2)}, v{AD}, s[12:15], s75 offen {SC}\ns_mov_b64 exec, -1")
a("P_e:")
FR = GD
a(f"v_bfe_u32 v{T+2}, v2, 4, 1\nv_lshlrev_b32 v{T+2}, 1, v{T+2}\nv_bfe_u32 v{T}, v2, 2, 2\nv_mov_b32 v{T+1}, 0x3f80")
a(f"v_cmp_eq_u32 vcc, v{T+2}, v{T}\nv_add_u32 v{T+2}, 1, v{T+2}\ns_nop 0\nv_cndmask_b32 v{SEL}, 0, v{T+1}, vcc\nv_cmp_eq_u32 vcc, v{T+2}, v{T}")
a(f"v_mov_b32 v{SEL+1}, v{SEL}\nv_and_b32 v{T+2}, 3, v2\nv_cndmask_b32 v{SEL+2}, 0, v{T+1}, vcc\nv_mul_u32_u24 v{SIDX}, 0x5555, v{T+2}\nv_mov_b32 v{SEL+3}, v{SEL+2}")
a(f"v_and_b32 v227, 24, v2\nv_and_b32 v{T}, 3, v2\nv_lshl_add_u32 v227, v{T}, 1, v227\nv_bfe_u32 v{T}, v2, 2, 1\nv_add_u32 v227, v227, v{T}")
a(f"v_lshrrev_b32 v{T}, 5, v2\nv_lshlrev_b32 v{VSP}, 5, v227\nv_lshl_add_u32 v{VSP}, v{T}, 4, v{VSP}\ns_lshl_b32 s31, s22, 11\ns_add_u32 s31, s31, 131072\nv_add_u32 v{VSP}, s31, v{VSP}")
a(f"v_bfe_u32 v{T+1}, v227, 1, 3\nv_xor_b32 v{T+1}, v{T+1}, v{T}\nv_lshlrev_b32 v227, 7, v227\nv_lshl_add_u32 v227, v{T+1}, 4, v227\nv_add_u32 v{FR}, s23, v227")
for ks in range(1, 4): a(f"v_xor_b32 v{FR+ks}, {32*ks}, v{FR}")
for ks in range(4): a(f"v_add_u32 v{FR+4+ks}, 0x10000, v{FR+ks}")
a(f"v_add_u32 v{VXR}, {XB}, v1\nv_add_u32 v{VXW}, s33, v1")
a(f"v_lshrrev_b32 v0, 3, v2\nv_lshlrev_b32 v0, 14, v0\nv_lshl_add_u32 v0, v{T+4}, 4, v0")
a("s_lshl_b32 s28, s24, 3\ns_add_u32 s28, s28, s22\ns_mul_i32 s28, s28, 102400")
a(f"s_lshl_b32 s75, s24, 6\ns_lshl_b32 s33, s22, 3\ns_add_u32 s75, s75, s33\ns_lshl_b32 s75, s75, 6\ns_add_u32 s75, s75, s25\ns_lshl_b32 s75, s75, 8\ns_add_u32 s75, s75, {PART}")
a(f"v_lshlrev_b32 v{AD}, 3, v2\nv_min_u32 v{AD+1}, 33, v2\nv_lshlrev_b32 v{AD+1}, 3, v{AD+1}")
a("s_cmp_lt_u32 s22, 4\ns_cbranch_scc1 P_h")
a(f"s_waitcnt vmcnt({4*(4-X0_-XA)})")
x_write()
a("P_h:")
a(f"s_lshr_b32 s29, s25, 4\ns_lshl_b32 s29, s29, 11\ns_and_b32 s20, s22, 3\ns_lshl_b32 s20, s20, 9\ns_add_u32 s29, s29, s20\ns_add_u32 s29, s29, {FW + 128}")
a(f"s_lshl_b32 s31, s24, 3\ns_add_u32 s31, s31, s22\ns_lshl_b32 s31, s31, 9\ns_add_u32 s31, s31, {FI}")
a(f"s_lshl_b32 s26, s25, 16\ns_lshl_b32 s20, s22, 10\ns_add_u32 s26, s26, s20\ns_add_u32 s26, s26, {WFR + 16384}")
a("s_waitcnt vmcnt(0)")
stamp()
for mt in range(4):
    for ks in range(4):
        a(f"ds_read_b128 {rg(TAB+16*mt+4*ks,4)}, v{FR+4*(mt>>1)+ks} offset:{4096*(mt&1)}")
a("s_setprio 0\ns_waitcnt lgkmcnt(0)\ns_barrier")
stamp()
def wf_read(off=0):
    for x in range(8):
        a(f"ds_read_b128 {rg(WF+4*x,4)}, v{VXR} offset:{XS*x + off}")
def wf_read_x(base):
    for x in (0, 4, 1, 5, 2, 6, 3, 7):
        a(f"ds_read_b128 {rg(WF+4*x,4)}, v{VXR} offset:{XS*(base + (x&3)) + 1024 + 1024*(x>>2)}")
wf_read_x(4)
poll_load(68, IX+10, IX+8)
poll_load(31, AD+2, AD)
def tg_mfma(mt, ks, e, d):
    c = "0" if ks == 0 else rg(d, 16)
    return f"v_mfma_f32_32x32x16_bf16 {rg(d,16)}, {rg(TAB+16*mt+4*ks,4)}, {rg(WF+16*e+4*ks,4)}, {c}"
D0, D1 = POOL+32, POOL+48
def tgen_groups():
    g = []
    for mt in range(3):
        for ks in range(4):
            for e in range(2):
                g.append([tg_mfma(mt, ks, e, D0 if e == 0 else D1)])
        g.extend([[] for _ in range(int(opts.get("gap", 3)))])
        for r in range(0, 16, 4):
            g.append([f"v_cvt_pk_bf16_f32 v{POOL+16*mt+r+x}, v{D0+r+x}, v{D1+r+x}" for x in range(4)])
    for ks in range(4): g.append([tg_mfma(3, ks, 0, D1)])
    for ks in range(4): g.append([tg_mfma(3, ks, 1, WF)])
    g.extend([[] for _ in range(int(opts.get("gap", 3)))])
    for r in range(0, 16, 4):
        g.append([f"v_cvt_pk_bf16_f32 v{D1+r+x}, v{D1+r+x}, v{WF+r+x}" for x in range(4)])
    return g
def wr_op(r):
    off = r*256 if r < 32 else 57472 + (r-32)*256
    pre = ["s_mov_b32 m0, s30", "s_nop 0"] if r == 32 else []
    return pre + [f"ds_write_addtid_b32 v{POOL+r} offset:{off}"]
a("s_mov_b32 m0, s23")
TP = int(opts.get("tp", 1)); TO = int(opts.get("to", 1))
def pro_d(mt): return [(ACC, ACC+16), (D0, D1), (ACC, ACC+16), (D1, GD)][mt]
pend = []
IXAT = int(opts.get("ixat", 2))
for mt in range(4):
    d0, d1 = pro_d(mt)
    seq = [(ks, e) for ks in range(4) for e in range(2)]
    if mt == 1:
        a("s_cmp_ge_u32 s22, 4\ns_cbranch_scc1 P_x1")
        poll_check(68, IX+10, IX+8, 1)
        x_load()
        a("P_x1:")
    if mt == IXAT:
        poll_check(31, AD+2, AD)
        stamp("y1")
        a("s_cmp_ge_u32 s22, 4\ns_cbranch_scc1 P_x2")
        x_write()
        a("P_x2:")
        a("s_lshl_b32 s68, s70, 16\ns_and_b32 s69, s70, 0xffff0000\ns_lshl_b32 s70, s71, 16\ns_and_b32 s71, s71, 0xffff0000")
        for x in range(4):
            a(f"buffer_load_dwordx4 {rg(IX+4*x,4)}, v{VL16}, s[12:15], s28 offen offset:{1024*x} {SC}")
        poll_load(29, RAW, AD+1)
        a("s_add_u32 s28, s28, 4096\ns_mov_b32 s21, 0")
        a(f"s_cmp_lg_u32 s22, {FIN}\ns_cbranch_scc1 P_f")
        srd(a, 4, 40, 16384*26)
        a(f"s_mov_b32 m0, {XWL}\ns_mul_i32 s20, s34, 1664\nbuffer_load_dwordx4 v1, s[4:7], s20 offen lds\nbuffer_load_dwordx4 v1, s[4:7], s20 offen offset:1024 lds")
        srd(a, 4, 44, 2)
        a(f"s_mov_b32 m0, {XWL+2048}\nv_mov_b32 v{RAW+3}, 0\nbuffer_load_ushort v{RAW+3}, s[4:7], 0 offen lds")
        srd(a, 4, 52, 2)
        a(f"s_mov_b32 m0, {XWL+2304}\ns_nop 0\nbuffer_load_ushort v{RAW+3}, s[4:7], 0 offen lds")
        srd(a, 4, 42, 26)
        a(f"v_lshlrev_b32 v{RAW+2}, 1, v2\nbuffer_load_ushort v{VWIDE}, v{RAW+2}, s[4:7], 0 offen\ns_mov_b32 m0, s23")
        a("P_f:")
    if TP: a(f"s_setprio {3 - mt}")
    for n, (ks, e) in enumerate(seq):
        if mt == 0: a(f"s_waitcnt lgkmcnt({7 - n if TO else 0})")
        a(tg_mfma(mt, ks, e, d0 if e == 0 else d1))
        if n >= 2:
            take = (len(pend) + (7 - n)) // (8 - n)
            for o in pend[:take]: a(o)
            pend = pend[take:]
        elif mt > 0: a("s_nop 4")
    assert not pend
    for r in range(16):
        pend.append(f"v_cvt_pk_bf16_f32 v{POOL+16*mt+r}, v{d0+r}, v{d1+r}")
    if mt == 3 and TO:
        cvs = pend; pend = []
        for r in range(16): pend.append(cvs[r]); pend.extend(wr_op(48 + r - 1) if r else [])
        pend.extend(wr_op(63))
    else:
        for r in range(16): pend.extend(wr_op(16*mt + r))
    if mt == 2 and TO:
        for s in range(8):
            for c in range(4): pend.append(f"v_mov_b32 v{ACC+4*s+c}, s{68+c}")
stamp("y2")
if TO: a("s_nop 1")
else:
    for s in range(8):
        for c in range(4): a(f"v_mov_b32 v{ACC+4*s+c}, s{68+c}")
for o in pend: a(o)
a(f"s_cmp_eq_u32 s22, {FIN}\ns_cbranch_scc1 P_k\ns_waitcnt vmcnt(0)\nP_k:")
poll_check(29, RAW, AD+1, 5)
a("s_waitcnt lgkmcnt(0)\ns_barrier")
wf_read_x(0)
stamp()

LA = int(opts.get("la", 1)); PAT = opts.get("pat", "SACMRL"); GP = int(opts.get("gp", 1))
RING = 8 * (LA + 1); DX = GD + 16
assert RING <= 16
def gather_phase(nunits, mf, cv, extra, acc_of):
    NB = nunits * 2
    log = [("ix", u) for u in range(4)]
    def vm_wait(tag):
        idx = len(log) - 1 - log[::-1].index(tag)
        a(f"s_waitcnt vmcnt({len(log) - 1 - idx})")
    def A(b):
        if b >= NB: return
        u = b // 2
        if b % 2 == 0: vm_wait(("ix", u))
        for x in range(4):
            d = IX + 4*(u & 3) + 2*(b & 1) + x//2
            a(f"v_lshlrev_b32_sdwa v{GD + (8*b) % RING + 2*x}, 3, v{d} dst_sel:DWORD dst_unused:UNUSED_PAD src0_sel:DWORD src1_sel:WORD_{x&1}")
    def R(b, lo=0, hi=4):
        if b >= NB: return
        for x in range(lo, hi):
            q = GD + (8*b) % RING + 2*x
            a(f"ds_read_b64 {rg(q,2)}, v{q}")
    def L(b):
        u = b // 2
        if b >= NB or b % 2 == 0 or not (nunits == 16 or u + 4 < nunits): return
        if u + 4 >= 16 and nunits == 20:
            for h in range(2):
                a(f"buffer_load_dwordx2 {rg(IX+4*(u&3)+2*h,2)}, v{VXW}, s[12:15], s28 offen offset:{1024*(u&3)+512*h} {SC}")
                log.append(("ix", u + 4))
        else:
            a(f"buffer_load_dwordx4 {rg(IX+4*(u&3),4)}, v{VL16}, s[12:15], s28 offen offset:{1024*(u&3)} {SC}")
            log.append(("ix", u + 4))
        if u & 3 == 3: a("s_add_u32 s28, s28, 4096")
    def emit(ops):
        for o in ops:
            if isinstance(o, tuple):
                a(o[0]); log.append(o[1])
            else: a(o)
    if GP: a("s_setprio 3")
    for b in range(LA + 1): A(b); R(b); L(b)
    for b in range(NB):
        if GP and b % (NB // 4) == 0 and b: a(f"s_setprio {3 - b // (NB // 4)}")
        nb = b + LA + 1
        for ch in PAT:
            if ch == "S":
                a(f"s_waitcnt lgkmcnt({min(NB, nb) * 4 - 4*(b+1)})")
                a(f"v_smfmac_f32_16x16x64_bf16 {rg(ACC+4*acc_of(b),4)}, {rg(SEL,4)}, {rg(GD + (8*b) % RING, 8)}, v{SIDX}")
            elif ch == "A": A(nb)
            elif ch == "R": R(nb)
            elif ch == "r": R(nb, 0, 2)
            elif ch == "q": R(nb, 2, 4)
            elif ch == "M": emit(mf.get(b, []))
            elif ch == "C": emit(cv.get(b, []))
            elif ch == "L": L(nb)
        emit(extra.get(b, []))
    return log, vm_wait
CYC = int(opts.get("cyc", 0))
def cyc(acc):
    if CYC: a(f"s_memtime s[98:99]\ns_waitcnt lgkmcnt(0)\ns_sub_u32 s100, s98, s96\ns_add_u32 s{acc}, s{acc}, s100\ns_mov_b32 s96, s98")
pad(PADPRO)
if CYC: a("s_memtime s[96:97]\ns_waitcnt lgkmcnt(0)\ns_mov_b32 s92, 0\ns_mov_b32 s93, 0\ns_mov_b32 s94, 0\ns_mov_b32 s95, 0\ns_mov_b32 s90, 0")
a("L_G:")
g_start = len(a.lines)
DD = [(POOL+32, POOL+48), (POOL+16, DX), (POOL+32, POOL+48), (DX, WF)]
mf = {}; cv = {}
for mt in range(4):
    seq = [(ks, e) for ks in range(4) for e in range(2)] if mt < 3 else [(ks, 0) for ks in range(4)] + [(ks, 1) for ks in range(4)]
    for n, (ks, e) in enumerate(seq): mf[8*mt + n] = [tg_mfma(mt, ks, e, DD[mt][e])]
    if mt < 3:
        for r in range(16):
            cv.setdefault(8*mt + 9 + (r * 7) // 16, []).append(f"v_cvt_pk_bf16_f32 v{POOL+16*mt+r}, v{DD[mt][0]+r}, v{DD[mt][1]+r}")
extra = {RAWAT // 4: [(f"buffer_load_dwordx4 {rg(RAW,4)}, v{VL16}, s[12:15], s26 offen {SC}", ("raw", 0)), "s_add_u32 s26, s26, 8192"]}
log, vm_wait = gather_phase(16, mf, cv, extra, lambda b: b // 4)
vm_wait(("raw", 0))
a(f"ds_write_b128 v{VXW}, {rg(RAW,4)}")
a("s_mov_b32 m0, s23\ns_add_u32 s21, s21, 1\ns_waitcnt lgkmcnt(0)")
cyc(92)
a("s_barrier")
cyc(93)
for r in range(64):
    for o in wr_op(r): a(o)
    if 8 <= r < 24: a(f"v_cvt_pk_bf16_f32 v{POOL+48+r-8}, v{DX+r-8}, v{WF+r-8}")
a("s_cmp_eq_u32 s21, 5\ns_cbranch_scc1 L_Wlast")
wf_read()
a("s_waitcnt vmcnt(0)\ns_cmp_lg_u32 s21, 1\ns_cbranch_scc1 L_nosent")
for x in range(4): a(f"v_mov_b32 v{RAW+x}, -1")
a(f"buffer_store_dwordx4 {rg(RAW,4)}, v0, s[12:15], s75 offen {SC}\nbuffer_store_dwordx4 {rg(RAW,4)}, v0, s[12:15], s75 offen offset:128 {SC}")
a(f"s_cmp_lg_u32 s22, {FIN}\ns_cbranch_scc1 L_nosent")
X = GD
a(f"v_and_b32 v{X}, 7, v2\nv_bfe_u32 v{X+1}, v2, 3, 1\nv_lshl_add_u32 v{X}, v{X+1}, 5, v{X}\nv_lshrrev_b32 v{X+1}, 4, v2\nv_lshl_add_u32 v{X}, v{X+1}, 3, v{X}\nv_mul_u32_u24 v{X}, 26, v{X}\nv_add_u32 v{X}, {XWL}, v{X}\nv_mov_b32 v{X+17}, {XWL+2048}")
for k in range(13): a(f"ds_read_u16 v{X+2+k}, v{X} offset:{2*k}")
a(f"ds_read_u16 v{X+15}, v{X+17}\nds_read_u16 v{X+16}, v{X+17} offset:256")
a(f"v_lshlrev_b32 v{X+1}, 16, v{VWIDE}\ns_nop 0")
for k in range(13): a(f"v_readlane_b32 s{36+k}, v{X+1}, {k}")
a("s_waitcnt lgkmcnt(0)")
for k in range(15): a(f"v_lshlrev_b32 v{X+2+k}, 16, v{X+2+k}")
a(f"v_mul_f32 v{VWIDE}, s36, v{X+2}\nv_readfirstlane_b32 s74, v{X+16}")
for k in range(1, 13): a(f"v_fmac_f32 v{VWIDE}, s{36+k}, v{X+2+k}")
rnd(VWIDE); a(f"v_add_f32 v{VWIDE}, v{VWIDE}, v{X+15}"); rnd(VWIDE)
a("L_nosent:")
a("s_waitcnt lgkmcnt(8)")
cyc(94)
a("s_barrier")
cyc(95)
a("s_branch L_G")
g_end = len(a.lines)
a("L_Wlast:")
a(f"v_and_b32 v{AD}, 1, v2\nv_mul_u32_u24 v{AD}, {4*XS}, v{AD}\nv_bfe_u32 v{AD+1}, v2, 1, 1\nv_lshl_add_u32 v{AD}, v{AD+1}, 4, v{AD}")
a(f"v_bfe_u32 v{AD+1}, v2, 3, 1\nv_lshl_add_u32 v{AD}, v{AD+1}, 5, v{AD}\nv_bfe_u32 v{AD+1}, v2, 2, 1\nv_lshl_add_u32 v{AD}, v{AD+1}, 6, v{AD}")
a(f"v_lshrrev_b32 v{AD+1}, 5, v2\nv_lshl_add_u32 v{AD}, v{AD+1}, 9, v{AD}\nv_add_u32 v{AD}, {XB}, v{AD}")
for x in range(4): a(f"ds_read_b128 {rg(WF+4*x,4)}, v{AD} offset:{XS*x}")
a(f"v_lshlrev_b32 v{VXW}, 3, v2")
a("s_cmp_lg_u32 s22, 0\ns_cbranch_scc1 L_Glast")
a(f"s_lshl_b32 s31, s34, 3\ns_add_u32 s31, s31, {F2}")
flag_store(31)
a("L_Glast:")
a("s_waitcnt lgkmcnt(0)")
cyc(94)
a("s_barrier")
cyc(95)
mf = {}; cv = {}; extra = {}
for mt in range(4):
    d = POOL + 16*mt
    for ks in range(4):
        c = "0" if ks == 0 else rg(d, 16)
        mf[4*mt + ks] = [f"v_mfma_f32_32x32x16_bf16 {rg(d,16)}, {rg(WF+4*ks,4)}, {rg(TAB+16*mt+4*ks,4)}, {c}"]
    cv[4*mt + 5] = [f"v_cvt_pk_bf16_f32 v{d+x}, v{d+2*x}, v{d+2*x+1}" for x in range(2)]
    cv[4*mt + 6] = [f"v_cvt_pk_bf16_f32 v{d+x}, v{d+2*x}, v{d+2*x+1}" for x in range(2, 4)]
    extra[4*mt + 6] = [f"ds_write_b128 v{VSP}, {rg(d,4)} offset:{(32*(mt & 1) + 512*(mt >> 1)) * 32}"]
extra[int(opts.get("mbat", 26))] = ["s_barrier"]
EP = int(opts.get("ep", 1))
RST = "sc1"
Y = TAB
def epi(s):
    return [f"v_cvt_pk_bf16_f32 v{POOL+2*s}, v{ACC+4*s}, v{ACC+4*s+1}", f"v_cvt_pk_bf16_f32 v{POOL+2*s+1}, v{ACC+4*s+2}, v{ACC+4*s+3}",
            f"v_pk_max_i16 v{POOL+2*s}, v{POOL+2*s}, 0", f"v_pk_max_i16 v{POOL+2*s+1}, v{POOL+2*s+1}, 0",
            f"v_dot2_f32_bf16 v{POOL+16+s}, v{POOL+2*s}, s72, 0", f"v_dot2_f32_bf16 v{POOL+16+s}, v{POOL+2*s+1}, s73, v{POOL+16+s}"]
def epi2(s): return [f"v_min_u32 v{POOL+16+s}, s33, v{POOL+16+s}"]
st0 = f"buffer_store_dwordx4 {rg(POOL+16,4)}, v0, s[12:15], s75 offen {RST}"
st1 = f"buffer_store_dwordx4 {rg(POOL+20,4)}, v0, s[12:15], s75 offen offset:128 {RST}"
extra[28] = ["s_lshl_b32 s31, s24, 9", f"s_add_u32 s31, s31, {F2}", "s_mov_b32 s33, -2", "s_mov_b32 s20, 0",
             (f"buffer_load_dwordx2 {rg(RAW,2)}, v{VXW}, s[12:15], s31 offen {SC}", ("f2", 0))]
extra[30] = [f"s_lshl_b32 s29, s34, 14", "s_lshl_b32 s27, s22, 11", "s_add_u32 s29, s29, s27", f"s_add_u32 s29, s29, {PART}",
             f"v_lshlrev_b32 v{Y+12}, 2, v2", f"v_add_u32 v{Y+12}, {PADR}, v{Y+12}", "s_lshl_b32 s27, s22, 8", f"v_add_u32 v{Y+13}, s27, v{Y+12}"]
extra[31] = [f"v_and_b32 v{Y+10}, 7, v2", f"v_bfe_u32 v{Y+11}, v2, 3, 1", f"v_lshl_add_u32 v{Y+10}, v{Y+11}, 5, v{Y+10}", f"v_lshrrev_b32 v{Y+11}, 4, v2",
             f"v_lshl_add_u32 v{Y+10}, v{Y+11}, 3, v{Y+10}", "s_lshl_b32 s27, s34, 6", f"v_add_u32 v{Y+10}, s27, v{Y+10}", f"v_lshlrev_b32 v{Y+10}, 1, v{Y+10}",
             "s_mov_b32 s8, s54", "s_and_b32 s9, s55, 0xffff", "s_mov_b32 s10, 32768", "s_mov_b32 s11, 0x00020000"]
if EP:
    for s in range(7): cv[33 + s] = epi(s) + (epi2(s-1) if s else [])
    extra[37] = [(st0, ("st", 0))]
gather_phase(20, mf, cv, extra, lambda b: b // 4 if b < 32 else b - 32)
cyc(90)
stamp()
if EP:
    a("s_nop 0")
    for o in epi(7): a(o)
    for o in epi2(6): a(o)
    a("s_nop 1")
    for o in epi2(7): a(o)
    a(st1)
else:
    a("s_nop 7")
    for k in range(6):
        for s in range(8): a(epi(s)[k])
    for s in range(8): a(epi2(s)[0])
    a(st0); a(st1)
a("R_f2:")
a(f"s_waitcnt vmcnt(0)\nv_cmp_ne_u64 vcc, s[64:65], {rg(RAW,2)}\ns_cbranch_vccz R_f2ok")
a(f"s_sleep 1\nbuffer_load_dwordx2 {rg(RAW,2)}, v{VXW}, s[12:15], s31 offen {SC}\ns_add_u32 s20, s20, 1\ns_cmp_lt_u32 s20, 0x8000\ns_cbranch_scc1 R_f2")
a("R_f2ok:")
a("s_mov_b32 s31, s29\ns_mov_b32 s20, 0")
if int(opts.get("rack", 1)): a("s_waitcnt vmcnt(0)")
if int(opts.get("rbar", 0)): a("s_barrier")
if int(opts.get("rdelay", 0)): a(f"s_sleep {int(opts.get('rdelay', 0))}")
a("R_poll:")
RSC = opts.get("rsc", "sc1").replace("_", " ")
a(f"buffer_load_dwordx4 {rg(Y,4)}, v1, s[12:15], s31 offen {RSC}\nbuffer_load_dwordx4 {rg(Y+4,4)}, v1, s[12:15], s31 offen offset:1024 {RSC}")
a("s_add_u32 s20, s20, 1\ns_waitcnt vmcnt(0)")
a(f"v_max3_u32 v{Y+8}, v{Y}, v{Y+1}, v{Y+2}\nv_max3_u32 v{Y+9}, v{Y+3}, v{Y+4}, v{Y+5}\nv_max3_u32 v{Y+8}, v{Y+8}, v{Y+6}, v{Y+7}\nv_max_u32 v{Y+8}, v{Y+8}, v{Y+9}")
a(f"v_cmp_eq_u32 vcc, -1, v{Y+8}\ns_cbranch_vccz R_ok")
a(f"s_sleep {RSLEEP}\ns_cmp_lt_u32 s20, 0x8000\ns_cbranch_scc1 R_poll")
a("R_ok:")
stamp("y3")
for x in range(4): a(f"v_add_f32 v{Y+x}, v{Y+x}, v{Y+4+x}")
a(f"s_nop 0\nv_permlane32_swap_b32 v{Y}, v{Y+2}\nv_permlane32_swap_b32 v{Y+1}, v{Y+3}\ns_nop 0\nv_add_f32 v{Y}, v{Y}, v{Y+2}\nv_add_f32 v{Y+1}, v{Y+1}, v{Y+3}\ns_nop 1\nv_permlane16_swap_b32 v{Y}, v{Y+1}\ns_nop 0\nv_add_f32 v{Y}, v{Y}, v{Y+1}")
a(f"ds_write_b32 v{Y+13}, v{Y}\ns_waitcnt lgkmcnt(0)\ns_barrier")
a(f"s_cmp_lg_u32 s22, {FIN}\ns_cbranch_scc1 M_fin")
for k in range(8): a(f"ds_read_b32 v{Y+k}, v{Y+12} offset:{256*k}")
a("s_waitcnt lgkmcnt(0)")
a(f"v_add_f32 v{Y}, v{Y}, v{Y+1}\nv_add_f32 v{Y+2}, v{Y+2}, v{Y+3}\nv_add_f32 v{Y+4}, v{Y+4}, v{Y+5}\nv_add_f32 v{Y+6}, v{Y+6}, v{Y+7}\nv_add_f32 v{Y}, v{Y}, v{Y+2}\nv_add_f32 v{Y+4}, v{Y+4}, v{Y+6}\nv_add_f32 v{Y}, v{Y}, v{Y+4}")
rnd(Y); a(f"v_add_f32 v{Y}, s74, v{Y}"); rnd(Y)
a(f"v_add_f32 v{Y}, v{Y}, v{VWIDE}"); rnd(Y)
a(f"v_mul_f32 v{Y}, 0xbfb8aa3b, v{Y}\nv_exp_f32 v{Y}, v{Y}\ns_nop 0\nv_add_f32 v{Y}, 1.0, v{Y}\nv_rcp_f32 v{Y}, v{Y}\ns_nop 0\nv_cvt_pk_bf16_f32 v{Y}, v{Y}, v{Y}")
a(f"buffer_store_short v{Y}, v{Y+10}, s[8:11], 0 offen")
a("M_fin:")
if int(opts.get("xcc", 0)):
    a("s_and_b32 s20, s2, 7\ns_cmp_lg_u32 s20, 0\ns_cbranch_scc1 M_end\ns_getreg_b32 s21, hwreg(HW_REG_XCC_ID)\ns_and_b32 s21, s21, 15\ns_bfe_u32 s20, s65, 0x40018\ns_cmp_eq_u32 s20, s21\ns_cbranch_scc1 M_end")
pad(PADEND)
if STAMP:
    a(f"s_cmp_lg_u32 s22, {SW}\ns_cbranch_scc1 M_end")
    a("s_waitcnt vmcnt(0)")
    stamp()
    a("s_waitcnt lgkmcnt(0)")
    n = nst[0]
    if int(opts.get('mt', 0)):
        for k in range(n - 1, -1, -1): a(f"s_sub_u32 s{76+2*k}, s{76+2*k}, s76\ns_mov_b32 s{77+2*k}, 0")
    if CYC:
        for k, r in enumerate([92, 93, 94, 95, 90]): a(f"s_mov_b32 s{78+2*k}, s{r}\ns_mov_b32 s{79+2*k}, 0")
        a("s_mov_b32 s76, 0\ns_mov_b32 s77, 0")
    elif PADPRO: a("s_mov_b32 s76, s64\ns_and_b32 s77, s65, 0x7fffffff")
    a(f"s_mul_i32 s31, s2, {8*n}\ns_add_u32 s31, s31, 0x8000000\nv_mov_b32 v2, 0")
    for k in range(n):
        a(f"v_mov_b32 v4, s{76+2*k}\nv_mov_b32 v5, s{77+2*k}\nbuffer_store_dwordx2 v[4:5], v2, s[12:15], s31 offen offset:{8*k}\ns_waitcnt vmcnt(0)")
    print("nstamps", n)
a("M_end:\ns_endpgm")
L = a.lines
errs = hazard.check(L[st:g_end] + L[g_start:], "main")
a.raw(kernel_desc(MAIN, 256, 102, 256))
for e in sorted(set(errs)): print("HAZARD", e)
open(sys.argv[1], "w").write(a.text())
```

```python
import sys
from common import *
import hazard
opts = dict(x.split("=") for x in sys.argv[2:])
AHEAD = int(opts.get("ahead", 8)); STAMP = int(opts.get("stamp", 0)); SW = int(opts.get("sw", 3))
SC = "sc1"
NT = "nt" if int(opts.get("nt", 0)) else ""
SST = opts.get("sst", "sc1").replace("_", " ")
SLEEP = int(opts.get("sleep", 1)); RSLEEP = int(opts.get("rsleep", 2))
TG0 = int(opts.get("tg0", 4)); TG1 = int(opts.get("tg1", 122)); RAWAT = int(opts.get("rawat", 40))
WS_BYTES = 268435456
IDX16 = 0; WFR = 4 << 20; PART = 8 << 20; FI = 16 << 20; FW = FI + 16384; F2 = FI + 24576; FE = FI + 65536; FL = int(opts.get('fl', 1))
LDELAY = int(opts.get('ldelay', 0)); M1 = int(opts.get('m1', 1)); M2 = int(opts.get('m2', 2))
STG = 131072; XWL = STG + 25600; XB = 131072; XS = 3200; PADR = 128000
ETAB = 0; WT = 12 << 20; MID = int(opts.get('mid', 2)); TOUCH = int(opts.get('touch', 1))
a = Asm()
a.raw(HEADER_COMMENT.rstrip("\n"))
a.raw("; @launch grid=(256,1,1) block=(512,1,1) lds=163840")
a.raw('.amdgcn_target "amdgcn-amd-amdhsa--gfx950"')
kernel_begin(a, MAIN)
TAB=4; ACC=68; WF=100; POOL=132; GD=196; NGD=32; IX=228; AD=GD+24; SEL=244; SIDX=252
RAW=248; VXW=253; VXR=254; VWIDE=3; VSP=255
Z0=GD+28; Z1=GD+29; Z2=GD+30; Z3=GD+31
VL16=1
T = POOL; U = GD
FIN = 3; POLLW = 7
def rg(b, n): return f"v[{b}:{b+n-1}]"
nst = [0]
SKIP = set(opts.get("skip", "x1,x2,x3,x4,z1").split(","))
def stamp(name=""):
    if STAMP and name not in SKIP and not (int(opts.get("cyc", 0)) and nst[0] >= 6):
        k = nst[0]; nst[0] += 1
        assert k < 13
        a(f"{'s_memtime' if int(opts.get('mt', 0)) else 's_memrealtime'} s[{76+2*k}:{77+2*k}]")
def rnd(r): a(f"v_cvt_pk_bf16_f32 v{r}, v{r}, v{r}\nv_lshlrev_b32 v{r}, 16, v{r}")
PADEND = int(opts.get("padend", 0)); PADPRO = int(opts.get("padpro", 0))
def pad(ticks):
    if not ticks: return
    l = newlab("PAD_")
    a(f"{l}:\ns_memrealtime s[32:33]\ns_waitcnt lgkmcnt(0)\ns_sub_u32 s32, s32, s64\ns_cmp_lt_i32 s32, {ticks}\ns_cbranch_scc1 {l}")
lab = [0]
def newlab(p):
    lab[0] += 1; return f"{p}{lab[0]}"
st = len(a.lines)
a("s_cmp_ge_u32 s2, 256\ns_cbranch_scc1 M_end")
stamp()
if int(opts.get("prio", 0)): a("s_setprio 2")
a("s_load_dwordx16 s[36:51], s[0:1], 0\ns_load_dwordx8 s[52:59], s[0:1], 64\ns_memrealtime s[64:65]")
a("s_getpc_b64 s[32:33]\nC_base:\ns_lshr_b32 s29, s2, 3\ns_lshl_b32 s20, s29, 9\nv_lshl_add_u32 v224, v0, 7, s20\nv_min_u32 v224, M_end-C_base, v224")
a("v_cmp_gt_u32 vcc, 4, v0\ns_and_saveexec_b64 s[20:21], vcc\ns_cbranch_execz C_skip\nglobal_load_dword v224, v224, s[32:33]\nC_skip:\ns_mov_b64 exec, -1")
a("v_and_b32 v2, 63, v0\nv_lshrrev_b32 v227, 6, v0\nv_lshlrev_b32 v1, 4, v2\nv_readfirstlane_b32 s22, v227")
a("s_and_b32 s20, s2, 7\ns_lshr_b32 s24, s20, 1\ns_and_b32 s20, s20, 1\ns_lshl_b32 s20, s20, 5\ns_add_u32 s25, s20, s29")
a("s_lshl_b32 s34, s24, 6\ns_add_u32 s34, s34, s25")
a("s_lshl_b32 s35, s22, 8\ns_add_u32 s35, s35, s34")
a(f"v_lshrrev_b32 v{U}, 4, v2\nv_and_b32 v{U+1}, 15, v2\nv_lshlrev_b32 v{U+2}, 15, v{U}\nv_lshl_add_u32 v{U+2}, v{U+1}, 3, v{U+2}\nv_mov_b32 v{U+5}, 0")
a("s_lshr_b32 s20, s35, 5\ns_lshl_b32 s20, s20, 17\ns_bfe_u32 s21, s35, 0x30002\ns_lshl_b32 s21, s21, 12\ns_add_u32 s20, s20, s21\ns_and_b32 s21, s35, 3\ns_lshl_b32 s21, s21, 7\ns_add_u32 s31, s20, s21")
a(f"s_mul_i32 s20, s34, 25600\ns_mul_i32 s21, s22, 3200\ns_add_u32 s20, s20, s21\ns_add_u32 s33, s21, {STG}\ns_mov_b32 m0, s33")
a("s_lshl_b32 s23, s22, 13\ns_add_u32 s30, s23, 8064")
a("s_mov_b32 s18, 3276800\ns_mov_b32 s19, 0x00020000\ns_mov_b32 s6, 6553600\ns_mov_b32 s7, 0x00020000")
a("s_waitcnt lgkmcnt(0)")
stamp()
a("s_mov_b32 s16, s46\ns_and_b32 s17, s47, 0xffff\ns_mov_b32 s4, s36\ns_and_b32 s5, s37, 0xffff")
srd(a, 60, 56, 256)
srd(a, 12, 58, WS_BYTES)
CNT = 163836
a("s_lshl_b32 s21, s2, 3\ns_add_u32 s21, s21, s22\ns_cmp_lg_u32 s21, 6\ns_cbranch_scc1 P_n0")
if int(opts.get("xcc", 0)):
    a("s_getreg_b32 s21, hwreg(HW_REG_XCC_ID)\ns_and_b32 s21, s21, 15\ns_lshl_b32 s21, s21, 24\ns_and_b32 s65, s65, 0xffffff\ns_or_b32 s65, s65, s21")
a(f"v_mov_b32 v{T+4}, s64\nv_mov_b32 v{T+5}, s65\nv_mov_b32 v{T+6}, 0\nv_or_b32 v{T+5}, 0x80000000, v{T+5}\ns_mov_b64 exec, 1")
a(f"buffer_store_dwordx2 {rg(T+4,2)}, v{T+6}, s[60:63], 0 offen {SC}\ns_mov_b64 exec, -1")
a("P_n0:")
WR_ = U + 8
def w1_loads(sreg=31):
    for j8 in range(8):
        a(f"buffer_load_dwordx2 {rg(WR_+2*j8,2)}, v{U+2}, s[16:19], s{sreg} offen offset:{512*j8} {NT}")
a("s_cmp_lg_u32 s22, 0\ns_cbranch_scc1 P_now1")
w1_loads()
a("P_now1:")
for r in range(3):
    a(f"buffer_load_dwordx4 v1, s[4:7], s20 offen offset:{1024*r} {NT} lds")
a(f"s_mov_b64 exec, 0xff\nbuffer_load_dwordx4 v1, s[4:7], s20 offen offset:3072 {NT} lds\ns_mov_b64 exec, -1")
srd(a, 8, 38, 128000)
a("s_barrier")
if int(opts.get("dw", 1)): a("s_cmp_lg_u32 s22, 5\ns_cbranch_scc1 P_n5\ns_load_dword s74, s[56:57], 192\nP_n5:")
a(f"s_cmp_lt_u32 s22, 4\ns_cbranch_scc1 P_lo\ns_cmp_lg_u32 s22, 4\ns_cbranch_scc1 P_skip")
a(f"v_and_b32 v224, 31, v2\nv_lshlrev_b32 v224, 7, v224\ns_lshl_b32 s21, s29, 12\nbuffer_load_dword v224, v224, s[8:11], s21 offen\ns_branch P_skip")
def nonce_load(): a("s_load_dwordx2 s[64:65], s[56:57], 0")
def nonce_get():
    l = newlab("N_")
    a(f"s_waitcnt lgkmcnt(0)\ns_cmp_lt_i32 s65, 0\ns_cbranch_scc1 {l}ok\ns_mov_b32 s20, 0\nv_mov_b32 v{AD}, 0")
    a(f"{l}:")
    a(f"buffer_load_dwordx2 {rg(AD+2,2)}, v{AD}, s[60:63], 0 offen {SC}\ns_add_u32 s20, s20, 1\ns_waitcnt vmcnt(0)")
    a(f"v_readfirstlane_b32 s64, v{AD+2}\nv_readfirstlane_b32 s65, v{AD+3}\ns_cmp_lt_i32 s65, 0\ns_cbranch_scc1 {l}ok")
    a(f"s_sleep 1\ns_cmp_lt_u32 s20, 0x8000\ns_cbranch_scc1 {l}")
    a(f"{l}ok:")
def flag_store(sreg):
    a(f"v_mov_b32 v{AD}, 0\nv_mov_b32 v{AD+2}, s64\nv_mov_b32 v{AD+3}, s65\ns_mov_b64 exec, 1")
    a(f"buffer_store_dwordx2 {rg(AD+2,2)}, v{AD}, s[12:15], s{sreg} offen {SC}\ns_mov_b64 exec, -1")
def w1_process(PR=WF, RB=WF+16, sreg=26):
    for c in range(4):
        for d in range(4):
            a(f"v_perm_b32 v{PR+4*c+d}, v{WR_+2*(2*d+1)+(c>>1)}, v{WR_+2*(2*d)+(c>>1)}, s{66+(c&1)}")
    for c in range(4):
        a(f"ds_write_b128 v{U+3}, {rg(PR+4*c,4)} offset:{(c&1)*128 + (c>>1)*16}")
    a("s_waitcnt lgkmcnt(0)")
    for r in range(4):
        a(f"ds_read_b128 {rg(RB+4*r,4)}, v{U+4} offset:{r*4*272}")
    for r in range(4):
        a(f"s_waitcnt lgkmcnt({3-r})\nbuffer_store_dwordx4 {rg(RB+4*r,4)}, v{U+5}, s[12:15], s{sreg} offen {SC}\ns_add_u32 s{sreg}, s{sreg}, {4*65536}")
a("P_lo:")
a("s_cmp_ge_u32 s35, 800\ns_cbranch_scc1 P_skip")
a("s_mov_b32 s66, 0x05040100\ns_mov_b32 s67, 0x07060302\ns_add_u32 s21, s23, 0x10000")
a(f"v_mul_u32_u24 v{U+3}, 272, v{U+1}\nv_lshl_add_u32 v{U+3}, v{U}, 5, v{U+3}\nv_add_u32 v{U+3}, s21, v{U+3}")
a(f"v_mul_u32_u24 v{U+4}, 272, v{U}\nv_lshl_add_u32 v{U+4}, v{U+1}, 4, v{U+4}\nv_add_u32 v{U+4}, s21, v{U+4}")
a(f"v_lshlrev_b32 v{U+5}, 16, v{U}\nv_bfe_u32 v{U+6}, v2, 3, 1\nv_lshl_add_u32 v{U+5}, v{U+6}, 12, v{U+5}\nv_and_b32 v{U+6}, 7, v2\nv_lshl_add_u32 v{U+5}, v{U+6}, 4, v{U+5}")
a("s_and_b32 s26, s35, 3\ns_lshl_b32 s26, s26, 20\ns_lshr_b32 s21, s35, 7\ns_lshl_b32 s21, s21, 13\ns_add_u32 s26, s26, s21\ns_bfe_u32 s21, s35, 0x30002\ns_lshl_b32 s21, s21, 9\ns_add_u32 s26, s26, s21")
a(f"s_bfe_u32 s21, s35, 0x20005\ns_lshl_b32 s21, s21, 7\ns_add_u32 s26, s26, s21\ns_add_u32 s26, s26, {WFR}")
a(f"s_and_b32 s75, s35, 3\ns_lshl_b32 s75, s75, 11\ns_bfe_u32 s21, s35, 0x20003\ns_lshl_b32 s21, s21, 9\ns_add_u32 s75, s75, s21\ns_lshr_b32 s21, s35, 5\ns_lshl_b32 s21, s21, 4\ns_add_u32 s75, s75, s21\ns_bfe_u32 s21, s35, 0x10002\ns_lshl_b32 s21, s21, 3\ns_add_u32 s75, s75, s21\ns_add_u32 s75, s75, {FW}")
a("s_cmp_lg_u32 s22, 0\ns_cbranch_scc1 P_skip")
H1, H2 = (3, 4) if FL else (0, 0)
a(f"s_and_b32 s75, s35, 3\ns_lshl_b32 s75, s75, {10+H1}\ns_lshr_b32 s21, s35, 7\ns_lshl_b32 s21, s21, {9+H1}\ns_add_u32 s75, s75, s21\ns_bfe_u32 s21, s35, 0x20003\ns_lshl_b32 s21, s21, {7+H1}\ns_add_u32 s75, s75, s21")
a(f"s_bfe_u32 s21, s35, 0x20005\ns_lshl_b32 s21, s21, {4+H2}\ns_add_u32 s75, s75, s21\ns_bfe_u32 s21, s35, 0x10002\ns_lshl_b32 s21, s21, {3+H2}\ns_add_u32 s75, s75, s21\ns_add_u32 s75, s75, {FE}")
a("s_waitcnt vmcnt(4)")
w1_process()
a("P_skip:")
stamp("x2")
a(f"v_and_b32 v{T+4}, 7, v2\nv_lshrrev_b32 v{T+5}, 3, v2")
a(f"s_and_b32 s20, s34, 1\ns_lshl_b32 s20, s20, 3\nv_add_u32 v{T+6}, s20, v{T+4}")
a(f"v_mul_u32_u24 v{T+7}, 400, v{T+4}\nv_add_u32 v{T+7}, s33, v{T+7}")
a(f"v_and_b32 v{T+8}, 1, v{T+5}\nv_lshrrev_b32 v{T+9}, 1, v{T+5}")
a(f"v_lshlrev_b32 v{T+10}, 3, v{T+8}\nv_xor_b32 v{T+10}, v{T+10}, v{T+6}")
a(f"v_lshl_add_u32 v{T+11}, v{T+9}, 6, v{T+7}")
a(f"v_lshlrev_b32 v{T+9}, 14, v{T+9}\nv_lshl_add_u32 v{T+9}, v{T+8}, 10, v{T+9}\nv_lshl_add_u32 v{T+9}, v{T+4}, 4, v{T+9}")
SL, LA_, RD, PK, SS = T+12, T+20, T+28, T+44, T+52
for u in range(8):
    a(f"v_xor_b32 v{SL+u}, {u}, v{T+10}")
    a(f"v_lshl_add_u32 v{LA_+u}, v{SL+u}, 2, v{T+11}")
a(f"v_and_b32 v{T+10}, 3, v{T+4}")
for u in range(4):
    a(f"v_xor_b32 v{SS+u}, {u}, v{T+10}\nv_lshl_add_u32 v{SS+4+u}, v{SS+u}, 2, v{T+7}\nv_add_u32 v{SS+u}, 16384, v{SS+u}")
a("s_lshr_b32 s27, s34, 3\ns_mul_i32 s27, s27, 102400\ns_lshl_b32 s20, s22, 11\ns_add_u32 s28, s27, s20\ns_and_b32 s21, s34, 7\ns_lshl_b32 s20, s21, 7\ns_add_u32 s28, s28, s20")
a(f"s_lshl_b32 s20, s22, 9\ns_add_u32 s27, s27, s20\ns_lshl_b32 s20, s21, 6\ns_add_u32 s27, s27, s20\ns_add_u32 s27, s27, 98304\nv_lshlrev_b32 v{T+8}, 3, v{T+4}")
TD = RAW
a(f"v_xor_b32 v{TD+1}, v{T+4}, v{U}\nv_lshlrev_b32 v{TD}, 7, v{T+5}\nv_lshl_add_u32 v{TD}, v{TD+1}, 4, v{TD}\nv_xor_b32 v{TD+1}, 64, v{TD}")
stamp("x1")
a(f"s_cmp_eq_u32 s22, 0\ns_cbranch_scc1 P_c4\ns_cmp_eq_u32 s22, 4\ns_cbranch_scc1 P_c1")
a("s_waitcnt vmcnt(0)\nP_c1:\ns_waitcnt vmcnt(1)\nP_c4:\ns_waitcnt vmcnt(4)")
stamp()
for u in range(8): a(f"ds_read_b32 v{RD+u}, v{LA_+u}")
for u in range(8): a(f"ds_read_b32 v{RD+8+u}, v{LA_+u} offset:256")
for u in range(4): a(f"ds_read_b32 v{SS+8+u}, v{SS+4+u} offset:384")
def conv(k):
    for u in range(8):
        a(f"v_lshl_add_u32 v{RD+8*k+u}, v{RD+8*k+u}, 4, v{SL+u}")
    for d in range(4):
        a(f"v_lshl_or_b32 v{PK+4*k+d}, v{RD+8*k+2*d+1}, 16, v{RD+8*k+2*d}")
a("s_waitcnt lgkmcnt(12)")
conv(0)
a(f"buffer_store_dwordx4 {rg(PK,4)}, v{T+9}, s[12:15], s28 offen {SC}")
a("s_waitcnt lgkmcnt(0)")
nonce_load()
conv(1)
for u in range(4): a(f"v_lshl_add_u32 v{SS+8+u}, v{SS+8+u}, 2, v{SS+u}")
a(f"v_lshl_or_b32 v{SS+4}, v{SS+9}, 16, v{SS+8}\nv_lshl_or_b32 v{SS+5}, v{SS+11}, 16, v{SS+10}")
a(f"s_add_u32 s28, s28, 65536\ns_mov_b32 exec_hi, 0\nbuffer_store_dwordx4 {rg(PK+4,4)}, v{T+9}, s[12:15], s28 offen {SC}")
a(f"s_mov_b64 exec, 0xff\nbuffer_store_dwordx2 {rg(SS+4,2)}, v{T+8}, s[12:15], s27 offen {SC}\ns_mov_b64 exec, -1")
stamp("x3")
BA = int(opts.get("ba", 0))
a("s_cmp_lg_u32 s22, 0\ns_cbranch_scc1 P_c")
nonce_get()
if FL:
    a(f"v_mov_b32 v{AD}, s64\nv_mov_b32 v{AD+1}, s65\nv_mov_b32 v{AD+2}, s64\nv_mov_b32 v{AD+3}, s65\ns_mov_b64 exec, 0xff\ns_waitcnt vmcnt(3)")
    a(f"buffer_store_dwordx4 {rg(AD,4)}, v1, s[12:15], s75 offen {SC}\ns_mov_b64 exec, -1")
else:
    a("s_waitcnt vmcnt(3)")
    flag_store(75)
a("s_mov_b32 s35, 4096")
a("P_c:")
if int(opts.get("nounit", 0)): a("s_mov_b32 s35, 4097")
stamp("x4")
a("s_mov_b32 s36, s31\ns_mov_b32 s37, s26\ns_mov_b32 s38, s75")
PRIO = int(opts.get("prio", 0))
def table_dma(mt):
    off = 4096*(mt & 1) + 65536*(mt >> 1)
    a(f"s_add_u32 s27, s23, {off}\ns_mov_b32 m0, s27\n{'s_setprio 0' if PRIO else 's_nop 0'}")
    for x in range(4):
        a(f"buffer_load_dwordx4 v{TD+(x&1)}, s[8:11], {'0' if int(opts.get('tabsame', 0)) else 's27'} offen offset:{1024*x} lds")
    if PRIO: a("s_setprio 2")
for mt in range(M1): table_dma(mt)
stamp()
a("s_lshl_b32 s20, s25, 3\ns_add_u32 s48, s48, s20\ns_addc_u32 s49, s49, 0\ns_add_u32 s50, s50, s20\ns_addc_u32 s51, s51, 0")
nonce_get()
a(f"s_lshr_b32 s31, s34, 3\ns_lshl_b32 s31, s31, 9\ns_and_b32 s20, s34, 7\ns_lshl_b32 s20, s20, 6\ns_add_u32 s31, s31, s20\ns_lshl_b32 s20, s22, 3\ns_add_u32 s31, s31, s20\ns_add_u32 s31, s31, {FI}")
NL = 4*M1
a(f"s_cmp_eq_u32 s35, 4096\ns_cbranch_scc1 P_a1\ns_waitcnt vmcnt({NL})\nP_a1:\ns_waitcnt vmcnt({NL+1})")
stamp()
flag_store(31)
XM = int(opts.get("xm", 1))
for mt in range(M1, XM): table_dma(mt)
PSC = opts.get("psc", "sc1").replace("_", " ")
def poll_load(sreg, tmp, addr): a(f"buffer_load_dwordx2 {rg(tmp,2)}, v{addr}, s[12:15], s{sreg} offen {PSC}")
def poll_check(sreg, tmp, addr, first_wait=0, sleep=SLEEP):
    l = newlab("Q_")
    a(f"s_mov_b32 s20, 0\ns_waitcnt vmcnt({first_wait})")
    a(f"{l}:")
    a(f"v_cmp_ne_u64 vcc, s[64:65], {rg(tmp,2)}\ns_cbranch_vccz {l}ok")
    a(f"s_sleep {sleep}")
    poll_load(sreg, tmp, addr)
    a(f"s_add_u32 s20, s20, 1\ns_waitcnt vmcnt(0)\ns_cmp_lt_u32 s20, 0x8000\ns_cbranch_scc1 {l}")
    a(f"{l}ok:")
a(f"s_lshr_b32 s21, s22, 2\ns_xor_b32 s21, s21, 1\ns_lshr_b32 s68, s25, 4\ns_lshl_b32 s68, s68, {10+H1}\ns_lshl_b32 s20, s21, {9+H1}\ns_add_u32 s68, s68, s20\ns_and_b32 s20, s22, 3\ns_lshl_b32 s20, s20, {7+H1}\ns_add_u32 s68, s68, s20\ns_add_u32 s68, s68, {FE}")
a(f"s_lshl_b32 s69, s25, 16\ns_lshl_b32 s21, s21, 13\ns_add_u32 s69, s69, s21\ns_lshl_b32 s20, s20, {3-H1}\ns_add_u32 s69, s69, s20\ns_add_u32 s69, s69, {WFR}\ns_add_u32 s74, s69, 4096")
a(f"v_and_b32 v{IX+8}, 7, v2\nv_lshlrev_b32 v{IX+8}, {3+H2}, v{IX+8}")
def x_load(): a(f"buffer_load_dwordx4 {rg(IX,4)}, v{VL16}, s[12:15], s69 offen {SC}\nbuffer_load_dwordx4 {rg(IX+4,4)}, v{VL16}, s[12:15], s74 offen {SC}")
def x_write(): a(f"ds_write_b128 v{VXW}, {rg(IX,4)} offset:1024\nds_write_b128 v{VXW}, {rg(IX+4,4)} offset:2048")
XA = int(opts.get("xa", 2))
X0_ = max(M1, XM)
a(f"s_cmp_lt_u32 s22, 4\ns_cbranch_scc1 P_g")
poll_load(68, IX+10, IX+8)
for mt in range(X0_, X0_ + XA): table_dma(mt)
poll_check(68, IX+10, IX+8, 4*XA)
stamp("z1")
x_load()
for mt in range(X0_ + XA, 4): table_dma(mt)
a("s_load_dwordx2 s[70:71], s[48:49], 0\ns_load_dwordx2 s[72:73], s[50:51], 0\ns_branch P_e")
a("P_g:")
for mt in range(X0_, 4): table_dma(mt)
a("s_load_dwordx2 s[70:71], s[48:49], 0\ns_load_dwordx2 s[72:73], s[50:51], 0")
a("P_e:")
FR = T + 16
a(f"v_bfe_u32 v{T+2}, v2, 4, 1\nv_lshlrev_b32 v{T+2}, 1, v{T+2}\nv_bfe_u32 v{T}, v2, 2, 2\nv_mov_b32 v{T+1}, 0x3f80")
a(f"v_cmp_eq_u32 vcc, v{T+2}, v{T}\nv_add_u32 v{T+2}, 1, v{T+2}\ns_nop 0\nv_cndmask_b32 v{SEL}, 0, v{T+1}, vcc\nv_cmp_eq_u32 vcc, v{T+2}, v{T}")
a(f"v_mov_b32 v{SEL+1}, v{SEL}\nv_and_b32 v{T+2}, 3, v2\nv_cndmask_b32 v{SEL+2}, 0, v{T+1}, vcc\nv_mul_u32_u24 v{SIDX}, 0x5555, v{T+2}\nv_mov_b32 v{SEL+3}, v{SEL+2}")
a(f"v_and_b32 v227, 24, v2\nv_and_b32 v{T}, 3, v2\nv_lshl_add_u32 v227, v{T}, 1, v227\nv_bfe_u32 v{T}, v2, 2, 1\nv_add_u32 v227, v227, v{T}")
a(f"v_lshrrev_b32 v{T}, 5, v2\nv_lshlrev_b32 v{VSP}, 5, v227\nv_lshl_add_u32 v{VSP}, v{T}, 4, v{VSP}\ns_lshl_b32 s31, s22, 11\ns_add_u32 s31, s31, 131072\nv_add_u32 v{VSP}, s31, v{VSP}")
a(f"v_bfe_u32 v{T+1}, v227, 1, 3\nv_xor_b32 v{T+1}, v{T+1}, v{T}\nv_lshlrev_b32 v227, 7, v227\nv_lshl_add_u32 v227, v{T+1}, 4, v227\nv_add_u32 v{FR}, s23, v227")
for ks in range(1, 4): a(f"v_xor_b32 v{FR+ks}, {32*ks}, v{FR}")
for ks in range(4): a(f"v_add_u32 v{FR+4+ks}, 0x10000, v{FR+ks}")
a(f"v_add_u32 v{VXR}, {XB}, v1\nv_add_u32 v{VXW}, s33, v1")
a(f"v_lshrrev_b32 v0, 3, v2\nv_lshlrev_b32 v0, 14, v0\nv_lshl_add_u32 v0, v{T+4}, 4, v0")
a("s_lshl_b32 s28, s24, 3\ns_add_u32 s28, s28, s22\ns_mul_i32 s28, s28, 102400")
a(f"s_lshl_b32 s75, s24, 6\ns_lshl_b32 s33, s22, 3\ns_add_u32 s75, s75, s33\ns_lshl_b32 s75, s75, 6\ns_add_u32 s75, s75, s25\ns_lshl_b32 s75, s75, 8\ns_add_u32 s75, s75, {PART}")
a(f"v_lshlrev_b32 v{AD}, 3, v2\nv_min_u32 v{AD+1}, 33, v2\nv_lshlrev_b32 v{AD+1}, 3, v{AD+1}")
a("s_cmp_lt_u32 s22, 4\ns_cbranch_scc1 P_h")
a(f"s_waitcnt vmcnt({4*(4-X0_-XA)})")
x_write()
a("P_h:")
a(f"s_lshr_b32 s29, s25, 4\ns_lshl_b32 s29, s29, 11\ns_and_b32 s20, s22, 3\ns_lshl_b32 s20, s20, 9\ns_add_u32 s29, s29, s20\ns_add_u32 s29, s29, {FW + 128}")
a(f"s_lshl_b32 s31, s24, 3\ns_add_u32 s31, s31, s22\ns_lshl_b32 s31, s31, 9\ns_add_u32 s31, s31, {FI}")
a(f"s_lshl_b32 s26, s25, 16\ns_lshl_b32 s20, s22, 10\ns_add_u32 s26, s26, s20\ns_add_u32 s26, s26, {WFR + 16384}")
a("s_waitcnt vmcnt(0)")
stamp()
for mt in range(4):
    for ks in range(4):
        a(f"ds_read_b128 {rg(TAB+16*mt+4*ks,4)}, v{FR+4*(mt>>1)+ks} offset:{4096*(mt&1)}")
a("s_setprio 0\ns_waitcnt lgkmcnt(0)\ns_barrier")
stamp()
def wf_read(off=0):
    for x in range(8):
        a(f"ds_read_b128 {rg(WF+4*x,4)}, v{VXR} offset:{XS*x + off}")
def wf_read_x(base):
    for x in (0, 4, 1, 5, 2, 6, 3, 7):
        a(f"ds_read_b128 {rg(WF+4*x,4)}, v{VXR} offset:{XS*(base + (x&3)) + 1024 + 1024*(x>>2)}")
wf_read_x(4)
poll_load(68, IX+10, IX+8)
poll_load(31, AD+2, AD)
UAT = int(opts.get("uat", 1))
if UAT == 0:
    a("s_cmp_ge_u32 s35, 800\ns_cbranch_scc1 P_u0")
    w1_loads(36)
    a("P_u0:")
def tg_mfma(mt, ks, e, d):
    c = "0" if ks == 0 else rg(d, 16)
    return f"v_mfma_f32_32x32x16_bf16 {rg(d,16)}, {rg(TAB+16*mt+4*ks,4)}, {rg(WF+16*e+4*ks,4)}, {c}"
D0, D1 = POOL+32, POOL+48
def tgen_groups():
    g = []
    for mt in range(3):
        for ks in range(4):
            for e in range(2):
                g.append([tg_mfma(mt, ks, e, D0 if e == 0 else D1)])
        g.extend([[] for _ in range(int(opts.get("gap", 3)))])
        for r in range(0, 16, 4):
            g.append([f"v_cvt_pk_bf16_f32 v{POOL+16*mt+r+x}, v{D0+r+x}, v{D1+r+x}" for x in range(4)])
    for ks in range(4): g.append([tg_mfma(3, ks, 0, D1)])
    for ks in range(4): g.append([tg_mfma(3, ks, 1, WF)])
    g.extend([[] for _ in range(int(opts.get("gap", 3)))])
    for r in range(0, 16, 4):
        g.append([f"v_cvt_pk_bf16_f32 v{D1+r+x}, v{D1+r+x}, v{WF+r+x}" for x in range(4)])
    return g
def wr_op(r):
    off = r*256 if r < 32 else 57472 + (r-32)*256
    pre = ["s_mov_b32 m0, s30", "s_nop 0"] if r == 32 else []
    return pre + [f"ds_write_addtid_b32 v{POOL+r} offset:{off}"]
a("s_mov_b32 m0, s23")
TP = int(opts.get("tp", 1)); TO = int(opts.get("to", 1))
def pro_d(mt): return [(ACC, ACC+16), (D0, D1), (ACC, ACC+16), (D1, GD)][mt]
pend = []
IXAT = int(opts.get("ixat", 2))
for mt in range(4):
    d0, d1 = pro_d(mt)
    seq = [(ks, e) for ks in range(4) for e in range(2)]
    if mt == 1:
        a("s_cmp_ge_u32 s22, 4\ns_cbranch_scc1 P_x1")
        if UAT == 0: a("s_cmp_lt_u32 s35, 800\ns_cbranch_scc1 P_u1\ns_waitcnt vmcnt(1)\nP_u1:")
        poll_check(68, IX+10, IX+8, 9 if UAT == 0 else 1)
        x_load()
        if UAT == 1:
            a("s_cmp_ge_u32 s35, 800\ns_cbranch_scc1 P_x1")
            w1_loads(36)
        a("P_x1:")
    if mt == IXAT:
        poll_check(31, AD+2, AD)
        stamp("y1")
        a("s_cmp_ge_u32 s22, 4\ns_cbranch_scc1 P_x2")
        x_write()
        a("s_cmp_ge_u32 s35, 800\ns_cbranch_scc1 P_x2")
        w1_process(IX, WR_, 37)
        a("P_x2:")
        a("s_lshl_b32 s68, s70, 16\ns_and_b32 s69, s70, 0xffff0000\ns_lshl_b32 s70, s71, 16\ns_and_b32 s71, s71, 0xffff0000")
        for x in range(4):
            a(f"buffer_load_dwordx4 {rg(IX+4*x,4)}, v{VL16}, s[12:15], s28 offen offset:{1024*x} {SC}")
        a("s_add_u32 s28, s28, 4096\ns_mov_b32 s21, 0")
        a(f"s_cmp_lg_u32 s22, {FIN}\ns_cbranch_scc1 P_f")
        srd(a, 4, 40, 16384*26)
        a(f"s_mov_b32 m0, {XWL}\ns_mul_i32 s20, s34, 1664\nbuffer_load_dwordx4 v1, s[4:7], s20 offen lds\nbuffer_load_dwordx4 v1, s[4:7], s20 offen offset:1024 lds")
        srd(a, 4, 44, 2)
        a(f"s_mov_b32 m0, {XWL+2048}\nv_mov_b32 v{RAW+3}, 0\nbuffer_load_ushort v{RAW+3}, s[4:7], 0 offen lds")
        srd(a, 4, 52, 2)
        a(f"s_mov_b32 m0, {XWL+2304}\ns_nop 0\nbuffer_load_ushort v{RAW+3}, s[4:7], 0 offen lds")
        srd(a, 4, 42, 26)
        a(f"v_lshlrev_b32 v{RAW+2}, 1, v2\nbuffer_load_ushort v{VWIDE}, v{RAW+2}, s[4:7], 0 offen\ns_mov_b32 m0, s23")
        a("P_f:")
    if TP: a(f"s_setprio {3 - mt}")
    for n, (ks, e) in enumerate(seq):
        if mt == 0: a(f"s_waitcnt lgkmcnt({7 - n if TO else 0})")
        a(tg_mfma(mt, ks, e, d0 if e == 0 else d1))
        if n >= 2:
            take = (len(pend) + (7 - n)) // (8 - n)
            for o in pend[:take]: a(o)
            pend = pend[take:]
        elif mt > 0: a("s_nop 4")
    assert not pend
    for r in range(16):
        pend.append(f"v_cvt_pk_bf16_f32 v{POOL+16*mt+r}, v{d0+r}, v{d1+r}")
    if mt == 3 and TO:
        cvs = pend; pend = []
        for r in range(16): pend.append(cvs[r]); pend.extend(wr_op(48 + r - 1) if r else [])
        pend.extend(wr_op(63))
    else:
        for r in range(16): pend.extend(wr_op(16*mt + r))
    if mt == 2 and TO:
        for s in range(8):
            for c in range(4): pend.append(f"v_mov_b32 v{ACC+4*s+c}, s{68+c}")
stamp("y2")
a("s_waitcnt lgkmcnt(8)\ns_barrier")
if TO: a("s_nop 1")
else:
    for s in range(8):
        for c in range(4): a(f"v_mov_b32 v{ACC+4*s+c}, s{68+c}")
for o in pend: a(o)
wf_read_x(0)
a(f"s_cmp_ge_u32 s35, 800\ns_cbranch_scc1 P_k2\ns_cmp_eq_u32 s22, {FIN}\ns_cbranch_scc1 P_k\ns_waitcnt vmcnt(4)\nP_k:\ns_waitcnt vmcnt(9)")
flag_store(38)
a("P_k2:")
stamp()

LA = int(opts.get("la", 1)); PAT = opts.get("pat", "SACMRL"); GP = int(opts.get("gp", 1))
RING = 8 * (LA + 1); DX = GD + 16
assert RING <= 16
ROT = int(opts.get("rot", 1))
def gather_phase(nunits, mf, cv, extra, acc_of, head=None, tail=None):
    NB = nunits * 2
    log = [("ix", u) for u in range(4)]
    def vm_wait(tag):
        idx = len(log) - 1 - log[::-1].index(tag)
        a(f"s_waitcnt vmcnt({len(log) - 1 - idx})")
    def A(b):
        if b >= NB: return
        u = b // 2
        if b % 2 == 0: vm_wait(("ix", u))
        for x in range(4):
            d = IX + 4*(u & 3) + 2*(b & 1) + x//2
            a(f"v_lshlrev_b32_sdwa v{GD + (8*b) % RING + 2*x}, 3, v{d} dst_sel:DWORD dst_unused:UNUSED_PAD src0_sel:DWORD src1_sel:WORD_{x&1}")
    def R(b, lo=0, hi=4):
        if b >= NB: return
        for x in range(lo, hi):
            q = GD + (8*b) % RING + 2*x
            a(f"ds_read_b64 {rg(q,2)}, v{q}")
    def L(b):
        u = b // 2
        if b >= NB or b % 2 == 0 or not (nunits == 16 or u + 4 < nunits): return
        if u + 4 >= 16 and nunits == 20:
            for h in range(2):
                a(f"buffer_load_dwordx2 {rg(IX+4*(u&3)+2*h,2)}, v{VXW}, s[12:15], s28 offen offset:{1024*(u&3)+512*h} {SC}")
                log.append(("ix", u + 4))
        else:
            a(f"buffer_load_dwordx4 {rg(IX+4*(u&3),4)}, v{VL16}, s[12:15], s28 offen offset:{1024*(u&3)} {SC}")
            log.append(("ix", u + 4))
        if u & 3 == 3: a("s_add_u32 s28, s28, 4096")
    def emit(ops):
        for o in ops:
            if isinstance(o, tuple):
                a(o[0]); log.append(o[1])
            elif o == "WAITRAW": vm_wait(("raw", 0))
            elif o == "WCHECK":
                vm_wait(("wfl", 0))
                a(f"v_cmp_ne_u64 vcc, s[64:65], {rg(RAW,2)}\ns_cbranch_vccnz W_slow\nW_back:")
            else: a(o)
    if GP: a("s_setprio 3")
    if head:
        for b in range(LA + 1): A(b)
        for b in range(LA + 1): L(b)
        head()
        for b in range(LA + 1): R(b)
    else:
        for b in range(LA + 1): A(b); R(b); L(b)
    for b in range(NB):
        if GP and b % (NB // 4) == 0 and b: a(f"s_setprio {3 - b // (NB // 4)}")
        nb = b + LA + 1
        for ch in PAT:
            if ch == "S":
                a(f"s_waitcnt lgkmcnt({min(NB, nb) * 4 - 4*(b+1)})")
                if tail and b == NB - 1: tail()
                a(f"v_smfmac_f32_16x16x64_bf16 {rg(ACC+4*acc_of(b),4)}, {rg(SEL,4)}, {rg(GD + (8*b) % RING, 8)}, v{SIDX}")
            elif ch == "A": A(nb)
            elif ch == "R": R(nb)
            elif ch == "r": R(nb, 0, 2)
            elif ch == "q": R(nb, 2, 4)
            elif ch == "M": emit(mf.get(b, []))
            elif ch == "C": emit(cv.get(b, []))
            elif ch == "L": L(nb)
        emit(extra.get(b, []))
    return log, vm_wait
CYC = int(opts.get("cyc", 0))
def cyc(acc):
    if CYC: a(f"s_memtime s[98:99]\ns_waitcnt lgkmcnt(0)\ns_sub_u32 s100, s98, s96\ns_add_u32 s{acc}, s{acc}, s100\ns_mov_b32 s96, s98")
pad(PADPRO)
if CYC: a("s_memtime s[96:97]\ns_waitcnt lgkmcnt(0)\ns_mov_b32 s92, 0\ns_mov_b32 s93, 0\ns_mov_b32 s94, 0\ns_mov_b32 s95, 0\ns_mov_b32 s90, 0")
a("L_G:")
g_start = len(a.lines)
DD = [(POOL+32, POOL+48), (POOL+16, DX), (POOL+32, POOL+48), (DX, WF)]
mf = {}; cv = {}
for mt in range(4):
    seq = [(ks, e) for ks in range(4) for e in range(2)] if mt < 3 else [(ks, 0) for ks in range(4)] + [(ks, 1) for ks in range(4)]
    for n, (ks, e) in enumerate(seq): mf[8*mt + n] = [tg_mfma(mt, ks, e, DD[mt][e])]
    if mt < 3:
        for r in range(16):
            cv.setdefault(8*mt + 9 + (r * 7) // 16, []).append(f"v_cvt_pk_bf16_f32 v{POOL+16*mt+r}, v{DD[mt][0]+r}, v{DD[mt][1]+r}")
PB = int(opts.get("pb", 15)); RB_ = int(opts.get("rb", 20)); XBAT = int(opts.get("xb", 29))
extra = {}
extra[PB] = ["s_cmp_eq_u32 s21, 4", "s_cselect_b32 s20, 1, 7", f"v_min_u32 v{RAW+2}, s20, v2", f"v_lshlrev_b32 v{RAW+2}, 3, v{RAW+2}",
             (f"buffer_load_dwordx2 {rg(RAW,2)}, v{RAW+2}, s[12:15], s29 offen {SC}", ("wfl", 0))]
extra[RB_] = ["WCHECK", (f"buffer_load_dwordx4 {rg(RAW,4)}, v{VL16}, s[12:15], s26 offen {SC}", ("raw", 0)), "s_add_u32 s26, s26, 8192", "s_add_u32 s29, s29, 64"]
extra[XBAT] = ["WAITRAW", f"ds_write_b128 v{VXW}, {rg(RAW,4)}", "s_mov_b32 m0, s23", "s_add_u32 s21, s21, 1"]
def g_head():
    a("s_waitcnt lgkmcnt(8)"); cyc(94); a("s_barrier"); cyc(95)
def g_tail():
    cyc(92); a("s_barrier"); cyc(93)
    for r in range(4):
        for o in wr_op(r): a(o)
log, vm_wait = gather_phase(16, mf, cv, extra, lambda b: b // 4, g_head, g_tail)
for r in range(4, 64):
    for o in wr_op(r): a(o)
    if 16 <= r < 32: a(f"v_cvt_pk_bf16_f32 v{POOL+48+r-16}, v{DX+r-16}, v{WF+r-16}")
a("s_cmp_eq_u32 s21, 5\ns_cbranch_scc1 L_Wlast")
wf_read()
a("s_waitcnt vmcnt(0)\ns_cmp_lg_u32 s21, 1\ns_cbranch_scc1 L_nosent")
for x in range(4): a(f"v_mov_b32 v{RAW+x}, -1")
a(f"buffer_store_dwordx4 {rg(RAW,4)}, v0, s[12:15], s75 offen {SC}\nbuffer_store_dwordx4 {rg(RAW,4)}, v0, s[12:15], s75 offen offset:128 {SC}")
a(f"s_cmp_lg_u32 s22, {FIN}\ns_cbranch_scc1 L_nosent")
X = GD
a(f"v_and_b32 v{X}, 7, v2\nv_bfe_u32 v{X+1}, v2, 3, 1\nv_lshl_add_u32 v{X}, v{X+1}, 5, v{X}\nv_lshrrev_b32 v{X+1}, 4, v2\nv_lshl_add_u32 v{X}, v{X+1}, 3, v{X}\nv_mul_u32_u24 v{X}, 26, v{X}\nv_add_u32 v{X}, {XWL}, v{X}\nv_mov_b32 v{X+17}, {XWL+2048}")
for k in range(13): a(f"ds_read_u16 v{X+2+k}, v{X} offset:{2*k}")
a(f"ds_read_u16 v{X+15}, v{X+17}\nds_read_u16 v{X+16}, v{X+17} offset:256")
a(f"v_lshlrev_b32 v{X+1}, 16, v{VWIDE}\ns_nop 0")
for k in range(13): a(f"v_readlane_b32 s{36+k}, v{X+1}, {k}")
a("s_waitcnt lgkmcnt(0)")
for k in range(15): a(f"v_lshlrev_b32 v{X+2+k}, 16, v{X+2+k}")
a(f"v_mul_f32 v{VWIDE}, s36, v{X+2}\nv_readfirstlane_b32 s74, v{X+16}")
for k in range(1, 13): a(f"v_fmac_f32 v{VWIDE}, s{36+k}, v{X+2+k}")
rnd(VWIDE); a(f"v_add_f32 v{VWIDE}, v{VWIDE}, v{X+15}"); rnd(VWIDE)
a("L_nosent:")
a("s_branch L_G")
g_end = len(a.lines)
a("W_slow:")
poll_check(29, RAW, RAW+2)
a("s_branch W_back")
a("L_Wlast:")
a(f"v_and_b32 v{AD}, 1, v2\nv_mul_u32_u24 v{AD}, {4*XS}, v{AD}\nv_bfe_u32 v{AD+1}, v2, 1, 1\nv_lshl_add_u32 v{AD}, v{AD+1}, 4, v{AD}")
a(f"v_bfe_u32 v{AD+1}, v2, 3, 1\nv_lshl_add_u32 v{AD}, v{AD+1}, 5, v{AD}\nv_bfe_u32 v{AD+1}, v2, 2, 1\nv_lshl_add_u32 v{AD}, v{AD+1}, 6, v{AD}")
a(f"v_lshrrev_b32 v{AD+1}, 5, v2\nv_lshl_add_u32 v{AD}, v{AD+1}, 9, v{AD}\nv_add_u32 v{AD}, {XB}, v{AD}")
for x in range(4): a(f"ds_read_b128 {rg(WF+4*x,4)}, v{AD} offset:{XS*x}")
a(f"v_lshlrev_b32 v{VXW}, 3, v2")
a("s_cmp_lg_u32 s22, 0\ns_cbranch_scc1 L_Glast")
a(f"s_lshl_b32 s31, s34, 3\ns_add_u32 s31, s31, {F2}")
flag_store(31)
a("L_Glast:")
mf = {}; cv = {}; extra = {}
for mt in range(4):
    d = POOL + 16*mt
    for ks in range(4):
        c = "0" if ks == 0 else rg(d, 16)
        mf[4*mt + ks] = [f"v_mfma_f32_32x32x16_bf16 {rg(d,16)}, {rg(WF+4*ks,4)}, {rg(TAB+16*mt+4*ks,4)}, {c}"]
    cv[4*mt + 5] = [f"v_cvt_pk_bf16_f32 v{d+x}, v{d+2*x}, v{d+2*x+1}" for x in range(2)]
    cv[4*mt + 6] = [f"v_cvt_pk_bf16_f32 v{d+x}, v{d+2*x}, v{d+2*x+1}" for x in range(2, 4)]
    extra[4*mt + 6] = [f"ds_write_b128 v{VSP}, {rg(d,4)} offset:{(32*(mt & 1) + 512*(mt >> 1)) * 32}"]
extra[int(opts.get("mbat", 26))] = ["s_barrier"]
EP = int(opts.get("ep", 1))
RST = "sc1"
Y = TAB
def epi(s):
    return [f"v_cvt_pk_bf16_f32 v{POOL+2*s}, v{ACC+4*s}, v{ACC+4*s+1}", f"v_cvt_pk_bf16_f32 v{POOL+2*s+1}, v{ACC+4*s+2}, v{ACC+4*s+3}",
            f"v_pk_max_i16 v{POOL+2*s}, v{POOL+2*s}, 0", f"v_pk_max_i16 v{POOL+2*s+1}, v{POOL+2*s+1}, 0",
            f"v_dot2_f32_bf16 v{POOL+16+s}, v{POOL+2*s}, s72, 0", f"v_dot2_f32_bf16 v{POOL+16+s}, v{POOL+2*s+1}, s73, v{POOL+16+s}"]
def epi2(s): return [f"v_min_u32 v{POOL+16+s}, s33, v{POOL+16+s}"]
st0 = f"buffer_store_dwordx4 {rg(POOL+16,4)}, v0, s[12:15], s75 offen {RST}"
st1 = f"buffer_store_dwordx4 {rg(POOL+20,4)}, v0, s[12:15], s75 offen offset:128 {RST}"
extra[28] = ["s_lshl_b32 s31, s24, 9", f"s_add_u32 s31, s31, {F2}", "s_mov_b32 s33, -2", "s_mov_b32 s20, 0",
             (f"buffer_load_dwordx2 {rg(RAW,2)}, v{VXW}, s[12:15], s31 offen {SC}", ("f2", 0))]
extra[30] = [f"s_lshl_b32 s29, s34, 14", "s_lshl_b32 s27, s22, 11", "s_add_u32 s29, s29, s27", f"s_add_u32 s29, s29, {PART}",
             f"v_lshlrev_b32 v{Y+12}, 2, v2", f"v_add_u32 v{Y+12}, {PADR}, v{Y+12}", "s_lshl_b32 s27, s22, 8", f"v_add_u32 v{Y+13}, s27, v{Y+12}"]
extra[31] = [f"v_and_b32 v{Y+10}, 7, v2", f"v_bfe_u32 v{Y+11}, v2, 3, 1", f"v_lshl_add_u32 v{Y+10}, v{Y+11}, 5, v{Y+10}", f"v_lshrrev_b32 v{Y+11}, 4, v2",
             f"v_lshl_add_u32 v{Y+10}, v{Y+11}, 3, v{Y+10}", "s_lshl_b32 s27, s34, 6", f"v_add_u32 v{Y+10}, s27, v{Y+10}", f"v_lshlrev_b32 v{Y+10}, 1, v{Y+10}",
             "s_mov_b32 s8, s54", "s_and_b32 s9, s55, 0xffff", "s_mov_b32 s10, 32768", "s_mov_b32 s11, 0x00020000"]
if EP:
    for s in range(7): cv[33 + s] = epi(s) + (epi2(s-1) if s else [])
    extra[37] = [(st0, ("st", 0))]
def gl_head():
    a("s_waitcnt lgkmcnt(0)"); cyc(94); a("s_barrier"); cyc(95)
gather_phase(20, mf, cv, extra, lambda b: b // 4 if b < 32 else b - 32, gl_head)
cyc(90)
stamp()
if EP:
    a("s_nop 0")
    for o in epi(7): a(o)
    for o in epi2(6): a(o)
    a("s_nop 1")
    for o in epi2(7): a(o)
    a(st1)
else:
    a("s_nop 7")
    for k in range(6):
        for s in range(8): a(epi(s)[k])
    for s in range(8): a(epi2(s)[0])
    a(st0); a(st1)
a("R_f2:")
a(f"s_waitcnt vmcnt(0)\nv_cmp_ne_u64 vcc, s[64:65], {rg(RAW,2)}\ns_cbranch_vccz R_f2ok")
a(f"s_sleep 1\nbuffer_load_dwordx2 {rg(RAW,2)}, v{VXW}, s[12:15], s31 offen {SC}\ns_add_u32 s20, s20, 1\ns_cmp_lt_u32 s20, 0x8000\ns_cbranch_scc1 R_f2")
a("R_f2ok:")
a("s_mov_b32 s31, s29\ns_mov_b32 s20, 0")
if int(opts.get("rack", 1)): a("s_waitcnt vmcnt(0)")
if int(opts.get("rbar", 0)): a("s_barrier")
if int(opts.get("rdelay", 0)): a(f"s_sleep {int(opts.get('rdelay', 0))}")
a("R_poll:")
RSC = opts.get("rsc", "sc1").replace("_", " ")
a(f"buffer_load_dwordx4 {rg(Y,4)}, v1, s[12:15], s31 offen {RSC}\nbuffer_load_dwordx4 {rg(Y+4,4)}, v1, s[12:15], s31 offen offset:1024 {RSC}")
a("s_add_u32 s20, s20, 1\ns_waitcnt vmcnt(0)")
a(f"v_max3_u32 v{Y+8}, v{Y}, v{Y+1}, v{Y+2}\nv_max3_u32 v{Y+9}, v{Y+3}, v{Y+4}, v{Y+5}\nv_max3_u32 v{Y+8}, v{Y+8}, v{Y+6}, v{Y+7}\nv_max_u32 v{Y+8}, v{Y+8}, v{Y+9}")
a(f"v_cmp_eq_u32 vcc, -1, v{Y+8}\ns_cbranch_vccz R_ok")
a(f"s_sleep {RSLEEP}\ns_cmp_lt_u32 s20, 0x8000\ns_cbranch_scc1 R_poll")
a("R_ok:")
stamp("y3")
for x in range(4): a(f"v_add_f32 v{Y+x}, v{Y+x}, v{Y+4+x}")
a(f"s_nop 0\nv_permlane32_swap_b32 v{Y}, v{Y+2}\nv_permlane32_swap_b32 v{Y+1}, v{Y+3}\ns_nop 0\nv_add_f32 v{Y}, v{Y}, v{Y+2}\nv_add_f32 v{Y+1}, v{Y+1}, v{Y+3}\ns_nop 1\nv_permlane16_swap_b32 v{Y}, v{Y+1}\ns_nop 0\nv_add_f32 v{Y}, v{Y}, v{Y+1}")
a(f"ds_write_b32 v{Y+13}, v{Y}\ns_waitcnt lgkmcnt(0)\ns_barrier")
a(f"s_cmp_lg_u32 s22, {FIN}\ns_cbranch_scc1 M_fin")
for k in range(8): a(f"ds_read_b32 v{Y+k}, v{Y+12} offset:{256*k}")
a("s_waitcnt lgkmcnt(0)")
a(f"v_add_f32 v{Y}, v{Y}, v{Y+1}\nv_add_f32 v{Y+2}, v{Y+2}, v{Y+3}\nv_add_f32 v{Y+4}, v{Y+4}, v{Y+5}\nv_add_f32 v{Y+6}, v{Y+6}, v{Y+7}\nv_add_f32 v{Y}, v{Y}, v{Y+2}\nv_add_f32 v{Y+4}, v{Y+4}, v{Y+6}\nv_add_f32 v{Y}, v{Y}, v{Y+4}")
rnd(Y); a(f"v_add_f32 v{Y}, s74, v{Y}"); rnd(Y)
a(f"v_add_f32 v{Y}, v{Y}, v{VWIDE}"); rnd(Y)
a(f"v_mul_f32 v{Y}, 0xbfb8aa3b, v{Y}\nv_exp_f32 v{Y}, v{Y}\ns_nop 0\nv_add_f32 v{Y}, 1.0, v{Y}\nv_rcp_f32 v{Y}, v{Y}\ns_nop 0\nv_cvt_pk_bf16_f32 v{Y}, v{Y}, v{Y}")
a(f"buffer_store_short v{Y}, v{Y+10}, s[8:11], 0 offen {opts.get('osc', '').replace('_', ' ')}")
a("M_fin:")
if int(opts.get("xcc", 0)):
    a("s_and_b32 s20, s2, 7\ns_cmp_lg_u32 s20, 0\ns_cbranch_scc1 M_end\ns_getreg_b32 s21, hwreg(HW_REG_XCC_ID)\ns_and_b32 s21, s21, 15\ns_bfe_u32 s20, s65, 0x40018\ns_cmp_eq_u32 s20, s21\ns_cbranch_scc1 M_end")
pad(PADEND)
PROBE = int(opts.get("probe", -1))
if PROBE >= 0:
    a(f"s_cmp_lg_u32 s22, {SW}\ns_cbranch_scc1 M_end")
    if int(opts.get("pwg", -1)) >= 0: a(f"s_cmp_lg_u32 s2, {int(opts.get('pwg'))}\ns_cbranch_scc1 M_end")
    a("s_waitcnt vmcnt(0)")
    stamp()
    a(f"s_waitcnt lgkmcnt(0)\ns_sub_u32 s20, s{76+2*PROBE}, s64\ns_mul_i32 s20, s20, {int(opts.get('gain', 10))}\ns_add_u32 s20, s20, 4000")
    a("PRB:\ns_memrealtime s[32:33]\ns_waitcnt lgkmcnt(0)\ns_sub_u32 s32, s32, s64\ns_cmp_lt_i32 s32, s20\ns_cbranch_scc1 PRB")
elif STAMP:
    a(f"s_cmp_lg_u32 s22, {SW}\ns_cbranch_scc1 M_end")
    a("s_waitcnt vmcnt(0)")
    stamp()
    a("s_waitcnt lgkmcnt(0)")
    n = nst[0]
    if int(opts.get('mt', 0)):
        for k in range(n - 1, -1, -1): a(f"s_sub_u32 s{76+2*k}, s{76+2*k}, s76\ns_mov_b32 s{77+2*k}, 0")
    if CYC:
        for k, r in enumerate([92, 93, 94, 95, 90]): a(f"s_mov_b32 s{78+2*k}, s{r}\ns_mov_b32 s{79+2*k}, 0")
        a("s_mov_b32 s76, 0\ns_mov_b32 s77, 0")
    elif PADPRO: a("s_mov_b32 s76, s64\ns_and_b32 s77, s65, 0x7fffffff")
    a(f"s_mul_i32 s31, s2, {8*n}\ns_add_u32 s31, s31, 0x8000000\nv_mov_b32 v2, 0")
    for k in range(n):
        a(f"v_mov_b32 v4, s{76+2*k}\nv_mov_b32 v5, s{77+2*k}\nbuffer_store_dwordx2 v[4:5], v2, s[12:15], s31 offen offset:{8*k}\ns_waitcnt vmcnt(0)")
    print("nstamps", n)
a("M_end:\ns_endpgm")
L = a.lines
errs = hazard.check(L[st:g_end] + L[g_start:], "main")
a.raw(kernel_desc(MAIN, 256, 102, 256))
for e in sorted(set(errs)): print("HAZARD", e)
open(sys.argv[1], "w").write(a.text())
```

```python
import sys
from common import *
import hazard
opts = dict(x.split("=") for x in sys.argv[2:])
AHEAD = int(opts.get("ahead", 8)); STAMP = int(opts.get("stamp", 0)); SW = int(opts.get("sw", 3))
SC = "sc1"
NT = "nt" if int(opts.get("nt", 0)) else ""
SST = opts.get("sst", "sc1").replace("_", " ")
SLEEP = int(opts.get("sleep", 1)); RSLEEP = int(opts.get("rsleep", 2))
TG0 = int(opts.get("tg0", 4)); TG1 = int(opts.get("tg1", 122)); RAWAT = int(opts.get("rawat", 40))
WS_BYTES = 268435456
IDX16 = 0; WFR = 4 << 20; PART = 8 << 20; FI = 16 << 20; FW = FI + 16384; F2 = FI + 24576; FE = FI + 65536; FL = int(opts.get('fl', 1))
LDELAY = int(opts.get('ldelay', 0)); M1 = int(opts.get('m1', 1)); M2 = int(opts.get('m2', 2))
STG = 131072; XWL = STG + 25600; XB = 131072; XS = 3200; PADR = 128000
ETAB = 0; WT = 12 << 20; MID = int(opts.get('mid', 2)); TOUCH = int(opts.get('touch', 1))
a = Asm()
a.raw(HEADER_COMMENT.rstrip("\n"))
a.raw("; @launch grid=(256,1,1) block=(512,1,1) lds=163840")
a.raw('.amdgcn_target "amdgcn-amd-amdhsa--gfx950"')
kernel_begin(a, MAIN)
TAB=4; ACC=68; WF=100; POOL=132; GD=196; NGD=32; IX=228; AD=GD+24; SEL=244; SIDX=252
RAW=248; VXW=253; VXR=254; VWIDE=3; VSP=255
Z0=GD+28; Z1=GD+29; Z2=GD+30; Z3=GD+31
VL16=1
T = POOL; U = GD
FIN = 3; POLLW = 7
def rg(b, n): return f"v[{b}:{b+n-1}]"
nst = [0]
SKIP = set(opts.get("skip", "x1,x2,x3,x4,z1").split(","))
def stamp(name=""):
    if STAMP and name not in SKIP and not (int(opts.get("cyc", 0)) and nst[0] >= 6):
        k = nst[0]; nst[0] += 1
        assert k < 13
        a(f"{'s_memtime' if int(opts.get('mt', 0)) else 's_memrealtime'} s[{76+2*k}:{77+2*k}]")
def rnd(r): a(f"v_cvt_pk_bf16_f32 v{r}, v{r}, v{r}\nv_lshlrev_b32 v{r}, 16, v{r}")
PADEND = int(opts.get("padend", 0)); PADPRO = int(opts.get("padpro", 0))
def pad(ticks):
    if not ticks: return
    l = newlab("PAD_")
    a(f"{l}:\ns_memrealtime s[32:33]\ns_waitcnt lgkmcnt(0)\ns_sub_u32 s32, s32, s64\ns_cmp_lt_i32 s32, {ticks}\ns_cbranch_scc1 {l}")
lab = [0]
def newlab(p):
    lab[0] += 1; return f"{p}{lab[0]}"
st = len(a.lines)
a("s_cmp_ge_u32 s2, 256\ns_cbranch_scc1 M_end")
stamp()
if int(opts.get("prio", 0)): a("s_setprio 2")
a("s_load_dwordx16 s[36:51], s[0:1], 0\ns_load_dwordx8 s[52:59], s[0:1], 64\ns_memrealtime s[64:65]")
a("s_getpc_b64 s[32:33]\nC_base:\ns_lshr_b32 s29, s2, 3\ns_lshl_b32 s20, s29, 9\nv_lshl_add_u32 v224, v0, 7, s20\nv_min_u32 v224, M_end-C_base, v224")
a("v_cmp_gt_u32 vcc, 4, v0\ns_and_saveexec_b64 s[20:21], vcc\ns_cbranch_execz C_skip\nglobal_load_dword v224, v224, s[32:33]\nC_skip:\ns_mov_b64 exec, -1")
a("v_and_b32 v2, 63, v0\nv_lshrrev_b32 v227, 6, v0\nv_lshlrev_b32 v1, 4, v2\nv_readfirstlane_b32 s22, v227")
a("s_and_b32 s20, s2, 7\ns_lshr_b32 s24, s20, 1\ns_and_b32 s20, s20, 1\ns_lshl_b32 s20, s20, 5\ns_add_u32 s25, s20, s29")
a("s_lshl_b32 s34, s24, 6\ns_add_u32 s34, s34, s25")
a("s_lshl_b32 s35, s22, 8\ns_add_u32 s35, s35, s34")
a(f"v_lshrrev_b32 v{U}, 4, v2\nv_and_b32 v{U+1}, 15, v2\nv_lshlrev_b32 v{U+2}, 15, v{U}\nv_lshl_add_u32 v{U+2}, v{U+1}, 3, v{U+2}\nv_mov_b32 v{U+5}, 0")
a("s_lshr_b32 s20, s35, 5\ns_lshl_b32 s20, s20, 17\ns_bfe_u32 s21, s35, 0x30002\ns_lshl_b32 s21, s21, 12\ns_add_u32 s20, s20, s21\ns_and_b32 s21, s35, 3\ns_lshl_b32 s21, s21, 7\ns_add_u32 s31, s20, s21")
a(f"s_mul_i32 s20, s34, 25600\ns_mul_i32 s21, s22, 3200\ns_add_u32 s20, s20, s21\ns_add_u32 s33, s21, {STG}\ns_mov_b32 m0, s33")
a("s_lshl_b32 s23, s22, 13\ns_add_u32 s30, s23, 8064")
a("s_mov_b32 s18, 3276800\ns_mov_b32 s19, 0x00020000\ns_mov_b32 s6, 6553600\ns_mov_b32 s7, 0x00020000")
a("s_waitcnt lgkmcnt(0)")
stamp()
a("s_mov_b32 s16, s46\ns_and_b32 s17, s47, 0xffff\ns_mov_b32 s4, s36\ns_and_b32 s5, s37, 0xffff")
srd(a, 60, 56, 256)
srd(a, 12, 58, WS_BYTES)
CNT = 163836
if int(opts.get("cas", 1)):
    a("s_cmp_lg_u32 s22, 6\ns_cbranch_scc1 P_n0\ns_cmp_ge_u32 s2, 8\ns_cbranch_scc1 P_n0")
    a(f"v_mov_b32 v{T+4}, s64\nv_mov_b32 v{T+5}, s65\nv_mov_b32 v{T+6}, 0\nv_mov_b32 v{T+7}, 0\nv_or_b32 v{T+5}, 0x80000000, v{T+5}\ns_mov_b64 exec, 1")
    a(f"buffer_atomic_cmpswap_x2 {rg(T+4,4)}, v{T+6}, s[60:63], 0 offen {SC}\ns_mov_b64 exec, -1\ns_nop 1")
else:
    a("s_lshl_b32 s21, s2, 3\ns_add_u32 s21, s21, s22\ns_cmp_lg_u32 s21, 6\ns_cbranch_scc1 P_n0")
    if int(opts.get("xcc", 0)):
        a("s_getreg_b32 s21, hwreg(HW_REG_XCC_ID)\ns_and_b32 s21, s21, 15\ns_lshl_b32 s21, s21, 24\ns_and_b32 s65, s65, 0xffffff\ns_or_b32 s65, s65, s21")
    a(f"v_mov_b32 v{T+4}, s64\nv_mov_b32 v{T+5}, s65\nv_mov_b32 v{T+6}, 0\nv_or_b32 v{T+5}, 0x80000000, v{T+5}\ns_mov_b64 exec, 1")
    a(f"buffer_store_dwordx2 {rg(T+4,2)}, v{T+6}, s[60:63], 0 offen {SC}\ns_mov_b64 exec, -1")
a("P_n0:")
WR_ = U + 8
def w1_loads(sreg=31):
    for j8 in range(8):
        a(f"buffer_load_dwordx2 {rg(WR_+2*j8,2)}, v{U+2}, s[16:19], s{sreg} offen offset:{512*j8} {NT}")
a("s_cmp_lg_u32 s22, 0\ns_cbranch_scc1 P_now1")
w1_loads()
a("P_now1:")
for r in range(3):
    a(f"buffer_load_dwordx4 v1, s[4:7], s20 offen offset:{1024*r} {NT} lds")
a(f"s_mov_b64 exec, 0xff\nbuffer_load_dwordx4 v1, s[4:7], s20 offen offset:3072 {NT} lds\ns_mov_b64 exec, -1")
srd(a, 8, 38, 128000)
a("s_barrier")
if int(opts.get("dw", 1)): a("s_cmp_lg_u32 s22, 5\ns_cbranch_scc1 P_n5\ns_load_dword s74, s[56:57], 192\nP_n5:")
a(f"s_cmp_lt_u32 s22, 4\ns_cbranch_scc1 P_lo\ns_cmp_lg_u32 s22, 4\ns_cbranch_scc1 P_skip")
a(f"v_and_b32 v224, 31, v2\nv_lshlrev_b32 v224, 7, v224\ns_lshl_b32 s21, s29, 12\nbuffer_load_dword v224, v224, s[8:11], s21 offen\ns_branch P_skip")
def nonce_load(): a("s_load_dwordx2 s[64:65], s[56:57], 0")
def nonce_get():
    l = newlab("N_")
    a(f"s_waitcnt lgkmcnt(0)\ns_cmp_lt_i32 s65, 0\ns_cbranch_scc1 {l}ok\ns_mov_b32 s20, 0\nv_mov_b32 v{AD}, 0")
    a(f"{l}:")
    a(f"buffer_load_dwordx2 {rg(AD+2,2)}, v{AD}, s[60:63], 0 offen {SC}\ns_add_u32 s20, s20, 1\ns_waitcnt vmcnt(0)")
    a(f"v_readfirstlane_b32 s64, v{AD+2}\nv_readfirstlane_b32 s65, v{AD+3}\ns_cmp_lt_i32 s65, 0\ns_cbranch_scc1 {l}ok")
    a(f"s_sleep 1\ns_cmp_lt_u32 s20, 0x8000\ns_cbranch_scc1 {l}")
    a(f"{l}ok:")
def flag_store(sreg):
    a(f"v_mov_b32 v{AD}, 0\nv_mov_b32 v{AD+2}, s64\nv_mov_b32 v{AD+3}, s65\ns_mov_b64 exec, 1")
    a(f"buffer_store_dwordx2 {rg(AD+2,2)}, v{AD}, s[12:15], s{sreg} offen {SC}\ns_mov_b64 exec, -1")
def w1_process(PR=WF, RB=WF+16, sreg=26):
    for c in range(4):
        for d in range(4):
            a(f"v_perm_b32 v{PR+4*c+d}, v{WR_+2*(2*d+1)+(c>>1)}, v{WR_+2*(2*d)+(c>>1)}, s{66+(c&1)}")
    for c in range(4):
        a(f"ds_write_b128 v{U+3}, {rg(PR+4*c,4)} offset:{(c&1)*128 + (c>>1)*16}")
    a("s_waitcnt lgkmcnt(0)")
    for r in range(4):
        a(f"ds_read_b128 {rg(RB+4*r,4)}, v{U+4} offset:{r*4*272}")
    for r in range(4):
        a(f"s_waitcnt lgkmcnt({3-r})\nbuffer_store_dwordx4 {rg(RB+4*r,4)}, v{U+5}, s[12:15], s{sreg} offen {SC}\ns_add_u32 s{sreg}, s{sreg}, {4*65536}")
a("P_lo:")
a("s_cmp_ge_u32 s35, 800\ns_cbranch_scc1 P_skip")
a("s_mov_b32 s66, 0x05040100\ns_mov_b32 s67, 0x07060302\ns_add_u32 s21, s23, 0x10000")
a(f"v_mul_u32_u24 v{U+3}, 272, v{U+1}\nv_lshl_add_u32 v{U+3}, v{U}, 5, v{U+3}\nv_add_u32 v{U+3}, s21, v{U+3}")
a(f"v_mul_u32_u24 v{U+4}, 272, v{U}\nv_lshl_add_u32 v{U+4}, v{U+1}, 4, v{U+4}\nv_add_u32 v{U+4}, s21, v{U+4}")
a(f"v_lshlrev_b32 v{U+5}, 16, v{U}\nv_bfe_u32 v{U+6}, v2, 3, 1\nv_lshl_add_u32 v{U+5}, v{U+6}, 12, v{U+5}\nv_and_b32 v{U+6}, 7, v2\nv_lshl_add_u32 v{U+5}, v{U+6}, 4, v{U+5}")
a("s_and_b32 s26, s35, 3\ns_lshl_b32 s26, s26, 20\ns_lshr_b32 s21, s35, 7\ns_lshl_b32 s21, s21, 13\ns_add_u32 s26, s26, s21\ns_bfe_u32 s21, s35, 0x30002\ns_lshl_b32 s21, s21, 9\ns_add_u32 s26, s26, s21")
a(f"s_bfe_u32 s21, s35, 0x20005\ns_lshl_b32 s21, s21, 7\ns_add_u32 s26, s26, s21\ns_add_u32 s26, s26, {WFR}")
a(f"s_and_b32 s75, s35, 3\ns_lshl_b32 s75, s75, 11\ns_bfe_u32 s21, s35, 0x20003\ns_lshl_b32 s21, s21, 9\ns_add_u32 s75, s75, s21\ns_lshr_b32 s21, s35, 5\ns_lshl_b32 s21, s21, 4\ns_add_u32 s75, s75, s21\ns_bfe_u32 s21, s35, 0x10002\ns_lshl_b32 s21, s21, 3\ns_add_u32 s75, s75, s21\ns_add_u32 s75, s75, {FW}")
a("s_cmp_lg_u32 s22, 0\ns_cbranch_scc1 P_skip")
H1, H2 = (3, 4) if FL else (0, 0)
a(f"s_and_b32 s75, s35, 3\ns_lshl_b32 s75, s75, {10+H1}\ns_lshr_b32 s21, s35, 7\ns_lshl_b32 s21, s21, {9+H1}\ns_add_u32 s75, s75, s21\ns_bfe_u32 s21, s35, 0x20003\ns_lshl_b32 s21, s21, {7+H1}\ns_add_u32 s75, s75, s21")
a(f"s_bfe_u32 s21, s35, 0x20005\ns_lshl_b32 s21, s21, {4+H2}\ns_add_u32 s75, s75, s21\ns_bfe_u32 s21, s35, 0x10002\ns_lshl_b32 s21, s21, {3+H2}\ns_add_u32 s75, s75, s21\ns_add_u32 s75, s75, {FE}")
a("s_waitcnt vmcnt(4)")
w1_process()
a("P_skip:")
stamp("x2")
a(f"v_and_b32 v{T+4}, 7, v2\nv_lshrrev_b32 v{T+5}, 3, v2")
a(f"s_and_b32 s20, s34, 1\ns_lshl_b32 s20, s20, 3\nv_add_u32 v{T+6}, s20, v{T+4}")
a(f"v_mul_u32_u24 v{T+7}, 400, v{T+4}\nv_add_u32 v{T+7}, s33, v{T+7}")
a(f"v_and_b32 v{T+8}, 1, v{T+5}\nv_lshrrev_b32 v{T+9}, 1, v{T+5}")
a(f"v_lshlrev_b32 v{T+10}, 3, v{T+8}\nv_xor_b32 v{T+10}, v{T+10}, v{T+6}")
a(f"v_lshl_add_u32 v{T+11}, v{T+9}, 6, v{T+7}")
a(f"v_lshlrev_b32 v{T+9}, 14, v{T+9}\nv_lshl_add_u32 v{T+9}, v{T+8}, 10, v{T+9}\nv_lshl_add_u32 v{T+9}, v{T+4}, 4, v{T+9}")
SL, LA_, RD, PK, SS = T+12, T+20, T+28, T+44, T+52
for u in range(8):
    a(f"v_xor_b32 v{SL+u}, {u}, v{T+10}")
    a(f"v_lshl_add_u32 v{LA_+u}, v{SL+u}, 2, v{T+11}")
a(f"v_and_b32 v{T+10}, 3, v{T+4}")
for u in range(4):
    a(f"v_xor_b32 v{SS+u}, {u}, v{T+10}\nv_lshl_add_u32 v{SS+4+u}, v{SS+u}, 2, v{T+7}\nv_add_u32 v{SS+u}, 16384, v{SS+u}")
a("s_lshr_b32 s27, s34, 3\ns_mul_i32 s27, s27, 102400\ns_lshl_b32 s20, s22, 11\ns_add_u32 s28, s27, s20\ns_and_b32 s21, s34, 7\ns_lshl_b32 s20, s21, 7\ns_add_u32 s28, s28, s20")
a(f"s_lshl_b32 s20, s22, 9\ns_add_u32 s27, s27, s20\ns_lshl_b32 s20, s21, 6\ns_add_u32 s27, s27, s20\ns_add_u32 s27, s27, 98304\nv_lshlrev_b32 v{T+8}, 3, v{T+4}")
TD = RAW
a(f"v_xor_b32 v{TD+1}, v{T+4}, v{U}\nv_lshlrev_b32 v{TD}, 7, v{T+5}\nv_lshl_add_u32 v{TD}, v{TD+1}, 4, v{TD}\nv_xor_b32 v{TD+1}, 64, v{TD}")
stamp("x1")
PRE = int(opts.get("pre", 2)); PDEL = int(opts.get("pdel", 0))
if PRE:
    a("s_cmp_lt_u32 s22, 4\ns_cbranch_scc1 P_np")
    if PDEL: a(f"s_sleep {PDEL}")
    for mt in range(4 - PRE, 4):
        a(f"s_add_u32 s21, s23, {4096*(mt & 1) + 65536*(mt >> 1)}\ns_mov_b32 m0, s21\ns_nop 0")
        for x in range(4): a(f"buffer_load_dwordx4 v{TD+(x&1)}, s[8:11], s21 offen offset:{1024*x} lds")
    a(f"s_waitcnt vmcnt({4*PRE})\ns_branch P_c9")
    a("P_np:")
a(f"s_cmp_eq_u32 s22, 0\ns_cbranch_scc1 P_c4\ns_cmp_eq_u32 s22, 4\ns_cbranch_scc1 P_c1")
a("s_waitcnt vmcnt(0)\nP_c1:\ns_waitcnt vmcnt(1)\nP_c4:\ns_waitcnt vmcnt(4)\nP_c9:")
stamp()
for u in range(8): a(f"ds_read_b32 v{RD+u}, v{LA_+u}")
for u in range(8): a(f"ds_read_b32 v{RD+8+u}, v{LA_+u} offset:256")
for u in range(4): a(f"ds_read_b32 v{SS+8+u}, v{SS+4+u} offset:384")
def conv(k):
    for u in range(8):
        a(f"v_lshl_add_u32 v{RD+8*k+u}, v{RD+8*k+u}, 4, v{SL+u}")
    for d in range(4):
        a(f"v_lshl_or_b32 v{PK+4*k+d}, v{RD+8*k+2*d+1}, 16, v{RD+8*k+2*d}")
a("s_waitcnt lgkmcnt(12)")
conv(0)
a(f"buffer_store_dwordx4 {rg(PK,4)}, v{T+9}, s[12:15], s28 offen {SC}")
a("s_waitcnt lgkmcnt(0)")
nonce_load()
conv(1)
for u in range(4): a(f"v_lshl_add_u32 v{SS+8+u}, v{SS+8+u}, 2, v{SS+u}")
a(f"v_lshl_or_b32 v{SS+4}, v{SS+9}, 16, v{SS+8}\nv_lshl_or_b32 v{SS+5}, v{SS+11}, 16, v{SS+10}")
a(f"s_add_u32 s28, s28, 65536\ns_mov_b32 exec_hi, 0\nbuffer_store_dwordx4 {rg(PK+4,4)}, v{T+9}, s[12:15], s28 offen {SC}")
a(f"s_mov_b64 exec, 0xff\nbuffer_store_dwordx2 {rg(SS+4,2)}, v{T+8}, s[12:15], s27 offen {SC}\ns_mov_b64 exec, -1")
stamp("x3")
BA = int(opts.get("ba", 0))
a("s_cmp_lg_u32 s22, 0\ns_cbranch_scc1 P_c")
nonce_get()
if FL:
    a(f"v_mov_b32 v{AD}, s64\nv_mov_b32 v{AD+1}, s65\nv_mov_b32 v{AD+2}, s64\nv_mov_b32 v{AD+3}, s65\ns_mov_b64 exec, 0xff\ns_waitcnt vmcnt(3)")
    a(f"buffer_store_dwordx4 {rg(AD,4)}, v1, s[12:15], s75 offen {SC}\ns_mov_b64 exec, -1")
else:
    a("s_waitcnt vmcnt(3)")
    flag_store(75)
a("s_mov_b32 s35, 4096")
a("P_c:")
if int(opts.get("nounit", 0)): a("s_mov_b32 s35, 4097")
stamp("x4")
a("s_mov_b32 s36, s31\ns_mov_b32 s37, s26\ns_mov_b32 s38, s75")
PRIO = int(opts.get("prio", 0))
def table_dma(mt):
    off = 4096*(mt & 1) + 65536*(mt >> 1)
    a(f"s_add_u32 s27, s23, {off}\ns_mov_b32 m0, s27\n{'s_setprio 0' if PRIO else 's_nop 0'}")
    for x in range(4):
        a(f"buffer_load_dwordx4 v{TD+(x&1)}, s[8:11], {'0' if int(opts.get('tabsame', 0)) else 's27'} offen offset:{1024*x} lds")
    if PRIO: a("s_setprio 2")
for mt in range(M1): table_dma(mt)
stamp()
a("s_lshl_b32 s20, s25, 3\ns_add_u32 s48, s48, s20\ns_addc_u32 s49, s49, 0\ns_add_u32 s50, s50, s20\ns_addc_u32 s51, s51, 0")
nonce_get()
a(f"s_lshr_b32 s31, s34, 3\ns_lshl_b32 s31, s31, 9\ns_and_b32 s20, s34, 7\ns_lshl_b32 s20, s20, 6\ns_add_u32 s31, s31, s20\ns_lshl_b32 s20, s22, 3\ns_add_u32 s31, s31, s20\ns_add_u32 s31, s31, {FI}")
NL = 4*M1
a(f"s_cmp_eq_u32 s35, 4096\ns_cbranch_scc1 P_a1\ns_waitcnt vmcnt({NL})\nP_a1:\ns_waitcnt vmcnt({NL+1})")
stamp()
flag_store(31)
if int(opts.get("spf", 1)):
    a("s_lshr_b32 s20, s22, 2\ns_add_u32 s20, s20, 1\ns_lshl_b32 s20, s20, 8\ns_add_u32 s20, s20, s34")
    a("s_lshr_b32 s21, s20, 5\ns_lshl_b32 s21, s21, 17\ns_bfe_u32 s39, s20, 0x30002\ns_lshl_b32 s39, s39, 12\ns_add_u32 s21, s21, s39\ns_and_b32 s39, s20, 3\ns_lshl_b32 s39, s39, 7\ns_add_u32 s21, s21, s39")
    a("s_and_b32 s39, s22, 3\ns_lshl_b32 s39, s39, 10\ns_add_u32 s21, s21, s39\ns_add_u32 s46, s46, s21\ns_addc_u32 s47, s47, 0")
    for f4 in range(4):
        for r in range(2): a(f"s_load_dword s3, s[46:47], {f4*32768 + r*512}")
XM = int(opts.get("xm", 1))
for mt in range(M1, XM): table_dma(mt)
PSC = opts.get("psc", "sc1").replace("_", " ")
def poll_load(sreg, tmp, addr): a(f"buffer_load_dwordx2 {rg(tmp,2)}, v{addr}, s[12:15], s{sreg} offen {PSC}")
def poll_check(sreg, tmp, addr, first_wait=0, sleep=SLEEP):
    l = newlab("Q_")
    a(f"s_mov_b32 s20, 0\ns_waitcnt vmcnt({first_wait})")
    a(f"{l}:")
    a(f"v_cmp_ne_u64 vcc, s[64:65], {rg(tmp,2)}\ns_cbranch_vccz {l}ok")
    a(f"s_sleep {sleep}")
    poll_load(sreg, tmp, addr)
    a(f"s_add_u32 s20, s20, 1\ns_waitcnt vmcnt(0)\ns_cmp_lt_u32 s20, 0x8000\ns_cbranch_scc1 {l}")
    a(f"{l}ok:")
a(f"s_lshr_b32 s21, s22, 2\ns_xor_b32 s21, s21, 1\ns_lshr_b32 s68, s25, 4\ns_lshl_b32 s68, s68, {10+H1}\ns_lshl_b32 s20, s21, {9+H1}\ns_add_u32 s68, s68, s20\ns_and_b32 s20, s22, 3\ns_lshl_b32 s20, s20, {7+H1}\ns_add_u32 s68, s68, s20\ns_add_u32 s68, s68, {FE}")
a(f"s_lshl_b32 s69, s25, 16\ns_lshl_b32 s21, s21, 13\ns_add_u32 s69, s69, s21\ns_lshl_b32 s20, s20, {3-H1}\ns_add_u32 s69, s69, s20\ns_add_u32 s69, s69, {WFR}\ns_add_u32 s74, s69, 4096")
a(f"v_and_b32 v{IX+8}, 7, v2\nv_lshlrev_b32 v{IX+8}, {3+H2}, v{IX+8}")
def x_load(): a(f"buffer_load_dwordx4 {rg(IX,4)}, v{VL16}, s[12:15], s69 offen {SC}\nbuffer_load_dwordx4 {rg(IX+4,4)}, v{VL16}, s[12:15], s74 offen {SC}")
def x_write(): a(f"ds_write_b128 v{VXW}, {rg(IX,4)} offset:1024\nds_write_b128 v{VXW}, {rg(IX+4,4)} offset:2048")
XA = int(opts.get("xa", 2))
X0_ = max(M1, XM)
XA = min(XA, 4 - PRE - X0_)
a(f"s_cmp_lt_u32 s22, 4\ns_cbranch_scc1 P_g")
poll_load(68, IX+10, IX+8)
for mt in range(X0_, X0_ + XA): table_dma(mt)
poll_check(68, IX+10, IX+8, 4*XA)
stamp("z1")
x_load()
for mt in range(X0_ + XA, 4 - PRE): table_dma(mt)
a("s_load_dwordx2 s[70:71], s[48:49], 0\ns_load_dwordx2 s[72:73], s[50:51], 0\ns_branch P_e")
a("P_g:")
for mt in range(X0_, 4): table_dma(mt)
a("s_load_dwordx2 s[70:71], s[48:49], 0\ns_load_dwordx2 s[72:73], s[50:51], 0")
a("P_e:")
FR = T + 16
a(f"v_bfe_u32 v{T+2}, v2, 4, 1\nv_lshlrev_b32 v{T+2}, 1, v{T+2}\nv_bfe_u32 v{T}, v2, 2, 2\nv_mov_b32 v{T+1}, 0x3f80")
a(f"v_cmp_eq_u32 vcc, v{T+2}, v{T}\nv_add_u32 v{T+2}, 1, v{T+2}\ns_nop 0\nv_cndmask_b32 v{SEL}, 0, v{T+1}, vcc\nv_cmp_eq_u32 vcc, v{T+2}, v{T}")
a(f"v_mov_b32 v{SEL+1}, v{SEL}\nv_and_b32 v{T+2}, 3, v2\nv_cndmask_b32 v{SEL+2}, 0, v{T+1}, vcc\nv_mul_u32_u24 v{SIDX}, 0x5555, v{T+2}\nv_mov_b32 v{SEL+3}, v{SEL+2}")
a(f"v_and_b32 v227, 24, v2\nv_and_b32 v{T}, 3, v2\nv_lshl_add_u32 v227, v{T}, 1, v227\nv_bfe_u32 v{T}, v2, 2, 1\nv_add_u32 v227, v227, v{T}")
a(f"v_lshrrev_b32 v{T}, 5, v2\nv_lshlrev_b32 v{VSP}, 5, v227\nv_lshl_add_u32 v{VSP}, v{T}, 4, v{VSP}\ns_lshl_b32 s31, s22, 11\ns_add_u32 s31, s31, 131072\nv_add_u32 v{VSP}, s31, v{VSP}")
a(f"v_bfe_u32 v{T+1}, v227, 1, 3\nv_xor_b32 v{T+1}, v{T+1}, v{T}\nv_lshlrev_b32 v227, 7, v227\nv_lshl_add_u32 v227, v{T+1}, 4, v227\nv_add_u32 v{FR}, s23, v227")
for ks in range(1, 4): a(f"v_xor_b32 v{FR+ks}, {32*ks}, v{FR}")
for ks in range(4): a(f"v_add_u32 v{FR+4+ks}, 0x10000, v{FR+ks}")
a(f"v_add_u32 v{VXR}, {XB}, v1\nv_add_u32 v{VXW}, s33, v1")
a(f"v_lshrrev_b32 v0, 3, v2\nv_lshlrev_b32 v0, 14, v0\nv_lshl_add_u32 v0, v{T+4}, 4, v0")
a("s_lshl_b32 s28, s24, 3\ns_add_u32 s28, s28, s22\ns_mul_i32 s28, s28, 102400")
a(f"s_lshl_b32 s75, s24, 6\ns_lshl_b32 s33, s22, 3\ns_add_u32 s75, s75, s33\ns_lshl_b32 s75, s75, 6\ns_add_u32 s75, s75, s25\ns_lshl_b32 s75, s75, 8\ns_add_u32 s75, s75, {PART}")
a(f"v_lshlrev_b32 v{AD}, 3, v2\nv_min_u32 v{AD+1}, 33, v2\nv_lshlrev_b32 v{AD+1}, 3, v{AD+1}")
a("s_cmp_lt_u32 s22, 4\ns_cbranch_scc1 P_h")
a(f"s_waitcnt vmcnt({4*(4-PRE-X0_-XA)})")
x_write()
a("P_h:")
a(f"s_lshr_b32 s29, s25, 4\ns_lshl_b32 s29, s29, 11\ns_and_b32 s20, s22, 3\ns_lshl_b32 s20, s20, 9\ns_add_u32 s29, s29, s20\ns_add_u32 s29, s29, {FW + 128}")
a(f"s_lshl_b32 s31, s24, 3\ns_add_u32 s31, s31, s22\ns_lshl_b32 s31, s31, 9\ns_add_u32 s31, s31, {FI}")
a(f"s_lshl_b32 s26, s25, 16\ns_lshl_b32 s20, s22, 10\ns_add_u32 s26, s26, s20\ns_add_u32 s26, s26, {WFR + 16384}")
a("s_waitcnt vmcnt(0)")
stamp()
for mt in range(4):
    for ks in range(4):
        a(f"ds_read_b128 {rg(TAB+16*mt+4*ks,4)}, v{FR+4*(mt>>1)+ks} offset:{4096*(mt&1)}")
a("s_setprio 0\ns_waitcnt lgkmcnt(0)\ns_barrier")
stamp()
def wf_read(off=0):
    for x in range(8):
        a(f"ds_read_b128 {rg(WF+4*x,4)}, v{VXR} offset:{XS*x + off}")
def wf_read_x(base):
    for x in (0, 4, 1, 5, 2, 6, 3, 7):
        a(f"ds_read_b128 {rg(WF+4*x,4)}, v{VXR} offset:{XS*(base + (x&3)) + 1024 + 1024*(x>>2)}")
wf_read_x(4)
poll_load(68, IX+10, IX+8)
poll_load(31, AD+2, AD)
UAT = int(opts.get("uat", 1))
if UAT == 0:
    a("s_cmp_ge_u32 s35, 800\ns_cbranch_scc1 P_u0")
    w1_loads(36)
    a("P_u0:")
def tg_mfma(mt, ks, e, d):
    c = "0" if ks == 0 else rg(d, 16)
    return f"v_mfma_f32_32x32x16_bf16 {rg(d,16)}, {rg(TAB+16*mt+4*ks,4)}, {rg(WF+16*e+4*ks,4)}, {c}"
D0, D1 = POOL+32, POOL+48
def tgen_groups():
    g = []
    for mt in range(3):
        for ks in range(4):
            for e in range(2):
                g.append([tg_mfma(mt, ks, e, D0 if e == 0 else D1)])
        g.extend([[] for _ in range(int(opts.get("gap", 3)))])
        for r in range(0, 16, 4):
            g.append([f"v_cvt_pk_bf16_f32 v{POOL+16*mt+r+x}, v{D0+r+x}, v{D1+r+x}" for x in range(4)])
    for ks in range(4): g.append([tg_mfma(3, ks, 0, D1)])
    for ks in range(4): g.append([tg_mfma(3, ks, 1, WF)])
    g.extend([[] for _ in range(int(opts.get("gap", 3)))])
    for r in range(0, 16, 4):
        g.append([f"v_cvt_pk_bf16_f32 v{D1+r+x}, v{D1+r+x}, v{WF+r+x}" for x in range(4)])
    return g
def wr_op(r):
    off = r*256 if r < 32 else 57472 + (r-32)*256
    pre = ["s_mov_b32 m0, s30", "s_nop 0"] if r == 32 else []
    return pre + [f"ds_write_addtid_b32 v{POOL+r} offset:{off}"]
a("s_mov_b32 m0, s23")
TP = int(opts.get("tp", 1)); TO = int(opts.get("to", 1))
def pro_d(mt): return [(ACC, ACC+16), (D0, D1), (ACC, ACC+16), (D1, GD)][mt]
pend = []
IXAT = int(opts.get("ixat", 2))
for mt in range(4):
    d0, d1 = pro_d(mt)
    seq = [(ks, e) for ks in range(4) for e in range(2)]
    if mt == 1:
        a("s_cmp_ge_u32 s22, 4\ns_cbranch_scc1 P_x1")
        if UAT == 0: a("s_cmp_lt_u32 s35, 800\ns_cbranch_scc1 P_u1\ns_waitcnt vmcnt(1)\nP_u1:")
        poll_check(68, IX+10, IX+8, 9 if UAT == 0 else 1)
        x_load()
        if UAT == 1:
            a("s_cmp_ge_u32 s35, 800\ns_cbranch_scc1 P_x1")
            w1_loads(36)
        a("P_x1:")
    if mt == IXAT:
        poll_check(31, AD+2, AD)
        stamp("y1")
        a("s_cmp_ge_u32 s22, 4\ns_cbranch_scc1 P_x2")
        x_write()
        a("s_cmp_ge_u32 s35, 800\ns_cbranch_scc1 P_x2")
        w1_process(IX, WR_, 37)
        a("P_x2:")
        a("s_lshl_b32 s68, s70, 16\ns_and_b32 s69, s70, 0xffff0000\ns_lshl_b32 s70, s71, 16\ns_and_b32 s71, s71, 0xffff0000")
        for x in range(4):
            a(f"buffer_load_dwordx4 {rg(IX+4*x,4)}, v{VL16}, s[12:15], s28 offen offset:{1024*x} {SC}")
        a("s_add_u32 s28, s28, 4096\ns_mov_b32 s21, 0")
        a(f"s_cmp_lg_u32 s22, {FIN}\ns_cbranch_scc1 P_f")
        srd(a, 4, 40, 16384*26)
        a(f"s_mov_b32 m0, {XWL}\ns_mul_i32 s20, s34, 1664\nbuffer_load_dwordx4 v1, s[4:7], s20 offen lds\nbuffer_load_dwordx4 v1, s[4:7], s20 offen offset:1024 lds")
        srd(a, 4, 44, 2)
        a(f"s_mov_b32 m0, {XWL+2048}\nv_mov_b32 v{RAW+3}, 0\nbuffer_load_ushort v{RAW+3}, s[4:7], 0 offen lds")
        srd(a, 4, 52, 2)
        a(f"s_mov_b32 m0, {XWL+2304}\ns_nop 0\nbuffer_load_ushort v{RAW+3}, s[4:7], 0 offen lds")
        srd(a, 4, 42, 26)
        a(f"v_lshlrev_b32 v{RAW+2}, 1, v2\nbuffer_load_ushort v{VWIDE}, v{RAW+2}, s[4:7], 0 offen\ns_mov_b32 m0, s23")
        a("P_f:")
    if TP: a(f"s_setprio {3 - mt}")
    for n, (ks, e) in enumerate(seq):
        if mt == 0: a(f"s_waitcnt lgkmcnt({7 - n if TO else 0})")
        a(tg_mfma(mt, ks, e, d0 if e == 0 else d1))
        if n >= 2:
            take = (len(pend) + (7 - n)) // (8 - n)
            for o in pend[:take]: a(o)
            pend = pend[take:]
        elif mt > 0: a("s_nop 4")
    assert not pend
    for r in range(16):
        pend.append(f"v_cvt_pk_bf16_f32 v{POOL+16*mt+r}, v{d0+r}, v{d1+r}")
    if mt == 3 and TO:
        cvs = pend; pend = []
        for r in range(16): pend.append(cvs[r]); pend.extend(wr_op(48 + r - 1) if r else [])
        pend.extend(wr_op(63))
    else:
        for r in range(16): pend.extend(wr_op(16*mt + r))
    if mt == 2 and TO:
        for s in range(8):
            for c in range(4): pend.append(f"v_mov_b32 v{ACC+4*s+c}, s{68+c}")
stamp("y2")
a("s_waitcnt lgkmcnt(8)\ns_barrier")
if TO: a("s_nop 1")
else:
    for s in range(8):
        for c in range(4): a(f"v_mov_b32 v{ACC+4*s+c}, s{68+c}")
for o in pend: a(o)
wf_read_x(0)
a(f"s_cmp_ge_u32 s35, 800\ns_cbranch_scc1 P_k2\ns_cmp_eq_u32 s22, {FIN}\ns_cbranch_scc1 P_k\ns_waitcnt vmcnt(4)\nP_k:\ns_waitcnt vmcnt(9)")
flag_store(38)
a("P_k2:")
stamp()

LA = int(opts.get("la", 1)); PAT = opts.get("pat", "SACMRL"); GP = int(opts.get("gp", 1))
RING = 8 * (LA + 1); DX = GD + 16
assert RING <= 16
ROT = int(opts.get("rot", 1))
def gather_phase(nunits, mf, cv, extra, acc_of, head=None, tail=None):
    NB = nunits * 2
    log = [("ix", u) for u in range(4)]
    def vm_wait(tag):
        idx = len(log) - 1 - log[::-1].index(tag)
        a(f"s_waitcnt vmcnt({len(log) - 1 - idx})")
    def A(b):
        if b >= NB: return
        u = b // 2
        if b % 2 == 0: vm_wait(("ix", u))
        for x in range(4):
            d = IX + 4*(u & 3) + 2*(b & 1) + x//2
            a(f"v_lshlrev_b32_sdwa v{GD + (8*b) % RING + 2*x}, 3, v{d} dst_sel:DWORD dst_unused:UNUSED_PAD src0_sel:DWORD src1_sel:WORD_{x&1}")
    def R(b, lo=0, hi=4):
        if b >= NB: return
        for x in range(lo, hi):
            q = GD + (8*b) % RING + 2*x
            a(f"ds_read_b64 {rg(q,2)}, v{q}")
    def L(b):
        u = b // 2
        if b >= NB or b % 2 == 0 or not (nunits == 16 or u + 4 < nunits): return
        if u + 4 >= 16 and nunits == 20:
            for h in range(2):
                a(f"buffer_load_dwordx2 {rg(IX+4*(u&3)+2*h,2)}, v{VXW}, s[12:15], s28 offen offset:{1024*(u&3)+512*h} {SC}")
                log.append(("ix", u + 4))
        else:
            a(f"buffer_load_dwordx4 {rg(IX+4*(u&3),4)}, v{VL16}, s[12:15], s28 offen offset:{1024*(u&3)} {SC}")
            log.append(("ix", u + 4))
        if u & 3 == 3: a("s_add_u32 s28, s28, 4096")
    def emit(ops):
        for o in ops:
            if isinstance(o, tuple):
                a(o[0]); log.append(o[1])
            elif o == "WAITRAW": vm_wait(("raw", 0))
            elif o == "WCHECK":
                vm_wait(("wfl", 0))
                a(f"v_cmp_ne_u64 vcc, s[64:65], {rg(RAW,2)}\ns_cbranch_vccnz W_slow\nW_back:")
            else: a(o)
    if GP: a("s_setprio 3")
    if head:
        for b in range(LA + 1): A(b)
        for b in range(LA + 1): L(b)
        head()
        for b in range(LA + 1): R(b)
    else:
        for b in range(LA + 1): A(b); R(b); L(b)
    for b in range(NB):
        if GP and b % (NB // 4) == 0 and b: a(f"s_setprio {3 - b // (NB // 4)}")
        nb = b + LA + 1
        for ch in PAT:
            if ch == "S":
                a(f"s_waitcnt lgkmcnt({min(NB, nb) * 4 - 4*(b+1)})")
                if tail and b == NB - 1: tail()
                a(f"v_smfmac_f32_16x16x64_bf16 {rg(ACC+4*acc_of(b),4)}, {rg(SEL,4)}, {rg(GD + (8*b) % RING, 8)}, v{SIDX}")
            elif ch == "A": A(nb)
            elif ch == "R": R(nb)
            elif ch == "r": R(nb, 0, 2)
            elif ch == "q": R(nb, 2, 4)
            elif ch == "M": emit(mf.get(b, []))
            elif ch == "C": emit(cv.get(b, []))
            elif ch == "L": L(nb)
        emit(extra.get(b, []))
    return log, vm_wait
CYC = int(opts.get("cyc", 0))
def cyc(acc):
    if CYC: a(f"s_memtime s[98:99]\ns_waitcnt lgkmcnt(0)\ns_sub_u32 s100, s98, s96\ns_add_u32 s{acc}, s{acc}, s100\ns_mov_b32 s96, s98")
pad(PADPRO)
if CYC: a("s_memtime s[96:97]\ns_waitcnt lgkmcnt(0)\ns_mov_b32 s92, 0\ns_mov_b32 s93, 0\ns_mov_b32 s94, 0\ns_mov_b32 s95, 0\ns_mov_b32 s90, 0")
a("L_G:")
g_start = len(a.lines)
DD = [(POOL+32, POOL+48), (POOL+16, DX), (POOL+32, POOL+48), (DX, WF)]
mf = {}; cv = {}
for mt in range(4):
    seq = [(ks, e) for ks in range(4) for e in range(2)] if mt < 3 else [(ks, 0) for ks in range(4)] + [(ks, 1) for ks in range(4)]
    for n, (ks, e) in enumerate(seq): mf[8*mt + n] = [tg_mfma(mt, ks, e, DD[mt][e])]
    if mt < 3:
        for r in range(16):
            cv.setdefault(8*mt + 9 + (r * 7) // 16, []).append(f"v_cvt_pk_bf16_f32 v{POOL+16*mt+r}, v{DD[mt][0]+r}, v{DD[mt][1]+r}")
PB = int(opts.get("pb", 15)); RB_ = int(opts.get("rb", 20)); XBAT = int(opts.get("xb", 29))
extra = {}
extra[PB] = ["s_cmp_eq_u32 s21, 4", "s_cselect_b32 s20, 1, 7", f"v_min_u32 v{RAW+2}, s20, v2", f"v_lshlrev_b32 v{RAW+2}, 3, v{RAW+2}",
             (f"buffer_load_dwordx2 {rg(RAW,2)}, v{RAW+2}, s[12:15], s29 offen {SC}", ("wfl", 0))]
extra[RB_] = ["WCHECK", (f"buffer_load_dwordx4 {rg(RAW,4)}, v{VL16}, s[12:15], s26 offen {SC}", ("raw", 0)), "s_add_u32 s26, s26, 8192", "s_add_u32 s29, s29, 64"]
extra[XBAT] = ["WAITRAW", f"ds_write_b128 v{VXW}, {rg(RAW,4)}", "s_mov_b32 m0, s23", "s_add_u32 s21, s21, 1"]
def g_head():
    a("s_waitcnt lgkmcnt(8)"); cyc(94); a("s_barrier"); cyc(95)
def g_tail():
    cyc(92); a("s_barrier"); cyc(93)
    for r in range(4):
        for o in wr_op(r): a(o)
log, vm_wait = gather_phase(16, mf, cv, extra, lambda b: b // 4, g_head, g_tail)
for r in range(4, 64):
    for o in wr_op(r): a(o)
    if 16 <= r < 32: a(f"v_cvt_pk_bf16_f32 v{POOL+48+r-16}, v{DX+r-16}, v{WF+r-16}")
a("s_cmp_eq_u32 s21, 5\ns_cbranch_scc1 L_Wlast")
wf_read()
a("s_waitcnt vmcnt(0)\ns_cmp_lg_u32 s21, 1\ns_cbranch_scc1 L_nosent")
for x in range(4): a(f"v_mov_b32 v{RAW+x}, -1")
a(f"buffer_store_dwordx4 {rg(RAW,4)}, v0, s[12:15], s75 offen {SC}\nbuffer_store_dwordx4 {rg(RAW,4)}, v0, s[12:15], s75 offen offset:128 {SC}")
a(f"s_cmp_lg_u32 s22, {FIN}\ns_cbranch_scc1 L_nosent")
X = GD
a(f"v_and_b32 v{X}, 7, v2\nv_bfe_u32 v{X+1}, v2, 3, 1\nv_lshl_add_u32 v{X}, v{X+1}, 5, v{X}\nv_lshrrev_b32 v{X+1}, 4, v2\nv_lshl_add_u32 v{X}, v{X+1}, 3, v{X}\nv_mul_u32_u24 v{X}, 26, v{X}\nv_add_u32 v{X}, {XWL}, v{X}\nv_mov_b32 v{X+17}, {XWL+2048}")
for k in range(13): a(f"ds_read_u16 v{X+2+k}, v{X} offset:{2*k}")
a(f"ds_read_u16 v{X+15}, v{X+17}\nds_read_u16 v{X+16}, v{X+17} offset:256")
a(f"v_lshlrev_b32 v{X+1}, 16, v{VWIDE}\ns_nop 0")
for k in range(13): a(f"v_readlane_b32 s{36+k}, v{X+1}, {k}")
a("s_waitcnt lgkmcnt(0)")
for k in range(15): a(f"v_lshlrev_b32 v{X+2+k}, 16, v{X+2+k}")
a(f"v_mul_f32 v{VWIDE}, s36, v{X+2}\nv_readfirstlane_b32 s74, v{X+16}")
for k in range(1, 13): a(f"v_fmac_f32 v{VWIDE}, s{36+k}, v{X+2+k}")
rnd(VWIDE); a(f"v_add_f32 v{VWIDE}, v{VWIDE}, v{X+15}"); rnd(VWIDE)
a("L_nosent:")
a("s_branch L_G")
g_end = len(a.lines)
a("W_slow:")
poll_check(29, RAW, RAW+2)
a("s_branch W_back")
a("L_Wlast:")
a(f"v_and_b32 v{AD}, 1, v2\nv_mul_u32_u24 v{AD}, {4*XS}, v{AD}\nv_bfe_u32 v{AD+1}, v2, 1, 1\nv_lshl_add_u32 v{AD}, v{AD+1}, 4, v{AD}")
a(f"v_bfe_u32 v{AD+1}, v2, 3, 1\nv_lshl_add_u32 v{AD}, v{AD+1}, 5, v{AD}\nv_bfe_u32 v{AD+1}, v2, 2, 1\nv_lshl_add_u32 v{AD}, v{AD+1}, 6, v{AD}")
a(f"v_lshrrev_b32 v{AD+1}, 5, v2\nv_lshl_add_u32 v{AD}, v{AD+1}, 9, v{AD}\nv_add_u32 v{AD}, {XB}, v{AD}")
for x in range(4): a(f"ds_read_b128 {rg(WF+4*x,4)}, v{AD} offset:{XS*x}")
a(f"v_lshlrev_b32 v{VXW}, 3, v2")
a("s_cmp_lg_u32 s22, 0\ns_cbranch_scc1 L_Glast")
a(f"s_lshl_b32 s31, s34, 3\ns_add_u32 s31, s31, {F2}")
flag_store(31)
a("L_Glast:")
mf = {}; cv = {}; extra = {}
for mt in range(4):
    d = POOL + 16*mt
    for ks in range(4):
        c = "0" if ks == 0 else rg(d, 16)
        mf[4*mt + ks] = [f"v_mfma_f32_32x32x16_bf16 {rg(d,16)}, {rg(WF+4*ks,4)}, {rg(TAB+16*mt+4*ks,4)}, {c}"]
    cv[4*mt + 5] = [f"v_cvt_pk_bf16_f32 v{d+x}, v{d+2*x}, v{d+2*x+1}" for x in range(2)]
    cv[4*mt + 6] = [f"v_cvt_pk_bf16_f32 v{d+x}, v{d+2*x}, v{d+2*x+1}" for x in range(2, 4)]
    extra[4*mt + 6] = [f"ds_write_b128 v{VSP}, {rg(d,4)} offset:{(32*(mt & 1) + 512*(mt >> 1)) * 32}"]
extra[int(opts.get("mbat", 26))] = ["s_barrier"]
EP = int(opts.get("ep", 1))
RST = "sc1"
Y = TAB
def epi(s):
    return [f"v_cvt_pk_bf16_f32 v{POOL+2*s}, v{ACC+4*s}, v{ACC+4*s+1}", f"v_cvt_pk_bf16_f32 v{POOL+2*s+1}, v{ACC+4*s+2}, v{ACC+4*s+3}",
            f"v_pk_max_i16 v{POOL+2*s}, v{POOL+2*s}, 0", f"v_pk_max_i16 v{POOL+2*s+1}, v{POOL+2*s+1}, 0",
            f"v_dot2_f32_bf16 v{POOL+16+s}, v{POOL+2*s}, s72, 0", f"v_dot2_f32_bf16 v{POOL+16+s}, v{POOL+2*s+1}, s73, v{POOL+16+s}"]
def epi2(s): return [f"v_min_u32 v{POOL+16+s}, s33, v{POOL+16+s}"]
st0 = f"buffer_store_dwordx4 {rg(POOL+16,4)}, v0, s[12:15], s75 offen {RST}"
st1 = f"buffer_store_dwordx4 {rg(POOL+20,4)}, v0, s[12:15], s75 offen offset:128 {RST}"
extra[28] = ["s_lshl_b32 s31, s24, 9", f"s_add_u32 s31, s31, {F2}", "s_mov_b32 s33, -2", "s_mov_b32 s20, 0",
             (f"buffer_load_dwordx2 {rg(RAW,2)}, v{VXW}, s[12:15], s31 offen {SC}", ("f2", 0))]
extra[30] = [f"s_lshl_b32 s29, s34, 14", "s_lshl_b32 s27, s22, 11", "s_add_u32 s29, s29, s27", f"s_add_u32 s29, s29, {PART}",
             f"v_lshlrev_b32 v{Y+12}, 2, v2", f"v_add_u32 v{Y+12}, {PADR}, v{Y+12}", "s_lshl_b32 s27, s22, 8", f"v_add_u32 v{Y+13}, s27, v{Y+12}"]
extra[31] = [f"v_and_b32 v{Y+10}, 7, v2", f"v_bfe_u32 v{Y+11}, v2, 3, 1", f"v_lshl_add_u32 v{Y+10}, v{Y+11}, 5, v{Y+10}", f"v_lshrrev_b32 v{Y+11}, 4, v2",
             f"v_lshl_add_u32 v{Y+10}, v{Y+11}, 3, v{Y+10}", "s_lshl_b32 s27, s34, 6", f"v_add_u32 v{Y+10}, s27, v{Y+10}", f"v_lshlrev_b32 v{Y+10}, 1, v{Y+10}",
             "s_mov_b32 s8, s54", "s_and_b32 s9, s55, 0xffff", "s_mov_b32 s10, 32768", "s_mov_b32 s11, 0x00020000"]
if EP:
    for s in range(7): cv[33 + s] = epi(s) + (epi2(s-1) if s else [])
    extra[37] = [(st0, ("st", 0))]
def gl_head():
    a("s_waitcnt lgkmcnt(0)"); cyc(94); a("s_barrier"); cyc(95)
gather_phase(20, mf, cv, extra, lambda b: b // 4 if b < 32 else b - 32, gl_head)
cyc(90)
stamp()
if EP:
    a("s_nop 0")
    for o in epi(7): a(o)
    for o in epi2(6): a(o)
    a("s_nop 1")
    for o in epi2(7): a(o)
    a(st1)
else:
    a("s_nop 7")
    for k in range(6):
        for s in range(8): a(epi(s)[k])
    for s in range(8): a(epi2(s)[0])
    a(st0); a(st1)
a("R_f2:")
a(f"s_waitcnt vmcnt(0)\nv_cmp_ne_u64 vcc, s[64:65], {rg(RAW,2)}\ns_cbranch_vccz R_f2ok")
a(f"s_sleep 1\nbuffer_load_dwordx2 {rg(RAW,2)}, v{VXW}, s[12:15], s31 offen {SC}\ns_add_u32 s20, s20, 1\ns_cmp_lt_u32 s20, 0x8000\ns_cbranch_scc1 R_f2")
a("R_f2ok:")
a("s_mov_b32 s31, s29\ns_mov_b32 s20, 0")
if int(opts.get("rack", 1)): a("s_waitcnt vmcnt(0)")
if int(opts.get("rbar", 0)): a("s_barrier")
if int(opts.get("rdelay", 0)): a(f"s_sleep {int(opts.get('rdelay', 0))}")
a("R_poll:")
RSC = opts.get("rsc", "sc1").replace("_", " ")
a(f"buffer_load_dwordx4 {rg(Y,4)}, v1, s[12:15], s31 offen {RSC}\nbuffer_load_dwordx4 {rg(Y+4,4)}, v1, s[12:15], s31 offen offset:1024 {RSC}")
a("s_add_u32 s20, s20, 1\ns_waitcnt vmcnt(0)")
a(f"v_max3_u32 v{Y+8}, v{Y}, v{Y+1}, v{Y+2}\nv_max3_u32 v{Y+9}, v{Y+3}, v{Y+4}, v{Y+5}\nv_max3_u32 v{Y+8}, v{Y+8}, v{Y+6}, v{Y+7}\nv_max_u32 v{Y+8}, v{Y+8}, v{Y+9}")
a(f"v_cmp_eq_u32 vcc, -1, v{Y+8}\ns_cbranch_vccz R_ok")
a(f"s_sleep {RSLEEP}\ns_cmp_lt_u32 s20, 0x8000\ns_cbranch_scc1 R_poll")
a("R_ok:")
stamp("y3")
for x in range(4): a(f"v_add_f32 v{Y+x}, v{Y+x}, v{Y+4+x}")
a(f"s_nop 0\nv_permlane32_swap_b32 v{Y}, v{Y+2}\nv_permlane32_swap_b32 v{Y+1}, v{Y+3}\ns_nop 0\nv_add_f32 v{Y}, v{Y}, v{Y+2}\nv_add_f32 v{Y+1}, v{Y+1}, v{Y+3}\ns_nop 1\nv_permlane16_swap_b32 v{Y}, v{Y+1}\ns_nop 0\nv_add_f32 v{Y}, v{Y}, v{Y+1}")
a(f"ds_write_b32 v{Y+13}, v{Y}\ns_waitcnt lgkmcnt(0)\ns_barrier")
a(f"s_cmp_lg_u32 s22, {FIN}\ns_cbranch_scc1 M_fin")
for k in range(8): a(f"ds_read_b32 v{Y+k}, v{Y+12} offset:{256*k}")
a("s_waitcnt lgkmcnt(0)")
a(f"v_add_f32 v{Y}, v{Y}, v{Y+1}\nv_add_f32 v{Y+2}, v{Y+2}, v{Y+3}\nv_add_f32 v{Y+4}, v{Y+4}, v{Y+5}\nv_add_f32 v{Y+6}, v{Y+6}, v{Y+7}\nv_add_f32 v{Y}, v{Y}, v{Y+2}\nv_add_f32 v{Y+4}, v{Y+4}, v{Y+6}\nv_add_f32 v{Y}, v{Y}, v{Y+4}")
rnd(Y); a(f"v_add_f32 v{Y}, s74, v{Y}"); rnd(Y)
a(f"v_add_f32 v{Y}, v{Y}, v{VWIDE}"); rnd(Y)
a(f"v_mul_f32 v{Y}, 0xbfb8aa3b, v{Y}\nv_exp_f32 v{Y}, v{Y}\ns_nop 0\nv_add_f32 v{Y}, 1.0, v{Y}\nv_rcp_f32 v{Y}, v{Y}\ns_nop 0\nv_cvt_pk_bf16_f32 v{Y}, v{Y}, v{Y}")
a(f"buffer_store_short v{Y}, v{Y+10}, s[8:11], 0 offen {opts.get('osc', '').replace('_', ' ')}")
a("M_fin:")
if int(opts.get("xcc", 0)):
    a("s_and_b32 s20, s2, 7\ns_cmp_lg_u32 s20, 0\ns_cbranch_scc1 M_end\ns_getreg_b32 s21, hwreg(HW_REG_XCC_ID)\ns_and_b32 s21, s21, 15\ns_bfe_u32 s20, s65, 0x40018\ns_cmp_eq_u32 s20, s21\ns_cbranch_scc1 M_end")
pad(PADEND)
PROBE = int(opts.get("probe", -1))
if PROBE >= 0:
    a(f"s_cmp_lg_u32 s22, {SW}\ns_cbranch_scc1 M_end")
    if int(opts.get("pwg", -1)) >= 0: a(f"s_cmp_lg_u32 s2, {int(opts.get('pwg'))}\ns_cbranch_scc1 M_end")
    a("s_waitcnt vmcnt(0)")
    stamp()
    a(f"s_waitcnt lgkmcnt(0)\ns_sub_u32 s20, s{76+2*PROBE}, s64\ns_mul_i32 s20, s20, {int(opts.get('gain', 10))}\ns_add_u32 s20, s20, 4000")
    a("PRB:\ns_memrealtime s[32:33]\ns_waitcnt lgkmcnt(0)\ns_sub_u32 s32, s32, s64\ns_cmp_lt_i32 s32, s20\ns_cbranch_scc1 PRB")
elif STAMP:
    a(f"s_cmp_lg_u32 s22, {SW}\ns_cbranch_scc1 M_end")
    a("s_waitcnt vmcnt(0)")
    stamp()
    a("s_waitcnt lgkmcnt(0)")
    n = nst[0]
    if int(opts.get('mt', 0)):
        for k in range(n - 1, -1, -1): a(f"s_sub_u32 s{76+2*k}, s{76+2*k}, s76\ns_mov_b32 s{77+2*k}, 0")
    if CYC:
        for k, r in enumerate([92, 93, 94, 95, 90]): a(f"s_mov_b32 s{78+2*k}, s{r}\ns_mov_b32 s{79+2*k}, 0")
        a("s_mov_b32 s76, 0\ns_mov_b32 s77, 0")
    elif PADPRO: a("s_mov_b32 s76, s64\ns_and_b32 s77, s65, 0x7fffffff")
    a(f"s_mul_i32 s31, s2, {8*n}\ns_add_u32 s31, s31, 0x8000000\nv_mov_b32 v2, 0")
    for k in range(n):
        a(f"v_mov_b32 v4, s{76+2*k}\nv_mov_b32 v5, s{77+2*k}\nbuffer_store_dwordx2 v[4:5], v2, s[12:15], s31 offen offset:{8*k}\ns_waitcnt vmcnt(0)")
    print("nstamps", n)
a("M_end:\ns_endpgm")
L = a.lines
errs = hazard.check(L[st:g_end] + L[g_start:], "main")
a.raw(kernel_desc(MAIN, 256, 102, 256))
for e in sorted(set(errs)): print("HAZARD", e)
open(sys.argv[1], "w").write(a.text())
```

```python
import sys
from common import *
import hazard
opts = dict(x.split("=") for x in sys.argv[2:])
AHEAD = int(opts.get("ahead", 8)); STAMP = int(opts.get("stamp", 0)); SW = int(opts.get("sw", 3))
SC = "sc1"
NT = "nt" if int(opts.get("nt", 0)) else ""
SST = opts.get("sst", "sc1").replace("_", " ")
SLEEP = int(opts.get("sleep", 1)); RSLEEP = int(opts.get("rsleep", 2))
TG0 = int(opts.get("tg0", 4)); TG1 = int(opts.get("tg1", 122)); RAWAT = int(opts.get("rawat", 40))
WS_BYTES = 268435456
IDX16 = 0; WFR = 4 << 20; PART = 8 << 20; FI = 16 << 20; FW = FI + 16384; F2 = FI + 24576; FE = FI + 65536; FL = int(opts.get('fl', 1))
LDELAY = int(opts.get('ldelay', 0)); M1 = int(opts.get('m1', 1)); M2 = int(opts.get('m2', 2))
STG = 131072; XWL = STG + 25600; XB = 131072; XS = 3200; PADR = 128000
ETAB = 0; WT = 12 << 20; MID = int(opts.get('mid', 2)); TOUCH = int(opts.get('touch', 1))
a = Asm()
a.raw(HEADER_COMMENT.rstrip("\n"))
a.raw("; @launch grid=(256,1,1) block=(512,1,1) lds=163840")
a.raw('.amdgcn_target "amdgcn-amd-amdhsa--gfx950"')
kernel_begin(a, MAIN)
TAB=4; ACC=68; WF=100; POOL=132; GD=196; NGD=32; IX=228; AD=GD+24; SEL=244; SIDX=252
RAW=248; VXW=253; VXR=254; VWIDE=3; VSP=255
Z0=GD+28; Z1=GD+29; Z2=GD+30; Z3=GD+31
VL16=1
T = POOL; U = GD
FIN = 3; POLLW = 7
def rg(b, n): return f"v[{b}:{b+n-1}]"
nst = [0]
SKIP = set(opts.get("skip", "x1,x2,x3,x4,z1").split(","))
def stamp(name=""):
    if STAMP and name not in SKIP and not (int(opts.get("cyc", 0)) and nst[0] >= 6):
        k = nst[0]; nst[0] += 1
        assert k < 13
        a(f"{'s_memtime' if int(opts.get('mt', 0)) else 's_memrealtime'} s[{76+2*k}:{77+2*k}]")
def rnd(r): a(f"v_cvt_pk_bf16_f32 v{r}, v{r}, v{r}\nv_lshlrev_b32 v{r}, 16, v{r}")
PADEND = int(opts.get("padend", 0)); PADPRO = int(opts.get("padpro", 0))
def pad(ticks):
    if not ticks: return
    l = newlab("PAD_")
    a(f"{l}:\ns_memrealtime s[32:33]\ns_waitcnt lgkmcnt(0)\ns_sub_u32 s32, s32, s64\ns_cmp_lt_i32 s32, {ticks}\ns_cbranch_scc1 {l}")
lab = [0]
def newlab(p):
    lab[0] += 1; return f"{p}{lab[0]}"
st = len(a.lines)
a("s_cmp_ge_u32 s2, 256\ns_cbranch_scc1 M_end")
stamp()
if int(opts.get("prio", 0)): a("s_setprio 2")
a("s_load_dwordx16 s[36:51], s[0:1], 0\ns_load_dwordx8 s[52:59], s[0:1], 64\ns_memrealtime s[64:65]")
a("s_getpc_b64 s[32:33]\nC_base:\ns_lshr_b32 s29, s2, 3\ns_lshl_b32 s20, s29, 9\nv_lshl_add_u32 v224, v0, 7, s20\nv_min_u32 v224, M_end-C_base, v224")
a("v_cmp_gt_u32 vcc, 4, v0\ns_and_saveexec_b64 s[20:21], vcc\ns_cbranch_execz C_skip\nglobal_load_dword v224, v224, s[32:33]\nC_skip:\ns_mov_b64 exec, -1")
a("v_and_b32 v2, 63, v0\nv_lshrrev_b32 v227, 6, v0\nv_lshlrev_b32 v1, 4, v2\nv_readfirstlane_b32 s22, v227")
a("s_and_b32 s20, s2, 7\ns_lshr_b32 s24, s20, 1\ns_and_b32 s20, s20, 1\ns_lshl_b32 s20, s20, 5\ns_add_u32 s25, s20, s29")
a("s_lshl_b32 s34, s24, 6\ns_add_u32 s34, s34, s25")
a("s_lshl_b32 s35, s22, 8\ns_add_u32 s35, s35, s34")
a(f"v_lshrrev_b32 v{U}, 4, v2\nv_and_b32 v{U+1}, 15, v2\nv_lshlrev_b32 v{U+2}, 15, v{U}\nv_lshl_add_u32 v{U+2}, v{U+1}, 3, v{U+2}\nv_mov_b32 v{U+5}, 0")
a("s_lshr_b32 s20, s35, 5\ns_lshl_b32 s20, s20, 17\ns_bfe_u32 s21, s35, 0x30002\ns_lshl_b32 s21, s21, 12\ns_add_u32 s20, s20, s21\ns_and_b32 s21, s35, 3\ns_lshl_b32 s21, s21, 7\ns_add_u32 s31, s20, s21")
a(f"s_mul_i32 s20, s34, 25600\ns_mul_i32 s21, s22, 3200\ns_add_u32 s20, s20, s21\ns_add_u32 s33, s21, {STG}\ns_mov_b32 m0, s33")
a("s_lshl_b32 s23, s22, 13\ns_add_u32 s30, s23, 8064")
a("s_mov_b32 s18, 3276800\ns_mov_b32 s19, 0x00020000\ns_mov_b32 s6, 6553600\ns_mov_b32 s7, 0x00020000")
a("s_waitcnt lgkmcnt(0)")
stamp()
a("s_mov_b32 s16, s46\ns_and_b32 s17, s47, 0xffff\ns_mov_b32 s4, s36\ns_and_b32 s5, s37, 0xffff")
srd(a, 60, 56, 256)
srd(a, 12, 58, WS_BYTES)
CNT = 163836
if int(opts.get("cas", 1)):
    a("s_cmp_lg_u32 s22, 6\ns_cbranch_scc1 P_n0\ns_cmp_ge_u32 s2, 8\ns_cbranch_scc1 P_n0")
    a(f"v_mov_b32 v{T+4}, s64\nv_mov_b32 v{T+5}, s65\nv_mov_b32 v{T+6}, 0\nv_mov_b32 v{T+7}, 0\nv_or_b32 v{T+5}, 0x80000000, v{T+5}\ns_mov_b64 exec, 1")
    a(f"buffer_atomic_cmpswap_x2 {rg(T+4,4)}, v{T+6}, s[60:63], 0 offen {SC}\ns_mov_b64 exec, -1\ns_nop 1")
else:
    a("s_lshl_b32 s21, s2, 3\ns_add_u32 s21, s21, s22\ns_cmp_lg_u32 s21, 6\ns_cbranch_scc1 P_n0")
    if int(opts.get("xcc", 0)):
        a("s_getreg_b32 s21, hwreg(HW_REG_XCC_ID)\ns_and_b32 s21, s21, 15\ns_lshl_b32 s21, s21, 24\ns_and_b32 s65, s65, 0xffffff\ns_or_b32 s65, s65, s21")
    a(f"v_mov_b32 v{T+4}, s64\nv_mov_b32 v{T+5}, s65\nv_mov_b32 v{T+6}, 0\nv_or_b32 v{T+5}, 0x80000000, v{T+5}\ns_mov_b64 exec, 1")
    a(f"buffer_store_dwordx2 {rg(T+4,2)}, v{T+6}, s[60:63], 0 offen {SC}\ns_mov_b64 exec, -1")
a("P_n0:")
WR_ = U + 8
def w1_loads(sreg=31):
    for j8 in range(8):
        a(f"buffer_load_dwordx2 {rg(WR_+2*j8,2)}, v{U+2}, s[16:19], s{sreg} offen offset:{512*j8} {NT}")
a("s_cmp_lg_u32 s22, 0\ns_cbranch_scc1 P_now1")
w1_loads()
a("P_now1:")
for r in range(3):
    a(f"buffer_load_dwordx4 v1, s[4:7], s20 offen offset:{1024*r} {NT} lds")
a(f"s_mov_b64 exec, 0xff\nbuffer_load_dwordx4 v1, s[4:7], s20 offen offset:3072 {NT} lds\ns_mov_b64 exec, -1")
srd(a, 8, 38, 128000)
a("s_barrier")
if int(opts.get("dw", 1)): a("s_cmp_lg_u32 s22, 5\ns_cbranch_scc1 P_n5\ns_load_dword s74, s[56:57], 192\nP_n5:")
a(f"s_cmp_lt_u32 s22, 4\ns_cbranch_scc1 P_lo\ns_cmp_lg_u32 s22, 4\ns_cbranch_scc1 P_skip")
a(f"v_and_b32 v224, 31, v2\nv_lshlrev_b32 v224, 7, v224\ns_lshl_b32 s21, s29, 12\nbuffer_load_dword v224, v224, s[8:11], s21 offen\ns_branch P_skip")
def nonce_load(): a("s_load_dwordx2 s[64:65], s[56:57], 0")
def nonce_get():
    l = newlab("N_")
    a(f"s_waitcnt lgkmcnt(0)\ns_cmp_lt_i32 s65, 0\ns_cbranch_scc1 {l}ok\ns_mov_b32 s20, 0\nv_mov_b32 v{AD}, 0")
    a(f"{l}:")
    a(f"buffer_load_dwordx2 {rg(AD+2,2)}, v{AD}, s[60:63], 0 offen {SC}\ns_add_u32 s20, s20, 1\ns_waitcnt vmcnt(0)")
    a(f"v_readfirstlane_b32 s64, v{AD+2}\nv_readfirstlane_b32 s65, v{AD+3}\ns_cmp_lt_i32 s65, 0\ns_cbranch_scc1 {l}ok")
    a(f"s_sleep 1\ns_cmp_lt_u32 s20, 0x8000\ns_cbranch_scc1 {l}")
    a(f"{l}ok:")
def flag_store(sreg):
    a(f"v_mov_b32 v{AD}, 0\nv_mov_b32 v{AD+2}, s64\nv_mov_b32 v{AD+3}, s65\ns_mov_b64 exec, 1")
    a(f"buffer_store_dwordx2 {rg(AD+2,2)}, v{AD}, s[12:15], s{sreg} offen {SC}\ns_mov_b64 exec, -1")
def w1_process(PR=WF, RB=WF+16, sreg=26):
    for c in range(4):
        for d in range(4):
            a(f"v_perm_b32 v{PR+4*c+d}, v{WR_+2*(2*d+1)+(c>>1)}, v{WR_+2*(2*d)+(c>>1)}, s{66+(c&1)}")
    for c in range(4):
        a(f"ds_write_b128 v{U+3}, {rg(PR+4*c,4)} offset:{(c&1)*128 + (c>>1)*16}")
    a("s_waitcnt lgkmcnt(0)")
    for r in range(4):
        a(f"ds_read_b128 {rg(RB+4*r,4)}, v{U+4} offset:{r*4*272}")
    for r in range(4):
        a(f"s_waitcnt lgkmcnt({3-r})\nbuffer_store_dwordx4 {rg(RB+4*r,4)}, v{U+5}, s[12:15], s{sreg} offen {SC}\ns_add_u32 s{sreg}, s{sreg}, {4*65536}")
a("P_lo:")
a("s_cmp_ge_u32 s35, 800\ns_cbranch_scc1 P_skip")
a("s_mov_b32 s66, 0x05040100\ns_mov_b32 s67, 0x07060302\ns_add_u32 s21, s23, 0x10000")
a(f"v_mul_u32_u24 v{U+3}, 272, v{U+1}\nv_lshl_add_u32 v{U+3}, v{U}, 5, v{U+3}\nv_add_u32 v{U+3}, s21, v{U+3}")
a(f"v_mul_u32_u24 v{U+4}, 272, v{U}\nv_lshl_add_u32 v{U+4}, v{U+1}, 4, v{U+4}\nv_add_u32 v{U+4}, s21, v{U+4}")
a(f"v_lshlrev_b32 v{U+5}, 16, v{U}\nv_bfe_u32 v{U+6}, v2, 3, 1\nv_lshl_add_u32 v{U+5}, v{U+6}, 12, v{U+5}\nv_and_b32 v{U+6}, 7, v2\nv_lshl_add_u32 v{U+5}, v{U+6}, 4, v{U+5}")
a("s_and_b32 s26, s35, 3\ns_lshl_b32 s26, s26, 20\ns_lshr_b32 s21, s35, 7\ns_lshl_b32 s21, s21, 13\ns_add_u32 s26, s26, s21\ns_bfe_u32 s21, s35, 0x30002\ns_lshl_b32 s21, s21, 9\ns_add_u32 s26, s26, s21")
a(f"s_bfe_u32 s21, s35, 0x20005\ns_lshl_b32 s21, s21, 7\ns_add_u32 s26, s26, s21\ns_add_u32 s26, s26, {WFR}")
a(f"s_and_b32 s75, s35, 3\ns_lshl_b32 s75, s75, 11\ns_bfe_u32 s21, s35, 0x20003\ns_lshl_b32 s21, s21, 9\ns_add_u32 s75, s75, s21\ns_lshr_b32 s21, s35, 5\ns_lshl_b32 s21, s21, 4\ns_add_u32 s75, s75, s21\ns_bfe_u32 s21, s35, 0x10002\ns_lshl_b32 s21, s21, 3\ns_add_u32 s75, s75, s21\ns_add_u32 s75, s75, {FW}")
a("s_cmp_lg_u32 s22, 0\ns_cbranch_scc1 P_skip")
H1, H2 = (3, 4) if FL else (0, 0)
a(f"s_and_b32 s75, s35, 3\ns_lshl_b32 s75, s75, {10+H1}\ns_lshr_b32 s21, s35, 7\ns_lshl_b32 s21, s21, {9+H1}\ns_add_u32 s75, s75, s21\ns_bfe_u32 s21, s35, 0x20003\ns_lshl_b32 s21, s21, {7+H1}\ns_add_u32 s75, s75, s21")
a(f"s_bfe_u32 s21, s35, 0x20005\ns_lshl_b32 s21, s21, {4+H2}\ns_add_u32 s75, s75, s21\ns_bfe_u32 s21, s35, 0x10002\ns_lshl_b32 s21, s21, {3+H2}\ns_add_u32 s75, s75, s21\ns_add_u32 s75, s75, {FE}")
a("s_waitcnt vmcnt(4)")
w1_process()
a("P_skip:")
stamp("x2")
a(f"v_and_b32 v{T+4}, 7, v2\nv_lshrrev_b32 v{T+5}, 3, v2")
a(f"s_and_b32 s20, s34, 1\ns_lshl_b32 s20, s20, 3\nv_add_u32 v{T+6}, s20, v{T+4}")
a(f"v_mul_u32_u24 v{T+7}, 400, v{T+4}\nv_add_u32 v{T+7}, s33, v{T+7}")
a(f"v_and_b32 v{T+8}, 1, v{T+5}\nv_lshrrev_b32 v{T+9}, 1, v{T+5}")
a(f"v_lshlrev_b32 v{T+10}, 3, v{T+8}\nv_xor_b32 v{T+10}, v{T+10}, v{T+6}")
a(f"v_lshl_add_u32 v{T+11}, v{T+9}, 6, v{T+7}")
a(f"v_lshlrev_b32 v{T+9}, 14, v{T+9}\nv_lshl_add_u32 v{T+9}, v{T+8}, 10, v{T+9}\nv_lshl_add_u32 v{T+9}, v{T+4}, 4, v{T+9}")
SL, LA_, RD, PK, SS = T+12, T+20, T+28, T+44, T+52
for u in range(8):
    a(f"v_xor_b32 v{SL+u}, {u}, v{T+10}")
    a(f"v_lshl_add_u32 v{LA_+u}, v{SL+u}, 2, v{T+11}")
a(f"v_and_b32 v{T+10}, 3, v{T+4}")
for u in range(4):
    a(f"v_xor_b32 v{SS+u}, {u}, v{T+10}\nv_lshl_add_u32 v{SS+4+u}, v{SS+u}, 2, v{T+7}\nv_add_u32 v{SS+u}, 16384, v{SS+u}")
a("s_lshr_b32 s27, s34, 3\ns_mul_i32 s27, s27, 102400\ns_lshl_b32 s20, s22, 11\ns_add_u32 s28, s27, s20\ns_and_b32 s21, s34, 7\ns_lshl_b32 s20, s21, 7\ns_add_u32 s28, s28, s20")
a(f"s_lshl_b32 s20, s22, 9\ns_add_u32 s27, s27, s20\ns_lshl_b32 s20, s21, 6\ns_add_u32 s27, s27, s20\ns_add_u32 s27, s27, 98304\nv_lshlrev_b32 v{T+8}, 3, v{T+4}")
TD = RAW
a(f"v_xor_b32 v{TD+1}, v{T+4}, v{U}\nv_lshlrev_b32 v{TD}, 7, v{T+5}\nv_lshl_add_u32 v{TD}, v{TD+1}, 4, v{TD}\nv_xor_b32 v{TD+1}, 64, v{TD}")
stamp("x1")
PRE = int(opts.get("pre", 2)); PDEL = int(opts.get("pdel", 0))
if PRE:
    a("s_cmp_lt_u32 s22, 4\ns_cbranch_scc1 P_np")
    if PDEL: a(f"s_sleep {PDEL}")
    for mt in range(4 - PRE, 4):
        a(f"s_add_u32 s21, s23, {4096*(mt & 1) + 65536*(mt >> 1)}\ns_mov_b32 m0, s21\ns_nop 0")
        for x in range(4): a(f"buffer_load_dwordx4 v{TD+(x&1)}, s[8:11], s21 offen offset:{1024*x} lds")
    a(f"s_waitcnt vmcnt({4*PRE})\ns_branch P_c9")
    a("P_np:")
a(f"s_cmp_eq_u32 s22, 0\ns_cbranch_scc1 P_c4\ns_cmp_eq_u32 s22, 4\ns_cbranch_scc1 P_c1")
a("s_waitcnt vmcnt(0)\nP_c1:\ns_waitcnt vmcnt(1)\nP_c4:\ns_waitcnt vmcnt(4)\nP_c9:")
stamp()
for u in range(8): a(f"ds_read_b32 v{RD+u}, v{LA_+u}")
for u in range(8): a(f"ds_read_b32 v{RD+8+u}, v{LA_+u} offset:256")
for u in range(4): a(f"ds_read_b32 v{SS+8+u}, v{SS+4+u} offset:384")
def conv(k):
    for u in range(8):
        a(f"v_lshl_add_u32 v{RD+8*k+u}, v{RD+8*k+u}, 4, v{SL+u}")
    for d in range(4):
        a(f"v_lshl_or_b32 v{PK+4*k+d}, v{RD+8*k+2*d+1}, 16, v{RD+8*k+2*d}")
a("s_waitcnt lgkmcnt(12)")
conv(0)
a(f"buffer_store_dwordx4 {rg(PK,4)}, v{T+9}, s[12:15], s28 offen {SC}")
a("s_waitcnt lgkmcnt(0)")
nonce_load()
conv(1)
for u in range(4): a(f"v_lshrrev_b32 v{SS+4+u}, 1, v{SS+8+u}\nv_lshl_add_u32 v{SS+8+u}, v{SS+8+u}, 2, v{SS+u}\nv_and_b32 v{SS+4+u}, 2, v{SS+4+u}\nv_xor_b32 v{SS+8+u}, v{SS+8+u}, v{SS+4+u}")
a(f"v_lshl_or_b32 v{SS+4}, v{SS+9}, 16, v{SS+8}\nv_lshl_or_b32 v{SS+5}, v{SS+11}, 16, v{SS+10}")
a(f"s_add_u32 s28, s28, 65536\ns_mov_b32 exec_hi, 0\nbuffer_store_dwordx4 {rg(PK+4,4)}, v{T+9}, s[12:15], s28 offen {SC}")
a(f"s_mov_b64 exec, 0xff\nbuffer_store_dwordx2 {rg(SS+4,2)}, v{T+8}, s[12:15], s27 offen {SC}\ns_mov_b64 exec, -1")
stamp("x3")
BA = int(opts.get("ba", 0))
a("s_cmp_lg_u32 s22, 0\ns_cbranch_scc1 P_c")
nonce_get()
if FL:
    a(f"v_mov_b32 v{AD}, s64\nv_mov_b32 v{AD+1}, s65\nv_mov_b32 v{AD+2}, s64\nv_mov_b32 v{AD+3}, s65\ns_mov_b64 exec, 0xff\ns_waitcnt vmcnt(3)")
    a(f"buffer_store_dwordx4 {rg(AD,4)}, v1, s[12:15], s75 offen {SC}\ns_mov_b64 exec, -1")
else:
    a("s_waitcnt vmcnt(3)")
    flag_store(75)
a("s_mov_b32 s35, 4096")
a("P_c:")
if int(opts.get("nounit", 0)): a("s_mov_b32 s35, 4097")
stamp("x4")
a("s_mov_b32 s36, s31\ns_mov_b32 s37, s26\ns_mov_b32 s38, s75")
PRIO = int(opts.get("prio", 0))
def table_dma(mt):
    off = 4096*(mt & 1) + 65536*(mt >> 1)
    a(f"s_add_u32 s27, s23, {off}\ns_mov_b32 m0, s27\n{'s_setprio 0' if PRIO else 's_nop 0'}")
    for x in range(4):
        a(f"buffer_load_dwordx4 v{TD+(x&1)}, s[8:11], {'0' if int(opts.get('tabsame', 0)) else 's27'} offen offset:{1024*x} lds")
    if PRIO: a("s_setprio 2")
for mt in range(M1): table_dma(mt)
stamp()
a("s_lshl_b32 s20, s25, 3\ns_add_u32 s48, s48, s20\ns_addc_u32 s49, s49, 0\ns_add_u32 s50, s50, s20\ns_addc_u32 s51, s51, 0")
nonce_get()
a(f"s_lshr_b32 s31, s34, 3\ns_lshl_b32 s31, s31, 9\ns_and_b32 s20, s34, 7\ns_lshl_b32 s20, s20, 6\ns_add_u32 s31, s31, s20\ns_lshl_b32 s20, s22, 3\ns_add_u32 s31, s31, s20\ns_add_u32 s31, s31, {FI}")
NL = 4*M1
a(f"s_cmp_eq_u32 s35, 4096\ns_cbranch_scc1 P_a1\ns_waitcnt vmcnt({NL})\nP_a1:\ns_waitcnt vmcnt({NL+1})")
stamp()
flag_store(31)
if int(opts.get("spf", 1)):
    a("s_lshr_b32 s20, s22, 2\ns_add_u32 s20, s20, 1\ns_lshl_b32 s20, s20, 8\ns_add_u32 s20, s20, s34")
    a("s_lshr_b32 s21, s20, 5\ns_lshl_b32 s21, s21, 17\ns_bfe_u32 s39, s20, 0x30002\ns_lshl_b32 s39, s39, 12\ns_add_u32 s21, s21, s39\ns_and_b32 s39, s20, 3\ns_lshl_b32 s39, s39, 7\ns_add_u32 s21, s21, s39")
    a("s_and_b32 s39, s22, 3\ns_lshl_b32 s39, s39, 10\ns_add_u32 s21, s21, s39\ns_add_u32 s46, s46, s21\ns_addc_u32 s47, s47, 0")
    for f4 in range(4):
        for r in range(2): a(f"s_load_dword s3, s[46:47], {f4*32768 + r*512}")
XM = int(opts.get("xm", 1))
for mt in range(M1, XM): table_dma(mt)
PSC = opts.get("psc", "sc1").replace("_", " ")
def poll_load(sreg, tmp, addr): a(f"buffer_load_dwordx2 {rg(tmp,2)}, v{addr}, s[12:15], s{sreg} offen {PSC}")
def poll_check(sreg, tmp, addr, first_wait=0, sleep=SLEEP):
    l = newlab("Q_")
    a(f"s_mov_b32 s20, 0\ns_waitcnt vmcnt({first_wait})")
    a(f"{l}:")
    a(f"v_cmp_ne_u64 vcc, s[64:65], {rg(tmp,2)}\ns_cbranch_vccz {l}ok")
    a(f"s_sleep {sleep}")
    poll_load(sreg, tmp, addr)
    a(f"s_add_u32 s20, s20, 1\ns_waitcnt vmcnt(0)\ns_cmp_lt_u32 s20, 0x8000\ns_cbranch_scc1 {l}")
    a(f"{l}ok:")
a(f"s_lshr_b32 s21, s22, 2\ns_xor_b32 s21, s21, 1\ns_lshr_b32 s68, s25, 4\ns_lshl_b32 s68, s68, {10+H1}\ns_lshl_b32 s20, s21, {9+H1}\ns_add_u32 s68, s68, s20\ns_and_b32 s20, s22, 3\ns_lshl_b32 s20, s20, {7+H1}\ns_add_u32 s68, s68, s20\ns_add_u32 s68, s68, {FE}")
a(f"s_lshl_b32 s69, s25, 16\ns_lshl_b32 s21, s21, 13\ns_add_u32 s69, s69, s21\ns_lshl_b32 s20, s20, {3-H1}\ns_add_u32 s69, s69, s20\ns_add_u32 s69, s69, {WFR}\ns_add_u32 s74, s69, 4096")
a(f"v_and_b32 v{IX+8}, 7, v2\nv_lshlrev_b32 v{IX+8}, {3+H2}, v{IX+8}")
def x_load(): a(f"buffer_load_dwordx4 {rg(IX,4)}, v{VL16}, s[12:15], s69 offen {SC}\nbuffer_load_dwordx4 {rg(IX+4,4)}, v{VL16}, s[12:15], s74 offen {SC}")
def x_write(): a(f"ds_write_b128 v{VXW}, {rg(IX,4)} offset:1024\nds_write_b128 v{VXW}, {rg(IX+4,4)} offset:2048")
XA = int(opts.get("xa", 2))
X0_ = max(M1, XM)
XA = min(XA, 4 - PRE - X0_)
a(f"s_cmp_lt_u32 s22, 4\ns_cbranch_scc1 P_g")
poll_load(68, IX+10, IX+8)
for mt in range(X0_, X0_ + XA): table_dma(mt)
poll_check(68, IX+10, IX+8, 4*XA)
stamp("z1")
x_load()
for mt in range(X0_ + XA, 4 - PRE): table_dma(mt)
a("s_load_dwordx2 s[70:71], s[48:49], 0\ns_load_dwordx2 s[72:73], s[50:51], 0\ns_branch P_e")
a("P_g:")
for mt in range(X0_, 4): table_dma(mt)
a("s_load_dwordx2 s[70:71], s[48:49], 0\ns_load_dwordx2 s[72:73], s[50:51], 0")
a("P_e:")
FR = T + 16
a(f"v_bfe_u32 v{T+2}, v2, 4, 1\nv_lshlrev_b32 v{T+2}, 1, v{T+2}\nv_bfe_u32 v{T}, v2, 2, 2\nv_mov_b32 v{T+1}, 0x3f80")
a(f"v_cmp_eq_u32 vcc, v{T+2}, v{T}\nv_add_u32 v{T+2}, 1, v{T+2}\ns_nop 0\nv_cndmask_b32 v{SEL}, 0, v{T+1}, vcc\nv_cmp_eq_u32 vcc, v{T+2}, v{T}")
a(f"v_mov_b32 v{SEL+1}, v{SEL}\nv_and_b32 v{T+2}, 3, v2\nv_cndmask_b32 v{SEL+2}, 0, v{T+1}, vcc\nv_mul_u32_u24 v{SIDX}, 0x5555, v{T+2}\nv_mov_b32 v{SEL+3}, v{SEL+2}")
a(f"v_and_b32 v227, 24, v2\nv_and_b32 v{T}, 3, v2\nv_lshl_add_u32 v227, v{T}, 1, v227\nv_bfe_u32 v{T}, v2, 2, 1\nv_add_u32 v227, v227, v{T}")
a(f"v_lshrrev_b32 v{T}, 5, v2\nv_lshlrev_b32 v{VSP}, 5, v227\nv_bfe_u32 v{T+1}, v2, 1, 1\nv_xor_b32 v{T+1}, v{T+1}, v{T}\nv_lshl_add_u32 v{VSP}, v{T+1}, 4, v{VSP}\ns_lshl_b32 s31, s22, 11\ns_add_u32 s31, s31, 131072\nv_add_u32 v{VSP}, s31, v{VSP}")
a(f"v_bfe_u32 v{T+1}, v227, 1, 3\nv_xor_b32 v{T+1}, v{T+1}, v{T}\nv_lshlrev_b32 v227, 7, v227\nv_lshl_add_u32 v227, v{T+1}, 4, v227\nv_add_u32 v{FR}, s23, v227")
for ks in range(1, 4): a(f"v_xor_b32 v{FR+ks}, {32*ks}, v{FR}")
for ks in range(4): a(f"v_add_u32 v{FR+4+ks}, 0x10000, v{FR+ks}")
a(f"v_add_u32 v{VXR}, {XB}, v1\nv_add_u32 v{VXW}, s33, v1")
a(f"v_lshrrev_b32 v0, 3, v2\nv_lshlrev_b32 v0, 14, v0\nv_lshl_add_u32 v0, v{T+4}, 4, v0")
a("s_lshl_b32 s28, s24, 3\ns_add_u32 s28, s28, s22\ns_mul_i32 s28, s28, 102400")
a(f"s_lshl_b32 s75, s24, 6\ns_lshl_b32 s33, s22, 3\ns_add_u32 s75, s75, s33\ns_lshl_b32 s75, s75, 6\ns_add_u32 s75, s75, s25\ns_lshl_b32 s75, s75, 8\ns_add_u32 s75, s75, {PART}")
a(f"v_lshlrev_b32 v{AD}, 3, v2\nv_min_u32 v{AD+1}, 33, v2\nv_lshlrev_b32 v{AD+1}, 3, v{AD+1}")
a("s_cmp_lt_u32 s22, 4\ns_cbranch_scc1 P_h")
a(f"s_waitcnt vmcnt({4*(4-PRE-X0_-XA)})")
x_write()
a("P_h:")
a(f"s_lshr_b32 s29, s25, 4\ns_lshl_b32 s29, s29, 11\ns_and_b32 s20, s22, 3\ns_lshl_b32 s20, s20, 9\ns_add_u32 s29, s29, s20\ns_add_u32 s29, s29, {FW + 128}")
a(f"s_lshl_b32 s31, s24, 3\ns_add_u32 s31, s31, s22\ns_lshl_b32 s31, s31, 9\ns_add_u32 s31, s31, {FI}")
a(f"s_lshl_b32 s26, s25, 16\ns_lshl_b32 s20, s22, 10\ns_add_u32 s26, s26, s20\ns_add_u32 s26, s26, {WFR + 16384}")
a("s_waitcnt vmcnt(0)")
stamp()
for mt in range(4):
    for ks in range(4):
        a(f"ds_read_b128 {rg(TAB+16*mt+4*ks,4)}, v{FR+4*(mt>>1)+ks} offset:{4096*(mt&1)}")
a("s_setprio 0\ns_waitcnt lgkmcnt(0)\ns_barrier")
stamp()
def wf_read(off=0):
    for x in range(8):
        a(f"ds_read_b128 {rg(WF+4*x,4)}, v{VXR} offset:{XS*x + off}")
def wf_read_x(base):
    for x in (0, 4, 1, 5, 2, 6, 3, 7):
        a(f"ds_read_b128 {rg(WF+4*x,4)}, v{VXR} offset:{XS*(base + (x&3)) + 1024 + 1024*(x>>2)}")
wf_read_x(4)
poll_load(68, IX+10, IX+8)
poll_load(31, AD+2, AD)
UAT = int(opts.get("uat", 1))
if UAT == 0:
    a("s_cmp_ge_u32 s35, 800\ns_cbranch_scc1 P_u0")
    w1_loads(36)
    a("P_u0:")
def tg_mfma(mt, ks, e, d):
    c = "0" if ks == 0 else rg(d, 16)
    return f"v_mfma_f32_32x32x16_bf16 {rg(d,16)}, {rg(TAB+16*mt+4*ks,4)}, {rg(WF+16*e+4*ks,4)}, {c}"
D0, D1 = POOL+32, POOL+48
def tgen_groups():
    g = []
    for mt in range(3):
        for ks in range(4):
            for e in range(2):
                g.append([tg_mfma(mt, ks, e, D0 if e == 0 else D1)])
        g.extend([[] for _ in range(int(opts.get("gap", 3)))])
        for r in range(0, 16, 4):
            g.append([f"v_cvt_pk_bf16_f32 v{POOL+16*mt+r+x}, v{D0+r+x}, v{D1+r+x}" for x in range(4)])
    for ks in range(4): g.append([tg_mfma(3, ks, 0, D1)])
    for ks in range(4): g.append([tg_mfma(3, ks, 1, WF)])
    g.extend([[] for _ in range(int(opts.get("gap", 3)))])
    for r in range(0, 16, 4):
        g.append([f"v_cvt_pk_bf16_f32 v{D1+r+x}, v{D1+r+x}, v{WF+r+x}" for x in range(4)])
    return g
def wr_op(r):
    off = r*256 if r < 32 else 57472 + (r-32)*256
    pre = ["s_mov_b32 m0, s30", "s_nop 0"] if r == 32 else []
    return pre + [f"ds_write_addtid_b32 v{POOL+r} offset:{off}"]
a("s_mov_b32 m0, s23")
TP = int(opts.get("tp", 0)); TO = int(opts.get("to", 1))
def pro_d(mt): return [(ACC, ACC+16), (D0, D1), (ACC, ACC+16), (D1, GD)][mt]
pend = []; held = []; UPAT = int(opts.get("upat", 3))
IXAT = int(opts.get("ixat", 2))
for mt in range(4):
    d0, d1 = pro_d(mt)
    seq = [(ks, e) for ks in range(4) for e in range(2)]
    if mt == 1:
        a("s_cmp_ge_u32 s22, 4\ns_cbranch_scc1 P_x1")
        if UAT == 0: a("s_cmp_lt_u32 s35, 800\ns_cbranch_scc1 P_u1\ns_waitcnt vmcnt(1)\nP_u1:")
        poll_check(68, IX+10, IX+8, 9 if UAT == 0 else 1)
        x_load()
        if UAT == 1:
            a("s_cmp_ge_u32 s35, 800\ns_cbranch_scc1 P_x1")
            w1_loads(36)
        a("P_x1:")
    if mt == IXAT:
        a("s_cmp_lt_u32 s35, 800\ns_cbranch_scc1 P_u2\ns_waitcnt vmcnt(0)\nP_u2:")
        poll_check(31, AD+2, AD, 8)
        stamp("y1")
        a("s_cmp_ge_u32 s22, 4\ns_cbranch_scc1 P_x2")
        x_write()
        a("P_x2:")
        a("s_lshl_b32 s68, s70, 16\ns_and_b32 s69, s70, 0xffff0000\ns_lshl_b32 s70, s71, 16\ns_and_b32 s71, s71, 0xffff0000")
        for x in range(4):
            a(f"buffer_load_dwordx4 {rg(IX+4*x,4)}, v{VL16}, s[12:15], s28 offen offset:{1024*x} {SC}")
        a("s_add_u32 s28, s28, 4096\ns_mov_b32 s21, 0")
        a(f"s_cmp_lg_u32 s22, {FIN}\ns_cbranch_scc1 P_f")
        srd(a, 4, 40, 16384*26)
        a(f"s_mov_b32 m0, {XWL}\ns_mul_i32 s20, s34, 1664\nbuffer_load_dwordx4 v1, s[4:7], s20 offen lds\nbuffer_load_dwordx4 v1, s[4:7], s20 offen offset:1024 lds")
        srd(a, 4, 44, 2)
        a(f"s_mov_b32 m0, {XWL+2048}\nv_mov_b32 v{RAW+3}, 0\nbuffer_load_ushort v{RAW+3}, s[4:7], 0 offen lds")
        srd(a, 4, 52, 2)
        a(f"s_mov_b32 m0, {XWL+2304}\ns_nop 0\nbuffer_load_ushort v{RAW+3}, s[4:7], 0 offen lds")
        srd(a, 4, 42, 26)
        a(f"v_lshlrev_b32 v{RAW+2}, 1, v2\nbuffer_load_ushort v{VWIDE}, v{RAW+2}, s[4:7], 0 offen\ns_mov_b32 m0, s23")
        a("P_f:")
    if mt == UPAT:
        a(f"s_cmp_ge_u32 s35, 800\ns_cbranch_scc1 P_k2\ns_cmp_eq_u32 s22, {FIN}\ns_cbranch_scc1 P_k\ns_waitcnt vmcnt(4)\nP_k:\ns_waitcnt vmcnt(9)")
        w1_process(POOL, WR_, 37)
        a("P_k2:")
    if TP == 1: a(f"s_setprio {3 - mt}")
    for n, (ks, e) in enumerate(seq):
        if mt == 0: a(f"s_waitcnt lgkmcnt({7 - n})")
        a(tg_mfma(mt, ks, e, d0 if e == 0 else d1))
        take = (len(pend) + (7 - n)) // (8 - n)
        for o in pend[:take]: a(o)
        pend = pend[take:]
    assert not pend
    cvs = [f"v_cvt_pk_bf16_f32 v{POOL+16*mt+r}, v{d0+r}, v{d1+r}" for r in range(16)]
    wrs = [wr_op(16*mt + r) for r in range(16)]
    HOLD = int(opts.get("hold", 10)) if mt else 0
    body = []
    for r in range(16):
        body.append(cvs[r])
        if 1 <= r <= 16 - HOLD and mt < 3: body.extend(wrs[r-1])
        if r == 15 and HOLD == 0 and mt < 3: body.extend(wrs[15])
        if 1 <= r and mt == 3: body.extend(wrs[r-1])
    if mt == 3: body.extend(wrs[15])
    pend = (held if held else ["s_nop 4", "s_nop 4"]) + body
    held = [o for w in wrs[16 - HOLD:] for o in w] if mt < 3 and HOLD else []
    if mt == 2:
        for s in range(8):
            for c in range(4): pend.append(f"v_mov_b32 v{ACC+4*s+c}, s{68+c}")
stamp("y2")
for o in pend: a(o)
a(f"s_cmp_lt_u32 s35, 800\ns_cbranch_scc1 P_m7\ns_cmp_eq_u32 s22, {FIN}\ns_cbranch_scc1 P_m7\ns_waitcnt vmcnt(3)\nP_m7:\ns_waitcnt vmcnt(7) lgkmcnt(0)")
stamp()

LA = int(opts.get("la", 1)); PAT = opts.get("pat", "SACMRL"); GP = int(opts.get("gp", 1))
RING = 8 * (LA + 1); DX = GD + 16
assert RING <= 16
assert LA == 1
def pre_ops():
    ops = [f"v_lshlrev_b32_sdwa v{GD + 2*x}, 3, v{IX + x//2} dst_sel:DWORD dst_unused:UNUSED_PAD src0_sel:DWORD src1_sel:WORD_{x&1}" for x in range(8)]
    return ops + [f"buffer_load_dwordx4 {rg(IX,4)}, v{VL16}, s[12:15], s28 offen {SC}"]
def gather_phase(nunits, mf, cv, extra, acc_of, head=None, tail=None):
    NB = nunits * 2
    log = [("ix", u) for u in range(4)]
    def vm_wait(tag):
        idx = len(log) - 1 - log[::-1].index(tag)
        a(f"s_waitcnt vmcnt({len(log) - 1 - idx})")
    def A(b):
        if b >= NB: return
        u = b // 2
        if b % 2 == 0: vm_wait(("ix", u))
        for x in range(4):
            d = IX + 4*(u & 3) + 2*(b & 1) + x//2
            a(f"v_lshlrev_b32_sdwa v{GD + (8*b) % RING + 2*x}, 3, v{d} dst_sel:DWORD dst_unused:UNUSED_PAD src0_sel:DWORD src1_sel:WORD_{x&1}")
    def R(b, lo=0, hi=4):
        if b >= NB: return
        for x in range(lo, hi):
            q = GD + (8*b) % RING + 2*x
            a(f"ds_read_b64 {rg(q,2)}, v{q}")
    def L(b):
        u = b // 2
        if b >= NB or b % 2 == 0 or not (nunits == 16 or u + 4 < nunits): return
        if u + 4 >= 16 and nunits == 20:
            for h in range(2):
                a(f"buffer_load_dwordx2 {rg(IX+4*(u&3)+2*h,2)}, v{VXW}, s[12:15], s28 offen offset:{1024*(u&3)+512*h} {SC}")
                log.append(("ix", u + 4))
        else:
            a(f"buffer_load_dwordx4 {rg(IX+4*(u&3),4)}, v{VL16}, s[12:15], s28 offen offset:{1024*(u&3)} {SC}")
            log.append(("ix", u + 4))
        if u & 3 == 3: a("s_add_u32 s28, s28, 4096")
    def emit(ops):
        for o in ops:
            if isinstance(o, tuple):
                a(o[0]); log.append(o[1])
            elif o == "WAITRAW": vm_wait(("raw", 0))
            elif o == "WCHECK":
                vm_wait(("wfl", 0))
                a(f"v_cmp_ne_u64 vcc, s[64:65], {rg(RAW,2)}\n{'s_nop 0' if int(opts.get('nochk', 0)) else 's_cbranch_vccnz W_slow'}\nW_back:")
            else: a(o)
    if head:
        log.append(("ix", 4))
        head()
        for b in range(LA + 1): R(b)
    else:
        for b in range(LA + 1): A(b); R(b); L(b)
    for b in range(NB):
        if GP and b % (NB // 4) == 0 and b: a(f"s_setprio {3 - b // (NB // 4)}")
        nb = b + LA + 1
        for ch in PAT:
            if ch == "S":
                a(f"s_waitcnt lgkmcnt({min(NB, nb) * 4 - 4*(b+1)})")
                if tail and b == NB - 1: tail()
                a(f"v_smfmac_f32_16x16x64_bf16 {rg(ACC+4*acc_of(b),4)}, {rg(SEL,4)}, {rg(GD + (8*b) % RING, 8)}, v{SIDX}")
            elif ch == "A": A(nb)
            elif ch == "R": R(nb)
            elif ch == "r": R(nb, 0, 2)
            elif ch == "q": R(nb, 2, 4)
            elif ch == "M": emit(mf.get(b, []))
            elif ch == "C": emit(cv.get(b, []))
            elif ch == "L": L(nb)
        emit(extra.get(b, []))
    return log, vm_wait
CYC = int(opts.get("cyc", 0))
def cyc(acc):
    if CYC == 2:
        if acc in (95, 93, 90):
            for k in range(12, 1, -1): a(f"s_mov_b32 s{76+2*k}, s{74+2*k}")
            a("s_memtime s[78:79]\ns_waitcnt lgkmcnt(0)")
    elif CYC: a(f"s_memtime s[98:99]\ns_waitcnt lgkmcnt(0)\ns_sub_u32 s100, s98, s96\ns_add_u32 s{acc}, s{acc}, s100\ns_mov_b32 s96, s98")
pad(PADPRO)
if CYC == 1: a("s_memtime s[96:97]\ns_waitcnt lgkmcnt(0)\ns_mov_b32 s92, 0\ns_mov_b32 s93, 0\ns_mov_b32 s94, 0\ns_mov_b32 s95, 0\ns_mov_b32 s90, 0")
for o in pre_ops(): a(o)
a("L_G:")
g_start = len(a.lines)
DD = [(POOL+32, POOL+48), (POOL+16, DX), (POOL+32, POOL+48), (DX, WF)]
mf = {}; cv = {}
for mt in range(4):
    seq = [(ks, e) for ks in range(4) for e in range(2)] if mt < 3 else [(ks, 0) for ks in range(4)] + [(ks, 1) for ks in range(4)]
    for n, (ks, e) in enumerate(seq): mf[8*mt + n] = [tg_mfma(mt, ks, e, DD[mt][e])]
    if mt < 3:
        for r in range(16):
            cv.setdefault(8*mt + 9 + (r * 7) // 16, []).append(f"v_cvt_pk_bf16_f32 v{POOL+16*mt+r}, v{DD[mt][0]+r}, v{DD[mt][1]+r}")
WFE = int(opts.get("wfe", 0))
if True:
    ml = [mf[k][0] for k in range(32)]
    mf = {}; cv = {}
    for mt in range(4):
        for n in range(8): mf.setdefault(7*mt + (n * 7) // 8, []).append(ml[8*mt + n])
        span = 6 if mt < 3 else 3
        for r in range(16):
            cv.setdefault(7*mt + 8 + (r * span) // 16, []).append(f"v_cvt_pk_bf16_f32 v{POOL+16*mt+r}, v{DD[mt][0]+r}, v{DD[mt][1]+r}")
PB = int(opts.get("pb", 15)); RB_ = int(opts.get("rb", 20)); XBAT = int(opts.get("xb", 29))
extra = {}
extra[PB] = ["s_cmp_eq_u32 s21, 4", "s_cselect_b32 s20, 1, 7", f"v_min_u32 v{RAW+2}, s20, v2", f"v_lshlrev_b32 v{RAW+2}, 3, v{RAW+2}",
             (f"buffer_load_dwordx2 {rg(RAW,2)}, v{RAW+2}, s[12:15], s29 offen {SC}", ("wfl", 0))]
extra[RB_] = ["WCHECK", (f"buffer_load_dwordx4 {rg(RAW,4)}, v{VL16}, s[12:15], s26 offen {SC}", ("raw", 0)), "s_add_u32 s26, s26, 8192", "s_add_u32 s29, s29, 64"]
extra[XBAT] = ["WAITRAW", f"ds_write_b128 v{VXW}, {rg(RAW,4)}", "s_mov_b32 m0, s23", "s_add_u32 s21, s21, 1"]
def g_head():
    a(f"s_setprio 3\ns_cmp_eq_u32 s21, 0\ns_waitcnt lgkmcnt({8 - WFE})"); cyc(94); a("s_barrier"); cyc(95)
    if CYC: a("s_cmp_eq_u32 s21, 0")
    a("s_cbranch_scc1 L_first\nL_G1:")
WP = int(opts.get("wp", 1))
def g_tail():
    cyc(92); a("s_barrier"); cyc(93)
    if WP: a("s_setprio 3")
    for r in range(4):
        for o in wr_op(r): a(o)
log, vm_wait = gather_phase(16, mf, cv, extra, lambda b: b // 4, g_head, g_tail)
po = pre_ops()
PA = int(opts.get("pa", 40))
wfo = [f"ds_read_b128 {rg(WF+4*x,4)}, v{VXR} offset:{XS*x}" for x in range(8)]
for r in range(4, 64):
    if WP and r % 16 == 0: a(f"s_setprio {3 - r // 16}")
    for o in wr_op(r): a(o)
    if r == PA: vm_wait(("ix", 16))
    if PA <= r < PA + 9: a(po[r - PA])
    if r % 6 == 4 and r // 6 < WFE: a(wfo[r // 6])
a("s_cmp_eq_u32 s21, 5\ns_cbranch_scc1 L_Wlast")
for o in wfo[WFE:]: a(o)
a("s_cmp_lg_u32 s21, 1\ns_cbranch_scc1 L_G")
for x in range(4): a(f"v_mov_b32 v{RAW+x}, -1")
a(f"buffer_store_dwordx4 {rg(RAW,4)}, v0, s[12:15], s75 offen {SC}\nbuffer_store_dwordx4 {rg(RAW,4)}, v0, s[12:15], s75 offen offset:128 {SC}")
a(f"s_cmp_lg_u32 s22, {FIN}\ns_cbranch_scc1 L_nosent")
X = POOL
a(f"v_and_b32 v{X}, 7, v2\nv_bfe_u32 v{X+1}, v2, 3, 1\nv_lshl_add_u32 v{X}, v{X+1}, 5, v{X}\nv_lshrrev_b32 v{X+1}, 4, v2\nv_lshl_add_u32 v{X}, v{X+1}, 3, v{X}\nv_mul_u32_u24 v{X}, 26, v{X}\nv_add_u32 v{X}, {XWL}, v{X}\nv_mov_b32 v{X+17}, {XWL+2048}")
for k in range(13): a(f"ds_read_u16 v{X+2+k}, v{X} offset:{2*k}")
a(f"ds_read_u16 v{X+15}, v{X+17}\nds_read_u16 v{X+16}, v{X+17} offset:256")
a(f"v_lshlrev_b32 v{X+1}, 16, v{VWIDE}\ns_nop 0")
for k in range(13): a(f"v_readlane_b32 s{36+k}, v{X+1}, {k}")
a("s_waitcnt lgkmcnt(0)")
for k in range(15): a(f"v_lshlrev_b32 v{X+2+k}, 16, v{X+2+k}")
a(f"v_mul_f32 v{VWIDE}, s36, v{X+2}\nv_readfirstlane_b32 s74, v{X+16}")
for k in range(1, 13): a(f"v_fmac_f32 v{VWIDE}, s{36+k}, v{X+2+k}")
rnd(VWIDE); a(f"v_add_f32 v{VWIDE}, v{VWIDE}, v{X+15}"); rnd(VWIDE)
a("L_nosent:")
a("s_branch L_G")
g_end = len(a.lines)
a("L_first:")
wf_read_x(0)
a("s_cmp_ge_u32 s35, 800\ns_cbranch_scc1 L_G1\ns_waitcnt vmcnt(1)")
a(f"v_mov_b32 v{RAW+2}, 0\nv_mov_b32 v{RAW}, s64\nv_mov_b32 v{RAW+1}, s65\ns_mov_b64 exec, 1\nbuffer_store_dwordx2 {rg(RAW,2)}, v{RAW+2}, s[12:15], s38 offen {SC}\ns_mov_b64 exec, -1")
a("s_branch L_G1")
a("W_slow:")
poll_check(29, RAW, RAW+2)
a("s_branch W_back")
a("L_Wlast:")
a(f"v_and_b32 v{AD}, 1, v2\nv_mul_u32_u24 v{AD}, {4*XS}, v{AD}\nv_bfe_u32 v{AD+1}, v2, 1, 1\nv_lshl_add_u32 v{AD}, v{AD+1}, 4, v{AD}")
a(f"v_bfe_u32 v{AD+1}, v2, 3, 1\nv_lshl_add_u32 v{AD}, v{AD+1}, 5, v{AD}\nv_bfe_u32 v{AD+1}, v2, 2, 1\nv_lshl_add_u32 v{AD}, v{AD+1}, 6, v{AD}")
a(f"v_lshrrev_b32 v{AD+1}, 5, v2\nv_lshl_add_u32 v{AD}, v{AD+1}, 9, v{AD}\nv_add_u32 v{AD}, {XB}, v{AD}")
for x in range(4): a(f"ds_read_b128 {rg(WF+4*x,4)}, v{AD} offset:{XS*x}")
a(f"v_lshlrev_b32 v{VXW}, 3, v2")
a("s_cmp_lg_u32 s22, 0\ns_cbranch_scc1 L_Glast")
a(f"s_lshl_b32 s31, s34, 3\ns_add_u32 s31, s31, {F2}")
flag_store(31)
a("L_Glast:")
mf = {}; cv = {}; extra = {}
for mt in range(4):
    d = POOL + 16*mt
    for ks in range(4):
        c = "0" if ks == 0 else rg(d, 16)
        mf[4*mt + ks] = [f"v_mfma_f32_32x32x16_bf16 {rg(d,16)}, {rg(WF+4*ks,4)}, {rg(TAB+16*mt+4*ks,4)}, {c}"]
    cv[4*mt + 5] = [f"v_cvt_pk_bf16_f32 v{d+x}, v{d+2*x}, v{d+2*x+1}" for x in range(2)]
    cv[4*mt + 6] = [f"v_cvt_pk_bf16_f32 v{d+x}, v{d+2*x}, v{d+2*x+1}" for x in range(2, 4)]
    extra[4*mt + 6] = [f"ds_write_b128 v{VSP}, {rg(d,4)} offset:{(32*(mt & 1) + 512*(mt >> 1)) * 32}"]
if not int(opts.get("nomb", 0)): extra[int(opts.get("mbat", 26))] = ["s_barrier"]
if int(opts.get("nosp", 0)): mf = {}; cv = {}; extra = {}
EP = int(opts.get("ep", 1))
RST = "sc1"
Y = TAB
def epi(s):
    return [f"v_cvt_pk_bf16_f32 v{POOL+2*s}, v{ACC+4*s}, v{ACC+4*s+1}", f"v_cvt_pk_bf16_f32 v{POOL+2*s+1}, v{ACC+4*s+2}, v{ACC+4*s+3}",
            f"v_pk_max_i16 v{POOL+2*s}, v{POOL+2*s}, 0", f"v_pk_max_i16 v{POOL+2*s+1}, v{POOL+2*s+1}, 0",
            f"v_dot2_f32_bf16 v{POOL+16+s}, v{POOL+2*s}, s72, 0", f"v_dot2_f32_bf16 v{POOL+16+s}, v{POOL+2*s+1}, s73, v{POOL+16+s}"]
def epi2(s): return [f"v_min_u32 v{POOL+16+s}, s33, v{POOL+16+s}"]
st0 = f"buffer_store_dwordx4 {rg(POOL+16,4)}, v0, s[12:15], s75 offen {RST}"
st1 = f"buffer_store_dwordx4 {rg(POOL+20,4)}, v0, s[12:15], s75 offen offset:128 {RST}"
extra[28] = ["s_lshl_b32 s31, s24, 9", f"s_add_u32 s31, s31, {F2}", "s_mov_b32 s33, -2", "s_mov_b32 s20, 0",
             (f"buffer_load_dwordx2 {rg(RAW,2)}, v{VXW}, s[12:15], s31 offen {SC}", ("f2", 0))]
extra[30] = [f"s_lshl_b32 s29, s34, 14", "s_lshl_b32 s27, s22, 11", "s_add_u32 s29, s29, s27", f"s_add_u32 s29, s29, {PART}",
             f"v_lshlrev_b32 v{Y+12}, 2, v2", f"v_add_u32 v{Y+12}, {PADR}, v{Y+12}", "s_lshl_b32 s27, s22, 8", f"v_add_u32 v{Y+13}, s27, v{Y+12}"]
extra[31] = [f"v_and_b32 v{Y+10}, 7, v2", f"v_bfe_u32 v{Y+11}, v2, 3, 1", f"v_lshl_add_u32 v{Y+10}, v{Y+11}, 5, v{Y+10}", f"v_lshrrev_b32 v{Y+11}, 4, v2",
             f"v_lshl_add_u32 v{Y+10}, v{Y+11}, 3, v{Y+10}", "s_lshl_b32 s27, s34, 6", f"v_add_u32 v{Y+10}, s27, v{Y+10}", f"v_lshlrev_b32 v{Y+10}, 1, v{Y+10}",
             "s_mov_b32 s8, s54", "s_and_b32 s9, s55, 0xffff", "s_mov_b32 s10, 32768", "s_mov_b32 s11, 0x00020000"]
if EP:
    for s in range(7): cv[33 + s] = epi(s) + (epi2(s-1) if s else [])
    extra[37] = [(st0, ("st", 0))]
if CYC == 2: extra.setdefault(29, []).extend([f"s_mov_b32 s{76+2*k}, s{74+2*k}" for k in range(12, 1, -1)] + ["s_memtime s[78:79]", "s_waitcnt lgkmcnt(0)"])
def gl_head():
    a("s_setprio 3\ns_waitcnt lgkmcnt(0)"); cyc(94); a("s_barrier"); cyc(95)
gather_phase(20, mf, cv, extra, lambda b: b // 4 if b < 32 else b - 32, gl_head)
cyc(90)
stamp()
if EP:
    a("s_nop 0")
    for o in epi(7): a(o)
    for o in epi2(6): a(o)
    a("s_nop 1")
    for o in epi2(7): a(o)
    a(st1)
else:
    a("s_nop 7")
    for k in range(6):
        for s in range(8): a(epi(s)[k])
    for s in range(8): a(epi2(s)[0])
    a(st0); a(st1)
a("R_f2:")
a(f"s_waitcnt vmcnt(0)\nv_cmp_ne_u64 vcc, s[64:65], {rg(RAW,2)}\ns_cbranch_vccz R_f2ok")
a(f"s_sleep 1\nbuffer_load_dwordx2 {rg(RAW,2)}, v{VXW}, s[12:15], s31 offen {SC}\ns_add_u32 s20, s20, 1\ns_cmp_lt_u32 s20, 0x8000\ns_cbranch_scc1 R_f2")
a("R_f2ok:")
a("s_mov_b32 s31, s29\ns_mov_b32 s20, 0")
if int(opts.get("rack", 1)): a("s_waitcnt vmcnt(0)")
if int(opts.get("rbar", 0)): a("s_barrier")
if int(opts.get("rdelay", 0)): a(f"s_sleep {int(opts.get('rdelay', 0))}")
a("R_poll:")
RSC = opts.get("rsc", "sc1").replace("_", " ")
a(f"buffer_load_dwordx4 {rg(Y,4)}, v1, s[12:15], s31 offen {RSC}\nbuffer_load_dwordx4 {rg(Y+4,4)}, v1, s[12:15], s31 offen offset:1024 {RSC}")
a("s_add_u32 s20, s20, 1\ns_waitcnt vmcnt(0)")
a(f"v_max3_u32 v{Y+8}, v{Y}, v{Y+1}, v{Y+2}\nv_max3_u32 v{Y+9}, v{Y+3}, v{Y+4}, v{Y+5}\nv_max3_u32 v{Y+8}, v{Y+8}, v{Y+6}, v{Y+7}\nv_max_u32 v{Y+8}, v{Y+8}, v{Y+9}")
a(f"v_cmp_eq_u32 vcc, -1, v{Y+8}\ns_cbranch_vccz R_ok")
a(f"s_sleep {RSLEEP}\ns_cmp_lt_u32 s20, 0x8000\ns_cbranch_scc1 R_poll")
a("R_ok:")
stamp("y3")
for x in range(4): a(f"v_add_f32 v{Y+x}, v{Y+x}, v{Y+4+x}")
a(f"s_nop 0\nv_permlane32_swap_b32 v{Y}, v{Y+2}\nv_permlane32_swap_b32 v{Y+1}, v{Y+3}\ns_nop 0\nv_add_f32 v{Y}, v{Y}, v{Y+2}\nv_add_f32 v{Y+1}, v{Y+1}, v{Y+3}\ns_nop 1\nv_permlane16_swap_b32 v{Y}, v{Y+1}\ns_nop 0\nv_add_f32 v{Y}, v{Y}, v{Y+1}")
a(f"ds_write_b32 v{Y+13}, v{Y}\ns_waitcnt lgkmcnt(0)\ns_barrier")
a(f"s_cmp_lg_u32 s22, {FIN}\ns_cbranch_scc1 M_fin")
for k in range(8): a(f"ds_read_b32 v{Y+k}, v{Y+12} offset:{256*k}")
a("s_waitcnt lgkmcnt(0)")
a(f"v_add_f32 v{Y}, v{Y}, v{Y+1}\nv_add_f32 v{Y+2}, v{Y+2}, v{Y+3}\nv_add_f32 v{Y+4}, v{Y+4}, v{Y+5}\nv_add_f32 v{Y+6}, v{Y+6}, v{Y+7}\nv_add_f32 v{Y}, v{Y}, v{Y+2}\nv_add_f32 v{Y+4}, v{Y+4}, v{Y+6}\nv_add_f32 v{Y}, v{Y}, v{Y+4}")
rnd(Y); a(f"v_add_f32 v{Y}, s74, v{Y}"); rnd(Y)
a(f"v_add_f32 v{Y}, v{Y}, v{VWIDE}"); rnd(Y)
a(f"v_mul_f32 v{Y}, 0xbfb8aa3b, v{Y}\nv_exp_f32 v{Y}, v{Y}\ns_nop 0\nv_add_f32 v{Y}, 1.0, v{Y}\nv_rcp_f32 v{Y}, v{Y}\ns_nop 0\nv_cvt_pk_bf16_f32 v{Y}, v{Y}, v{Y}")
a(f"buffer_store_short v{Y}, v{Y+10}, s[8:11], 0 offen {opts.get('osc', '').replace('_', ' ')}")
a("M_fin:")
if int(opts.get("xcc", 0)):
    a("s_and_b32 s20, s2, 7\ns_cmp_lg_u32 s20, 0\ns_cbranch_scc1 M_end\ns_getreg_b32 s21, hwreg(HW_REG_XCC_ID)\ns_and_b32 s21, s21, 15\ns_bfe_u32 s20, s65, 0x40018\ns_cmp_eq_u32 s20, s21\ns_cbranch_scc1 M_end")
pad(PADEND)
PROBE = int(opts.get("probe", -1))
if PROBE >= 0:
    a(f"s_cmp_lg_u32 s22, {SW}\ns_cbranch_scc1 M_end")
    if int(opts.get("pwg", -1)) >= 0: a(f"s_cmp_lg_u32 s2, {int(opts.get('pwg'))}\ns_cbranch_scc1 M_end")
    a("s_waitcnt vmcnt(0)")
    stamp()
    a(f"s_waitcnt lgkmcnt(0)\ns_sub_u32 s20, s{76+2*PROBE}, s64\ns_mul_i32 s20, s20, {int(opts.get('gain', 10))}\ns_add_u32 s20, s20, 4000")
    a("PRB:\ns_memrealtime s[32:33]\ns_waitcnt lgkmcnt(0)\ns_sub_u32 s32, s32, s64\ns_cmp_lt_i32 s32, s20\ns_cbranch_scc1 PRB")
elif STAMP:
    a(f"s_cmp_lg_u32 s22, {SW}\ns_cbranch_scc1 M_end")
    a("s_waitcnt vmcnt(0)")
    stamp()
    a("s_waitcnt lgkmcnt(0)")
    n = nst[0]
    if int(opts.get('mt', 0)):
        for k in range(n - 1, -1, -1): a(f"s_sub_u32 s{76+2*k}, s{76+2*k}, s76\ns_mov_b32 s{77+2*k}, 0")
    if CYC == 2:
        n = 13
        for k in range(1, 12): a(f"s_sub_u32 s{76+2*k}, s{76+2*k}, s{78+2*k}\ns_mov_b32 s{77+2*k}, 0")
        a("s_mov_b32 s76, 0\ns_mov_b32 s77, 0\ns_mov_b32 s100, 0\ns_mov_b32 s101, 0")
    elif CYC:
        for k, r in enumerate([92, 93, 94, 95, 90]): a(f"s_mov_b32 s{78+2*k}, s{r}\ns_mov_b32 s{79+2*k}, 0")
        a("s_mov_b32 s76, 0\ns_mov_b32 s77, 0")
    elif PADPRO: a("s_mov_b32 s76, s64\ns_and_b32 s77, s65, 0x7fffffff")
    a(f"s_mul_i32 s31, s2, {8*n}\ns_add_u32 s31, s31, 0x8000000\nv_mov_b32 v2, 0")
    for k in range(n):
        a(f"v_mov_b32 v4, s{76+2*k}\nv_mov_b32 v5, s{77+2*k}\nbuffer_store_dwordx2 v[4:5], v2, s[12:15], s31 offen offset:{8*k}\ns_waitcnt vmcnt(0)")
    print("nstamps", n)
a("M_end:\ns_endpgm")
L = a.lines
errs = hazard.check(L[st:g_end] + L[g_start:], "main")
a.raw(kernel_desc(MAIN, 256, 102, 256))
for e in sorted(set(errs)): print("HAZARD", e)
open(sys.argv[1], "w").write(a.text())
```

```python
import re
def regs_of(op):
    op = op.strip()
    m = re.fullmatch(r"([va])\[(\d+):(\d+)\]", op)
    if m: return {(m.group(1), i) for i in range(int(m.group(2)), int(m.group(3)) + 1)}
    m = re.fullmatch(r"-?([va])(\d+)", op)
    if m: return {(m.group(1), int(m.group(2)))}
    return set()
def sregs_of(op):
    op = op.strip()
    m = re.fullmatch(r"s\[(\d+):(\d+)\]", op)
    if m: return {i for i in range(int(m.group(1)), int(m.group(2)) + 1)}
    m = re.fullmatch(r"s(\d+)", op)
    if m: return {int(m.group(1))}
    if op == "vcc": return {"vcc"}
    return set()
def parse(line):
    line = line.split(";")[0].strip()
    if not line or line.endswith(":") or line.startswith("."): return None
    p = line.split(None, 1)
    mn = p[0]
    ops = []
    if len(p) > 1:
        ops = [x.strip().split(" ")[0] for x in p[1].split(",")]
    return mn, ops
def passes(mn):
    if "32x32x16" in mn or "32x32x32" in mn: return 8
    if "16x16x32" in mn or "16x16x64" in mn: return 4
    if "4x4x4" in mn: return 2
    raise Exception(mn)
def check(lines, name=""):
    ins = []
    for l in lines:
        p = parse(l)
        if p: ins.append((p[0], p[1], l.strip()))
    pos = []; c = 0
    for mn, ops, l in ins:
        pos.append(c)
        c += (int(ops[0], 0) + 1) if mn == "s_nop" else 1
    errs = []
    def info(mn, ops):
        is_mfma = mn.startswith("v_mfma") or mn.startswith("v_smfmac")
        is_valu = mn.startswith("v_") and not is_mfma
        is_mem = mn.startswith(("ds_", "buffer_", "global_"))
        w = set(); r = set(); sw = set(); sr = set()
        if is_mfma:
            w = regs_of(ops[0]); r = set().union(*[regs_of(o) for o in ops[1:]])
            if mn.startswith("v_smfmac"): r |= w
        elif is_valu:
            if mn.startswith("v_cmp") or mn.startswith("v_readfirstlane") or mn.startswith("v_readlane"):
                sw = sregs_of(ops[0]); r = set().union(*[regs_of(o) for o in ops[1:]])
            else:
                w = regs_of(ops[0]); r = set().union(*[regs_of(o) for o in ops[1:]]) if len(ops) > 1 else set()
                if "swap" in mn: w |= regs_of(ops[1]); r |= regs_of(ops[0])
                if mn.startswith(("v_fmac", "v_dot2c")): r |= w
            for o in ops[1:]: sr |= sregs_of(o)
        elif is_mem:
            st = ("write" in mn) or ("store" in mn) or ("atomic" in mn)
            allr = [regs_of(o) for o in ops]
            if st or " lds" in mn: r = set().union(*allr)
            else:
                w = allr[0]; r = set().union(*allr[1:]) if len(allr) > 1 else set()
            for o in ops: sr |= sregs_of(o)
        return is_mfma, is_valu, is_mem, w, r, sw, sr
    I = [info(mn, ops) for mn, ops, l in ins]
    for j in range(len(ins)):
        mj = ins[j][0]; fj, vj, memj, wj, rj, swj, srj = I[j]
        if " lds" in ins[j][2] and memj:
            rj = rj | wj; wj = set()
        for i in range(j - 1, max(-1, j - 24), -1):
            d = pos[j] - pos[i] - ((int(ins[i][1][0], 0) + 1) if ins[i][0] == "s_nop" else 1)
            if d > 20: break
            mi = ins[i][0]; fi, vi, memi, wi, ri, swi, sri = I[i]
            need = 0
            if vi and fj and (wi & rj): need = max(need, 2)
            if fi:
                ps = passes(mi)
                if fj:
                    opsj = ins[j][1]
                    cj = regs_of(opsj[0]) if mj.startswith("v_smfmac") else regs_of(opsj[3])
                    ab = regs_of(opsj[1]) | regs_of(opsj[2]) | (regs_of(opsj[3]) if mj.startswith("v_smfmac") else set())
                    if wi & ab: need = max(need, {2:5,4:8,8:12}[ps])
                    if wi & cj:
                        if wi == cj and passes(mj) == ps: need = max(need, 2 if ps == 2 else 0)
                        else: need = max(need, {2:4,4:6,8:10}[ps])
                    elif wi & wj: need = max(need, {2:4,4:6,8:10}[ps])
                elif (vj or memj) and (wi & (rj | wj)): need = max(need, {2:5,4:8,8:12}[ps])
                if vj:
                    opsi = ins[i][1]
                    ci = regs_of(opsi[0]) if mi.startswith("v_smfmac") else regs_of(opsi[3])
                    if ci & wj: need = max(need, {2:1,4:3,8:7}[ps])
            if vi and vj and (wi & rj):
                if "permlane" in mj or "dpp" in ins[j][2] or "row_" in ins[j][2] or "quad_perm" in ins[j][2]: need = max(need, 2)
                if mj.startswith(("v_readlane", "v_readfirstlane")): need = max(need, 1)
                if mi.startswith(("v_exp", "v_rcp", "v_log", "v_rsq", "v_sqrt")): need = max(need, 1)
                if "sdwa" in mi and "dst_sel:DWORD" not in ins[i][2]: need = max(need, 1)
            if vi and swi:
                if vj and ((swi & srj) or ("vcc" in swi and mj.startswith("v_cndmask") and "vcc" in ins[j][2])): need = max(need, 2)
                if memj and (swi & srj): need = max(need, 5)
            if memi and ("store" in mi) and ("x3" in mi or "x4" in mi) and vj and (ri & wj): need = max(need, 2)
            if mi == "s_mov_b32" and ins[i][1][0] == "m0" and memj and ("addtid" in mj or " lds" in ins[j][2]): need = max(need, 1)
            if d < need: errs.append(f"{name}: need {need} have {d}: [{ins[i][2]}] -> [{ins[j][2]}]")
    return errs

def skip_variants(lines):
    labels = {}
    for i, l in enumerate(lines):
        s = l.strip()
        if s.endswith(":"): labels.setdefault(s[:-1], []).append(i)
    def target(i):
        s = lines[i].strip().split()
        if s and (s[0].startswith("s_cbranch") or s[0] == "s_branch"):
            for t in labels.get(s[1], []):
                if t > i: return t
        return None
    out = []; i = 0
    while i < len(lines):
        out.append(lines[i]); t = target(i)
        i = t if (t is not None and t - i < 400) else i + 1
    yield out
    for i in range(len(lines)):
        t = target(i)
        if t is not None:
            yield lines[max(0, i - 30):i + 1] + lines[t:t + 40]
def check_all(lines, name=""):
    errs = check(lines, name)
    for v in skip_variants(lines): errs += check(v, name + "/skip")
    return errs
```

```python
import sys
from common import *
import hazard
opts = dict(x.split("=") for x in sys.argv[2:])
AHEAD = int(opts.get("ahead", 8)); STAMP = int(opts.get("stamp", 0)); SW = int(opts.get("sw", 3))
SC = "sc1"
NT = "nt" if int(opts.get("nt", 0)) else ""
SST = opts.get("sst", "sc1").replace("_", " ")
SLEEP = int(opts.get("sleep", 1)); RSLEEP = int(opts.get("rsleep", 2))
TG0 = int(opts.get("tg0", 4)); TG1 = int(opts.get("tg1", 122)); RAWAT = int(opts.get("rawat", 40))
WS_BYTES = 268435456
IDX16 = 0; WFR = 4 << 20; PART = 8 << 20; FI = 16 << 20; FW = FI + 16384; F2 = FI + 24576; FE = FI + 65536; FL = int(opts.get('fl', 1))
LDELAY = int(opts.get('ldelay', 0)); M1 = int(opts.get('m1', 1)); M2 = int(opts.get('m2', 2))
STG = 131072; XWL = STG + 25600; XB = 131072; XS = 3200; PADR = 128000
ETAB = 0; WT = 12 << 20; MID = int(opts.get('mid', 2)); TOUCH = int(opts.get('touch', 1))
DOC = """;
; Generated by a script written for this kernel (gen/f21.py)."""
a = Asm()
a.raw(HEADER_COMMENT.rstrip("\n"))
a.raw("; @launch grid=(256,1,1) block=(512,1,1) lds=163840")
a.raw(DOC)
a.raw('.amdgcn_target "amdgcn-amd-amdhsa--gfx950"')
kernel_begin(a, MAIN)
TAB=4; ACC=68; WF=100; POOL=132; GD=196; NGD=32; IX=228; AD=GD+24; SEL=244; SIDX=252
RAW=248; VXW=253; VXR=254; VWIDE=3; VSP=255
Z0=GD+28; Z1=GD+29; Z2=GD+30; Z3=GD+31
VL16=1
T = POOL; U = GD
FIN = 3; POLLW = 7
def rg(b, n): return f"v[{b}:{b+n-1}]"
nst = [0]
SKIP = set(opts.get("skip", "x1,x2,x3,x4,z1,n0,n1").split(","))
def stamp(name=""):
    if STAMP and name not in SKIP and not (int(opts.get("cyc", 0)) and nst[0] >= 6):
        k = nst[0]; nst[0] += 1
        assert k < 13
        a(f"{'s_memtime' if int(opts.get('mt', 0)) else 's_memrealtime'} s[{76+2*k}:{77+2*k}]")
def rnd(r): a(f"v_cvt_pk_bf16_f32 v{r}, v{r}, v{r}\nv_lshlrev_b32 v{r}, 16, v{r}")
PADEND = int(opts.get("padend", 0)); PADPRO = int(opts.get("padpro", 0))
def pad(ticks):
    if not ticks: return
    l = newlab("PAD_")
    a(f"{l}:\ns_memrealtime s[32:33]\ns_waitcnt lgkmcnt(0)\ns_sub_u32 s32, s32, s64\ns_cmp_lt_i32 s32, {ticks}\ns_cbranch_scc1 {l}")
lab = [0]
def newlab(p):
    lab[0] += 1; return f"{p}{lab[0]}"
st = len(a.lines)
a("s_cmp_ge_u32 s2, 256\ns_cbranch_scc1 M_end")
stamp()
if int(opts.get("prio", 0)): a("s_setprio 2")
a("s_load_dwordx16 s[36:51], s[0:1], 0\ns_load_dwordx8 s[52:59], s[0:1], 64\ns_memrealtime s[64:65]")
a("s_getpc_b64 s[32:33]\nC_base:\ns_lshr_b32 s29, s2, 3\ns_mul_i32 s20, s29, 640\nv_lshl_add_u32 v224, v0, 7, s20\nv_min_u32 v224, M_end-C_base, v224")
a("v_cmp_gt_u32 vcc, 5, v0\ns_and_saveexec_b64 s[20:21], vcc\ns_cbranch_execz C_skip\nglobal_load_dword v224, v224, s[32:33]\nC_skip:\ns_mov_b64 exec, -1")
a("v_and_b32 v2, 63, v0\nv_lshrrev_b32 v227, 6, v0\nv_lshlrev_b32 v1, 4, v2\nv_readfirstlane_b32 s22, v227")
a("s_and_b32 s20, s2, 7\ns_lshr_b32 s24, s20, 1\ns_and_b32 s20, s20, 1\ns_lshl_b32 s20, s20, 5\ns_add_u32 s25, s20, s29")
a("s_lshl_b32 s34, s24, 6\ns_add_u32 s34, s34, s25")
a("s_lshl_b32 s35, s22, 8\ns_add_u32 s35, s35, s34")
a(f"v_lshrrev_b32 v{U}, 4, v2\nv_and_b32 v{U+1}, 15, v2\nv_lshlrev_b32 v{U+2}, 15, v{U}\nv_lshl_add_u32 v{U+2}, v{U+1}, 3, v{U+2}\nv_mov_b32 v{U+5}, 0")
a("s_lshr_b32 s20, s35, 5\ns_lshl_b32 s20, s20, 17\ns_bfe_u32 s21, s35, 0x30002\ns_lshl_b32 s21, s21, 12\ns_add_u32 s20, s20, s21\ns_and_b32 s21, s35, 3\ns_lshl_b32 s21, s21, 7\ns_add_u32 s31, s20, s21")
a(f"s_mul_i32 s20, s34, 25600\ns_mul_i32 s21, s22, 3200\ns_add_u32 s20, s20, s21\ns_add_u32 s33, s21, {STG}\ns_mov_b32 m0, s33")
a("s_lshl_b32 s23, s22, 13\ns_add_u32 s30, s23, 8064")
a("s_mov_b32 s18, 3276800\ns_mov_b32 s19, 0x00020000\ns_mov_b32 s6, 6553600\ns_mov_b32 s7, 0x00020000")
a("s_waitcnt lgkmcnt(0)")
stamp()
a("s_mov_b32 s16, s46\ns_and_b32 s17, s47, 0xffff\ns_mov_b32 s4, s36\ns_and_b32 s5, s37, 0xffff")
srd(a, 60, 56, 256)
srd(a, 12, 58, WS_BYTES)
CNT = 163836
if int(opts.get("cas", 1)):
    a("s_cmp_lg_u32 s22, 6\ns_cbranch_scc1 P_n0\ns_cmp_ge_u32 s2, 8\ns_cbranch_scc1 P_n0")
    a(f"v_mov_b32 v{T+4}, s64\nv_mov_b32 v{T+5}, s65\nv_mov_b32 v{T+6}, 0\nv_mov_b32 v{T+7}, 0\nv_or_b32 v{T+5}, 0x80000000, v{T+5}\ns_mov_b64 exec, 1")
    a(f"buffer_atomic_cmpswap_x2 {rg(T+4,4)}, v{T+6}, s[60:63], 0 offen {SC}\ns_mov_b64 exec, -1\ns_nop 1")
else:
    a("s_lshl_b32 s21, s2, 3\ns_add_u32 s21, s21, s22\ns_cmp_lg_u32 s21, 6\ns_cbranch_scc1 P_n0")
    if int(opts.get("xcc", 0)):
        a("s_getreg_b32 s21, hwreg(HW_REG_XCC_ID)\ns_and_b32 s21, s21, 15\ns_lshl_b32 s21, s21, 24\ns_and_b32 s65, s65, 0xffffff\ns_or_b32 s65, s65, s21")
    a(f"v_mov_b32 v{T+4}, s64\nv_mov_b32 v{T+5}, s65\nv_mov_b32 v{T+6}, 0\nv_or_b32 v{T+5}, 0x80000000, v{T+5}\ns_mov_b64 exec, 1")
    a(f"buffer_store_dwordx2 {rg(T+4,2)}, v{T+6}, s[60:63], 0 offen {SC}\ns_mov_b64 exec, -1")
a("P_n0:")
WR_ = U + 8
def w1_loads(sreg=31):
    for j8 in range(8):
        a(f"buffer_load_dwordx2 {rg(WR_+2*j8,2)}, v{U+2}, s[16:19], s{sreg} offen offset:{512*j8} {NT}")
a("s_cmp_lg_u32 s22, 0\ns_cbranch_scc1 P_now1")
w1_loads()
a("P_now1:")
for r in range(3):
    a(f"buffer_load_dwordx4 v1, s[4:7], s20 offen offset:{1024*r} {NT} lds")
a(f"s_mov_b64 exec, 0xff\nbuffer_load_dwordx4 v1, s[4:7], s20 offen offset:3072 {NT} lds\ns_mov_b64 exec, -1")
srd(a, 8, 38, 128000)
a("s_barrier")
if int(opts.get("dw", 1)): a("s_cmp_lg_u32 s22, 5\ns_cbranch_scc1 P_n5\ns_load_dword s74, s[56:57], 192\nP_n5:")
a(f"s_cmp_lt_u32 s22, 4\ns_cbranch_scc1 P_lo\ns_cmp_lg_u32 s22, 4\ns_cbranch_scc1 P_skip")
a(f"v_and_b32 v224, 31, v2\nv_lshlrev_b32 v224, 7, v224\ns_lshl_b32 s21, s29, 12\nbuffer_load_dword v224, v224, s[8:11], s21 offen\ns_branch P_skip")
def nonce_load(): a("s_load_dwordx2 s[64:65], s[56:57], 0")
def nonce_get():
    l = newlab("N_")
    a(f"s_waitcnt lgkmcnt(0)\ns_cmp_lt_i32 s65, 0\ns_cbranch_scc1 {l}ok\ns_mov_b32 s20, 0\nv_mov_b32 v{AD}, 0")
    a(f"{l}:")
    a(f"buffer_load_dwordx2 {rg(AD+2,2)}, v{AD}, s[60:63], 0 offen {SC}\ns_add_u32 s20, s20, 1\ns_waitcnt vmcnt(0)")
    a(f"v_readfirstlane_b32 s64, v{AD+2}\nv_readfirstlane_b32 s65, v{AD+3}\ns_cmp_lt_i32 s65, 0\ns_cbranch_scc1 {l}ok")
    a(f"s_sleep 1\ns_cmp_lt_u32 s20, 0x8000\ns_cbranch_scc1 {l}")
    a(f"{l}ok:")
def flag_store(sreg):
    a(f"v_mov_b32 v{AD}, 0\nv_mov_b32 v{AD+2}, s64\nv_mov_b32 v{AD+3}, s65\ns_mov_b64 exec, 1")
    a(f"buffer_store_dwordx2 {rg(AD+2,2)}, v{AD}, s[12:15], s{sreg} offen {SC}\ns_mov_b64 exec, -1")
def w1_process(PR=WF, RB=WF+16, sreg=26):
    for c in range(4):
        for d in range(4):
            a(f"v_perm_b32 v{PR+4*c+d}, v{WR_+2*(2*d+1)+(c>>1)}, v{WR_+2*(2*d)+(c>>1)}, s{66+(c&1)}")
    for c in range(4):
        a(f"ds_write_b128 v{U+3}, {rg(PR+4*c,4)} offset:{(c&1)*128 + (c>>1)*16}")
    a("s_waitcnt lgkmcnt(0)")
    for r in range(4):
        a(f"ds_read_b128 {rg(RB+4*r,4)}, v{U+4} offset:{r*4*272}")
    for r in range(4):
        a(f"s_waitcnt lgkmcnt({3-r})\nbuffer_store_dwordx4 {rg(RB+4*r,4)}, v{U+5}, s[12:15], s{sreg} offen {SC}\ns_add_u32 s{sreg}, s{sreg}, {4*65536}")
a("P_lo:")
a("s_cmp_ge_u32 s35, 800\ns_cbranch_scc1 P_skip")
a("s_mov_b32 s66, 0x05040100\ns_mov_b32 s67, 0x07060302\ns_add_u32 s21, s23, 0x10000")
a(f"v_mul_u32_u24 v{U+3}, 272, v{U+1}\nv_lshl_add_u32 v{U+3}, v{U}, 5, v{U+3}\nv_add_u32 v{U+3}, s21, v{U+3}")
a(f"v_mul_u32_u24 v{U+4}, 272, v{U}\nv_lshl_add_u32 v{U+4}, v{U+1}, 4, v{U+4}\nv_add_u32 v{U+4}, s21, v{U+4}")
a(f"v_lshlrev_b32 v{U+5}, 16, v{U}\nv_bfe_u32 v{U+6}, v2, 3, 1\nv_lshl_add_u32 v{U+5}, v{U+6}, 12, v{U+5}\nv_and_b32 v{U+6}, 7, v2\nv_lshl_add_u32 v{U+5}, v{U+6}, 4, v{U+5}")
a("s_and_b32 s26, s35, 3\ns_lshl_b32 s26, s26, 20\ns_lshr_b32 s21, s35, 7\ns_lshl_b32 s21, s21, 13\ns_add_u32 s26, s26, s21\ns_bfe_u32 s21, s35, 0x30002\ns_lshl_b32 s21, s21, 9\ns_add_u32 s26, s26, s21")
a(f"s_bfe_u32 s21, s35, 0x20005\ns_lshl_b32 s21, s21, 7\ns_add_u32 s26, s26, s21\ns_add_u32 s26, s26, {WFR}")
a(f"s_and_b32 s75, s35, 3\ns_lshl_b32 s75, s75, 11\ns_bfe_u32 s21, s35, 0x20003\ns_lshl_b32 s21, s21, 9\ns_add_u32 s75, s75, s21\ns_lshr_b32 s21, s35, 5\ns_lshl_b32 s21, s21, 4\ns_add_u32 s75, s75, s21\ns_bfe_u32 s21, s35, 0x10002\ns_lshl_b32 s21, s21, 3\ns_add_u32 s75, s75, s21\ns_add_u32 s75, s75, {FW}")
a("s_cmp_lg_u32 s22, 0\ns_cbranch_scc1 P_skip")
H1, H2 = (3, 4) if FL else (0, 0)
a(f"s_and_b32 s75, s35, 3\ns_lshl_b32 s75, s75, {10+H1}\ns_lshr_b32 s21, s35, 7\ns_lshl_b32 s21, s21, {9+H1}\ns_add_u32 s75, s75, s21\ns_bfe_u32 s21, s35, 0x20003\ns_lshl_b32 s21, s21, {7+H1}\ns_add_u32 s75, s75, s21")
a(f"s_bfe_u32 s21, s35, 0x20005\ns_lshl_b32 s21, s21, {4+H2}\ns_add_u32 s75, s75, s21\ns_bfe_u32 s21, s35, 0x10002\ns_lshl_b32 s21, s21, {3+H2}\ns_add_u32 s75, s75, s21\ns_add_u32 s75, s75, {FE}")
a("s_waitcnt vmcnt(4)")
w1_process()
FF = int(opts.get("ff", 0))
if FF: nonce_load()
a("P_skip:")
stamp("x2")
a(f"v_and_b32 v{T+4}, 7, v2\nv_lshrrev_b32 v{T+5}, 3, v2")
a(f"s_and_b32 s20, s34, 1\ns_lshl_b32 s20, s20, 3\nv_add_u32 v{T+6}, s20, v{T+4}")
a(f"v_mul_u32_u24 v{T+7}, 400, v{T+4}\nv_add_u32 v{T+7}, s33, v{T+7}")
a(f"v_and_b32 v{T+8}, 1, v{T+5}\nv_lshrrev_b32 v{T+9}, 1, v{T+5}")
a(f"v_lshlrev_b32 v{T+10}, 3, v{T+8}\nv_xor_b32 v{T+10}, v{T+10}, v{T+6}")
a(f"v_lshl_add_u32 v{T+11}, v{T+9}, 6, v{T+7}")
a(f"v_lshlrev_b32 v{T+9}, 14, v{T+9}\nv_lshl_add_u32 v{T+9}, v{T+8}, 10, v{T+9}\nv_lshl_add_u32 v{T+9}, v{T+4}, 4, v{T+9}")
SL, LA_, RD, PK, SS = T+12, T+20, T+28, T+44, T+52
for u in range(8):
    a(f"v_xor_b32 v{SL+u}, {u}, v{T+10}")
    a(f"v_lshl_add_u32 v{LA_+u}, v{SL+u}, 2, v{T+11}")
a(f"v_and_b32 v{T+10}, 3, v{T+4}")
for u in range(4):
    a(f"v_xor_b32 v{SS+u}, {u}, v{T+10}\nv_lshl_add_u32 v{SS+4+u}, v{SS+u}, 2, v{T+7}\nv_add_u32 v{SS+u}, 16384, v{SS+u}")
a("s_lshr_b32 s27, s34, 3\ns_mul_i32 s27, s27, 102400\ns_lshl_b32 s20, s22, 11\ns_add_u32 s28, s27, s20\ns_and_b32 s21, s34, 7\ns_lshl_b32 s20, s21, 7\ns_add_u32 s28, s28, s20")
a(f"s_lshl_b32 s20, s22, 9\ns_add_u32 s27, s27, s20\ns_lshl_b32 s20, s21, 6\ns_add_u32 s27, s27, s20\ns_add_u32 s27, s27, 98304\nv_lshlrev_b32 v{T+8}, 3, v{T+4}")
TD = RAW
a(f"v_xor_b32 v{TD+1}, v{T+4}, v{U}\nv_lshlrev_b32 v{TD}, 7, v{T+5}\nv_lshl_add_u32 v{TD}, v{TD+1}, 4, v{TD}\nv_xor_b32 v{TD+1}, 64, v{TD}")
stamp("x1")
PRE = int(opts.get("pre", 2)); PDEL = int(opts.get("pdel", 0))
if PRE:
    a("s_cmp_lt_u32 s22, 4\ns_cbranch_scc1 P_np")
    if PDEL: a(f"s_sleep {PDEL}")
    for mt in range(4 - PRE, 4):
        a(f"s_add_u32 s21, s23, {4096*(mt & 1) + 65536*(mt >> 1)}\ns_mov_b32 m0, s21\ns_nop 0")
        for x in range(4): a(f"buffer_load_dwordx4 v{TD+(x&1)}, s[8:11], s21 offen offset:{1024*x} lds")
    a(f"s_waitcnt vmcnt({4*PRE})\ns_branch P_c9")
    a("P_np:")
def e_flag(n):
    a(f"v_mov_b32 v{AD}, s64\nv_mov_b32 v{AD+1}, s65\nv_mov_b32 v{AD+2}, s64\nv_mov_b32 v{AD+3}, s65\ns_mov_b64 exec, 0xff\ns_waitcnt vmcnt({n})")
    a(f"buffer_store_dwordx4 {rg(AD,4)}, v1, s[12:15], s75 offen {SC}\ns_mov_b64 exec, -1")
if FF:
    a("s_cmp_lg_u32 s22, 0\ns_cbranch_scc1 P_c0")
    nonce_get()
    e_flag(0)
    a("s_mov_b32 s35, 4097\ns_branch P_c9\nP_c0:")
a(f"s_cmp_eq_u32 s22, 0\ns_cbranch_scc1 P_c4\ns_cmp_eq_u32 s22, 4\ns_cbranch_scc1 P_c1")
a("s_waitcnt vmcnt(0)\nP_c1:\ns_waitcnt vmcnt(1)\nP_c4:\ns_waitcnt vmcnt(4)\nP_c9:")
stamp()
for u in range(8): a(f"ds_read_b32 v{RD+u}, v{LA_+u}")
for u in range(8): a(f"ds_read_b32 v{RD+8+u}, v{LA_+u} offset:256")
for u in range(4): a(f"ds_read_b32 v{SS+8+u}, v{SS+4+u} offset:384")
def conv(k):
    for u in range(8):
        a(f"v_lshl_add_u32 v{RD+8*k+u}, v{RD+8*k+u}, 4, v{SL+u}")
    for d in range(4):
        a(f"v_lshl_or_b32 v{PK+4*k+d}, v{RD+8*k+2*d+1}, 16, v{RD+8*k+2*d}")
a("s_waitcnt lgkmcnt(12)")
conv(0)
a(f"buffer_store_dwordx4 {rg(PK,4)}, v{T+9}, s[12:15], s28 offen {SC}")
a("s_waitcnt lgkmcnt(0)")
nonce_load()
conv(1)
for u in range(4): a(f"v_lshrrev_b32 v{SS+4+u}, 1, v{SS+8+u}\nv_lshl_add_u32 v{SS+8+u}, v{SS+8+u}, 2, v{SS+u}\nv_and_b32 v{SS+4+u}, 2, v{SS+4+u}\nv_xor_b32 v{SS+8+u}, v{SS+8+u}, v{SS+4+u}")
a(f"v_lshl_or_b32 v{SS+4}, v{SS+9}, 16, v{SS+8}\nv_lshl_or_b32 v{SS+5}, v{SS+11}, 16, v{SS+10}")
a(f"s_add_u32 s28, s28, 65536\ns_mov_b32 exec_hi, 0\nbuffer_store_dwordx4 {rg(PK+4,4)}, v{T+9}, s[12:15], s28 offen {SC}")
a(f"s_mov_b64 exec, 0xff\nbuffer_store_dwordx2 {rg(SS+4,2)}, v{T+8}, s[12:15], s27 offen {SC}\ns_mov_b64 exec, -1")
stamp("x3")
BA = int(opts.get("ba", 0))
if not FF:
    a("s_cmp_lg_u32 s22, 0\ns_cbranch_scc1 P_c")
    if int(opts.get("ackfirst", 0)):
        a("s_waitcnt vmcnt(3)")
        stamp("n0")
    nonce_get()
    stamp("n1")
    if FL:
        a(f"v_mov_b32 v{AD}, s64\nv_mov_b32 v{AD+1}, s65\nv_mov_b32 v{AD+2}, s64\nv_mov_b32 v{AD+3}, s65\ns_mov_b64 exec, 0xff\ns_waitcnt vmcnt(3)")
        a(f"buffer_store_dwordx4 {rg(AD,4)}, v1, s[12:15], s75 offen {SC}\ns_mov_b64 exec, -1")
    else:
        a("s_waitcnt vmcnt(3)")
        flag_store(75)
    a("s_mov_b32 s35, 4096")
a("P_c:")
if int(opts.get("nounit", 0)): a("s_mov_b32 s35, 4097")
stamp("x4")
a("s_mov_b32 s36, s31\ns_mov_b32 s37, s26\ns_mov_b32 s38, s75")
PRIO = int(opts.get("prio", 0))
def table_dma(mt):
    off = 4096*(mt & 1) + 65536*(mt >> 1)
    a(f"s_add_u32 s27, s23, {off}\ns_mov_b32 m0, s27\n{'s_setprio 0' if PRIO else 's_nop 0'}")
    for x in range(4):
        a(f"buffer_load_dwordx4 v{TD+(x&1)}, s[8:11], {'0' if int(opts.get('tabsame', 0)) else 's27'} offen offset:{1024*x} lds")
    if PRIO: a("s_setprio 2")
for mt in range(M1): table_dma(mt)
stamp("m1")
a("s_lshl_b32 s20, s25, 3\ns_add_u32 s48, s48, s20\ns_addc_u32 s49, s49, 0\ns_add_u32 s50, s50, s20\ns_addc_u32 s51, s51, 0")
nonce_get()
a(f"s_lshr_b32 s31, s34, 3\ns_lshl_b32 s31, s31, 9\ns_and_b32 s20, s34, 7\ns_lshl_b32 s20, s20, 6\ns_add_u32 s31, s31, s20\ns_lshl_b32 s20, s22, 3\ns_add_u32 s31, s31, s20\ns_add_u32 s31, s31, {FI}")
NL = 4*M1
a(f"s_cmp_eq_u32 s35, 4096\ns_cbranch_scc1 P_a1\ns_waitcnt vmcnt({NL})\nP_a1:\ns_waitcnt vmcnt({NL+1})")
stamp()
flag_store(31)
if int(opts.get("spf", 1)):
    a("s_lshr_b32 s20, s22, 2\ns_add_u32 s20, s20, 1\ns_lshl_b32 s20, s20, 8\ns_add_u32 s20, s20, s34")
    a("s_lshr_b32 s21, s20, 5\ns_lshl_b32 s21, s21, 17\ns_bfe_u32 s39, s20, 0x30002\ns_lshl_b32 s39, s39, 12\ns_add_u32 s21, s21, s39\ns_and_b32 s39, s20, 3\ns_lshl_b32 s39, s39, 7\ns_add_u32 s21, s21, s39")
    a("s_and_b32 s39, s22, 3\ns_lshl_b32 s39, s39, 10\ns_add_u32 s21, s21, s39\ns_add_u32 s46, s46, s21\ns_addc_u32 s47, s47, 0")
    for f4 in range(4):
        for r in range(2): a(f"s_load_dword s3, s[46:47], {f4*32768 + r*512}")
XM = int(opts.get("xm", 1))
for mt in range(M1, XM): table_dma(mt)
PSC = opts.get("psc", "sc1").replace("_", " ")
def poll_load(sreg, tmp, addr): a(f"buffer_load_dwordx2 {rg(tmp,2)}, v{addr}, s[12:15], s{sreg} offen {PSC}")
def poll_check(sreg, tmp, addr, first_wait=0, sleep=SLEEP):
    l = newlab("Q_")
    a(f"s_mov_b32 s20, 0\ns_waitcnt vmcnt({first_wait})")
    a(f"{l}:")
    a(f"v_cmp_ne_u64 vcc, s[64:65], {rg(tmp,2)}\ns_cbranch_vccz {l}ok")
    a(f"s_sleep {sleep}")
    poll_load(sreg, tmp, addr)
    a(f"s_add_u32 s20, s20, 1\ns_waitcnt vmcnt(0)\ns_cmp_lt_u32 s20, 0x8000\ns_cbranch_scc1 {l}")
    a(f"{l}ok:")
a(f"s_lshr_b32 s21, s22, 2\ns_xor_b32 s21, s21, 1\ns_lshr_b32 s68, s25, 4\ns_lshl_b32 s68, s68, {10+H1}\ns_lshl_b32 s20, s21, {9+H1}\ns_add_u32 s68, s68, s20\ns_and_b32 s20, s22, 3\ns_lshl_b32 s20, s20, {7+H1}\ns_add_u32 s68, s68, s20\ns_add_u32 s68, s68, {FE}")
a(f"s_lshl_b32 s69, s25, 16\ns_lshl_b32 s21, s21, 13\ns_add_u32 s69, s69, s21\ns_lshl_b32 s20, s20, {3-H1}\ns_add_u32 s69, s69, s20\ns_add_u32 s69, s69, {WFR}\ns_add_u32 s74, s69, 4096")
a(f"v_and_b32 v{IX+8}, 7, v2\nv_lshlrev_b32 v{IX+8}, {3+H2}, v{IX+8}")
def x_load(): a(f"buffer_load_dwordx4 {rg(IX,4)}, v{VL16}, s[12:15], s69 offen {SC}\nbuffer_load_dwordx4 {rg(IX+4,4)}, v{VL16}, s[12:15], s74 offen {SC}")
def x_write(): a(f"ds_write_b128 v{VXW}, {rg(IX,4)} offset:1024\nds_write_b128 v{VXW}, {rg(IX+4,4)} offset:2048")
XA = int(opts.get("xa", 2))
X0_ = max(M1, XM)
XA = min(XA, 4 - PRE - X0_)
a(f"s_cmp_lt_u32 s22, 4\ns_cbranch_scc1 P_g")
poll_load(68, IX+10, IX+8)
for mt in range(X0_, X0_ + XA): table_dma(mt)
poll_check(68, IX+10, IX+8, 4*XA)
stamp("z1")
x_load()
for mt in range(X0_ + XA, 4 - PRE): table_dma(mt)
a("s_load_dwordx2 s[70:71], s[48:49], 0\ns_load_dwordx2 s[72:73], s[50:51], 0\ns_branch P_e")
a("P_g:")
for mt in range(X0_, 4): table_dma(mt)
a("s_load_dwordx2 s[70:71], s[48:49], 0\ns_load_dwordx2 s[72:73], s[50:51], 0")
a("P_e:")
FR = T + 16
a(f"v_bfe_u32 v{T+2}, v2, 4, 1\nv_lshlrev_b32 v{T+2}, 1, v{T+2}\nv_bfe_u32 v{T}, v2, 2, 2\nv_mov_b32 v{T+1}, 0x3f80")
a(f"v_cmp_eq_u32 vcc, v{T+2}, v{T}\nv_add_u32 v{T+2}, 1, v{T+2}\ns_nop 0\nv_cndmask_b32 v{SEL}, 0, v{T+1}, vcc\nv_cmp_eq_u32 vcc, v{T+2}, v{T}")
a(f"v_mov_b32 v{SEL+1}, v{SEL}\nv_and_b32 v{T+2}, 3, v2\nv_cndmask_b32 v{SEL+2}, 0, v{T+1}, vcc\nv_mul_u32_u24 v{SIDX}, 0x5555, v{T+2}\nv_mov_b32 v{SEL+3}, v{SEL+2}")
a(f"v_and_b32 v227, 24, v2\nv_and_b32 v{T}, 3, v2\nv_lshl_add_u32 v227, v{T}, 1, v227\nv_bfe_u32 v{T}, v2, 2, 1\nv_add_u32 v227, v227, v{T}")
a(f"v_lshrrev_b32 v{T}, 5, v2\nv_lshlrev_b32 v{VSP}, 5, v227\nv_bfe_u32 v{T+1}, v2, 1, 1\nv_xor_b32 v{T+1}, v{T+1}, v{T}\nv_lshl_add_u32 v{VSP}, v{T+1}, 4, v{VSP}\ns_lshl_b32 s31, s22, 11\ns_add_u32 s31, s31, 131072\nv_add_u32 v{VSP}, s31, v{VSP}")
a(f"v_bfe_u32 v{T+1}, v227, 1, 3\nv_xor_b32 v{T+1}, v{T+1}, v{T}\nv_lshlrev_b32 v227, 7, v227\nv_lshl_add_u32 v227, v{T+1}, 4, v227\nv_add_u32 v{FR}, s23, v227")
for ks in range(1, 4): a(f"v_xor_b32 v{FR+ks}, {32*ks}, v{FR}")
for ks in range(4): a(f"v_add_u32 v{FR+4+ks}, 0x10000, v{FR+ks}")
a(f"v_add_u32 v{VXR}, {XB}, v1\nv_add_u32 v{VXW}, s33, v1")
a(f"v_lshrrev_b32 v0, 3, v2\nv_lshlrev_b32 v0, 14, v0\nv_lshl_add_u32 v0, v{T+4}, 4, v0")
a("s_lshl_b32 s28, s24, 3\ns_add_u32 s28, s28, s22\ns_mul_i32 s28, s28, 102400")
a(f"s_lshl_b32 s75, s24, 6\ns_lshl_b32 s33, s22, 3\ns_add_u32 s75, s75, s33\ns_lshl_b32 s75, s75, 6\ns_add_u32 s75, s75, s25\ns_lshl_b32 s75, s75, 8\ns_add_u32 s75, s75, {PART}")
a(f"v_lshlrev_b32 v{AD}, 3, v2\nv_min_u32 v{AD+1}, 33, v2\nv_lshlrev_b32 v{AD+1}, 3, v{AD+1}")
a("s_cmp_lt_u32 s22, 4\ns_cbranch_scc1 P_h")
a(f"s_waitcnt vmcnt({4*(4-PRE-X0_-XA)})")
x_write()
a("P_h:")
a(f"s_lshr_b32 s29, s25, 4\ns_lshl_b32 s29, s29, 11\ns_and_b32 s20, s22, 3\ns_lshl_b32 s20, s20, 9\ns_add_u32 s29, s29, s20\ns_add_u32 s29, s29, {FW + 128}")
a(f"s_lshl_b32 s31, s24, 3\ns_add_u32 s31, s31, s22\ns_lshl_b32 s31, s31, 9\ns_add_u32 s31, s31, {FI}")
a(f"s_lshl_b32 s26, s25, 16\ns_lshl_b32 s20, s22, 10\ns_add_u32 s26, s26, s20\ns_add_u32 s26, s26, {WFR + 16384}")
a("s_waitcnt vmcnt(0)")
stamp()
for mt in range(4):
    for ks in range(4):
        a(f"ds_read_b128 {rg(TAB+16*mt+4*ks,4)}, v{FR+4*(mt>>1)+ks} offset:{4096*(mt&1)}")
a(f"v_mov_b32 v224, {CNT}\nv_mov_b32 v225, 0\nds_write_b32 v224, v225\nv_mov_b32 v225, 1")
a("s_setprio 0\ns_waitcnt lgkmcnt(0)\ns_barrier")
stamp()
def wf_read(off=0):
    for x in range(8):
        a(f"ds_read_b128 {rg(WF+4*x,4)}, v{VXR} offset:{XS*x + off}")
def wf_read_x(base):
    for x in (0, 4, 1, 5, 2, 6, 3, 7):
        a(f"ds_read_b128 {rg(WF+4*x,4)}, v{VXR} offset:{XS*(base + (x&3)) + 1024 + 1024*(x>>2)}")
wf_read_x(4)
poll_load(68, IX+10, IX+8)
poll_load(31, AD+2, AD)
UAT = int(opts.get("uat", 1))
if UAT == 0:
    a("s_cmp_ge_u32 s35, 800\ns_cbranch_scc1 P_u0")
    w1_loads(36)
    a("P_u0:")
def tg_mfma(mt, ks, e, d):
    c = "0" if ks == 0 else rg(d, 16)
    return f"v_mfma_f32_32x32x16_bf16 {rg(d,16)}, {rg(TAB+16*mt+4*ks,4)}, {rg(WF+16*e+4*ks,4)}, {c}"
D0, D1 = POOL+32, POOL+48
def tgen_groups():
    g = []
    for mt in range(3):
        for ks in range(4):
            for e in range(2):
                g.append([tg_mfma(mt, ks, e, D0 if e == 0 else D1)])
        g.extend([[] for _ in range(int(opts.get("gap", 3)))])
        for r in range(0, 16, 4):
            g.append([f"v_cvt_pk_bf16_f32 v{POOL+16*mt+r+x}, v{D0+r+x}, v{D1+r+x}" for x in range(4)])
    for ks in range(4): g.append([tg_mfma(3, ks, 0, D1)])
    for ks in range(4): g.append([tg_mfma(3, ks, 1, WF)])
    g.extend([[] for _ in range(int(opts.get("gap", 3)))])
    for r in range(0, 16, 4):
        g.append([f"v_cvt_pk_bf16_f32 v{D1+r+x}, v{D1+r+x}, v{WF+r+x}" for x in range(4)])
    return g
def wr_op(r):
    off = r*256 if r < 32 else 57472 + (r-32)*256
    pre = ["s_mov_b32 m0, s30", "s_nop 0"] if r == 32 else []
    return pre + [f"ds_write_addtid_b32 v{POOL+r} offset:{off}"]
a("s_mov_b32 m0, s23")
TP = int(opts.get("tp", 0)); TO = int(opts.get("to", 1))
def pro_d(mt): return [(ACC, ACC+16), (D0, D1), (ACC, ACC+16), (D1, GD)][mt]
pend = []; held = []; UPAT = int(opts.get("upat", 3))
IXAT = int(opts.get("ixat", 2))
for mt in range(4):
    d0, d1 = pro_d(mt)
    seq = [(ks, e) for ks in range(4) for e in range(2)]
    if mt == 1:
        a("s_cmp_ge_u32 s22, 4\ns_cbranch_scc1 P_x1")
        if UAT == 0: a("s_cmp_lt_u32 s35, 800\ns_cbranch_scc1 P_u1\ns_waitcnt vmcnt(1)\nP_u1:")
        poll_check(68, IX+10, IX+8, 9 if UAT == 0 else 1)
        x_load()
        if UAT == 1:
            a("s_cmp_ge_u32 s35, 800\ns_cbranch_scc1 P_x1")
            w1_loads(36)
        a("P_x1:")
    if mt == IXAT:
        a("s_cmp_lt_u32 s35, 800\ns_cbranch_scc1 P_u2\ns_waitcnt vmcnt(0)\nP_u2:")
        poll_check(31, AD+2, AD, 8)
        stamp("y1")
        a("s_cmp_ge_u32 s22, 4\ns_cbranch_scc1 P_x2")
        x_write()
        a("s_mov_b64 exec, 1\nds_add_u32 v224, v225\ns_mov_b64 exec, -1")
        a("P_x2:")
        a("s_lshl_b32 s68, s70, 16\ns_and_b32 s69, s70, 0xffff0000\ns_lshl_b32 s70, s71, 16\ns_and_b32 s71, s71, 0xffff0000")
        for x in range(4):
            a(f"buffer_load_dwordx4 {rg(IX+4*x,4)}, v{VL16}, s[12:15], s28 offen offset:{1024*x} {SC}")
        a("s_add_u32 s28, s28, 4096\ns_mov_b32 s21, 0")
        a(f"s_cmp_lg_u32 s22, {FIN}\ns_cbranch_scc1 P_f")
        srd(a, 4, 40, 16384*26)
        a(f"s_mov_b32 m0, {XWL}\ns_mul_i32 s20, s34, 1664\nbuffer_load_dwordx4 v1, s[4:7], s20 offen lds\nbuffer_load_dwordx4 v1, s[4:7], s20 offen offset:1024 lds")
        srd(a, 4, 44, 2)
        a(f"s_mov_b32 m0, {XWL+2048}\nv_mov_b32 v{RAW+3}, 0\nbuffer_load_ushort v{RAW+3}, s[4:7], 0 offen lds")
        srd(a, 4, 52, 2)
        a(f"s_mov_b32 m0, {XWL+2304}\ns_nop 0\nbuffer_load_ushort v{RAW+3}, s[4:7], 0 offen lds")
        srd(a, 4, 42, 26)
        a(f"v_lshlrev_b32 v{RAW+2}, 1, v2\nbuffer_load_ushort v{VWIDE}, v{RAW+2}, s[4:7], 0 offen\ns_mov_b32 m0, s23")
        a("P_f:")
    if mt == UPAT:
        a(f"s_cmp_ge_u32 s35, 800\ns_cbranch_scc1 P_k2\ns_cmp_eq_u32 s22, {FIN}\ns_cbranch_scc1 P_k\ns_waitcnt vmcnt(4)\nP_k:\ns_waitcnt vmcnt(9)")
        w1_process(POOL, WR_, 37)
        a("P_k2:")
    if TP == 1: a(f"s_setprio {3 - mt}")
    for n, (ks, e) in enumerate(seq):
        if mt == 0: a(f"s_waitcnt lgkmcnt({7 - n})")
        a(tg_mfma(mt, ks, e, d0 if e == 0 else d1))
        take = (len(pend) + (7 - n)) // (8 - n)
        for o in pend[:take]: a(o)
        pend = pend[take:]
    assert not pend
    cvs = [f"v_cvt_pk_bf16_f32 v{POOL+16*mt+r}, v{d0+r}, v{d1+r}" for r in range(16)]
    wrs = [wr_op(16*mt + r) for r in range(16)]
    HOLD = int(opts.get("hold", 10)) if mt else 0
    body = []
    for r in range(16):
        body.append(cvs[r])
        if 1 <= r <= 16 - HOLD and mt < 3: body.extend(wrs[r-1])
        if r == 15 and HOLD == 0 and mt < 3: body.extend(wrs[15])
        if 1 <= r and mt == 3: body.extend(wrs[r-1])
    if mt == 3: body.extend(wrs[15])
    pend = (held if held else ["s_nop 5", "s_nop 5"]) + body
    held = [o for w in wrs[16 - HOLD:] for o in w] if mt < 3 and HOLD else []
    if mt == 2:
        for s in range(8):
            for c in range(4): pend.append(f"v_mov_b32 v{ACC+4*s+c}, s{68+c}")
stamp("y2")
a("s_mov_b32 s20, 0\nP_cnt:\nds_read_b32 v225, v224\ns_add_u32 s20, s20, 1\ns_waitcnt lgkmcnt(0)\nv_readfirstlane_b32 s27, v225\ns_cmp_ge_u32 s27, 4\ns_cbranch_scc1 P_cok\ns_cmp_lt_u32 s20, 0x100000\ns_cbranch_scc1 P_cnt\nP_cok:")
for o in pend: a(o)
wf_read_x(0)
a(f"s_cmp_lt_u32 s35, 800\ns_cbranch_scc1 P_m7\ns_cmp_eq_u32 s22, {FIN}\ns_cbranch_scc1 P_m7\ns_waitcnt vmcnt(3)\nP_m7:\ns_waitcnt vmcnt(7)")
stamp()

LA = int(opts.get("la", 1)); PAT = opts.get("pat", "SACMRL"); GP = int(opts.get("gp", 1))
RING = 8 * (LA + 1); DX = GD + 16
assert RING <= 16
assert LA == 1
def pre_ops():
    ops = [f"v_lshlrev_b32_sdwa v{GD + 2*x}, 3, v{IX + x//2} dst_sel:DWORD dst_unused:UNUSED_PAD src0_sel:DWORD src1_sel:WORD_{x&1}" for x in range(8)]
    return ops + [f"buffer_load_dwordx4 {rg(IX,4)}, v{VL16}, s[12:15], s28 offen {SC}"]
def gather_phase(nunits, mf, cv, extra, acc_of, head=None, tail=None):
    NB = nunits * 2
    log = [("ix", u) for u in range(4)]
    def vm_wait(tag):
        idx = len(log) - 1 - log[::-1].index(tag)
        a(f"s_waitcnt vmcnt({len(log) - 1 - idx})")
    def A(b):
        if b >= NB: return
        u = b // 2
        if b % 2 == 0: vm_wait(("ix", u))
        for x in range(4):
            d = IX + 4*(u & 3) + 2*(b & 1) + x//2
            a(f"v_lshlrev_b32_sdwa v{GD + (8*b) % RING + 2*x}, 3, v{d} dst_sel:DWORD dst_unused:UNUSED_PAD src0_sel:DWORD src1_sel:WORD_{x&1}")
    def R(b, lo=0, hi=4):
        if b >= NB: return
        for x in range(lo, hi):
            q = GD + (8*b) % RING + 2*x
            a(f"ds_read_b64 {rg(q,2)}, v{q}")
    def L(b):
        u = b // 2
        if b >= NB or b % 2 == 0 or not (nunits == 16 or u + 4 < nunits): return
        if u + 4 >= 16 and nunits == 20:
            for h in range(2):
                a(f"buffer_load_dwordx2 {rg(IX+4*(u&3)+2*h,2)}, v{VXW}, s[12:15], s28 offen offset:{1024*(u&3)+512*h} {SC}")
                log.append(("ix", u + 4))
        else:
            a(f"buffer_load_dwordx4 {rg(IX+4*(u&3),4)}, v{VL16}, s[12:15], s28 offen offset:{1024*(u&3)} {SC}")
            log.append(("ix", u + 4))
        if u & 3 == 3: a("s_add_u32 s28, s28, 4096")
    def emit(ops):
        for o in ops:
            if isinstance(o, tuple):
                a(o[0]); log.append(o[1])
            elif o == "WAITRAW": vm_wait(("raw", 0))
            elif o == "WCHECK":
                vm_wait(("wfl", 0))
                a(f"v_cmp_ne_u64 vcc, s[64:65], {rg(RAW,2)}\n{'s_nop 0' if int(opts.get('nochk', 0)) else 's_cbranch_vccnz W_slow'}\nW_back:")
            else: a(o)
    if head:
        log.append(("ix", 4))
        head()
        for b in range(LA + 1): R(b)
    else:
        for b in range(LA + 1): A(b); R(b); L(b)
    for b in range(NB):
        if GP and b % (NB // 4) == 0 and b: a(f"s_setprio {3 - b // (NB // 4)}")
        nb = b + LA + 1
        for ch in PAT:
            if ch == "S":
                a(f"s_waitcnt lgkmcnt({min(NB, nb) * 4 - 4*(b+1)})")
                if tail and b == NB - 1: tail()
                a(f"v_smfmac_f32_16x16x64_bf16 {rg(ACC+4*acc_of(b),4)}, {rg(SEL,4)}, {rg(GD + (8*b) % RING, 8)}, v{SIDX}")
            elif ch == "A": A(nb)
            elif ch == "R": R(nb)
            elif ch == "r": R(nb, 0, 2)
            elif ch == "q": R(nb, 2, 4)
            elif ch == "M": emit(mf.get(b, []))
            elif ch == "C": emit(cv.get(b, []))
            elif ch == "L": L(nb)
        emit(extra.get(b, []))
    return log, vm_wait
CYC = int(opts.get("cyc", 0))
def cyc(acc):
    if CYC == 2:
        if acc in (95, 93, 90):
            for k in range(12, 1, -1): a(f"s_mov_b32 s{76+2*k}, s{74+2*k}")
            a("s_memtime s[78:79]\ns_waitcnt lgkmcnt(0)")
    elif CYC: a(f"s_memtime s[98:99]\ns_waitcnt lgkmcnt(0)\ns_sub_u32 s100, s98, s96\ns_add_u32 s{acc}, s{acc}, s100\ns_mov_b32 s96, s98")
pad(PADPRO)
if CYC == 1: a("s_memtime s[96:97]\ns_waitcnt lgkmcnt(0)\ns_mov_b32 s92, 0\ns_mov_b32 s93, 0\ns_mov_b32 s94, 0\ns_mov_b32 s95, 0\ns_mov_b32 s90, 0")
for o in pre_ops(): a(o)
if int(opts.get("ga", 0)): a.raw(f"    .p2alignl {int(opts.get('ga'))}, 0xbf800000")
if int(opts.get("gs4", 0)): a("s_nop 0")
a("L_G:")
g_start = len(a.lines)
DD = [(POOL+32, POOL+48), (POOL+16, DX), (POOL+32, POOL+48), (DX, WF)]
mf = {}; cv = {}
for mt in range(4):
    seq = [(ks, e) for ks in range(4) for e in range(2)] if mt < 3 else [(ks, 0) for ks in range(4)] + [(ks, 1) for ks in range(4)]
    for n, (ks, e) in enumerate(seq): mf[8*mt + n] = [tg_mfma(mt, ks, e, DD[mt][e])]
    if mt < 3:
        for r in range(16):
            cv.setdefault(8*mt + 9 + (r * 7) // 16, []).append(f"v_cvt_pk_bf16_f32 v{POOL+16*mt+r}, v{DD[mt][0]+r}, v{DD[mt][1]+r}")
WFE = int(opts.get("wfe", 0))
if True:
    ml = [mf[k][0] for k in range(32)]
    mf = {}; cv = {}
    for mt in range(4):
        for n in range(8): mf.setdefault(7*mt + (n * 7) // 8, []).append(ml[8*mt + n])
        span = 6 if mt < 3 else 3
        for r in range(16):
            cv.setdefault(7*mt + 8 + (r * span) // 16, []).append(f"v_cvt_pk_bf16_f32 v{POOL+16*mt+r}, v{DD[mt][0]+r}, v{DD[mt][1]+r}")
PB = int(opts.get("pb", 15)); RB_ = int(opts.get("rb", 20)); XBAT = int(opts.get("xb", 29))
extra = {}
extra[PB] = ["s_cmp_eq_u32 s21, 4", "s_cselect_b32 s20, 1, 7", f"v_min_u32 v{RAW+2}, s20, v2", f"v_lshlrev_b32 v{RAW+2}, 3, v{RAW+2}",
             (f"buffer_load_dwordx2 {rg(RAW,2)}, v{RAW+2}, s[12:15], s29 offen {SC}", ("wfl", 0))]
extra[RB_] = ["WCHECK", (f"buffer_load_dwordx4 {rg(RAW,4)}, v{VL16}, s[12:15], s26 offen {SC}", ("raw", 0)), "s_add_u32 s26, s26, 8192", "s_add_u32 s29, s29, 64"]
extra[XBAT] = ["WAITRAW", f"ds_write_b128 v{VXW}, {rg(RAW,4)}", "s_mov_b32 m0, s23", "s_add_u32 s21, s21, 1"]
def g_head():
    a(f"s_setprio 3\ns_cmp_eq_u32 s21, 0\ns_waitcnt lgkmcnt({8 - WFE})"); cyc(94); a("s_barrier"); cyc(95)
    if CYC: a("s_cmp_eq_u32 s21, 0")
    a("s_cbranch_scc1 L_first\nL_G1:")
WP = int(opts.get("wp", 1))
def g_tail():
    cyc(92); a("s_barrier"); cyc(93)
    if WP: a("s_setprio 3")
    for r in range(4):
        for o in wr_op(r): a(o)
log, vm_wait = gather_phase(16, mf, cv, extra, lambda b: b // 4, g_head, g_tail)
po = pre_ops()
PA = int(opts.get("pa", 40))
wfo = [f"ds_read_b128 {rg(WF+4*x,4)}, v{VXR} offset:{XS*x}" for x in range(8)]
for r in range(4, 64):
    if WP and r % 16 == 0: a(f"s_setprio {3 - r // 16}")
    for o in wr_op(r): a(o)
    if r == PA: vm_wait(("ix", 16))
    if PA <= r < PA + 9: a(po[r - PA])
    if r % 6 == 4 and r // 6 < WFE: a(wfo[r // 6])
a("s_cmp_eq_u32 s21, 5\ns_cbranch_scc1 L_Wlast")
for o in wfo[WFE:]: a(o)
a("s_cmp_lg_u32 s21, 1\ns_cbranch_scc1 L_G")
for x in range(4): a(f"v_mov_b32 v{RAW+x}, -1")
a(f"buffer_store_dwordx4 {rg(RAW,4)}, v0, s[12:15], s75 offen {SC}\nbuffer_store_dwordx4 {rg(RAW,4)}, v0, s[12:15], s75 offen offset:128 {SC}")
a("L_nosent:")
a("s_branch L_G")
g_end = len(a.lines)
a("L_first:")
a("s_cmp_ge_u32 s35, 800\ns_cbranch_scc1 L_G1\ns_waitcnt vmcnt(1)")
a(f"v_mov_b32 v{RAW+2}, 0\nv_mov_b32 v{RAW}, s64\nv_mov_b32 v{RAW+1}, s65\ns_mov_b64 exec, 1\nbuffer_store_dwordx2 {rg(RAW,2)}, v{RAW+2}, s[12:15], s38 offen {SC}\ns_mov_b64 exec, -1")
a("s_branch L_G1")
a("W_slow:")
poll_check(29, RAW, RAW+2)
a("s_branch W_back")
a("L_Wlast:")
a(f"v_and_b32 v{AD}, 1, v2\nv_mul_u32_u24 v{AD}, {4*XS}, v{AD}\nv_bfe_u32 v{AD+1}, v2, 1, 1\nv_lshl_add_u32 v{AD}, v{AD+1}, 4, v{AD}")
a(f"v_bfe_u32 v{AD+1}, v2, 3, 1\nv_lshl_add_u32 v{AD}, v{AD+1}, 5, v{AD}\nv_bfe_u32 v{AD+1}, v2, 2, 1\nv_lshl_add_u32 v{AD}, v{AD+1}, 6, v{AD}")
a(f"v_lshrrev_b32 v{AD+1}, 5, v2\nv_lshl_add_u32 v{AD}, v{AD+1}, 9, v{AD}\nv_add_u32 v{AD}, {XB}, v{AD}")
for x in range(4): a(f"ds_read_b128 {rg(WF+4*x,4)}, v{AD} offset:{XS*x}")
a(f"v_lshlrev_b32 v{VXW}, 3, v2")
a("s_cmp_lg_u32 s22, 0\ns_cbranch_scc1 L_Gl0")
a(f"s_lshl_b32 s31, s34, 3\ns_add_u32 s31, s31, {F2}")
flag_store(31)
a("L_Gl0:")
X = DX
a(f"s_cmp_lg_u32 s22, {FIN}\ns_cbranch_scc1 L_Glast")
a(f"v_and_b32 v{RAW}, 7, v2\nv_bfe_u32 v{RAW+1}, v2, 3, 1\nv_lshl_add_u32 v{RAW}, v{RAW+1}, 5, v{RAW}\nv_lshrrev_b32 v{RAW+1}, 4, v2\nv_lshl_add_u32 v{RAW}, v{RAW+1}, 3, v{RAW}\nv_mul_u32_u24 v{RAW}, 26, v{RAW}\nv_add_u32 v{RAW}, {XWL}, v{RAW}\nv_mov_b32 v{RAW+1}, {XWL+2048}")
for k in range(13): a(f"ds_read_u16_d16_hi v{X+k}, v{RAW} offset:{2*k}")
a(f"ds_read_u16_d16_hi v{X+13}, v{RAW+1}\nds_read_u16_d16_hi v{X+14}, v{RAW+1} offset:256")
a("L_Glast:")
mf = {}; cv = {}; extra = {}
for mt in range(4):
    d = POOL + 16*mt
    for ks in range(4):
        c = "0" if ks == 0 else rg(d, 16)
        mf[4*mt + ks] = [f"v_mfma_f32_32x32x16_bf16 {rg(d,16)}, {rg(WF+4*ks,4)}, {rg(TAB+16*mt+4*ks,4)}, {c}"]
    cv[4*mt + 5] = [f"v_cvt_pk_bf16_f32 v{d+x}, v{d+2*x}, v{d+2*x+1}" for x in range(2)]
    cv[4*mt + 6] = [f"v_cvt_pk_bf16_f32 v{d+x}, v{d+2*x}, v{d+2*x+1}" for x in range(2, 4)]
    extra[4*mt + 6] = [f"ds_write_b128 v{VSP}, {rg(d,4)} offset:{(32*(mt & 1) + 512*(mt >> 1)) * 32}"]
if not int(opts.get("nomb", 0)): extra[int(opts.get("mbat", 26))] = ["s_barrier"]
if int(opts.get("nosp", 0)): mf = {}; cv = {}; extra = {}
EP = int(opts.get("ep", 1))
RST = "sc1"
Y = TAB
def epi(s):
    return [f"v_cvt_pk_bf16_f32 v{POOL+2*s}, v{ACC+4*s}, v{ACC+4*s+1}", f"v_cvt_pk_bf16_f32 v{POOL+2*s+1}, v{ACC+4*s+2}, v{ACC+4*s+3}",
            f"v_pk_max_i16 v{POOL+2*s}, v{POOL+2*s}, 0", f"v_pk_max_i16 v{POOL+2*s+1}, v{POOL+2*s+1}, 0",
            f"v_dot2_f32_bf16 v{POOL+16+s}, v{POOL+2*s}, s72, 0", f"v_dot2_f32_bf16 v{POOL+16+s}, v{POOL+2*s+1}, s73, v{POOL+16+s}"]
def epi2(s): return [f"v_min_u32 v{POOL+16+s}, s33, v{POOL+16+s}"]
st0 = f"buffer_store_dwordx4 {rg(POOL+16,4)}, v0, s[12:15], s75 offen {RST}"
st1 = f"buffer_store_dwordx4 {rg(POOL+20,4)}, v0, s[12:15], s75 offen offset:128 {RST}"
extra[28] = ["s_lshl_b32 s31, s24, 9", f"s_add_u32 s31, s31, {F2}", "s_mov_b32 s33, -2", "s_mov_b32 s20, 0",
             (f"buffer_load_dwordx2 {rg(RAW,2)}, v{VXW}, s[12:15], s31 offen {SC}", ("f2", 0))]
extra[30] = [f"s_lshl_b32 s29, s34, 14", "s_lshl_b32 s27, s22, 11", "s_add_u32 s29, s29, s27", f"s_add_u32 s29, s29, {PART}",
             f"v_lshlrev_b32 v{Y+12}, 2, v2", f"v_add_u32 v{Y+12}, {PADR}, v{Y+12}", "s_lshl_b32 s27, s22, 8", f"v_add_u32 v{Y+13}, s27, v{Y+12}"]
extra[31] = [f"v_and_b32 v{Y+10}, 7, v2", f"v_bfe_u32 v{Y+11}, v2, 3, 1", f"v_lshl_add_u32 v{Y+10}, v{Y+11}, 5, v{Y+10}", f"v_lshrrev_b32 v{Y+11}, 4, v2",
             f"v_lshl_add_u32 v{Y+10}, v{Y+11}, 3, v{Y+10}", "s_lshl_b32 s27, s34, 6", f"v_add_u32 v{Y+10}, s27, v{Y+10}", f"v_lshlrev_b32 v{Y+10}, 1, v{Y+10}",
             "s_mov_b32 s8, s54", "s_and_b32 s9, s55, 0xffff", "s_mov_b32 s10, 32768", "s_mov_b32 s11, 0x00020000"]
if EP:
    for s in range(7): cv[33 + s] = epi(s) + (epi2(s-1) if s else [])
    extra[37] = [(st0, ("st", 0))]
if CYC == 2: extra.setdefault(29, []).extend([f"s_mov_b32 s{76+2*k}, s{74+2*k}" for k in range(12, 1, -1)] + ["s_memtime s[78:79]", "s_waitcnt lgkmcnt(0)"])
def gl_head():
    a("s_setprio 3\ns_waitcnt lgkmcnt(0)"); cyc(94); a("s_barrier"); cyc(95)
gather_phase(20, mf, cv, extra, lambda b: b // 4 if b < 32 else b - 32, gl_head)
cyc(90)
stamp()
if EP:
    a("s_nop 0")
    for o in epi(7): a(o)
    for o in epi2(6): a(o)
    a("s_nop 1")
    for o in epi2(7): a(o)
    a(st1)
else:
    a("s_nop 7")
    for k in range(6):
        for s in range(8): a(epi(s)[k])
    for s in range(8): a(epi2(s)[0])
    a(st0); a(st1)
a(f"s_cmp_lg_u32 s22, {FIN}\ns_cbranch_scc1 R_f2\ns_mov_b32 s27, 0xffff0000")
a(f"v_lshlrev_b32 v{X+15}, 16, v{VWIDE}")
for k in range(15): a(f"v_and_b32 v{X+k}, s27, v{X+k}")
for k in range(13): a(f"v_readlane_b32 s{36+k}, v{X+15}, {k}")
a(f"v_readfirstlane_b32 s74, v{X+14}\nv_mul_f32 v{VWIDE}, s36, v{X}")
for k in range(1, 13): a(f"v_fmac_f32 v{VWIDE}, s{36+k}, v{X+k}")
rnd(VWIDE); a(f"v_add_f32 v{VWIDE}, v{VWIDE}, v{X+13}"); rnd(VWIDE)
DRY = int(opts.get("dry", 0))
if DRY: a("s_mov_b32 s35, 0\ns_branch R_fin")
a("R_f2:")
a(f"s_waitcnt vmcnt(0)\nv_cmp_ne_u64 vcc, s[64:65], {rg(RAW,2)}\ns_cbranch_vccz R_f2ok")
a(f"s_sleep 1\nbuffer_load_dwordx2 {rg(RAW,2)}, v{VXW}, s[12:15], s31 offen {SC}\ns_add_u32 s20, s20, 1\ns_cmp_lt_u32 s20, 0x8000\ns_cbranch_scc1 R_f2")
a("R_f2ok:")
a("s_mov_b32 s31, s29\ns_mov_b32 s20, 0")
if int(opts.get("rack", 1)): a("s_waitcnt vmcnt(0)")
if int(opts.get("rbar", 0)): a("s_barrier")
if int(opts.get("rdelay", 0)): a(f"s_sleep {int(opts.get('rdelay', 0))}")
PP = int(opts.get("pp", 0)); PSL = int(opts.get("psl", 6))
if PP:
    Z = [Y + 16 + 8*k for k in range(PP)]
    def pl(z): a(f"buffer_load_dwordx4 {rg(z,4)}, v1, s[12:15], s31 offen sc1\nbuffer_load_dwordx4 {rg(z+4,4)}, v1, s[12:15], s31 offen offset:1024 sc1")
    for k in range(PP):
        pl(Z[k])
        if k < PP - 1: a(f"s_sleep {PSL}")
    a("R_poll:")
    for k in range(PP):
        z = Z[k]
        a(f"s_waitcnt vmcnt({2*(PP-1)})")
        a(f"v_max3_u32 v{Y+8}, v{z}, v{z+1}, v{z+2}\nv_max3_u32 v{Y+9}, v{z+3}, v{z+4}, v{z+5}\nv_max3_u32 v{Y+8}, v{Y+8}, v{z+6}, v{z+7}\nv_max_u32 v{Y+8}, v{Y+8}, v{Y+9}")
        for x in range(4): a(f"v_add_f32 v{Y+x}, v{z+x}, v{z+4+x}")
        a(f"v_cmp_eq_u32 vcc, -1, v{Y+8}\ns_cbranch_vccz R_ok")
        pl(z)
    a("s_add_u32 s20, s20, 1\ns_cmp_lt_u32 s20, 0x8000\ns_cbranch_scc1 R_poll")
else:
    a("R_poll:")
    RSC = opts.get("rsc", "sc1").replace("_", " ")
    a(f"buffer_load_dwordx4 {rg(Y,4)}, v1, s[12:15], s31 offen {RSC}\nbuffer_load_dwordx4 {rg(Y+4,4)}, v1, s[12:15], s31 offen offset:1024 {RSC}")
    a("s_add_u32 s20, s20, 1\ns_waitcnt vmcnt(0)")
    a(f"v_max3_u32 v{Y+8}, v{Y}, v{Y+1}, v{Y+2}\nv_max3_u32 v{Y+9}, v{Y+3}, v{Y+4}, v{Y+5}\nv_max3_u32 v{Y+8}, v{Y+8}, v{Y+6}, v{Y+7}\nv_max_u32 v{Y+8}, v{Y+8}, v{Y+9}")
    a(f"v_cmp_eq_u32 vcc, -1, v{Y+8}\ns_cbranch_vccz R_ok")
    a(f"s_sleep {RSLEEP}\ns_cmp_lt_u32 s20, 0x8000\ns_cbranch_scc1 R_poll")
a("R_ok:")
stamp("y3")
if not PP:
    for x in range(4): a(f"v_add_f32 v{Y+x}, v{Y+x}, v{Y+4+x}")
a(f"s_nop 0\nv_permlane32_swap_b32 v{Y}, v{Y+2}\nv_permlane32_swap_b32 v{Y+1}, v{Y+3}\ns_nop 0\nv_add_f32 v{Y}, v{Y}, v{Y+2}\nv_add_f32 v{Y+1}, v{Y+1}, v{Y+3}\ns_nop 1\nv_permlane16_swap_b32 v{Y}, v{Y+1}\ns_nop 0\nv_add_f32 v{Y}, v{Y}, v{Y+1}")
a(f"ds_write_b32 v{Y+13}, v{Y}\ns_waitcnt lgkmcnt(0)\ns_barrier")
a(f"s_cmp_lg_u32 s22, {FIN}\ns_cbranch_scc1 M_fin\ns_mov_b32 s35, 1")
a("R_fin:")
for k in range(8): a(f"ds_read_b32 v{Y+k}, v{Y+12} offset:{256*k}")
a("s_waitcnt lgkmcnt(0)")
a(f"v_add_f32 v{Y}, v{Y}, v{Y+1}\nv_add_f32 v{Y+2}, v{Y+2}, v{Y+3}\nv_add_f32 v{Y+4}, v{Y+4}, v{Y+5}\nv_add_f32 v{Y+6}, v{Y+6}, v{Y+7}\nv_add_f32 v{Y}, v{Y}, v{Y+2}\nv_add_f32 v{Y+4}, v{Y+4}, v{Y+6}\nv_add_f32 v{Y}, v{Y}, v{Y+4}")
rnd(Y); a(f"v_add_f32 v{Y}, s74, v{Y}"); rnd(Y)
a(f"v_add_f32 v{Y}, v{Y}, v{VWIDE}"); rnd(Y)
a(f"v_mul_f32 v{Y}, 0xbfb8aa3b, v{Y}\nv_exp_f32 v{Y}, v{Y}\ns_nop 0\nv_add_f32 v{Y}, 1.0, v{Y}\nv_rcp_f32 v{Y}, v{Y}\ns_nop 0\nv_cvt_pk_bf16_f32 v{Y}, v{Y}, v{Y}")
if DRY: a("s_cmp_eq_u32 s35, 0\ns_cbranch_scc1 R_f2")
a(f"buffer_store_short v{Y}, v{Y+10}, s[8:11], 0 offen {opts.get('osc', '').replace('_', ' ')}")
a("M_fin:")
if int(opts.get("xcc", 0)):
    a("s_and_b32 s20, s2, 7\ns_cmp_lg_u32 s20, 0\ns_cbranch_scc1 M_end\ns_getreg_b32 s21, hwreg(HW_REG_XCC_ID)\ns_and_b32 s21, s21, 15\ns_bfe_u32 s20, s65, 0x40018\ns_cmp_eq_u32 s20, s21\ns_cbranch_scc1 M_end")
pad(PADEND)
PROBE = int(opts.get("probe", -1))
if PROBE >= 0:
    a(f"s_cmp_lg_u32 s22, {SW}\ns_cbranch_scc1 M_end")
    if int(opts.get("pwg", -1)) >= 0: a(f"s_cmp_lg_u32 s2, {int(opts.get('pwg'))}\ns_cbranch_scc1 M_end")
    a("s_waitcnt vmcnt(0)")
    stamp()
    a(f"s_waitcnt lgkmcnt(0)\ns_sub_u32 s20, s{76+2*PROBE}, s64\ns_mul_i32 s20, s20, {int(opts.get('gain', 10))}\ns_add_u32 s20, s20, 4000")
    a("PRB:\ns_memrealtime s[32:33]\ns_waitcnt lgkmcnt(0)\ns_sub_u32 s32, s32, s64\ns_cmp_lt_i32 s32, s20\ns_cbranch_scc1 PRB")
elif STAMP:
    a(f"s_cmp_lg_u32 s22, {SW}\ns_cbranch_scc1 M_end")
    a("s_waitcnt vmcnt(0)")
    stamp()
    a("s_waitcnt lgkmcnt(0)")
    n = nst[0]
    if int(opts.get('mt', 0)):
        for k in range(n - 1, -1, -1): a(f"s_sub_u32 s{76+2*k}, s{76+2*k}, s76\ns_mov_b32 s{77+2*k}, 0")
    if CYC == 2:
        n = 13
        for k in range(1, 12): a(f"s_sub_u32 s{76+2*k}, s{76+2*k}, s{78+2*k}\ns_mov_b32 s{77+2*k}, 0")
        a("s_mov_b32 s76, 0\ns_mov_b32 s77, 0\ns_mov_b32 s100, 0\ns_mov_b32 s101, 0")
    elif CYC:
        for k, r in enumerate([92, 93, 94, 95, 90]): a(f"s_mov_b32 s{78+2*k}, s{r}\ns_mov_b32 s{79+2*k}, 0")
        a("s_mov_b32 s76, 0\ns_mov_b32 s77, 0")
    elif PADPRO: a("s_mov_b32 s76, s64\ns_and_b32 s77, s65, 0x7fffffff")
    a(f"s_mul_i32 s31, s2, {8*n}\ns_add_u32 s31, s31, 0x8000000\nv_mov_b32 v2, 0")
    for k in range(n):
        a(f"v_mov_b32 v4, s{76+2*k}\nv_mov_b32 v5, s{77+2*k}\nbuffer_store_dwordx2 v[4:5], v2, s[12:15], s31 offen offset:{8*k}\ns_waitcnt vmcnt(0)")
    print("nstamps", n)
a("M_end:\ns_endpgm")
import re
MW = int(opts.get("mw", 0)); AL = int(opts.get("al", 0))
if MW:
    k = g_start
    while k < len(a.lines) - 2:
        l0, l1, l2 = a.lines[k].strip(), a.lines[k+1].strip(), a.lines[k+2].strip()
        if re.fullmatch(r"s_waitcnt lgkmcnt\(\d+\)", l0) and l1.startswith("v_smfmac") and re.fullmatch(r"s_waitcnt vmcnt\(\d+\)", l2):
            a.lines[k] = "    " + l2 + " " + l0.split()[1]
            del a.lines[k+2]
            if k + 2 < g_end: g_end -= 1
        k += 1
if AL:
    k = g_start
    while k < len(a.lines):
        if a.lines[k].strip().startswith("v_smfmac"):
            a.lines.insert(k, "    .p2alignl 3, 0xbf800000")
            if k < g_end: g_end += 1
            k += 1
        k += 1
L = a.lines
errs = hazard.check_all(L[st:g_end] + L[g_start:], "main")
a.raw(kernel_desc(MAIN, 256, 102, 256))
for e in sorted(set(errs)): print("HAZARD", e)
open(sys.argv[1], "w").write(a.text())
```

```python
import sys
from common import *
import hazard
opts = dict(x.split("=") for x in sys.argv[2:])
AHEAD = int(opts.get("ahead", 8)); STAMP = int(opts.get("stamp", 0)); SW = int(opts.get("sw", 3))
SC = "sc1"
NT = "nt" if int(opts.get("nt", 0)) else ""
SST = opts.get("sst", "sc1").replace("_", " ")
SLEEP = int(opts.get("sleep", 1)); RSLEEP = int(opts.get("rsleep", 2))
TG0 = int(opts.get("tg0", 4)); TG1 = int(opts.get("tg1", 122)); RAWAT = int(opts.get("rawat", 40))
WS_BYTES = 268435456
IDX16 = 0; WFR = 4 << 20; PART = 8 << 20; FI = 16 << 20; FW = FI + 16384; F2 = FI + 24576; FE = FI + 65536; FL = int(opts.get('fl', 1))
LDELAY = int(opts.get('ldelay', 0)); M1 = int(opts.get('m1', 1)); M2 = int(opts.get('m2', 2))
STG = 131072; XWL = STG + 25600; XB = 131072; XS = 3200; PADR = 128000
ETAB = 0; WT = 12 << 20; MID = int(opts.get('mid', 2)); TOUCH = int(opts.get('touch', 1))
DOC = """;
; Generated by a script written for this kernel (gen/f21.py)."""
a = Asm()
a.raw(HEADER_COMMENT.rstrip("\n"))
a.raw("; @launch grid=(256,1,1) block=(512,1,1) lds=163840")
a.raw(DOC)
a.raw('.amdgcn_target "amdgcn-amd-amdhsa--gfx950"')
kernel_begin(a, MAIN)
TAB=4; ACC=68; WF=100; POOL=132; GD=196; NGD=32; IX=228; AD=GD+24; SEL=244; SIDX=252
RAW=248; VXW=253; VXR=254; VWIDE=3; VSP=255
Z0=GD+28; Z1=GD+29; Z2=GD+30; Z3=GD+31
VL16=1
T = POOL; U = GD
FIN = 3; POLLW = 7
def rg(b, n): return f"v[{b}:{b+n-1}]"
nst = [0]
SKIP = set(opts.get("skip", "x1,x2,x3,x4,z1,n0,n1").split(","))
def stamp(name=""):
    if STAMP and name not in SKIP and not (int(opts.get("cyc", 0)) and nst[0] >= 6):
        k = nst[0]; nst[0] += 1
        assert k < 13
        a(f"{'s_memtime' if int(opts.get('mt', 0)) else 's_memrealtime'} s[{76+2*k}:{77+2*k}]")
def rnd(r): a(f"v_cvt_pk_bf16_f32 v{r}, v{r}, v{r}\nv_lshlrev_b32 v{r}, 16, v{r}")
PADEND = int(opts.get("padend", 0)); PADPRO = int(opts.get("padpro", 0))
def pad(ticks):
    if not ticks: return
    l = newlab("PAD_")
    a(f"{l}:\ns_memrealtime s[32:33]\ns_waitcnt lgkmcnt(0)\ns_sub_u32 s32, s32, s64\ns_cmp_lt_i32 s32, {ticks}\ns_cbranch_scc1 {l}")
lab = [0]
def newlab(p):
    lab[0] += 1; return f"{p}{lab[0]}"
st = len(a.lines)
a("s_cmp_ge_u32 s2, 256\ns_cbranch_scc1 M_end")
stamp()
if int(opts.get("prio", 0)): a("s_setprio 2")
a("s_load_dwordx16 s[36:51], s[0:1], 0\ns_load_dwordx8 s[52:59], s[0:1], 64\ns_memrealtime s[64:65]")
a("s_getpc_b64 s[32:33]\nC_base:\ns_lshr_b32 s29, s2, 3\ns_mul_i32 s20, s29, 640\nv_lshl_add_u32 v224, v0, 7, s20\nv_min_u32 v224, M_end-C_base, v224")
a("v_cmp_gt_u32 vcc, 5, v0\ns_and_saveexec_b64 s[20:21], vcc\ns_cbranch_execz C_skip\nglobal_load_dword v224, v224, s[32:33]\nC_skip:\ns_mov_b64 exec, -1")
a("v_and_b32 v2, 63, v0\nv_lshrrev_b32 v227, 6, v0\nv_lshlrev_b32 v1, 4, v2\nv_readfirstlane_b32 s22, v227")
a("s_and_b32 s20, s2, 7\ns_lshr_b32 s24, s20, 1\ns_and_b32 s20, s20, 1\ns_lshl_b32 s20, s20, 5\ns_add_u32 s25, s20, s29")
a("s_lshl_b32 s34, s24, 6\ns_add_u32 s34, s34, s25")
a("s_lshl_b32 s35, s22, 8\ns_add_u32 s35, s35, s34")
a(f"v_lshrrev_b32 v{U}, 4, v2\nv_and_b32 v{U+1}, 15, v2\nv_lshlrev_b32 v{U+2}, 15, v{U}\nv_lshl_add_u32 v{U+2}, v{U+1}, 3, v{U+2}\nv_mov_b32 v{U+5}, 0")
a("s_lshr_b32 s20, s35, 5\ns_lshl_b32 s20, s20, 17\ns_bfe_u32 s21, s35, 0x30002\ns_lshl_b32 s21, s21, 12\ns_add_u32 s20, s20, s21\ns_and_b32 s21, s35, 3\ns_lshl_b32 s21, s21, 7\ns_add_u32 s31, s20, s21")
a(f"s_mul_i32 s20, s34, 25600\ns_mul_i32 s21, s22, 3200\ns_add_u32 s20, s20, s21\ns_add_u32 s33, s21, {STG}\ns_mov_b32 m0, s33")
a("s_lshl_b32 s23, s22, 13\ns_add_u32 s30, s23, 8064")
a("s_mov_b32 s18, 3276800\ns_mov_b32 s19, 0x00020000\ns_mov_b32 s6, 6553600\ns_mov_b32 s7, 0x00020000")
a("s_waitcnt lgkmcnt(0)")
stamp()
a("s_mov_b32 s16, s46\ns_and_b32 s17, s47, 0xffff\ns_mov_b32 s4, s36\ns_and_b32 s5, s37, 0xffff")
srd(a, 60, 56, 256)
srd(a, 12, 58, WS_BYTES)
CNT = 163836
if int(opts.get("cas", 1)):
    a("s_cmp_lg_u32 s22, 6\ns_cbranch_scc1 P_n0\ns_cmp_ge_u32 s2, 8\ns_cbranch_scc1 P_n0")
    a(f"v_mov_b32 v{T+4}, s64\nv_mov_b32 v{T+5}, s65\nv_mov_b32 v{T+6}, 0\nv_mov_b32 v{T+7}, 0\nv_or_b32 v{T+5}, 0x80000000, v{T+5}\ns_mov_b64 exec, 1")
    a(f"buffer_atomic_cmpswap_x2 {rg(T+4,4)}, v{T+6}, s[60:63], 0 offen {SC}\ns_mov_b64 exec, -1\ns_nop 1")
else:
    a("s_lshl_b32 s21, s2, 3\ns_add_u32 s21, s21, s22\ns_cmp_lg_u32 s21, 6\ns_cbranch_scc1 P_n0")
    if int(opts.get("xcc", 0)):
        a("s_getreg_b32 s21, hwreg(HW_REG_XCC_ID)\ns_and_b32 s21, s21, 15\ns_lshl_b32 s21, s21, 24\ns_and_b32 s65, s65, 0xffffff\ns_or_b32 s65, s65, s21")
    a(f"v_mov_b32 v{T+4}, s64\nv_mov_b32 v{T+5}, s65\nv_mov_b32 v{T+6}, 0\nv_or_b32 v{T+5}, 0x80000000, v{T+5}\ns_mov_b64 exec, 1")
    a(f"buffer_store_dwordx2 {rg(T+4,2)}, v{T+6}, s[60:63], 0 offen {SC}\ns_mov_b64 exec, -1")
a("P_n0:")
WR_ = U + 8
def w1_loads(sreg=31):
    for j8 in range(8):
        a(f"buffer_load_dwordx2 {rg(WR_+2*j8,2)}, v{U+2}, s[16:19], s{sreg} offen offset:{512*j8} {NT}")
a("s_cmp_lg_u32 s22, 0\ns_cbranch_scc1 P_now1")
w1_loads()
a("P_now1:")
for r in range(3):
    a(f"buffer_load_dwordx4 v1, s[4:7], s20 offen offset:{1024*r} {NT} lds")
a(f"s_mov_b64 exec, 0xff\nbuffer_load_dwordx4 v1, s[4:7], s20 offen offset:3072 {NT} lds\ns_mov_b64 exec, -1")
srd(a, 8, 38, 128000)
a("s_barrier")
if int(opts.get("dw", 1)): a("s_cmp_lg_u32 s22, 5\ns_cbranch_scc1 P_n5\ns_load_dword s74, s[56:57], 192\nP_n5:")
a(f"s_cmp_lt_u32 s22, 4\ns_cbranch_scc1 P_lo\ns_cmp_lg_u32 s22, 4\ns_cbranch_scc1 P_skip")
a(f"v_and_b32 v224, 31, v2\nv_lshlrev_b32 v224, 7, v224\ns_lshl_b32 s21, s29, 12\nbuffer_load_dword v224, v224, s[8:11], s21 offen\ns_branch P_skip")
def nonce_load(): a("s_load_dwordx2 s[64:65], s[56:57], 0")
def nonce_get():
    l = newlab("N_")
    a(f"s_waitcnt lgkmcnt(0)\ns_cmp_lt_i32 s65, 0\ns_cbranch_scc1 {l}ok\ns_mov_b32 s20, 0\nv_mov_b32 v{AD}, 0")
    a(f"{l}:")
    a(f"buffer_load_dwordx2 {rg(AD+2,2)}, v{AD}, s[60:63], 0 offen {SC}\ns_add_u32 s20, s20, 1\ns_waitcnt vmcnt(0)")
    a(f"v_readfirstlane_b32 s64, v{AD+2}\nv_readfirstlane_b32 s65, v{AD+3}\ns_cmp_lt_i32 s65, 0\ns_cbranch_scc1 {l}ok")
    a(f"s_sleep 1\ns_cmp_lt_u32 s20, 0x8000\ns_cbranch_scc1 {l}")
    a(f"{l}ok:")
def flag_store(sreg):
    a(f"v_mov_b32 v{AD}, 0\nv_mov_b32 v{AD+2}, s64\nv_mov_b32 v{AD+3}, s65\ns_mov_b64 exec, 1")
    a(f"buffer_store_dwordx2 {rg(AD+2,2)}, v{AD}, s[12:15], s{sreg} offen {SC}\ns_mov_b64 exec, -1")
def w1_process(PR=WF, RB=WF+16, sreg=26):
    for c in range(4):
        for d in range(4):
            a(f"v_perm_b32 v{PR+4*c+d}, v{WR_+2*(2*d+1)+(c>>1)}, v{WR_+2*(2*d)+(c>>1)}, s{66+(c&1)}")
    for c in range(4):
        a(f"ds_write_b128 v{U+3}, {rg(PR+4*c,4)} offset:{(c&1)*128 + (c>>1)*16}")
    a("s_waitcnt lgkmcnt(0)")
    for r in range(4):
        a(f"ds_read_b128 {rg(RB+4*r,4)}, v{U+4} offset:{r*4*272}")
    for r in range(4):
        a(f"s_waitcnt lgkmcnt({3-r})\nbuffer_store_dwordx4 {rg(RB+4*r,4)}, v{U+5}, s[12:15], s{sreg} offen {SC}\ns_add_u32 s{sreg}, s{sreg}, {4*65536}")
a("P_lo:")
a("s_cmp_ge_u32 s35, 800\ns_cbranch_scc1 P_skip")
a("s_mov_b32 s66, 0x05040100\ns_mov_b32 s67, 0x07060302\ns_add_u32 s21, s23, 0x10000")
a(f"v_mul_u32_u24 v{U+3}, 272, v{U+1}\nv_lshl_add_u32 v{U+3}, v{U}, 5, v{U+3}\nv_add_u32 v{U+3}, s21, v{U+3}")
a(f"v_mul_u32_u24 v{U+4}, 272, v{U}\nv_lshl_add_u32 v{U+4}, v{U+1}, 4, v{U+4}\nv_add_u32 v{U+4}, s21, v{U+4}")
a(f"v_lshlrev_b32 v{U+5}, 16, v{U}\nv_bfe_u32 v{U+6}, v2, 3, 1\nv_lshl_add_u32 v{U+5}, v{U+6}, 12, v{U+5}\nv_and_b32 v{U+6}, 7, v2\nv_lshl_add_u32 v{U+5}, v{U+6}, 4, v{U+5}")
a("s_and_b32 s26, s35, 3\ns_lshl_b32 s26, s26, 20\ns_lshr_b32 s21, s35, 7\ns_lshl_b32 s21, s21, 13\ns_add_u32 s26, s26, s21\ns_bfe_u32 s21, s35, 0x30002\ns_lshl_b32 s21, s21, 9\ns_add_u32 s26, s26, s21")
a(f"s_bfe_u32 s21, s35, 0x20005\ns_lshl_b32 s21, s21, 7\ns_add_u32 s26, s26, s21\ns_add_u32 s26, s26, {WFR}")
a(f"s_and_b32 s75, s35, 3\ns_lshl_b32 s75, s75, 11\ns_bfe_u32 s21, s35, 0x20003\ns_lshl_b32 s21, s21, 9\ns_add_u32 s75, s75, s21\ns_lshr_b32 s21, s35, 5\ns_lshl_b32 s21, s21, 4\ns_add_u32 s75, s75, s21\ns_bfe_u32 s21, s35, 0x10002\ns_lshl_b32 s21, s21, 3\ns_add_u32 s75, s75, s21\ns_add_u32 s75, s75, {FW}")
a("s_cmp_lg_u32 s22, 0\ns_cbranch_scc1 P_skip")
H1, H2 = (3, 4) if FL else (0, 0)
a(f"s_and_b32 s75, s35, 3\ns_lshl_b32 s75, s75, {10+H1}\ns_lshr_b32 s21, s35, 7\ns_lshl_b32 s21, s21, {9+H1}\ns_add_u32 s75, s75, s21\ns_bfe_u32 s21, s35, 0x20003\ns_lshl_b32 s21, s21, {7+H1}\ns_add_u32 s75, s75, s21")
a(f"s_bfe_u32 s21, s35, 0x20005\ns_lshl_b32 s21, s21, {4+H2}\ns_add_u32 s75, s75, s21\ns_bfe_u32 s21, s35, 0x10002\ns_lshl_b32 s21, s21, {3+H2}\ns_add_u32 s75, s75, s21\ns_add_u32 s75, s75, {FE}")
a("s_waitcnt vmcnt(4)")
w1_process()
FF = int(opts.get("ff", 0))
if FF: nonce_load()
a("P_skip:")
stamp("x2")
a(f"v_and_b32 v{T+4}, 7, v2\nv_lshrrev_b32 v{T+5}, 3, v2")
a(f"s_and_b32 s20, s34, 1\ns_lshl_b32 s20, s20, 3\nv_add_u32 v{T+6}, s20, v{T+4}")
a(f"v_mul_u32_u24 v{T+7}, 400, v{T+4}\nv_add_u32 v{T+7}, s33, v{T+7}")
a(f"v_and_b32 v{T+8}, 1, v{T+5}\nv_lshrrev_b32 v{T+9}, 1, v{T+5}")
a(f"v_lshlrev_b32 v{T+10}, 3, v{T+8}\nv_xor_b32 v{T+10}, v{T+10}, v{T+6}")
a(f"v_lshl_add_u32 v{T+11}, v{T+9}, 6, v{T+7}")
a(f"v_lshlrev_b32 v{T+9}, 14, v{T+9}\nv_lshl_add_u32 v{T+9}, v{T+8}, 10, v{T+9}\nv_lshl_add_u32 v{T+9}, v{T+4}, 4, v{T+9}")
SL, LA_, RD, PK, SS = T+12, T+20, T+28, T+44, T+52
for u in range(8):
    a(f"v_xor_b32 v{SL+u}, {u}, v{T+10}")
    a(f"v_lshl_add_u32 v{LA_+u}, v{SL+u}, 2, v{T+11}")
a(f"v_and_b32 v{T+10}, 3, v{T+4}")
for u in range(4):
    a(f"v_xor_b32 v{SS+u}, {u}, v{T+10}\nv_lshl_add_u32 v{SS+4+u}, v{SS+u}, 2, v{T+7}\nv_add_u32 v{SS+u}, 16384, v{SS+u}")
a("s_lshr_b32 s27, s34, 3\ns_mul_i32 s27, s27, 102400\ns_lshl_b32 s20, s22, 11\ns_add_u32 s28, s27, s20\ns_and_b32 s21, s34, 7\ns_lshl_b32 s20, s21, 7\ns_add_u32 s28, s28, s20")
a(f"s_lshl_b32 s20, s22, 9\ns_add_u32 s27, s27, s20\ns_lshl_b32 s20, s21, 6\ns_add_u32 s27, s27, s20\ns_add_u32 s27, s27, 98304\nv_lshlrev_b32 v{T+8}, 3, v{T+4}")
TD = RAW
a(f"v_xor_b32 v{TD+1}, v{T+4}, v{U}\nv_lshlrev_b32 v{TD}, 7, v{T+5}\nv_lshl_add_u32 v{TD}, v{TD+1}, 4, v{TD}\nv_xor_b32 v{TD+1}, 64, v{TD}")
stamp("x1")
PRE = int(opts.get("pre", 2)); PDEL = int(opts.get("pdel", 0))
if PRE:
    a("s_cmp_lt_u32 s22, 4\ns_cbranch_scc1 P_np")
    if PDEL: a(f"s_sleep {PDEL}")
    for mt in range(4 - PRE, 4):
        a(f"s_add_u32 s21, s23, {4096*(mt & 1) + 65536*(mt >> 1)}\ns_mov_b32 m0, s21\ns_nop 0")
        for x in range(4): a(f"buffer_load_dwordx4 v{TD+(x&1)}, s[8:11], s21 offen offset:{1024*x} lds")
    a(f"s_waitcnt vmcnt({4*PRE})\ns_branch P_c9")
    a("P_np:")
def e_flag(n):
    a(f"v_mov_b32 v{AD}, s64\nv_mov_b32 v{AD+1}, s65\nv_mov_b32 v{AD+2}, s64\nv_mov_b32 v{AD+3}, s65\ns_mov_b64 exec, 0xff\ns_waitcnt vmcnt({n})")
    a(f"buffer_store_dwordx4 {rg(AD,4)}, v1, s[12:15], s75 offen {SC}\ns_mov_b64 exec, -1")
if FF:
    a("s_cmp_lg_u32 s22, 0\ns_cbranch_scc1 P_c0")
    nonce_get()
    e_flag(0)
    a("s_mov_b32 s35, 4097\ns_branch P_c9\nP_c0:")
a(f"s_cmp_eq_u32 s22, 0\ns_cbranch_scc1 P_c4\ns_cmp_eq_u32 s22, 4\ns_cbranch_scc1 P_c1")
a("s_waitcnt vmcnt(0)\nP_c1:\ns_waitcnt vmcnt(1)\nP_c4:\ns_waitcnt vmcnt(4)\nP_c9:")
stamp()
for u in range(8): a(f"ds_read_b32 v{RD+u}, v{LA_+u}")
for u in range(8): a(f"ds_read_b32 v{RD+8+u}, v{LA_+u} offset:256")
for u in range(4): a(f"ds_read_b32 v{SS+8+u}, v{SS+4+u} offset:384")
def conv(k):
    for u in range(8):
        a(f"v_lshl_add_u32 v{RD+8*k+u}, v{RD+8*k+u}, 4, v{SL+u}")
    for d in range(4):
        a(f"v_lshl_or_b32 v{PK+4*k+d}, v{RD+8*k+2*d+1}, 16, v{RD+8*k+2*d}")
a("s_waitcnt lgkmcnt(12)")
conv(0)
a(f"buffer_store_dwordx4 {rg(PK,4)}, v{T+9}, s[12:15], s28 offen {SC}")
a("s_waitcnt lgkmcnt(0)")
nonce_load()
conv(1)
for u in range(4): a(f"v_lshrrev_b32 v{SS+4+u}, 1, v{SS+8+u}\nv_lshl_add_u32 v{SS+8+u}, v{SS+8+u}, 2, v{SS+u}\nv_and_b32 v{SS+4+u}, 2, v{SS+4+u}\nv_xor_b32 v{SS+8+u}, v{SS+8+u}, v{SS+4+u}")
a(f"v_lshl_or_b32 v{SS+4}, v{SS+9}, 16, v{SS+8}\nv_lshl_or_b32 v{SS+5}, v{SS+11}, 16, v{SS+10}")
a(f"s_add_u32 s28, s28, 65536\ns_mov_b32 exec_hi, 0\nbuffer_store_dwordx4 {rg(PK+4,4)}, v{T+9}, s[12:15], s28 offen {SC}")
a(f"s_mov_b64 exec, 0xff\nbuffer_store_dwordx2 {rg(SS+4,2)}, v{T+8}, s[12:15], s27 offen {SC}\ns_mov_b64 exec, -1")
stamp("x3")
BA = int(opts.get("ba", 0))
if not FF:
    a("s_cmp_lg_u32 s22, 0\ns_cbranch_scc1 P_c")
    if int(opts.get("ackfirst", 0)):
        a("s_waitcnt vmcnt(3)")
        stamp("n0")
    nonce_get()
    stamp("n1")
    if FL:
        a(f"v_mov_b32 v{AD}, s64\nv_mov_b32 v{AD+1}, s65\nv_mov_b32 v{AD+2}, s64\nv_mov_b32 v{AD+3}, s65\ns_mov_b64 exec, 0xff\ns_waitcnt vmcnt(3)")
        a(f"buffer_store_dwordx4 {rg(AD,4)}, v1, s[12:15], s75 offen {SC}\ns_mov_b64 exec, -1")
    else:
        a("s_waitcnt vmcnt(3)")
        flag_store(75)
    a("s_mov_b32 s35, 4096")
a("P_c:")
if int(opts.get("nounit", 0)): a("s_mov_b32 s35, 4097")
stamp("x4")
a("s_mov_b32 s36, s31\ns_mov_b32 s37, s26\ns_mov_b32 s38, s75")
PRIO = int(opts.get("prio", 0))
def table_dma(mt):
    off = 4096*(mt & 1) + 65536*(mt >> 1)
    a(f"s_add_u32 s27, s23, {off}\ns_mov_b32 m0, s27\n{'s_setprio 0' if PRIO else 's_nop 0'}")
    for x in range(4):
        a(f"buffer_load_dwordx4 v{TD+(x&1)}, s[8:11], {'0' if int(opts.get('tabsame', 0)) else 's27'} offen offset:{1024*x} lds")
    if PRIO: a("s_setprio 2")
for mt in range(M1): table_dma(mt)
stamp("m1")
a("s_lshl_b32 s20, s25, 3\ns_add_u32 s48, s48, s20\ns_addc_u32 s49, s49, 0\ns_add_u32 s50, s50, s20\ns_addc_u32 s51, s51, 0")
nonce_get()
a(f"s_lshr_b32 s31, s34, 3\ns_lshl_b32 s31, s31, 9\ns_and_b32 s20, s34, 7\ns_lshl_b32 s20, s20, 6\ns_add_u32 s31, s31, s20\ns_lshl_b32 s20, s22, 3\ns_add_u32 s31, s31, s20\ns_add_u32 s31, s31, {FI}")
NL = 4*M1
STRICT = int(opts.get("strict", 3))
if STRICT: a("s_waitcnt vmcnt(0)")
else: a(f"s_cmp_eq_u32 s35, 4096\ns_cbranch_scc1 P_a1\ns_waitcnt vmcnt({NL})\nP_a1:\ns_waitcnt vmcnt({NL+1})")
stamp()
flag_store(31)
if int(opts.get("spf", 1)):
    a("s_lshr_b32 s20, s22, 2\ns_add_u32 s20, s20, 1\ns_lshl_b32 s20, s20, 8\ns_add_u32 s20, s20, s34")
    a("s_lshr_b32 s21, s20, 5\ns_lshl_b32 s21, s21, 17\ns_bfe_u32 s39, s20, 0x30002\ns_lshl_b32 s39, s39, 12\ns_add_u32 s21, s21, s39\ns_and_b32 s39, s20, 3\ns_lshl_b32 s39, s39, 7\ns_add_u32 s21, s21, s39")
    a("s_and_b32 s39, s22, 3\ns_lshl_b32 s39, s39, 10\ns_add_u32 s21, s21, s39\ns_add_u32 s46, s46, s21\ns_addc_u32 s47, s47, 0")
    for f4 in range(4):
        for r in range(2): a(f"s_load_dword s3, s[46:47], {f4*32768 + r*512}")
XM = int(opts.get("xm", 1))
for mt in range(M1, XM): table_dma(mt)
PSC = opts.get("psc", "sc1").replace("_", " ")
def poll_load(sreg, tmp, addr): a(f"buffer_load_dwordx2 {rg(tmp,2)}, v{addr}, s[12:15], s{sreg} offen {PSC}")
def poll_check(sreg, tmp, addr, first_wait=0, sleep=SLEEP):
    l = newlab("Q_")
    a(f"s_mov_b32 s20, 0\ns_waitcnt vmcnt({first_wait})")
    a(f"{l}:")
    a(f"v_cmp_ne_u64 vcc, s[64:65], {rg(tmp,2)}\ns_cbranch_vccz {l}ok")
    a(f"s_sleep {sleep}")
    poll_load(sreg, tmp, addr)
    a(f"s_add_u32 s20, s20, 1\ns_waitcnt vmcnt(0)\ns_cmp_lt_u32 s20, 0x8000\ns_cbranch_scc1 {l}")
    a(f"{l}ok:")
a(f"s_lshr_b32 s21, s22, 2\ns_xor_b32 s21, s21, 1\ns_lshr_b32 s68, s25, 4\ns_lshl_b32 s68, s68, {10+H1}\ns_lshl_b32 s20, s21, {9+H1}\ns_add_u32 s68, s68, s20\ns_and_b32 s20, s22, 3\ns_lshl_b32 s20, s20, {7+H1}\ns_add_u32 s68, s68, s20\ns_add_u32 s68, s68, {FE}")
a(f"s_lshl_b32 s69, s25, 16\ns_lshl_b32 s21, s21, 13\ns_add_u32 s69, s69, s21\ns_lshl_b32 s20, s20, {3-H1}\ns_add_u32 s69, s69, s20\ns_add_u32 s69, s69, {WFR}\ns_add_u32 s74, s69, 4096")
a(f"v_and_b32 v{IX+8}, 7, v2\nv_lshlrev_b32 v{IX+8}, {3+H2}, v{IX+8}")
def x_load(): a(f"buffer_load_dwordx4 {rg(IX,4)}, v{VL16}, s[12:15], s69 offen {SC}\nbuffer_load_dwordx4 {rg(IX+4,4)}, v{VL16}, s[12:15], s74 offen {SC}")
def x_write(): a(f"ds_write_b128 v{VXW}, {rg(IX,4)} offset:1024\nds_write_b128 v{VXW}, {rg(IX+4,4)} offset:2048")
XA = int(opts.get("xa", 2))
X0_ = max(M1, XM)
XA = min(XA, 4 - PRE - X0_)
a(f"s_cmp_lt_u32 s22, 4\ns_cbranch_scc1 P_g")
poll_load(68, IX+10, IX+8)
for mt in range(X0_, X0_ + XA): table_dma(mt)
poll_check(68, IX+10, IX+8, 4*XA)
stamp("z1")
x_load()
for mt in range(X0_ + XA, 4 - PRE): table_dma(mt)
a("s_load_dwordx2 s[70:71], s[48:49], 0\ns_load_dwordx2 s[72:73], s[50:51], 0\ns_branch P_e")
a("P_g:")
for mt in range(X0_, 4): table_dma(mt)
a("s_load_dwordx2 s[70:71], s[48:49], 0\ns_load_dwordx2 s[72:73], s[50:51], 0")
a("P_e:")
FR = T + 16
a(f"v_bfe_u32 v{T+2}, v2, 4, 1\nv_lshlrev_b32 v{T+2}, 1, v{T+2}\nv_bfe_u32 v{T}, v2, 2, 2\nv_mov_b32 v{T+1}, 0x3f80")
a(f"v_cmp_eq_u32 vcc, v{T+2}, v{T}\nv_add_u32 v{T+2}, 1, v{T+2}\ns_nop 0\nv_cndmask_b32 v{SEL}, 0, v{T+1}, vcc\nv_cmp_eq_u32 vcc, v{T+2}, v{T}")
a(f"v_mov_b32 v{SEL+1}, v{SEL}\nv_and_b32 v{T+2}, 3, v2\nv_cndmask_b32 v{SEL+2}, 0, v{T+1}, vcc\nv_mul_u32_u24 v{SIDX}, 0x5555, v{T+2}\nv_mov_b32 v{SEL+3}, v{SEL+2}")
a(f"v_and_b32 v227, 24, v2\nv_and_b32 v{T}, 3, v2\nv_lshl_add_u32 v227, v{T}, 1, v227\nv_bfe_u32 v{T}, v2, 2, 1\nv_add_u32 v227, v227, v{T}")
a(f"v_lshrrev_b32 v{T}, 5, v2\nv_lshlrev_b32 v{VSP}, 5, v227\nv_bfe_u32 v{T+1}, v2, 1, 1\nv_xor_b32 v{T+1}, v{T+1}, v{T}\nv_lshl_add_u32 v{VSP}, v{T+1}, 4, v{VSP}\ns_lshl_b32 s31, s22, 11\ns_add_u32 s31, s31, 131072\nv_add_u32 v{VSP}, s31, v{VSP}")
a(f"v_bfe_u32 v{T+1}, v227, 1, 3\nv_xor_b32 v{T+1}, v{T+1}, v{T}\nv_lshlrev_b32 v227, 7, v227\nv_lshl_add_u32 v227, v{T+1}, 4, v227\nv_add_u32 v{FR}, s23, v227")
for ks in range(1, 4): a(f"v_xor_b32 v{FR+ks}, {32*ks}, v{FR}")
for ks in range(4): a(f"v_add_u32 v{FR+4+ks}, 0x10000, v{FR+ks}")
a(f"v_add_u32 v{VXR}, {XB}, v1\nv_add_u32 v{VXW}, s33, v1")
a(f"v_lshrrev_b32 v0, 3, v2\nv_lshlrev_b32 v0, 14, v0\nv_lshl_add_u32 v0, v{T+4}, 4, v0")
a("s_lshl_b32 s28, s24, 3\ns_add_u32 s28, s28, s22\ns_mul_i32 s28, s28, 102400")
a(f"s_lshl_b32 s75, s24, 6\ns_lshl_b32 s33, s22, 3\ns_add_u32 s75, s75, s33\ns_lshl_b32 s75, s75, 6\ns_add_u32 s75, s75, s25\ns_lshl_b32 s75, s75, 8\ns_add_u32 s75, s75, {PART}")
a(f"v_lshlrev_b32 v{AD}, 3, v2\nv_min_u32 v{AD+1}, 33, v2\nv_lshlrev_b32 v{AD+1}, 3, v{AD+1}")
a("s_cmp_lt_u32 s22, 4\ns_cbranch_scc1 P_h")
a(f"s_waitcnt vmcnt({4*(4-PRE-X0_-XA)})")
x_write()
a("P_h:")
a(f"s_lshr_b32 s29, s25, 4\ns_lshl_b32 s29, s29, 11\ns_and_b32 s20, s22, 3\ns_lshl_b32 s20, s20, 9\ns_add_u32 s29, s29, s20\ns_add_u32 s29, s29, {FW + 128}")
a(f"s_lshl_b32 s31, s24, 3\ns_add_u32 s31, s31, s22\ns_lshl_b32 s31, s31, 9\ns_add_u32 s31, s31, {FI}")
a(f"s_lshl_b32 s26, s25, 16\ns_lshl_b32 s20, s22, 10\ns_add_u32 s26, s26, s20\ns_add_u32 s26, s26, {WFR + 16384}")
a("s_waitcnt vmcnt(0)")
stamp()
for mt in range(4):
    for ks in range(4):
        a(f"ds_read_b128 {rg(TAB+16*mt+4*ks,4)}, v{FR+4*(mt>>1)+ks} offset:{4096*(mt&1)}")
a(f"v_mov_b32 v224, {CNT}\nv_mov_b32 v225, 0\nds_write_b32 v224, v225\nv_mov_b32 v225, 1")
a("s_setprio 0\ns_waitcnt lgkmcnt(0)\ns_barrier")
stamp()
def wf_read(off=0):
    for x in range(8):
        a(f"ds_read_b128 {rg(WF+4*x,4)}, v{VXR} offset:{XS*x + off}")
def wf_read_x(base):
    for x in (0, 4, 1, 5, 2, 6, 3, 7):
        a(f"ds_read_b128 {rg(WF+4*x,4)}, v{VXR} offset:{XS*(base + (x&3)) + 1024 + 1024*(x>>2)}")
wf_read_x(4)
poll_load(68, IX+10, IX+8)
poll_load(31, AD+2, AD)
UAT = int(opts.get("uat", 1))
if UAT == 0:
    a("s_cmp_ge_u32 s35, 800\ns_cbranch_scc1 P_u0")
    w1_loads(36)
    a("P_u0:")
def tg_mfma(mt, ks, e, d):
    c = "0" if ks == 0 else rg(d, 16)
    return f"v_mfma_f32_32x32x16_bf16 {rg(d,16)}, {rg(TAB+16*mt+4*ks,4)}, {rg(WF+16*e+4*ks,4)}, {c}"
D0, D1 = POOL+32, POOL+48
def tgen_groups():
    g = []
    for mt in range(3):
        for ks in range(4):
            for e in range(2):
                g.append([tg_mfma(mt, ks, e, D0 if e == 0 else D1)])
        g.extend([[] for _ in range(int(opts.get("gap", 3)))])
        for r in range(0, 16, 4):
            g.append([f"v_cvt_pk_bf16_f32 v{POOL+16*mt+r+x}, v{D0+r+x}, v{D1+r+x}" for x in range(4)])
    for ks in range(4): g.append([tg_mfma(3, ks, 0, D1)])
    for ks in range(4): g.append([tg_mfma(3, ks, 1, WF)])
    g.extend([[] for _ in range(int(opts.get("gap", 3)))])
    for r in range(0, 16, 4):
        g.append([f"v_cvt_pk_bf16_f32 v{D1+r+x}, v{D1+r+x}, v{WF+r+x}" for x in range(4)])
    return g
def wr_op(r):
    off = r*256 if r < 32 else 57472 + (r-32)*256
    pre = ["s_mov_b32 m0, s30", "s_nop 0"] if r == 32 else []
    return pre + [f"ds_write_addtid_b32 v{POOL+r} offset:{off}"]
a("s_mov_b32 m0, s23")
TP = int(opts.get("tp", 0)); TO = int(opts.get("to", 1))
def pro_d(mt): return [(ACC, ACC+16), (D0, D1), (ACC, ACC+16), (D1, GD)][mt]
pend = []; held = []; UPAT = int(opts.get("upat", 3))
IXAT = int(opts.get("ixat", 2))
for mt in range(4):
    d0, d1 = pro_d(mt)
    seq = [(ks, e) for ks in range(4) for e in range(2)]
    if mt == 1:
        a("s_cmp_ge_u32 s22, 4\ns_cbranch_scc1 P_x1")
        if UAT == 0: a("s_cmp_lt_u32 s35, 800\ns_cbranch_scc1 P_u1\ns_waitcnt vmcnt(1)\nP_u1:")
        poll_check(68, IX+10, IX+8, 9 if UAT == 0 else 1)
        x_load()
        if UAT == 1:
            a("s_cmp_ge_u32 s35, 800\ns_cbranch_scc1 P_x1")
            w1_loads(36)
        a("P_x1:")
    if mt == IXAT:
        a("s_cmp_lt_u32 s35, 800\ns_cbranch_scc1 P_u2\ns_waitcnt vmcnt(0)\nP_u2:")
        poll_check(31, AD+2, AD, 8)
        stamp("y1")
        a("s_cmp_ge_u32 s22, 4\ns_cbranch_scc1 P_x2")
        x_write()
        a("s_mov_b64 exec, 1\nds_add_u32 v224, v225\ns_mov_b64 exec, -1")
        a("P_x2:")
        a("s_lshl_b32 s68, s70, 16\ns_and_b32 s69, s70, 0xffff0000\ns_lshl_b32 s70, s71, 16\ns_and_b32 s71, s71, 0xffff0000")
        for x in range(4):
            a(f"buffer_load_dwordx4 {rg(IX+4*x,4)}, v{VL16}, s[12:15], s28 offen offset:{1024*x} {SC}")
        a("s_add_u32 s28, s28, 4096\ns_mov_b32 s21, 0")
        a(f"s_cmp_lg_u32 s22, {FIN}\ns_cbranch_scc1 P_f")
        srd(a, 4, 40, 16384*26)
        a(f"s_mov_b32 m0, {XWL}\ns_mul_i32 s20, s34, 1664\nbuffer_load_dwordx4 v1, s[4:7], s20 offen lds\nbuffer_load_dwordx4 v1, s[4:7], s20 offen offset:1024 lds")
        srd(a, 4, 44, 2)
        a(f"s_mov_b32 m0, {XWL+2048}\nv_mov_b32 v{RAW+3}, 0\nbuffer_load_ushort v{RAW+3}, s[4:7], 0 offen lds")
        srd(a, 4, 52, 2)
        a(f"s_mov_b32 m0, {XWL+2304}\ns_nop 0\nbuffer_load_ushort v{RAW+3}, s[4:7], 0 offen lds")
        srd(a, 4, 42, 26)
        a(f"v_lshlrev_b32 v{RAW+2}, 1, v2\nbuffer_load_ushort v{VWIDE}, v{RAW+2}, s[4:7], 0 offen\ns_mov_b32 m0, s23")
        a("P_f:")
    if mt == UPAT:
        a(f"s_cmp_ge_u32 s35, 800\ns_cbranch_scc1 P_k2\ns_cmp_eq_u32 s22, {FIN}\ns_cbranch_scc1 P_k\ns_waitcnt vmcnt(4)\nP_k:\ns_waitcnt vmcnt(9)")
        w1_process(POOL, WR_, 37)
        a("P_k2:")
    if TP == 1: a(f"s_setprio {3 - mt}")
    for n, (ks, e) in enumerate(seq):
        if mt == 0: a(f"s_waitcnt lgkmcnt({7 - n})")
        a(tg_mfma(mt, ks, e, d0 if e == 0 else d1))
        take = (len(pend) + (7 - n)) // (8 - n)
        for o in pend[:take]: a(o)
        pend = pend[take:]
    assert not pend
    cvs = [f"v_cvt_pk_bf16_f32 v{POOL+16*mt+r}, v{d0+r}, v{d1+r}" for r in range(16)]
    wrs = [wr_op(16*mt + r) for r in range(16)]
    HOLD = int(opts.get("hold", 10)) if mt else 0
    body = []
    for r in range(16):
        body.append(cvs[r])
        if 1 <= r <= 16 - HOLD and mt < 3: body.extend(wrs[r-1])
        if r == 15 and HOLD == 0 and mt < 3: body.extend(wrs[15])
        if 1 <= r and mt == 3: body.extend(wrs[r-1])
    if mt == 3: body.extend(wrs[15])
    pend = (held if held else ["s_nop 5", "s_nop 5"]) + body
    held = [o for w in wrs[16 - HOLD:] for o in w] if mt < 3 and HOLD else []
    if mt == 2:
        for s in range(8):
            for c in range(4): pend.append(f"v_mov_b32 v{ACC+4*s+c}, s{68+c}")
stamp("y2")
a("s_mov_b32 s20, 0\nP_cnt:\nds_read_b32 v225, v224\ns_add_u32 s20, s20, 1\ns_waitcnt lgkmcnt(0)\nv_readfirstlane_b32 s27, v225\ns_cmp_ge_u32 s27, 4\ns_cbranch_scc1 P_cok\ns_cmp_lt_u32 s20, 0x100000\ns_cbranch_scc1 P_cnt\nP_cok:")
for o in pend: a(o)
wf_read_x(0)
a(f"s_cmp_lt_u32 s35, 800\ns_cbranch_scc1 P_m7\ns_cmp_eq_u32 s22, {FIN}\ns_cbranch_scc1 P_m7\ns_waitcnt vmcnt(3)\nP_m7:\ns_waitcnt vmcnt(7)")
stamp()

LA = int(opts.get("la", 1)); PAT = opts.get("pat", "SACMRL"); GP = int(opts.get("gp", 1))
RING = 8 * (LA + 1); DX = GD + 16
assert RING <= 16
assert LA == 1
def pre_ops():
    ops = [f"v_lshlrev_b32_sdwa v{GD + 2*x}, 3, v{IX + x//2} dst_sel:DWORD dst_unused:UNUSED_PAD src0_sel:DWORD src1_sel:WORD_{x&1}" for x in range(8)]
    return ops + [f"buffer_load_dwordx4 {rg(IX,4)}, v{VL16}, s[12:15], s28 offen {SC}"]
def gather_phase(nunits, mf, cv, extra, acc_of, head=None, tail=None):
    NB = nunits * 2
    log = [("ix", u) for u in range(4)]
    def vm_wait(tag):
        idx = len(log) - 1 - log[::-1].index(tag)
        a(f"s_waitcnt vmcnt({len(log) - 1 - idx})")
    def A(b):
        if b >= NB: return
        u = b // 2
        if b % 2 == 0: vm_wait(("ix", u))
        for x in range(4):
            d = IX + 4*(u & 3) + 2*(b & 1) + x//2
            a(f"v_lshlrev_b32_sdwa v{GD + (8*b) % RING + 2*x}, 3, v{d} dst_sel:DWORD dst_unused:UNUSED_PAD src0_sel:DWORD src1_sel:WORD_{x&1}")
    def R(b, lo=0, hi=4):
        if b >= NB: return
        for x in range(lo, hi):
            q = GD + (8*b) % RING + 2*x
            a(f"ds_read_b64 {rg(q,2)}, v{q}")
    def L(b):
        u = b // 2
        if b >= NB or b % 2 == 0 or not (nunits == 16 or u + 4 < nunits): return
        if u + 4 >= 16 and nunits == 20:
            for h in range(2):
                a(f"buffer_load_dwordx2 {rg(IX+4*(u&3)+2*h,2)}, v{VXW}, s[12:15], s28 offen offset:{1024*(u&3)+512*h} {SC}")
                log.append(("ix", u + 4))
        else:
            a(f"buffer_load_dwordx4 {rg(IX+4*(u&3),4)}, v{VL16}, s[12:15], s28 offen offset:{1024*(u&3)} {SC}")
            log.append(("ix", u + 4))
        if u & 3 == 3: a("s_add_u32 s28, s28, 4096")
    def emit(ops):
        for o in ops:
            if isinstance(o, tuple):
                a(o[0]); log.append(o[1])
            elif o == "WAITRAW": vm_wait(("raw", 0))
            elif o == "WCHECK":
                vm_wait(("wfl", 0))
                a(f"v_cmp_ne_u64 vcc, s[64:65], {rg(RAW,2)}\n{'s_nop 0' if int(opts.get('nochk', 0)) else 's_cbranch_vccnz W_slow'}\nW_back:")
            else: a(o)
    if head:
        log.append(("ix", 4))
        head()
        for b in range(LA + 1): R(b)
    else:
        for b in range(LA + 1): A(b); R(b); L(b)
    for b in range(NB):
        if GP and b % (NB // 4) == 0 and b: a(f"s_setprio {3 - b // (NB // 4)}")
        nb = b + LA + 1
        for ch in PAT:
            if ch == "S":
                a(f"s_waitcnt lgkmcnt({min(NB, nb) * 4 - 4*(b+1)})")
                if tail and b == NB - 1: tail()
                a(f"v_smfmac_f32_16x16x64_bf16 {rg(ACC+4*acc_of(b),4)}, {rg(SEL,4)}, {rg(GD + (8*b) % RING, 8)}, v{SIDX}")
            elif ch == "A": A(nb)
            elif ch == "R": R(nb)
            elif ch == "r": R(nb, 0, 2)
            elif ch == "q": R(nb, 2, 4)
            elif ch == "M": emit(mf.get(b, []))
            elif ch == "C": emit(cv.get(b, []))
            elif ch == "L": L(nb)
        emit(extra.get(b, []))
    return log, vm_wait
CYC = int(opts.get("cyc", 0))
def cyc(acc):
    if CYC == 2:
        if acc in (95, 93, 90):
            for k in range(12, 1, -1): a(f"s_mov_b32 s{76+2*k}, s{74+2*k}")
            a("s_memtime s[78:79]\ns_waitcnt lgkmcnt(0)")
    elif CYC: a(f"s_memtime s[98:99]\ns_waitcnt lgkmcnt(0)\ns_sub_u32 s100, s98, s96\ns_add_u32 s{acc}, s{acc}, s100\ns_mov_b32 s96, s98")
pad(PADPRO)
if CYC == 1: a("s_memtime s[96:97]\ns_waitcnt lgkmcnt(0)\ns_mov_b32 s92, 0\ns_mov_b32 s93, 0\ns_mov_b32 s94, 0\ns_mov_b32 s95, 0\ns_mov_b32 s90, 0")
for o in pre_ops(): a(o)
if int(opts.get("ga", 0)): a.raw(f"    .p2alignl {int(opts.get('ga'))}, 0xbf800000")
if int(opts.get("gs4", 0)): a("s_nop 0")
a("L_G:")
g_start = len(a.lines)
DD = [(POOL+32, POOL+48), (POOL+16, DX), (POOL+32, POOL+48), (DX, WF)]
mf = {}; cv = {}
for mt in range(4):
    seq = [(ks, e) for ks in range(4) for e in range(2)] if mt < 3 else [(ks, 0) for ks in range(4)] + [(ks, 1) for ks in range(4)]
    for n, (ks, e) in enumerate(seq): mf[8*mt + n] = [tg_mfma(mt, ks, e, DD[mt][e])]
    if mt < 3:
        for r in range(16):
            cv.setdefault(8*mt + 9 + (r * 7) // 16, []).append(f"v_cvt_pk_bf16_f32 v{POOL+16*mt+r}, v{DD[mt][0]+r}, v{DD[mt][1]+r}")
WFE = int(opts.get("wfe", 0))
if True:
    ml = [mf[k][0] for k in range(32)]
    mf = {}; cv = {}
    for mt in range(4):
        for n in range(8): mf.setdefault(7*mt + (n * 7) // 8, []).append(ml[8*mt + n])
        span = 6 if mt < 3 else 3
        for r in range(16):
            cv.setdefault(7*mt + 8 + (r * span) // 16, []).append(f"v_cvt_pk_bf16_f32 v{POOL+16*mt+r}, v{DD[mt][0]+r}, v{DD[mt][1]+r}")
PB = int(opts.get("pb", 15)); RB_ = int(opts.get("rb", 20)); XBAT = int(opts.get("xb", 29))
extra = {}
extra[PB] = ["s_cmp_eq_u32 s21, 4", "s_cselect_b32 s20, 1, 7", f"v_min_u32 v{RAW+2}, s20, v2", f"v_lshlrev_b32 v{RAW+2}, 3, v{RAW+2}",
             (f"buffer_load_dwordx2 {rg(RAW,2)}, v{RAW+2}, s[12:15], s29 offen {SC}", ("wfl", 0))]
extra[RB_] = ["WCHECK", (f"buffer_load_dwordx4 {rg(RAW,4)}, v{VL16}, s[12:15], s26 offen {SC}", ("raw", 0)), "s_add_u32 s26, s26, 8192", "s_add_u32 s29, s29, 64"]
extra[XBAT] = ["WAITRAW", f"ds_write_b128 v{VXW}, {rg(RAW,4)}", "s_mov_b32 m0, s23", "s_add_u32 s21, s21, 1"]
def g_head():
    a(f"s_setprio 3\ns_cmp_eq_u32 s21, 0\ns_waitcnt lgkmcnt({8 - WFE})"); cyc(94); a("s_barrier"); cyc(95)
    if CYC: a("s_cmp_eq_u32 s21, 0")
    a("s_cbranch_scc1 L_first\nL_G1:")
WP = int(opts.get("wp", 1))
def g_tail():
    cyc(92); a("s_barrier"); cyc(93)
    if WP: a("s_setprio 3")
    for r in range(4):
        for o in wr_op(r): a(o)
log, vm_wait = gather_phase(16, mf, cv, extra, lambda b: b // 4, g_head, g_tail)
po = pre_ops()
PA = int(opts.get("pa", 40))
wfo = [f"ds_read_b128 {rg(WF+4*x,4)}, v{VXR} offset:{XS*x}" for x in range(8)]
for r in range(4, 64):
    if WP and r % 16 == 0: a(f"s_setprio {3 - r // 16}")
    for o in wr_op(r): a(o)
    if r == PA:
        if STRICT in (1, 2): a("s_waitcnt vmcnt(0)")
        else: vm_wait(("ix", 16))
    if PA <= r < PA + 9: a(po[r - PA])
    if r % 6 == 4 and r // 6 < WFE: a(wfo[r // 6])
a("s_cmp_eq_u32 s21, 5\ns_cbranch_scc1 L_Wlast")
for o in wfo[WFE:]: a(o)
if STRICT == 3: a("s_cmp_eq_u32 s21, 3\ns_cbranch_scc1 L_drain")
a("s_cmp_lg_u32 s21, 1\ns_cbranch_scc1 L_G")
for x in range(4): a(f"v_mov_b32 v{RAW+x}, -1")
a(f"buffer_store_dwordx4 {rg(RAW,4)}, v0, s[12:15], s75 offen {SC}\nbuffer_store_dwordx4 {rg(RAW,4)}, v0, s[12:15], s75 offen offset:128 {SC}")
a("L_nosent:")
a("s_branch L_G")
g_end = len(a.lines)
if STRICT == 3: a("L_drain:\ns_waitcnt vmcnt(0)\ns_branch L_G")
a("L_first:")
a("s_cmp_ge_u32 s35, 800\ns_cbranch_scc1 L_G1\ns_waitcnt vmcnt(%d)" % (0 if STRICT in (1, 3) else 1))
a(f"v_mov_b32 v{RAW+2}, 0\nv_mov_b32 v{RAW}, s64\nv_mov_b32 v{RAW+1}, s65\ns_mov_b64 exec, 1\nbuffer_store_dwordx2 {rg(RAW,2)}, v{RAW+2}, s[12:15], s38 offen {SC}\ns_mov_b64 exec, -1")
a("s_branch L_G1")
a("W_slow:")
poll_check(29, RAW, RAW+2)
a("s_branch W_back")
a("L_Wlast:")
a(f"v_and_b32 v{AD}, 1, v2\nv_mul_u32_u24 v{AD}, {4*XS}, v{AD}\nv_bfe_u32 v{AD+1}, v2, 1, 1\nv_lshl_add_u32 v{AD}, v{AD+1}, 4, v{AD}")
a(f"v_bfe_u32 v{AD+1}, v2, 3, 1\nv_lshl_add_u32 v{AD}, v{AD+1}, 5, v{AD}\nv_bfe_u32 v{AD+1}, v2, 2, 1\nv_lshl_add_u32 v{AD}, v{AD+1}, 6, v{AD}")
a(f"v_lshrrev_b32 v{AD+1}, 5, v2\nv_lshl_add_u32 v{AD}, v{AD+1}, 9, v{AD}\nv_add_u32 v{AD}, {XB}, v{AD}")
for x in range(4): a(f"ds_read_b128 {rg(WF+4*x,4)}, v{AD} offset:{XS*x}")
a(f"v_lshlrev_b32 v{VXW}, 3, v2")
a("s_cmp_lg_u32 s22, 0\ns_cbranch_scc1 L_Gl0")
a(f"s_lshl_b32 s31, s34, 3\ns_add_u32 s31, s31, {F2}")
flag_store(31)
a("L_Gl0:")
X = DX
a(f"s_cmp_lg_u32 s22, {FIN}\ns_cbranch_scc1 L_Glast")
a(f"v_and_b32 v{RAW}, 7, v2\nv_bfe_u32 v{RAW+1}, v2, 3, 1\nv_lshl_add_u32 v{RAW}, v{RAW+1}, 5, v{RAW}\nv_lshrrev_b32 v{RAW+1}, 4, v2\nv_lshl_add_u32 v{RAW}, v{RAW+1}, 3, v{RAW}\nv_mul_u32_u24 v{RAW}, 26, v{RAW}\nv_add_u32 v{RAW}, {XWL}, v{RAW}\nv_mov_b32 v{RAW+1}, {XWL+2048}")
for k in range(13): a(f"ds_read_u16_d16_hi v{X+k}, v{RAW} offset:{2*k}")
a(f"ds_read_u16_d16_hi v{X+13}, v{RAW+1}\nds_read_u16_d16_hi v{X+14}, v{RAW+1} offset:256")
a("L_Glast:")
mf = {}; cv = {}; extra = {}
for mt in range(4):
    d = POOL + 16*mt
    for ks in range(4):
        c = "0" if ks == 0 else rg(d, 16)
        mf[4*mt + ks] = [f"v_mfma_f32_32x32x16_bf16 {rg(d,16)}, {rg(WF+4*ks,4)}, {rg(TAB+16*mt+4*ks,4)}, {c}"]
    cv[4*mt + 5] = [f"v_cvt_pk_bf16_f32 v{d+x}, v{d+2*x}, v{d+2*x+1}" for x in range(2)]
    cv[4*mt + 6] = [f"v_cvt_pk_bf16_f32 v{d+x}, v{d+2*x}, v{d+2*x+1}" for x in range(2, 4)]
    extra[4*mt + 6] = [f"ds_write_b128 v{VSP}, {rg(d,4)} offset:{(32*(mt & 1) + 512*(mt >> 1)) * 32}"]
if not int(opts.get("nomb", 0)): extra[int(opts.get("mbat", 26))] = ["s_barrier"]
if int(opts.get("nosp", 0)): mf = {}; cv = {}; extra = {}
EP = int(opts.get("ep", 1))
RST = "sc1"
Y = TAB
def epi(s):
    return [f"v_cvt_pk_bf16_f32 v{POOL+2*s}, v{ACC+4*s}, v{ACC+4*s+1}", f"v_cvt_pk_bf16_f32 v{POOL+2*s+1}, v{ACC+4*s+2}, v{ACC+4*s+3}",
            f"v_pk_max_i16 v{POOL+2*s}, v{POOL+2*s}, 0", f"v_pk_max_i16 v{POOL+2*s+1}, v{POOL+2*s+1}, 0",
            f"v_dot2_f32_bf16 v{POOL+16+s}, v{POOL+2*s}, s72, 0", f"v_dot2_f32_bf16 v{POOL+16+s}, v{POOL+2*s+1}, s73, v{POOL+16+s}"]
def epi2(s): return [f"v_min_u32 v{POOL+16+s}, s33, v{POOL+16+s}"]
st0 = f"buffer_store_dwordx4 {rg(POOL+16,4)}, v0, s[12:15], s75 offen {RST}"
st1 = f"buffer_store_dwordx4 {rg(POOL+20,4)}, v0, s[12:15], s75 offen offset:128 {RST}"
extra[28] = ["s_lshl_b32 s31, s24, 9", f"s_add_u32 s31, s31, {F2}", "s_mov_b32 s33, -2", "s_mov_b32 s20, 0",
             (f"buffer_load_dwordx2 {rg(RAW,2)}, v{VXW}, s[12:15], s31 offen {SC}", ("f2", 0))]
extra[30] = [f"s_lshl_b32 s29, s34, 14", "s_lshl_b32 s27, s22, 11", "s_add_u32 s29, s29, s27", f"s_add_u32 s29, s29, {PART}",
             f"v_lshlrev_b32 v{Y+12}, 2, v2", f"v_add_u32 v{Y+12}, {PADR}, v{Y+12}", "s_lshl_b32 s27, s22, 8", f"v_add_u32 v{Y+13}, s27, v{Y+12}"]
extra[31] = [f"v_and_b32 v{Y+10}, 7, v2", f"v_bfe_u32 v{Y+11}, v2, 3, 1", f"v_lshl_add_u32 v{Y+10}, v{Y+11}, 5, v{Y+10}", f"v_lshrrev_b32 v{Y+11}, 4, v2",
             f"v_lshl_add_u32 v{Y+10}, v{Y+11}, 3, v{Y+10}", "s_lshl_b32 s27, s34, 6", f"v_add_u32 v{Y+10}, s27, v{Y+10}", f"v_lshlrev_b32 v{Y+10}, 1, v{Y+10}",
             "s_mov_b32 s8, s54", "s_and_b32 s9, s55, 0xffff", "s_mov_b32 s10, 32768", "s_mov_b32 s11, 0x00020000"]
if EP:
    for s in range(7): cv[33 + s] = epi(s) + (epi2(s-1) if s else [])
    extra[37] = [(st0, ("st", 0))]
if CYC == 2: extra.setdefault(29, []).extend([f"s_mov_b32 s{76+2*k}, s{74+2*k}" for k in range(12, 1, -1)] + ["s_memtime s[78:79]", "s_waitcnt lgkmcnt(0)"])
def gl_head():
    a("s_setprio 3\ns_waitcnt lgkmcnt(0)"); cyc(94); a("s_barrier"); cyc(95)
gather_phase(20, mf, cv, extra, lambda b: b // 4 if b < 32 else b - 32, gl_head)
cyc(90)
stamp()
if EP:
    a("s_nop 0")
    for o in epi(7): a(o)
    for o in epi2(6): a(o)
    a("s_nop 1")
    for o in epi2(7): a(o)
    a(st1)
else:
    a("s_nop 7")
    for k in range(6):
        for s in range(8): a(epi(s)[k])
    for s in range(8): a(epi2(s)[0])
    a(st0); a(st1)
a(f"s_cmp_lg_u32 s22, {FIN}\ns_cbranch_scc1 R_f2\ns_mov_b32 s27, 0xffff0000")
a(f"v_lshlrev_b32 v{X+15}, 16, v{VWIDE}")
for k in range(15): a(f"v_and_b32 v{X+k}, s27, v{X+k}")
for k in range(13): a(f"v_readlane_b32 s{36+k}, v{X+15}, {k}")
a(f"v_readfirstlane_b32 s74, v{X+14}\nv_mul_f32 v{VWIDE}, s36, v{X}")
for k in range(1, 13): a(f"v_fmac_f32 v{VWIDE}, s{36+k}, v{X+k}")
rnd(VWIDE); a(f"v_add_f32 v{VWIDE}, v{VWIDE}, v{X+13}"); rnd(VWIDE)
DRY = int(opts.get("dry", 0))
if DRY: a("s_mov_b32 s35, 0\ns_branch R_fin")
a("R_f2:")
a(f"s_waitcnt vmcnt(0)\nv_cmp_ne_u64 vcc, s[64:65], {rg(RAW,2)}\ns_cbranch_vccz R_f2ok")
a(f"s_sleep 1\nbuffer_load_dwordx2 {rg(RAW,2)}, v{VXW}, s[12:15], s31 offen {SC}\ns_add_u32 s20, s20, 1\ns_cmp_lt_u32 s20, 0x8000\ns_cbranch_scc1 R_f2")
a("R_f2ok:")
a("s_mov_b32 s31, s29\ns_mov_b32 s20, 0")
if int(opts.get("rack", 1)): a("s_waitcnt vmcnt(0)")
if int(opts.get("rbar", 0)): a("s_barrier")
if int(opts.get("rdelay", 0)): a(f"s_sleep {int(opts.get('rdelay', 0))}")
PP = int(opts.get("pp", 0)); PSL = int(opts.get("psl", 6))
if PP:
    Z = [Y + 16 + 8*k for k in range(PP)]
    def pl(z): a(f"buffer_load_dwordx4 {rg(z,4)}, v1, s[12:15], s31 offen sc1\nbuffer_load_dwordx4 {rg(z+4,4)}, v1, s[12:15], s31 offen offset:1024 sc1")
    for k in range(PP):
        pl(Z[k])
        if k < PP - 1: a(f"s_sleep {PSL}")
    a("R_poll:")
    for k in range(PP):
        z = Z[k]
        a(f"s_waitcnt vmcnt({2*(PP-1)})")
        a(f"v_max3_u32 v{Y+8}, v{z}, v{z+1}, v{z+2}\nv_max3_u32 v{Y+9}, v{z+3}, v{z+4}, v{z+5}\nv_max3_u32 v{Y+8}, v{Y+8}, v{z+6}, v{z+7}\nv_max_u32 v{Y+8}, v{Y+8}, v{Y+9}")
        for x in range(4): a(f"v_add_f32 v{Y+x}, v{z+x}, v{z+4+x}")
        a(f"v_cmp_eq_u32 vcc, -1, v{Y+8}\ns_cbranch_vccz R_ok")
        pl(z)
    a("s_add_u32 s20, s20, 1\ns_cmp_lt_u32 s20, 0x8000\ns_cbranch_scc1 R_poll")
else:
    a("R_poll:")
    RSC = opts.get("rsc", "sc1").replace("_", " ")
    a(f"buffer_load_dwordx4 {rg(Y,4)}, v1, s[12:15], s31 offen {RSC}\nbuffer_load_dwordx4 {rg(Y+4,4)}, v1, s[12:15], s31 offen offset:1024 {RSC}")
    a("s_add_u32 s20, s20, 1\ns_waitcnt vmcnt(0)")
    a(f"v_max3_u32 v{Y+8}, v{Y}, v{Y+1}, v{Y+2}\nv_max3_u32 v{Y+9}, v{Y+3}, v{Y+4}, v{Y+5}\nv_max3_u32 v{Y+8}, v{Y+8}, v{Y+6}, v{Y+7}\nv_max_u32 v{Y+8}, v{Y+8}, v{Y+9}")
    a(f"v_cmp_eq_u32 vcc, -1, v{Y+8}\ns_cbranch_vccz R_ok")
    a(f"s_sleep {RSLEEP}\ns_cmp_lt_u32 s20, 0x8000\ns_cbranch_scc1 R_poll")
a("R_ok:")
stamp("y3")
if not PP:
    for x in range(4): a(f"v_add_f32 v{Y+x}, v{Y+x}, v{Y+4+x}")
a(f"s_nop 0\nv_permlane32_swap_b32 v{Y}, v{Y+2}\nv_permlane32_swap_b32 v{Y+1}, v{Y+3}\ns_nop 0\nv_add_f32 v{Y}, v{Y}, v{Y+2}\nv_add_f32 v{Y+1}, v{Y+1}, v{Y+3}\ns_nop 1\nv_permlane16_swap_b32 v{Y}, v{Y+1}\ns_nop 0\nv_add_f32 v{Y}, v{Y}, v{Y+1}")
a(f"ds_write_b32 v{Y+13}, v{Y}\ns_waitcnt lgkmcnt(0)\ns_barrier")
a(f"s_cmp_lg_u32 s22, {FIN}\ns_cbranch_scc1 M_fin\ns_mov_b32 s35, 1")
a("R_fin:")
for k in range(8): a(f"ds_read_b32 v{Y+k}, v{Y+12} offset:{256*k}")
a("s_waitcnt lgkmcnt(0)")
a(f"v_add_f32 v{Y}, v{Y}, v{Y+1}\nv_add_f32 v{Y+2}, v{Y+2}, v{Y+3}\nv_add_f32 v{Y+4}, v{Y+4}, v{Y+5}\nv_add_f32 v{Y+6}, v{Y+6}, v{Y+7}\nv_add_f32 v{Y}, v{Y}, v{Y+2}\nv_add_f32 v{Y+4}, v{Y+4}, v{Y+6}\nv_add_f32 v{Y}, v{Y}, v{Y+4}")
rnd(Y); a(f"v_add_f32 v{Y}, s74, v{Y}"); rnd(Y)
a(f"v_add_f32 v{Y}, v{Y}, v{VWIDE}"); rnd(Y)
a(f"v_mul_f32 v{Y}, 0xbfb8aa3b, v{Y}\nv_exp_f32 v{Y}, v{Y}\ns_nop 0\nv_add_f32 v{Y}, 1.0, v{Y}\nv_rcp_f32 v{Y}, v{Y}\ns_nop 0\nv_cvt_pk_bf16_f32 v{Y}, v{Y}, v{Y}")
if DRY: a("s_cmp_eq_u32 s35, 0\ns_cbranch_scc1 R_f2")
a(f"buffer_store_short v{Y}, v{Y+10}, s[8:11], 0 offen {opts.get('osc', '').replace('_', ' ')}")
a("M_fin:")
if int(opts.get("xcc", 0)):
    a("s_and_b32 s20, s2, 7\ns_cmp_lg_u32 s20, 0\ns_cbranch_scc1 M_end\ns_getreg_b32 s21, hwreg(HW_REG_XCC_ID)\ns_and_b32 s21, s21, 15\ns_bfe_u32 s20, s65, 0x40018\ns_cmp_eq_u32 s20, s21\ns_cbranch_scc1 M_end")
pad(PADEND)
PROBE = int(opts.get("probe", -1))
if PROBE >= 0:
    a(f"s_cmp_lg_u32 s22, {SW}\ns_cbranch_scc1 M_end")
    if int(opts.get("pwg", -1)) >= 0: a(f"s_cmp_lg_u32 s2, {int(opts.get('pwg'))}\ns_cbranch_scc1 M_end")
    a("s_waitcnt vmcnt(0)")
    stamp()
    a(f"s_waitcnt lgkmcnt(0)\ns_sub_u32 s20, s{76+2*PROBE}, s64\ns_mul_i32 s20, s20, {int(opts.get('gain', 10))}\ns_add_u32 s20, s20, 4000")
    a("PRB:\ns_memrealtime s[32:33]\ns_waitcnt lgkmcnt(0)\ns_sub_u32 s32, s32, s64\ns_cmp_lt_i32 s32, s20\ns_cbranch_scc1 PRB")
elif STAMP:
    a(f"s_cmp_lg_u32 s22, {SW}\ns_cbranch_scc1 M_end")
    a("s_waitcnt vmcnt(0)")
    stamp()
    a("s_waitcnt lgkmcnt(0)")
    n = nst[0]
    if int(opts.get('mt', 0)):
        for k in range(n - 1, -1, -1): a(f"s_sub_u32 s{76+2*k}, s{76+2*k}, s76\ns_mov_b32 s{77+2*k}, 0")
    if CYC == 2:
        n = 13
        for k in range(1, 12): a(f"s_sub_u32 s{76+2*k}, s{76+2*k}, s{78+2*k}\ns_mov_b32 s{77+2*k}, 0")
        a("s_mov_b32 s76, 0\ns_mov_b32 s77, 0\ns_mov_b32 s100, 0\ns_mov_b32 s101, 0")
    elif CYC:
        for k, r in enumerate([92, 93, 94, 95, 90]): a(f"s_mov_b32 s{78+2*k}, s{r}\ns_mov_b32 s{79+2*k}, 0")
        a("s_mov_b32 s76, 0\ns_mov_b32 s77, 0")
    elif PADPRO: a("s_mov_b32 s76, s64\ns_and_b32 s77, s65, 0x7fffffff")
    a(f"s_mul_i32 s31, s2, {8*n}\ns_add_u32 s31, s31, 0x8000000\nv_mov_b32 v2, 0")
    for k in range(n):
        a(f"v_mov_b32 v4, s{76+2*k}\nv_mov_b32 v5, s{77+2*k}\nbuffer_store_dwordx2 v[4:5], v2, s[12:15], s31 offen offset:{8*k}\ns_waitcnt vmcnt(0)")
    print("nstamps", n)
a("M_end:\ns_endpgm")
import re
MW = int(opts.get("mw", 0)); AL = int(opts.get("al", 0))
if MW:
    k = g_start
    while k < len(a.lines) - 2:
        l0, l1, l2 = a.lines[k].strip(), a.lines[k+1].strip(), a.lines[k+2].strip()
        if re.fullmatch(r"s_waitcnt lgkmcnt\(\d+\)", l0) and l1.startswith("v_smfmac") and re.fullmatch(r"s_waitcnt vmcnt\(\d+\)", l2):
            a.lines[k] = "    " + l2 + " " + l0.split()[1]
            del a.lines[k+2]
            if k + 2 < g_end: g_end -= 1
        k += 1
if AL:
    k = g_start
    while k < len(a.lines):
        if a.lines[k].strip().startswith("v_smfmac"):
            a.lines.insert(k, "    .p2alignl 3, 0xbf800000")
            if k < g_end: g_end += 1
            k += 1
        k += 1
L = a.lines
errs = hazard.check_all(L[st:g_end] + L[g_start:], "main")
a.raw(kernel_desc(MAIN, 256, 102, 256))
for e in sorted(set(errs)): print("HAZARD", e)
open(sys.argv[1], "w").write(a.text())
```

```python
import sys, re
from common import *
import hazard
opts = dict(x.split("=") for x in sys.argv[2:])
def O(k, d): return int(opts.get(k, d))
STAMP = O("stamp", 0); SW = O("sw", 7); SC = "sc1"; SLEEP = 1; RSLEEP = 2
WS_BYTES = 268435456
WFR = 4 << 20; PART = 8 << 20; FI = 16 << 20; FW = FI + 16384; F2 = FI + 32768; FE = FI + 65536; FX = 17 << 20; HX = 20 << 20
STG = 131072; XWL = STG + 25600; XB = 131072; XS = 3200; PADR = 128000
DOC = """;
; Generated by a script written for this kernel (gen/h2.py)."""
a = Asm()
a.raw(HEADER_COMMENT.rstrip("\n"))
a.raw("; @launch grid=(256,1,1) block=(512,1,1) lds=163840")
a.raw(DOC)
a.raw('.amdgcn_target "amdgcn-amd-amdhsa--gfx950"')
kernel_begin(a, MAIN)
LN = 0; VL16 = 1
TAB = 2; ACC = 66; WF = 130; POOL = 162; T8 = 210; GD = 218; IX = 234; SEL = 250; SIDX = 254; VT = 255
T = ACC; U = T8; WR_ = GD; AD = IX + 12; TD = POOL; FR = POOL + 4
FIN = 7
def rg(b, n): return f"v[{b}:{b+n-1}]"
nst = [0]; lab = [0]
SKIP = set(opts.get("skip", "").split(","))
CYC = O("cyc", 0)
def stamp(name="-"):
    if STAMP and name not in SKIP and not (CYC and nst[0] >= 1):
        k = nst[0]; nst[0] += 1
        assert k < 13
        a(f"{'s_memtime' if O('mt', 0) else 's_memrealtime'} s[{76+2*k}:{77+2*k}]")
def cyc_ops(): return [f"s_mov_b32 s{76+2*k}, s{74+2*k}" for k in range(12, 1, -1)] + ["s_memtime s[78:79]", "s_waitcnt lgkmcnt(0)"] if CYC else []
def cyc():
    for o in cyc_ops(): a(o)
def newlab(p):
    lab[0] += 1; return f"{p}{lab[0]}"
def rnd(r): a(f"v_cvt_pk_bf16_f32 v{r}, v{r}, v{r}\nv_lshlrev_b32 v{r}, 16, v{r}")
PADPRO = O("padpro", 0)
def pad(ticks):
    if not ticks: return
    l = newlab("PAD_")
    a(f"{l}:\ns_memrealtime s[32:33]\ns_waitcnt lgkmcnt(0)\ns_sub_u32 s32, s32, s64\ns_cmp_lt_i32 s32, {ticks}\ns_cbranch_scc1 {l}")
st = len(a.lines)
a("s_cmp_ge_u32 s2, 256\ns_cbranch_scc1 M_end")
stamp()
a("s_load_dwordx16 s[36:51], s[0:1], 0\ns_load_dwordx8 s[52:59], s[0:1], 64\ns_memrealtime s[64:65]")
NCP = O("ncp", 8)
a(f"s_getpc_b64 s[32:33]\nC_base:\ns_lshr_b32 s29, s2, 3\ns_mul_i32 s20, s29, {128*NCP}\nv_lshl_add_u32 v{VT}, v0, 7, s20\nv_min_u32 v{VT}, C_end-C_base, v{VT}")
a(f"v_cmp_gt_u32 vcc, {NCP}, v0\ns_and_saveexec_b64 s[20:21], vcc\ns_cbranch_execz C_skip\nglobal_load_dword v{VT}, v{VT}, s[32:33]\nC_skip:\ns_mov_b64 exec, -1")
a(f"v_lshrrev_b32 v{T}, 6, v0\nv_and_b32 v0, 63, v0\nv_lshlrev_b32 v1, 4, v0\nv_readfirstlane_b32 s22, v{T}")
a("s_and_b32 s20, s2, 7\ns_lshr_b32 s24, s20, 1\ns_and_b32 s20, s20, 1\ns_lshl_b32 s20, s20, 5\ns_add_u32 s25, s20, s29")
a("s_lshl_b32 s34, s24, 6\ns_add_u32 s34, s34, s25")
a("s_lshl_b32 s35, s22, 8\ns_add_u32 s35, s35, s34")
a(f"v_lshrrev_b32 v{U}, 4, v0\nv_and_b32 v{U+1}, 15, v0\nv_lshlrev_b32 v{U+2}, 15, v{U}\nv_lshl_add_u32 v{U+2}, v{U+1}, 3, v{U+2}\nv_mov_b32 v{U+5}, 0")
a("s_lshr_b32 s20, s35, 5\ns_lshl_b32 s20, s20, 17\ns_bfe_u32 s21, s35, 0x30002\ns_lshl_b32 s21, s21, 12\ns_add_u32 s20, s20, s21\ns_and_b32 s21, s35, 3\ns_lshl_b32 s21, s21, 7\ns_add_u32 s31, s20, s21")
a(f"s_mul_i32 s20, s34, 25600\ns_mul_i32 s21, s22, 3200\ns_add_u32 s20, s20, s21\ns_add_u32 s33, s21, {STG}\ns_mov_b32 m0, s33")
a("s_lshl_b32 s23, s22, 13\ns_add_u32 s30, s23, 8064")
a("s_mov_b32 s18, 3276800\ns_mov_b32 s19, 0x00020000\ns_mov_b32 s6, 6553600\ns_mov_b32 s7, 0x00020000")
a("s_waitcnt lgkmcnt(0)")
stamp()
a("s_mov_b32 s16, s46\ns_and_b32 s17, s47, 0xffff\ns_mov_b32 s4, s36\ns_and_b32 s5, s37, 0xffff")
srd(a, 60, 56, 256)
srd(a, 12, 58, WS_BYTES)
a("s_cmp_lg_u32 s22, 6\ns_cbranch_scc1 P_n0\ns_cmp_ge_u32 s2, 8\ns_cbranch_scc1 P_n0")
a(f"v_mov_b32 v{T+4}, s64\nv_mov_b32 v{T+5}, s65\nv_mov_b32 v{T+6}, 0\nv_mov_b32 v{T+7}, 0\nv_or_b32 v{T+5}, 0x80000000, v{T+5}\ns_mov_b64 exec, 1")
a(f"buffer_atomic_cmpswap_x2 {rg(T+4,4)}, v{T+6}, s[60:63], 0 offen {SC}\ns_mov_b64 exec, -1\ns_nop 1")
a("P_n0:")
def w1_loads(sreg=31):
    for j8 in range(8):
        a(f"buffer_load_dwordx2 {rg(WR_+2*j8,2)}, v{U+2}, s[16:19], s{sreg} offen offset:{512*j8}")
a("s_cmp_lg_u32 s22, 0\ns_cbranch_scc1 P_now1")
w1_loads()
a("P_now1:")
for r in range(3):
    a(f"buffer_load_dwordx4 v1, s[4:7], s20 offen offset:{1024*r} lds")
a("s_mov_b64 exec, 0xff\nbuffer_load_dwordx4 v1, s[4:7], s20 offen offset:3072 lds\ns_mov_b64 exec, -1")
srd(a, 8, 38, 128000)
a("s_mov_b32 s66, 0x05040100\ns_mov_b32 s67, 0x07060302")
a("s_barrier")
a("s_cmp_lg_u32 s22, 5\ns_cbranch_scc1 P_n5\ns_load_dword s74, s[56:57], 192\nP_n5:")
a("s_cmp_lt_u32 s22, 4\ns_cbranch_scc1 P_lo\ns_cmp_lg_u32 s22, 4\ns_cbranch_scc1 P_skip")
a(f"v_and_b32 v{VT}, 31, v0\nv_lshlrev_b32 v{VT}, 7, v{VT}\ns_lshl_b32 s21, s29, 12\nbuffer_load_dword v{VT}, v{VT}, s[8:11], s21 offen\ns_branch P_skip")
def nonce_load(): a("s_load_dwordx2 s[64:65], s[56:57], 0")
def nonce_get():
    l = newlab("N_")
    a(f"s_waitcnt lgkmcnt(0)\ns_cmp_lt_i32 s65, 0\ns_cbranch_scc1 {l}ok\ns_mov_b32 s20, 0\nv_mov_b32 v{AD}, 0")
    a(f"{l}:")
    a(f"buffer_load_dwordx2 {rg(AD+2,2)}, v{AD}, s[60:63], 0 offen {SC}\ns_add_u32 s20, s20, 1\ns_waitcnt vmcnt(0)")
    a(f"v_readfirstlane_b32 s64, v{AD+2}\nv_readfirstlane_b32 s65, v{AD+3}\ns_cmp_lt_i32 s65, 0\ns_cbranch_scc1 {l}ok")
    a(f"s_sleep 1\ns_cmp_lt_u32 s20, 0x8000\ns_cbranch_scc1 {l}")
    a(f"{l}ok:")
def flag_ops(sreg, t):
    return [f"v_mov_b32 v{t+2}, 0", f"v_mov_b32 v{t}, s64", f"v_mov_b32 v{t+1}, s65", "s_mov_b64 exec, 1",
            f"buffer_store_dwordx2 {rg(t,2)}, v{t+2}, s[12:15], s{sreg} offen {SC}", "s_mov_b64 exec, -1"]
def line_flag_ops(sreg, t, tag=None):
    st_ = f"buffer_store_dwordx4 {rg(t,4)}, v1, s[12:15], s{sreg} offen {SC}"
    return [f"v_mov_b32 v{t}, s64", f"v_mov_b32 v{t+1}, s65", f"v_mov_b32 v{t+2}, s64", f"v_mov_b32 v{t+3}, s65", "s_mov_b64 exec, 0xff",
            (st_, tag) if tag else st_, "s_mov_b64 exec, -1"]
def flag_store(sreg, t=AD):
    for o in flag_ops(sreg, t): a(o)
def w1_process(PR, RB, sreg):
    for c in range(4):
        for d in range(4):
            a(f"v_perm_b32 v{PR+4*c+d}, v{WR_+2*(2*d+1)+(c>>1)}, v{WR_+2*(2*d)+(c>>1)}, s{66+(c&1)}")
    for c in range(4):
        a(f"ds_write_b128 v{U+3}, {rg(PR+4*c,4)} offset:{(c&1)*128 + (c>>1)*16}")
    a("s_waitcnt lgkmcnt(0)")
    for r in range(4):
        a(f"ds_read_b128 {rg(RB+4*r,4)}, v{U+4} offset:{r*4*272}")
    for r in range(4):
        a(f"s_waitcnt lgkmcnt({3-r})\nbuffer_store_dwordx4 {rg(RB+4*r,4)}, v{U+5}, s[12:15], s{sreg} offen {SC}\ns_add_u32 s{sreg}, s{sreg}, {4*65536}")
a("P_lo:")
a("s_cmp_ge_u32 s35, 800\ns_cbranch_scc1 P_skip")
a("s_add_u32 s21, s23, 0x10000")
a(f"v_mul_u32_u24 v{U+3}, 272, v{U+1}\nv_lshl_add_u32 v{U+3}, v{U}, 5, v{U+3}\nv_add_u32 v{U+3}, s21, v{U+3}")
a(f"v_mul_u32_u24 v{U+4}, 272, v{U}\nv_lshl_add_u32 v{U+4}, v{U+1}, 4, v{U+4}\nv_add_u32 v{U+4}, s21, v{U+4}")
a(f"v_lshlrev_b32 v{U+5}, 16, v{U}\nv_bfe_u32 v{U+6}, v0, 3, 1\nv_lshl_add_u32 v{U+5}, v{U+6}, 12, v{U+5}\nv_and_b32 v{U+6}, 7, v0\nv_lshl_add_u32 v{U+5}, v{U+6}, 4, v{U+5}")
a("s_and_b32 s26, s35, 3\ns_lshl_b32 s26, s26, 20\ns_lshr_b32 s21, s35, 7\ns_lshl_b32 s21, s21, 13\ns_add_u32 s26, s26, s21\ns_bfe_u32 s21, s35, 0x30002\ns_lshl_b32 s21, s21, 9\ns_add_u32 s26, s26, s21")
a(f"s_bfe_u32 s21, s35, 0x20005\ns_lshl_b32 s21, s21, 7\ns_add_u32 s26, s26, s21\ns_add_u32 s26, s26, {WFR}")
a(f"s_and_b32 s75, s35, 3\ns_lshl_b32 s75, s75, 11\ns_bfe_u32 s21, s35, 0x20003\ns_lshl_b32 s21, s21, 9\ns_add_u32 s75, s75, s21\ns_lshr_b32 s21, s35, 5\ns_lshl_b32 s21, s21, 4\ns_add_u32 s75, s75, s21\ns_bfe_u32 s21, s35, 0x10002\ns_lshl_b32 s21, s21, 3\ns_add_u32 s75, s75, s21\ns_add_u32 s75, s75, {FW}")
a("s_cmp_ge_u32 s22, 2\ns_cbranch_scc1 P_skip")
a("s_and_b32 s75, s35, 3\ns_lshl_b32 s75, s75, 14\ns_lshr_b32 s21, s35, 7\ns_lshl_b32 s21, s21, 12\ns_add_u32 s75, s75, s21\ns_bfe_u32 s21, s35, 0x20003\ns_lshl_b32 s21, s21, 10\ns_add_u32 s75, s75, s21")
a(f"s_bfe_u32 s21, s35, 0x20005\ns_lshl_b32 s21, s21, 8\ns_add_u32 s75, s75, s21\ns_bfe_u32 s21, s35, 0x10002\ns_lshl_b32 s21, s21, 7\ns_add_u32 s75, s75, s21\ns_add_u32 s75, s75, {FE}")
a("s_cmp_lg_u32 s22, 0\ns_cbranch_scc1 P_skip")
a("s_waitcnt vmcnt(4)")
w1_process(WF, WF+16, 26)
nonce_load()
a("P_skip:")
a(f"v_and_b32 v{T+4}, 7, v0\nv_lshrrev_b32 v{T+5}, 3, v0")
a(f"s_and_b32 s20, s34, 1\ns_lshl_b32 s20, s20, 3\nv_add_u32 v{T+6}, s20, v{T+4}")
a(f"v_mul_u32_u24 v{T+7}, 400, v{T+4}\nv_add_u32 v{T+7}, s33, v{T+7}")
a(f"v_and_b32 v{T+8}, 1, v{T+5}\nv_lshrrev_b32 v{T+9}, 1, v{T+5}")
a(f"v_lshlrev_b32 v{T+10}, 3, v{T+8}\nv_xor_b32 v{T+10}, v{T+10}, v{T+6}")
a(f"v_lshl_add_u32 v{T+11}, v{T+9}, 6, v{T+7}")
a(f"v_lshlrev_b32 v{T+9}, 14, v{T+9}\nv_lshl_add_u32 v{T+9}, v{T+8}, 10, v{T+9}\nv_lshl_add_u32 v{T+9}, v{T+4}, 4, v{T+9}")
SL, LA_, RD, PK, SS = T+12, T+20, T+28, T+44, T+52
for u in range(8):
    a(f"v_xor_b32 v{SL+u}, {u}, v{T+10}")
    a(f"v_lshl_add_u32 v{LA_+u}, v{SL+u}, 2, v{T+11}")
a(f"v_and_b32 v{T+10}, 3, v{T+4}")
for u in range(4):
    a(f"v_xor_b32 v{SS+u}, {u}, v{T+10}\nv_lshl_add_u32 v{SS+4+u}, v{SS+u}, 2, v{T+7}\nv_add_u32 v{SS+u}, 16384, v{SS+u}")
a("s_lshr_b32 s27, s34, 3\ns_mul_i32 s27, s27, 102400\ns_lshl_b32 s20, s22, 11\ns_add_u32 s28, s27, s20\ns_and_b32 s21, s34, 7\ns_lshl_b32 s20, s21, 7\ns_add_u32 s28, s28, s20")
a(f"s_lshl_b32 s20, s22, 9\ns_add_u32 s27, s27, s20\ns_lshl_b32 s20, s21, 6\ns_add_u32 s27, s27, s20\ns_add_u32 s27, s27, 98304\nv_lshlrev_b32 v{T+8}, 3, v{T+4}")
a(f"v_xor_b32 v{TD+1}, v{T+4}, v{U}\nv_lshlrev_b32 v{TD}, 7, v{T+5}\nv_lshl_add_u32 v{TD}, v{TD+1}, 4, v{TD}\nv_xor_b32 v{TD+1}, 64, v{TD}")
def table_dma(mt, s=27):
    a(f"s_add_u32 s{s}, s23, {4096*(mt & 1) + 65536*(mt >> 1)}\ns_mov_b32 m0, s{s}\ns_nop 0")
    for x in range(4): a(f"buffer_load_dwordx4 v{TD+(x&1)}, s[8:11], s{s} offen offset:{1024*x} lds")
a("s_cmp_lt_u32 s22, 4\ns_cbranch_scc1 P_np")
table_dma(2, 21); table_dma(3, 21)
a("s_waitcnt vmcnt(8)\ns_branch P_c9")
a("P_np:")
a("s_cmp_lg_u32 s22, 0\ns_cbranch_scc1 P_c0")
nonce_get()
a(f"v_mov_b32 v{AD}, s64\nv_mov_b32 v{AD+1}, s65\nv_mov_b32 v{AD+2}, s64\nv_mov_b32 v{AD+3}, s65\ns_mov_b64 exec, 0xff\ns_waitcnt vmcnt(0)")
a(f"buffer_store_dwordx4 {rg(AD,4)}, v1, s[12:15], s75 offen {SC}\ns_mov_b64 exec, -1")
a("s_mov_b32 s35, 4097\ns_branch P_c9\nP_c0:\ns_waitcnt vmcnt(0)\nP_c9:")
stamp()
for u in range(8): a(f"ds_read_b32 v{RD+u}, v{LA_+u}")
for u in range(8): a(f"ds_read_b32 v{RD+8+u}, v{LA_+u} offset:256")
for u in range(4): a(f"ds_read_b32 v{SS+8+u}, v{SS+4+u} offset:384")
def conv(k):
    for u in range(8):
        a(f"v_lshl_add_u32 v{RD+8*k+u}, v{RD+8*k+u}, 4, v{SL+u}")
    for d in range(4):
        a(f"v_lshl_or_b32 v{PK+4*k+d}, v{RD+8*k+2*d+1}, 16, v{RD+8*k+2*d}")
a("s_waitcnt lgkmcnt(12)")
conv(0)
a(f"buffer_store_dwordx4 {rg(PK,4)}, v{T+9}, s[12:15], s28 offen {SC}")
a("s_waitcnt lgkmcnt(0)")
nonce_load()
conv(1)
for u in range(4): a(f"v_lshrrev_b32 v{SS+4+u}, 1, v{SS+8+u}\nv_lshl_add_u32 v{SS+8+u}, v{SS+8+u}, 2, v{SS+u}\nv_and_b32 v{SS+4+u}, 2, v{SS+4+u}\nv_xor_b32 v{SS+8+u}, v{SS+8+u}, v{SS+4+u}")
a(f"v_lshl_or_b32 v{SS+4}, v{SS+9}, 16, v{SS+8}\nv_lshl_or_b32 v{SS+5}, v{SS+11}, 16, v{SS+10}")
a(f"s_add_u32 s28, s28, 65536\ns_mov_b32 exec_hi, 0\nbuffer_store_dwordx4 {rg(PK+4,4)}, v{T+9}, s[12:15], s28 offen {SC}")
a(f"s_mov_b64 exec, 0xff\nbuffer_store_dwordx2 {rg(SS+4,2)}, v{T+8}, s[12:15], s27 offen {SC}\ns_mov_b64 exec, -1")
a("s_mov_b32 s36, s31\ns_mov_b32 s37, s26\ns_mov_b32 s38, s75")
table_dma(0)
a("s_lshl_b32 s20, s25, 3\ns_add_u32 s48, s48, s20\ns_addc_u32 s49, s49, 0\ns_add_u32 s50, s50, s20\ns_addc_u32 s51, s51, 0")
nonce_get()
a(f"s_lshr_b32 s31, s34, 3\ns_lshl_b32 s31, s31, 9\ns_and_b32 s20, s34, 7\ns_lshl_b32 s20, s20, 6\ns_add_u32 s31, s31, s20\ns_lshl_b32 s20, s22, 3\ns_add_u32 s31, s31, s20\ns_add_u32 s31, s31, {FI}")
a("s_waitcnt vmcnt(0)")
stamp()
flag_store(31)
a("s_lshr_b32 s20, s22, 2\ns_add_u32 s20, s20, 1\ns_lshl_b32 s20, s20, 8\ns_add_u32 s20, s20, s34")
a("s_lshr_b32 s21, s20, 5\ns_lshl_b32 s21, s21, 17\ns_bfe_u32 s39, s20, 0x30002\ns_lshl_b32 s39, s39, 12\ns_add_u32 s21, s21, s39\ns_and_b32 s39, s20, 3\ns_lshl_b32 s39, s39, 7\ns_add_u32 s21, s21, s39")
a("s_and_b32 s39, s22, 3\ns_lshl_b32 s39, s39, 10\ns_add_u32 s21, s21, s39\ns_add_u32 s46, s46, s21\ns_addc_u32 s47, s47, 0")
for f4 in range(4):
    for r in range(2): a(f"s_load_dword s3, s[46:47], {f4*32768 + r*512}")
def pl_op(sreg, tmp, addr): return f"buffer_load_dwordx2 {rg(tmp,2)}, v{addr}, s[12:15], s{sreg} offen {SC}"
def poll_load(sreg, tmp, addr): a(pl_op(sreg, tmp, addr))
def poll_check(sreg, tmp, addr, first_wait=0):
    l = newlab("Q_")
    a(f"s_mov_b32 s20, 0\ns_waitcnt vmcnt({first_wait})")
    a(f"{l}:")
    a(f"v_cmp_ne_u64 vcc, s[64:65], {rg(tmp,2)}\ns_cbranch_vccz {l}ok")
    a(f"s_sleep {SLEEP}")
    poll_load(sreg, tmp, addr)
    a(f"s_add_u32 s20, s20, 1\ns_waitcnt vmcnt(0)\ns_cmp_lt_u32 s20, 0x8000\ns_cbranch_scc1 {l}")
    a(f"{l}ok:")
a("s_cmp_lt_u32 s22, 4\ns_cbranch_scc1 P_g")
a(f"s_and_b32 s21, s24, 1\ns_lshr_b32 s68, s25, 4\ns_lshl_b32 s68, s68, 14\ns_lshl_b32 s20, s21, 12\ns_add_u32 s68, s68, s20\ns_and_b32 s20, s22, 3\ns_lshl_b32 s20, s20, 10\ns_add_u32 s68, s68, s20\ns_add_u32 s68, s68, {FE}")
a(f"s_lshl_b32 s69, s25, 16\ns_lshl_b32 s21, s21, 13\ns_add_u32 s69, s69, s21\ns_add_u32 s69, s69, s20\ns_add_u32 s69, s69, {WFR}\ns_add_u32 s74, s69, 4096")
a(f"v_and_b32 v{IX+8}, 7, v0\nv_lshlrev_b32 v{IX+8}, 7, v{IX+8}")
poll_load(68, IX+10, IX+8)
table_dma(1)
poll_check(68, IX+10, IX+8, 4)
stamp("z1")
a(f"buffer_load_dwordx4 {rg(IX,4)}, v1, s[12:15], s69 offen {SC}\nbuffer_load_dwordx4 {rg(IX+4,4)}, v1, s[12:15], s74 offen {SC}")
a("s_branch P_e")
a("P_g:")
for mt in range(1, 4): table_dma(mt)
a("P_e:")
a("s_load_dwordx2 s[70:71], s[48:49], 0\ns_load_dwordx2 s[72:73], s[50:51], 0")
a(f"v_bfe_u32 v{T+2}, v0, 4, 1\nv_lshlrev_b32 v{T+2}, 1, v{T+2}\nv_bfe_u32 v{T}, v0, 2, 2\nv_mov_b32 v{T+1}, 0x3f80")
a(f"v_cmp_eq_u32 vcc, v{T+2}, v{T}\nv_add_u32 v{T+2}, 1, v{T+2}\ns_nop 0\nv_cndmask_b32 v{SEL}, 0, v{T+1}, vcc\nv_cmp_eq_u32 vcc, v{T+2}, v{T}")
a(f"v_mov_b32 v{SEL+1}, v{SEL}\nv_and_b32 v{T+2}, 3, v0\nv_cndmask_b32 v{SEL+2}, 0, v{T+1}, vcc\nv_mul_u32_u24 v{SIDX}, 0x5555, v{T+2}\nv_mov_b32 v{SEL+3}, v{SEL+2}")
PI = T + 3
def pi_ops(d, t): return [f"v_and_b32 v{d}, 24, v0", f"v_and_b32 v{t}, 3, v0", f"v_lshl_add_u32 v{d}, v{t}, 1, v{d}", f"v_bfe_u32 v{t}, v0, 2, 1", f"v_add_u32 v{d}, v{d}, v{t}"]
for o in pi_ops(PI, T): a(o)
a(f"v_lshrrev_b32 v{T}, 5, v0\nv_bfe_u32 v{T+1}, v{PI}, 1, 3\nv_xor_b32 v{T+1}, v{T+1}, v{T}\nv_lshlrev_b32 v{PI}, 7, v{PI}\nv_lshl_add_u32 v{PI}, v{T+1}, 4, v{PI}\nv_add_u32 v{FR}, s23, v{PI}")
for ks in range(1, 4): a(f"v_xor_b32 v{FR+ks}, {32*ks}, v{FR}")
for ks in range(4): a(f"v_add_u32 v{FR+4+ks}, 0x10000, v{FR+ks}")
a(f"v_add_u32 v{T+8}, s33, v1\nv_add_u32 v{T+9}, {XB}, v1\nv_lshlrev_b32 v{AD}, 3, v0")
a("s_and_b32 s21, s24, 1\ns_xor_b32 s20, s24, 1\ns_lshl_b32 s28, s20, 3\ns_add_u32 s28, s28, s22\ns_mul_i32 s28, s28, 102400\ns_lshl_b32 s27, s21, 14\ns_add_u32 s28, s28, s27")
a(f"s_lshl_b32 s68, s20, 3\ns_add_u32 s68, s68, s22\ns_lshl_b32 s68, s68, 9\ns_add_u32 s68, s68, {FI}\ns_xor_b32 s31, s68, 4096")
a(f"s_lshl_b32 s75, s24, 6\ns_lshl_b32 s27, s22, 3\ns_add_u32 s75, s75, s27\ns_lshl_b32 s75, s75, 6\ns_add_u32 s75, s75, s25\ns_lshl_b32 s75, s75, 8\ns_add_u32 s75, s75, {PART}")
a(f"s_lshr_b32 s29, s25, 4\ns_lshl_b32 s39, s29, 14\ns_lshl_b32 s29, s29, 11\ns_and_b32 s27, s22, 3\ns_lshl_b32 s27, s27, 9\ns_add_u32 s29, s29, s27\ns_add_u32 s29, s29, {FW + 256}")
a(f"s_lshl_b32 s27, s27, 1\ns_add_u32 s39, s39, s27\ns_lshl_b32 s27, s21, 12\ns_add_u32 s39, s39, s27\ns_add_u32 s39, s39, {FE + 8192}")
a(f"s_lshl_b32 s26, s25, 16\ns_lshl_b32 s27, s22, 10\ns_add_u32 s26, s26, s27\ns_lshl_b32 s27, s21, 13\ns_add_u32 s26, s26, s27\ns_add_u32 s26, s26, {WFR + 16384}")
a("s_waitcnt vmcnt(0)")
stamp()
a("s_cmp_lt_u32 s22, 4\ns_cbranch_scc1 P_h")
a(f"ds_write_b128 v{T+8}, {rg(IX,4)} offset:1024\nds_write_b128 v{T+8}, {rg(IX+4,4)} offset:2048")
a("P_h:")
for mt in range(4):
    for ks in range(4):
        a(f"ds_read_b128 {rg(TAB+16*mt+4*ks,4)}, v{FR+4*(mt>>1)+ks} offset:{4096*(mt&1)}")
a(f"v_mov_b32 v{T+10}, 163836\nv_mov_b32 v{T+11}, 0\nds_write_b32 v{T+10}, v{T+11}")
a("s_waitcnt lgkmcnt(0)\ns_barrier")
stamp()
for x in (0, 4, 1, 5, 2, 6, 3, 7):
    a(f"ds_read_b128 {rg(WF+4*x,4)}, v{T+9} offset:{XS*(4 + (x&3)) + 1024 + 1024*(x>>2)}")
poll_load(68, IX, AD)
poll_load(31, IX+2, AD)
a("s_cmp_ge_u32 s35, 800\ns_cbranch_scc1 P_u0")
w1_loads(36)
a("P_u0:")
a("s_and_b32 s21, s24, 1\ns_lshl_b32 s21, s21, 1\ns_sub_u32 s21, s21, 1\ns_mul_i32 s46, s21, 819200\ns_sub_u32 s47, 16384, s46\ns_sub_u32 s46, s46, 16384")
def tg_mfma(mt, ks, e, d):
    c = "0" if ks == 0 else rg(d, 16)
    return f"v_mfma_f32_32x32x16_bf16 {rg(d,16)}, {rg(TAB+16*mt+4*ks,4)}, {rg(WF+16*e+4*ks,4)}, {c}"
def wr_op(r, reg):
    off = r*256 if r < 32 else 57472 + (r-32)*256
    pre = ["s_mov_b32 m0, s30", "s_nop 0"] if r == 32 else []
    return pre + [f"ds_write_addtid_b32 v{reg} offset:{off}"]
a("s_mov_b32 m0, s23")
PD = [(ACC, ACC+16), (ACC+32, ACC+48), (ACC, ACC+16), (POOL+32, WF)]
PO = [POOL, POOL+16, POOL, POOL+32]
IXAT = O("ixat", 2); UPAT = O("upat", 2)
pend = []
for mt in range(4):
    d0, d1 = PD[mt]
    seq = [(ks, e) for ks in range(4) for e in range(2)] if mt < 3 else [(ks, 0) for ks in range(4)] + [(ks, 1) for ks in range(4)]
    if mt == UPAT and UPAT < IXAT:
        a("s_cmp_ge_u32 s35, 800\ns_cbranch_scc1 P_k2\ns_waitcnt vmcnt(0)")
        w1_process(POOL+32, WR_, 37)
        a("P_k2:")
    if mt == IXAT:
        if UPAT < IXAT:
            a("s_waitcnt vmcnt(0)\ns_cmp_ge_u32 s35, 800\ns_cbranch_scc1 P_k4\ns_cmp_lg_u32 s22, 1\ns_cbranch_scc1 P_k3")
            for o in line_flag_ops(38, IX+4): a(o)
            a("s_branch P_k4\nP_k3:")
            flag_store(38, IX+4)
            a("P_k4:\ns_mov_b32 s35, 4096")
            poll_check(68, IX, AD, 1)
            poll_check(31, IX+2, AD, 1)
        else:
            a("s_cmp_lt_u32 s35, 800\ns_cbranch_scc1 P_u2\ns_waitcnt vmcnt(0)\nP_u2:")
            poll_check(68, IX, AD, 8)
            poll_check(31, IX+2, AD, 8)
        stamp("y1")
        a("s_lshl_b32 s68, s70, 16\ns_and_b32 s69, s70, 0xffff0000\ns_lshl_b32 s70, s71, 16\ns_and_b32 s71, s71, 0xffff0000")
        for x in range(4):
            a(f"buffer_load_dwordx4 {rg(IX+4*x,4)}, v1, s[12:15], s28 offen offset:{1024*x} {SC}")
        a("s_add_u32 s28, s28, 4096")
        TCH = O("tch", 0)
        if TCH:
            a(f"v_bfe_u32 v{U+6}, v0, 2, 1\nv_mul_u32_u24 v{VT}, 819200, v{U+6}\nv_lshrrev_b32 v{U+6}, 3, v0\nv_lshl_add_u32 v{VT}, v{U+6}, 15, v{VT}\nv_and_b32 v{U+6}, 3, v0\nv_lshl_add_u32 v{VT}, v{U+6}, 7, v{VT}")
            a("s_and_b32 s20, s24, 2\ns_lshl_b32 s20, s20, 3\ns_add_u32 s20, s20, s22\ns_mul_i32 s20, s20, 102400\ns_and_b32 s21, s24, 1\ns_lshl_b32 s21, s21, 14\ns_add_u32 s20, s20, s21\ns_lshr_b32 s21, s2, 3\ns_lshl_b32 s21, s21, 9\ns_add_u32 s20, s20, s21")
            a(f"s_mov_b64 exec, 0xffffff\nbuffer_load_dword v{U+7}, v{VT}, s[12:15], s20 offen {SC}\ns_mov_b64 exec, -1")
        a(f"s_cmp_lg_u32 s22, {FIN}\ns_cbranch_scc1 P_f")
        srd(a, 4, 40, 16384*26)
        a(f"s_mov_b32 m0, {XWL}\ns_mul_i32 s20, s34, 1664\nbuffer_load_dwordx4 v1, s[4:7], s20 offen lds\nbuffer_load_dwordx4 v1, s[4:7], s20 offen offset:1024 lds")
        srd(a, 4, 44, 2)
        a(f"s_mov_b32 m0, {XWL+2048}\nv_mov_b32 v{VT}, 0\nbuffer_load_ushort v{VT}, s[4:7], 0 offen lds")
        srd(a, 4, 52, 2)
        a(f"s_mov_b32 m0, {XWL+2304}\ns_nop 0\nbuffer_load_ushort v{VT}, s[4:7], 0 offen lds")
        srd(a, 4, 42, 26)
        a(f"s_mov_b32 m0, {XWL+2560}\nv_lshlrev_b32 v{VT}, 1, v0\nbuffer_load_ushort v{VT}, s[4:7], 0 offen lds\ns_mov_b32 m0, s23")
        a("P_f:")
    if mt == UPAT and UPAT >= IXAT:
        a("s_cmp_ge_u32 s35, 800\ns_cbranch_scc1 P_k2\ns_waitcnt vmcnt(%d)" % (4 + TCH))
        w1_process(POOL+32, WR_, 37)
        a("P_k2:")
    for n, (ks, e) in enumerate(seq):
        if mt == 0: a(f"s_waitcnt lgkmcnt({7 - n})")
        a(tg_mfma(mt, ks, e, d0 if e == 0 else d1))
        take = (len(pend) + (7 - n)) // (8 - n)
        for o in pend[:take]: a(o)
        pend = pend[take:]
    assert not pend
    body = []
    for r in range(16):
        body.append(f"v_cvt_pk_bf16_f32 v{PO[mt]+r}, v{d0+r}, v{d1+r}")
        if r: body.extend(wr_op(16*mt + r - 1, PO[mt] + r - 1))
    body.extend(wr_op(16*mt + 15, PO[mt] + 15))
    fill = ["s_nop 5", "s_nop 5"]
    if mt == 2: fill = [f"v_mov_b32 v{ACC+32+4*s+c}, s{68+c}" for s in range(8) for c in range(4)]
    if mt == 3: fill = [f"v_mov_b32 v{ACC+x}, 0" for x in range(20, 32)]
    pend = fill + body
    if mt == 2: pend += [f"v_mov_b32 v{ACC+x}, 0" for x in range(20)]
stamp("y2")
for o in pend: a(o)
a(f"s_cmp_lt_u32 s35, 800\ns_cbranch_scc1 P_m7\ns_cmp_eq_u32 s22, {FIN}\ns_cbranch_scc1 P_m7\ns_waitcnt vmcnt({3+TCH})\nP_m7:\ns_waitcnt vmcnt({7+TCH})")
stamp()

PAT = opts.get("pat", "SACMRL")
def pre_ops():
    ops = [f"v_lshlrev_b32_sdwa v{GD + 2*x}, 3, v{IX + x//2} dst_sel:DWORD dst_unused:UNUSED_PAD src0_sel:DWORD src1_sel:WORD_{x&1}" for x in range(8)]
    return ops + [f"buffer_load_dwordx4 {rg(IX,4)}, v1, s[12:15], s28 offen {SC}"]
U0 = O("u0", 36)
BIGQ = [TAB + 28 + 4*q for q in range(9)] + [WF + 4*q for q in range(4)] + [POOL + 28 + 4*q for q in range(5)]
def gather_phase(nunits, mf, cv, extra, acc_of, head, tail=None):
    NB = nunits * 2; last = nunits == 36
    def ixreg(u): return BIGQ[u - U0] if last and u >= U0 else IX + 4*(u & 3)
    log = [("ix", u) for u in range(5)]
    def vm_wait(tag):
        idx = len(log) - 1 - log[::-1].index(tag)
        a(f"s_waitcnt vmcnt({len(log) - 1 - idx})")
    def A(b):
        if b >= NB: return
        u = b // 2
        if b % 2 == 0: vm_wait(("ix", u))
        for x in range(4):
            d = ixreg(u) + 2*(b & 1) + x//2
            a(f"v_lshlrev_b32_sdwa v{GD + (8*b) % 16 + 2*x}, 3, v{d} dst_sel:DWORD dst_unused:UNUSED_PAD src0_sel:DWORD src1_sel:WORD_{x&1}")
    def R(b):
        if b >= NB: return
        for x in range(4):
            q = GD + (8*b) % 16 + 2*x
            a(f"ds_read_b64 {rg(q,2)}, v{q}")
    def L(b):
        u = b // 2
        if b >= NB or b % 2 == 0 or (last and u + 4 >= min(nunits, U0)): return
        if last and u + 4 >= 32:
            for h in range(2):
                a(f"buffer_load_dwordx2 {rg(IX+4*(u&3)+2*h,2)}, v{VT}, s[12:15], s28 offen offset:{1024*(u&3)+512*h} {SC}")
                log.append(("ix", u + 4))
        else:
            a(f"buffer_load_dwordx4 {rg(IX+4*(u&3),4)}, v1, s[12:15], s28 offen offset:{1024*(u&3)} {SC}")
            log.append(("ix", u + 4))
        if u & 3 == 3:
            a("s_add_u32 s28, s28, 4096")
            if u + 4 == 15: a("s_add_u32 s28, s28, s46")
            if u + 4 == 31: a("s_add_u32 s28, s28, s47")
    def emit(ops):
        for o in ops:
            if o == "SYNC": continue
            if isinstance(o, tuple) and o[0] == "WAIT": vm_wait(o[1])
            elif isinstance(o, tuple):
                a(o[0]); log.append(o[1])
            else: a(o)
    sync = sorted(b for b, ops in extra.items() if "s_barrier" in ops or "SYNC" in ops) + [NB - 1]
    pr = {}; lo = 0
    for hi in sync:
        for q in range(4): pr[lo + ((hi + 1 - lo) * q) // 4] = 3 - q
        lo = hi + 1
    head()
    R(0); R(1)
    for b in range(NB):
        if b in pr and b: a(f"s_setprio {pr[b]}")
        nb = b + 2
        for ch in PAT:
            if ch == "S":
                a(f"s_waitcnt lgkmcnt({min(NB, nb) * 4 - 4*(b+1)})")
                if tail and b == NB - 1: tail()
                a(f"v_smfmac_f32_16x16x64_bf16 {rg(ACC+4*acc_of(b),4)}, {rg(SEL,4)}, {rg(GD + (8*b) % 16, 8)}, v{SIDX}")
            elif ch == "A": A(nb)
            elif ch == "R": R(nb)
            elif ch == "M": emit(mf.get(b, []))
            elif ch == "C": emit(cv.get(b, []))
            elif ch == "L": L(nb)
        emit(extra.get(b, []))
    return log, vm_wait
pad(PADPRO)
for o in pre_ops(): a(o)
g_start = len(a.lines)
RAW = POOL
P16, P32 = POOL + 16, POOL + 32
def add(d, b, ops): d.setdefault(b, []).extend(ops)
def cvt(d, x, y): return f"v_cvt_pk_bf16_f32 v{d}, v{x}, v{y}"
def selfpack(d, s): return [cvt(d + q, s + 2*q, s + 2*q + 1) for q in range(8)]
def combine(d):
    ops = []
    for q in range(7, -1, -1):
        ops += [f"v_perm_b32 v{d+2*q+1}, v{d+q}, v{T8+q}, s67", f"v_perm_b32 v{d+2*q}, v{d+q}, v{T8+q}, s66"]
    return ops
def tgen(start, per, nv):
    mf = {}; cv = {}; cur = [start]
    def M(ops):
        for i in range(0, len(ops), per):
            add(mf, cur[0], ops[i:i+per]); cur[0] += 1
    def V(ops, adv=True):
        b = cur[0] + 1
        for i in range(0, len(ops), nv):
            add(cv, b, ops[i:i+nv]); b += 1
        if adv: cur[0] = b - 1
    M([tg_mfma(0, ks, e, (P16, P32)[e]) for ks in range(4) for e in range(2)])
    V([cvt(POOL + r, P16 + r, P32 + r) for r in range(16)])
    M([tg_mfma(1, ks, e, (P16, P32)[e]) for ks in range(4) for e in range(2)])
    V([cvt(P16 + r, P16 + r, P32 + r) for r in range(16)])
    M([tg_mfma(2, ks, 0, P32) for ks in range(4)])
    V(selfpack(T8, P32))
    M([tg_mfma(3, ks, 0, P32) for ks in range(4)])
    V(selfpack(P32, P32), adv=False)
    M([tg_mfma(2, ks, 1, WF) for ks in range(4)])
    V(selfpack(WF, WF) + combine(WF) + [f"v_mov_b32 v{T8+q}, v{P32+q}" for q in range(8)])
    M([tg_mfma(3, ks, 1, P32) for ks in range(4)])
    lastm = cur[0]
    V(selfpack(P32, P32) + combine(P32))
    print("tile generation: last MFMA batch", lastm - 1, "ends at", cur[0])
    assert cur[0] <= 63
    return mf, cv, lastm
SRC = [POOL + r for r in range(32)] + [WF + r for r in range(16)] + [P32 + r for r in range(16)]
NX = WF + 16
def g_tail():
    a("s_barrier"); cyc()
    a("s_setprio 3")
    for r in range(4):
        for o in wr_op(r, SRC[r]): a(o)
PA = O("pa", 42)
def w_phase(tag, mid, early=()):
    po = pre_ops()
    for o in early: a(o)
    for r in range(4, 64):
        if r % 16 == 0: a(f"s_setprio {3 - r // 16}")
        if r == 52: a(f"s_cmp_eq_u32 s22, 7\ns_cbranch_scc1 {tag}")
        for o in wr_op(r, SRC[r]): a(o)
        if r == PA:
            a("s_waitcnt vmcnt(0)")
            for o in mid: a(o)
        if PA <= r < PA + 9: a(po[r - PA])
    a(f"{tag}:")
def part_off(d, t): return [f"v_lshrrev_b32 v{d}, 3, v0", f"v_lshlrev_b32 v{d}, 14, v{d}", f"v_and_b32 v{t}, 7, v0", f"v_lshl_add_u32 v{d}, v{t}, 4, v{d}"]
def wf_reads(ad): return [f"ds_read_b128 {rg(WF+4*x,4)}, v{ad} offset:{XS*x}" for x in (0, 4, 1, 5, 2, 6, 3, 7)]
PB = O("pb", 12); RB = O("rb", 16); XBAT = O("xb", 22); BB = O("bb", 26)
extra = {}
add(extra, PB, [f"v_min_u32 v{RAW+2}, 7, v0", f"v_lshlrev_b32 v{RAW+2}, 7, v{RAW+2}", (pl_op(39, RAW, RAW+2), ("wfl", 0))])
add(extra, RB, [("WAIT", ("wfl", 0)), f"v_cmp_ne_u64 vcc, s[64:65], {rg(RAW,2)}", "s_cbranch_vccnz W_slow", "W_back:",
                (f"buffer_load_dwordx4 {rg(RAW,4)}, v1, s[12:15], s26 offen {SC}", ("raw", 0)), "s_add_u32 s26, s26, 16384"])
CB0 = O("cb0", 1); C1 = 163836
add(extra, XBAT, [f"v_add_u32 v{RAW+4}, s33, v1", ("WAIT", ("raw", 0)), f"ds_write_b128 v{RAW+4}, {rg(RAW,4)}"])
if CB0:
    add(extra, XBAT, [f"v_mov_b32 v{RAW+6}, {C1}", f"v_mov_b32 v{RAW+7}, 1", "s_mov_b64 exec, 1", f"ds_add_u32 v{RAW+6}, v{RAW+7}", "s_mov_b64 exec, -1", "SYNC"])
    add(extra, BB - 2, [f"ds_read_b32 v{RAW+7}, v{RAW+6}"])
    add(extra, BB, [f"v_add_u32 v{RAW+4}, {XB}, v1", f"v_readfirstlane_b32 s20, v{RAW+7}", "s_cmp_lt_u32 s20, 8", "s_cbranch_scc1 J_slow", "J_back:"] + wf_reads(RAW+4))
else:
    add(extra, BB, [f"v_add_u32 v{RAW+4}, {XB}, v1", "s_barrier"] + wf_reads(RAW+4))
add(extra, BB + 1, [f"v_min_u32 v{T8+2}, 17, v0", f"v_lshlrev_b32 v{T8+2}, 3, v{T8+2}", (pl_op(29, T8, T8+2), ("wf2", 0))])
add(extra, BB + 9, [("WAIT", ("wf2", 0)), f"v_cmp_ne_u64 vcc, s[64:65], {rg(T8,2)}", "s_cbranch_vccnz Z_slow", "Z_back:"])
mf, cv, lastm = tgen(BB + 3, O("per0", 2), O("nv0", 6))
add(extra, max(lastm, 54), [(f"buffer_load_dwordx4 {rg(NX,4)}, v1, s[12:15], s26 offen {SC}", ("nx", 0)), "s_mov_b32 m0, s23"])
def g0_head():
    a("s_setprio 3\ns_waitcnt lgkmcnt(0)\ns_barrier"); cyc()
    a("s_cmp_lt_u32 s35, 800\ns_cbranch_scc1 L_first\nL_G1:")
gather_phase(32, mf, cv, extra, lambda b: b // 4, g0_head, g_tail)
sent = part_off(T8+4, T8+5) + [f"v_mov_b32 v{T8+x}, -1" for x in range(4)] + \
       [f"buffer_store_dwordx4 {rg(T8,4)}, v{T8+4}, s[12:15], s75 offen {SC}", f"buffer_store_dwordx4 {rg(T8,4)}, v{T8+4}, s[12:15], s75 offen offset:128 {SC}"]
w_phase("W_e0", [f"v_add_u32 v{T8}, s33, v1", f"ds_write_b128 v{T8}, {rg(NX,4)}", f"v_add_u32 v{T8+6}, {XB}, v1"], sent if not O("sl", 1) else ())
if O("sl", 1):
    for o in sent: a(o)
for o in ["s_xor_b32 s27, s34, 64", "s_lshl_b32 s3, s27, 15", "s_lshl_b32 s20, s22, 12", "s_add_u32 s3, s3, s20", f"s_add_u32 s3, s3, {HX}",
          "s_lshl_b32 s38, s27, 11", "s_lshl_b32 s20, s22, 8", "s_add_u32 s38, s38, s20", f"s_add_u32 s38, s38, {FX}", "s_xor_b32 s39, s38, 0x20000", "s_xor_b32 s37, s3, 0x200000"]: a(o)
PT = O("pt", 0)
if PT == 1:
    for t in range(4): a(f"buffer_store_dwordx4 {rg(T8,4)}, v1, s[12:15], s3 offen offset:{1024*t} {SC}")
mf, cv, lastm = tgen(O("ts1", 1), O("per1", 1), O("nv1", 4))
extra = {}
add(extra, 2, [f"s_lshl_b32 s26, s25, 16", "s_lshl_b32 s27, s22, 10", "s_add_u32 s26, s26, s27", f"s_add_u32 s26, s26, {WFR + 6*8192}"])
add(extra, max(lastm, 54), [f"v_and_b32 v{NX}, 0x27f, v1", (f"buffer_load_dwordx4 {rg(NX,4)}, v{NX}, s[12:15], s26 offen {SC}", ("nx", 0)), "s_mov_b32 m0, s23"])
def g1_head():
    a("s_setprio 3\ns_waitcnt lgkmcnt(0)\ns_barrier"); cyc()
    for o in wf_reads(T8+6): a(o)
gather_phase(32, mf, cv, extra, lambda b: b // 4, g1_head, g_tail)
A0 = T8 + 4; XW = POOL
mid = [f"v_lshrrev_b32 v{T8}, 5, v0", f"v_lshlrev_b32 v{T8}, 7, v{T8}", f"v_and_b32 v{T8+1}, 7, v0", f"v_lshl_add_u32 v{T8}, v{T8+1}, 4, v{T8}",
       "s_lshl_b32 s20, s22, 8", f"s_add_u32 s20, s20, {PADR}", f"v_add_u32 v{T8}, s20, v{T8}", f"ds_write_b128 v{T8}, {rg(NX,4)}",
       f"v_and_b32 v{A0}, 1, v0", f"v_lshlrev_b32 v{A0}, 10, v{A0}", f"v_bfe_u32 v{A0+1}, v0, 1, 1", f"v_lshl_add_u32 v{A0}, v{A0+1}, 4, v{A0}",
       f"v_bfe_u32 v{A0+1}, v0, 3, 1", f"v_lshl_add_u32 v{A0}, v{A0+1}, 5, v{A0}", f"v_bfe_u32 v{A0+1}, v0, 2, 1", f"v_lshl_add_u32 v{A0}, v{A0+1}, 6, v{A0}",
       f"v_lshrrev_b32 v{A0+1}, 5, v0", f"v_lshl_add_u32 v{A0}, v{A0+1}, 7, v{A0}", f"v_add_u32 v{A0}, {PADR}, v{A0}",
       f"v_mov_b32 v{T8}, {PADR + 2048}", f"v_mov_b32 v{T8+1}, 0", f"ds_write_b32 v{T8}, v{T8+1}",
       "s_and_b32 s27, s24, 1", "s_xor_b32 s27, s27, 1", "s_lshl_b32 s47, s27, 14", f"v_lshlrev_b32 v{VT}, 3, v0"]
if PT == 2: mid += ["s_mov_b64 exec, 1", f"buffer_load_dword v{T8+7}, v1, s[12:15], s3 offen {SC}", f"buffer_load_dword v{T8+7}, v1, s[12:15], s37 offen offset:4092 {SC}", "s_mov_b64 exec, -1"]
F2OPS = ["s_cmp_lg_u32 s22, 0", "s_cbranch_scc1 G_nf2", "s_lshl_b32 s31, s34, 3", f"s_add_u32 s31, s31, {F2}"] + flag_ops(31, T8) + ["G_nf2:"]
w_phase("W_e1", mid, F2OPS if not O("sl", 1) else ())
XW = WF + 16
a(f"s_cmp_lg_u32 s22, {FIN}\ns_cbranch_scc1 L_Glast")
a(f"v_and_b32 v{T8}, 7, v0\nv_bfe_u32 v{T8+1}, v0, 3, 1\nv_lshl_add_u32 v{T8}, v{T8+1}, 5, v{T8}\nv_lshrrev_b32 v{T8+1}, 4, v0\nv_lshl_add_u32 v{T8}, v{T8+1}, 3, v{T8}\nv_mul_u32_u24 v{T8}, 26, v{T8}\nv_add_u32 v{T8}, {XWL}, v{T8}\nv_mov_b32 v{T8+1}, {XWL+2048}\nv_lshl_add_u32 v{T8+2}, v0, 2, v{T8+1}")
for k in range(13): a(f"ds_read_u16_d16_hi v{XW+k}, v{T8} offset:{2*k}")
a(f"ds_read_u16_d16_hi v{XW+13}, v{T8+1}\nds_read_u16_d16_hi v{XW+14}, v{T8+1} offset:256\nds_read_u16_d16_hi v{XW+15}, v{T8+2} offset:512")
a("L_Glast:")
HR = TAB + 20
extra = {}; mf = {}; cv = {}
BB = 0
if O("sl", 1): add(extra, 0, F2OPS)
VSP = T8 + 6
add(cv, BB + 1, pi_ops(VSP, VSP+1) + [f"v_lshlrev_b32 v{VSP}, 5, v{VSP}"])
add(cv, BB + 2, [f"v_lshrrev_b32 v{A0}, 5, v0", f"v_bfe_u32 v{VSP+1}, v0, 1, 1", f"v_xor_b32 v{VSP+1}, v{VSP+1}, v{A0}", f"v_lshl_add_u32 v{VSP}, v{VSP+1}, 4, v{VSP}",
                 "s_lshl_b32 s31, s22, 11", "s_add_u32 s31, s31, 131072", f"v_add_u32 v{VSP}, s31, v{VSP}"])
S0 = BB + 3
for mt in range(4):
    d = POOL + 16*(mt % 3)
    for ks in range(4):
        add(mf, S0 + 4*mt + ks, [f"v_mfma_f32_32x32x16_bf16 {rg(d,16)}, {rg(WF+4*ks,4)}, {rg(TAB+16*mt+4*ks,4)}, {'0' if ks == 0 else rg(d,16)}"])
    add(cv, S0 + 4*mt + 5, [cvt(d + x, d + 2*x, d + 2*x + 1) for x in range(4)])
    add(extra, S0 + 4*mt + 5, [f"ds_write_b128 v{VSP}, {rg(d,4)} offset:{(32*(mt & 1) + 512*(mt >> 1)) * 32}"])
if O("nosp", 0): mf = {}; extra = {k: [o for o in v if "ds_write_b128" not in str(o)] for k, v in extra.items()}
CB = O("cb", 0)
C2 = PADR + 2048
if CB:
    add(extra, S0 + 17, [f"v_mov_b32 v{A0}, {C2}", f"v_mov_b32 v{A0+1}, 1", "s_mov_b64 exec, 1", f"ds_add_u32 v{A0}, v{A0+1}", "s_mov_b64 exec, -1"])
    add(extra, 57, [f"ds_read_b32 v{A0+1}, v{A0}"])
    add(extra, 60, [f"v_readfirstlane_b32 s20, v{A0+1}", "s_cmp_lt_u32 s20, 8", "s_cbranch_scc1 K_slow", "K_back:"])
elif not O("nomb", 0): add(extra, O("mbat", 56), ["s_barrier"])
for t in range(4):
    b = 8*t + 9; s = ACC + 8*t
    add(cv, b, [cvt(s + x, s + 2*x, s + 2*x + 1) for x in range(4)])
    add(extra, b, [(f"buffer_store_dwordx4 {rg(s,4)}, v1, s[12:15], s3 offen offset:{1024*t} {SC}" if not O("nohs", 0) else f"buffer_load_dword v{HR+8}, v1, s[60:63], 0 offen", ("hs", t))])
def hl_op(t): return f"buffer_load_dwordx4 {rg(ACC+8*t+4,4)}, v1, s[12:15], s37 offen offset:{1024*t} {SC}"
NA = O("na", 3)
FA, PA_, CA, SA = O("fa", 8*NA + 7), O("pa1", 45), O("ca", 50), O("sa", 3)
FB, PB_, CB_ = O("fb", 39), O("pb1", 59), O("cb1", 64)
add(extra, FA, [("WAIT", ("hs", NA - 1))] + line_flag_ops(38, HR + 4, ("fl", 0)) + ["s_add_u32 s38, s38, 128"])
if NA < 4: add(extra, FB, [("WAIT", ("hs", 3))] + line_flag_ops(38, HR + 4, ("fl", 1)))
add(extra, PA_, [f"v_mov_b32 v{HR+2}, 0", (pl_op(39, HR, HR+2), ("hp", 0))])
add(extra, CA, [("WAIT", ("hp", 0)), f"v_cmp_ne_u64 vcc, s[64:65], {rg(HR,2)}", "s_cbranch_vccnz H_slow", "H_back:", "s_add_u32 s39, s39, 128"])
for t in range(NA): add(extra, CA + SA*t, [(hl_op(t), ("hl", t))])
if NA < 4: add(extra, PB_, [(pl_op(39, HR, HR+2), ("hp", 1))])
if NA == 4: add(extra, CB_, ["I_back:"])
else: add(extra, CB_, [("WAIT", ("hp", 1)), f"v_cmp_ne_u64 vcc, s[64:65], {rg(HR,2)}", "s_cbranch_vccnz I_slow", "I_back:"] + [(hl_op(t), ("hl", t)) for t in range(NA, 4)])
Y = TAB; K = ACC + 32
def epi(s):
    r = ACC + 8*(s >> 1) + 4 + 2*(s & 1); t = POOL + 24
    w = [("WAIT", ("hl", s >> 1))] if s % 2 == 0 else []
    return w + [f"v_lshlrev_b32 v{t}, 16, v{r}", f"v_and_b32 v{t+1}, s27, v{r}", f"v_lshlrev_b32 v{t+2}, 16, v{r+1}", f"v_and_b32 v{t+3}, s27, v{r+1}",
            f"v_pk_add_f32 {rg(t,2)}, {rg(t,2)}, {rg(K+4*s,2)}", f"v_pk_add_f32 {rg(t+2,2)}, {rg(t+2,2)}, {rg(K+4*s+2,2)}",
            cvt(POOL+2*s, t, t+1), cvt(POOL+2*s+1, t+2, t+3),
            f"v_pk_max_i16 v{POOL+2*s}, v{POOL+2*s}, 0", f"v_pk_max_i16 v{POOL+2*s+1}, v{POOL+2*s+1}, 0",
            f"v_dot2_f32_bf16 v{POOL+16+s}, v{POOL+2*s}, s72, 0", f"v_dot2_f32_bf16 v{POOL+16+s}, v{POOL+2*s+1}, s73, v{POOL+16+s}"]
def epi2(s): return [f"v_min_u32 v{POOL+16+s}, s33, v{POOL+16+s}"]
st0 = f"buffer_store_dwordx4 {rg(POOL+16,4)}, v{Y+14}, s[12:15], s75 offen {SC}"
st1 = f"buffer_store_dwordx4 {rg(POOL+20,4)}, v{Y+14}, s[12:15], s75 offen offset:128 {SC}"
add(extra, 62, ["s_lshl_b32 s31, s24, 9", f"s_add_u32 s31, s31, {F2}", "s_mov_b32 s33, -2", "s_mov_b32 s27, 0xffff0000", f"v_lshlrev_b32 v{Y+18}, 3, v0"])
add(extra, O("f2at", 66), [(pl_op(31, Y+16, Y+18), ("f2", 0))])
add(cv, 58, part_off(Y+14, Y+15) + [f"v_lshlrev_b32 v{Y+12}, 2, v0", f"v_add_u32 v{Y+12}, {PADR}, v{Y+12}"])
add(cv, 59, ["s_lshl_b32 s29, s34, 14", "s_lshl_b32 s20, s22, 11", "s_add_u32 s29, s29, s20", f"s_add_u32 s29, s29, {PART}", "s_lshl_b32 s20, s22, 8", f"v_add_u32 v{Y+13}, s20, v{Y+12}",
             f"v_and_b32 v{Y+10}, 7, v0", f"v_bfe_u32 v{Y+11}, v0, 3, 1", f"v_lshl_add_u32 v{Y+10}, v{Y+11}, 5, v{Y+10}"])
add(cv, 60, [f"v_lshrrev_b32 v{Y+11}, 4, v0", f"v_lshl_add_u32 v{Y+10}, v{Y+11}, 3, v{Y+10}", "s_lshl_b32 s20, s34, 6", f"v_add_u32 v{Y+10}, s20, v{Y+10}", f"v_lshlrev_b32 v{Y+10}, 1, v{Y+10}",
             "s_mov_b32 s8, s54", "s_and_b32 s9, s55, 0xffff", "s_mov_b32 s10, 32768", "s_mov_b32 s11, 0x00020000"])
for s in range(7): add(cv, 65 + s, epi(s) + (epi2(s-1) if s else []))
add(extra, 69, [(st0, ("st", 0))])
if CYC == 1:
    add(extra, 61, cyc_ops())
    add(extra, 30, cyc_ops())
if CYC == 2:
    for b in [int(x) for x in opts.get("at", "8,16,24,30,32,38,40,49,51,58,63,65").split(",")]: add(extra, b, cyc_ops())
if U0 < 36:
    B0 = O("b0", S0 + 18); BR = O("br", 1)
    add(extra, B0 - 1, ["s_lshl_b32 s21, s24, 3", "s_add_u32 s21, s21, s22", "s_mul_i32 s21, s21, 102400", "s_add_u32 s36, s21, 98304", "s_and_b32 s20, s24, 1", "s_lshl_b32 s20, s20, 14",
                        "s_add_u32 s21, s21, s20", f"s_add_u32 s21, s21, {65536 + 4096*((U0-16)//4)}"])
    for u in range(U0, 36):
        b = B0 + (u - U0) // BR; q = BIGQ[u - U0]
        if u < 32:
            add(extra, b, [(f"buffer_load_dwordx4 {rg(q,4)}, v1, s[12:15], s21 offen offset:{1024*(u&3)} {SC}", ("ix", u))] + (["s_add_u32 s21, s21, 4096"] if u & 3 == 3 else []))
        else:
            add(extra, b, [(f"buffer_load_dwordx2 {rg(q+2*h,2)}, v{VT}, s[12:15], s36 offen offset:{1024*(u&3)+512*h} {SC}", ("ix", u)) for h in range(2)])
def gl_head():
    a("s_setprio 3\ns_waitcnt lgkmcnt(0)\ns_barrier"); cyc()
    for x in range(4): a(f"ds_read_b128 {rg(WF+4*x,4)}, v{A0} offset:{256*x}")
gather_phase(36, mf, cv, extra, lambda b: b // 4 if b < 64 else b - 56, gl_head)
cyc()
stamp()
for o in epi(7) + epi2(6): a(o)
a("s_nop 1")
for o in epi2(7): a(o)
a(st1)
VW = T8
a(f"s_mov_b32 s20, 0\ns_cmp_lg_u32 s22, {FIN}\ns_cbranch_scc1 R_f2")
for k in range(16): a(f"v_and_b32 v{XW+k}, s27, v{XW+k}")
a("s_nop 0")
for k in range(13): a(f"v_readlane_b32 s{36+k}, v{XW+15}, {k}")
a(f"v_readfirstlane_b32 s74, v{XW+14}\nv_mul_f32 v{VW}, s36, v{XW}")
for k in range(1, 13): a(f"v_fmac_f32 v{VW}, s{36+k}, v{XW+k}")
rnd(VW); a(f"v_add_f32 v{VW}, v{VW}, v{XW+13}"); rnd(VW)
a("R_f2:")
a(f"s_waitcnt vmcnt(0)\nv_cmp_ne_u64 vcc, s[64:65], {rg(Y+16,2)}\ns_cbranch_vccz R_f2ok")
a(f"s_sleep 1\n{pl_op(31, Y+16, Y+18)}\ns_add_u32 s20, s20, 1\ns_cmp_lt_u32 s20, 0x8000\ns_cbranch_scc1 R_f2")
a("R_f2ok:")
a("s_mov_b32 s20, 0")
a("R_poll:")
a(f"buffer_load_dwordx4 {rg(Y,4)}, v1, s[12:15], s29 offen {SC}\nbuffer_load_dwordx4 {rg(Y+4,4)}, v1, s[12:15], s29 offen offset:1024 {SC}")
a("s_add_u32 s20, s20, 1\ns_waitcnt vmcnt(0)")
a(f"v_max3_u32 v{Y+8}, v{Y}, v{Y+1}, v{Y+2}\nv_max3_u32 v{Y+9}, v{Y+3}, v{Y+4}, v{Y+5}\nv_max3_u32 v{Y+8}, v{Y+8}, v{Y+6}, v{Y+7}\nv_max_u32 v{Y+8}, v{Y+8}, v{Y+9}")
a(f"v_cmp_eq_u32 vcc, -1, v{Y+8}\ns_cbranch_vccz R_ok")
a(f"s_sleep {RSLEEP}\ns_cmp_lt_u32 s20, 0x8000\ns_cbranch_scc1 R_poll")
a("R_ok:")
stamp("y3")
for x in range(4): a(f"v_add_f32 v{Y+x}, v{Y+x}, v{Y+4+x}")
a(f"s_nop 0\nv_permlane32_swap_b32 v{Y}, v{Y+2}\nv_permlane32_swap_b32 v{Y+1}, v{Y+3}\ns_nop 0\nv_add_f32 v{Y}, v{Y}, v{Y+2}\nv_add_f32 v{Y+1}, v{Y+1}, v{Y+3}\ns_nop 1\nv_permlane16_swap_b32 v{Y}, v{Y+1}\ns_nop 0\nv_add_f32 v{Y}, v{Y}, v{Y+1}")
a(f"ds_write_b32 v{Y+13}, v{Y}\ns_waitcnt lgkmcnt(0)\ns_barrier")
a(f"s_cmp_lg_u32 s22, {FIN}\ns_cbranch_scc1 M_fin")
for k in range(8): a(f"ds_read_b32 v{Y+k}, v{Y+12} offset:{256*k}")
a("s_waitcnt lgkmcnt(0)")
a(f"v_add_f32 v{Y}, v{Y}, v{Y+1}\nv_add_f32 v{Y+2}, v{Y+2}, v{Y+3}\nv_add_f32 v{Y+4}, v{Y+4}, v{Y+5}\nv_add_f32 v{Y+6}, v{Y+6}, v{Y+7}\nv_add_f32 v{Y}, v{Y}, v{Y+2}\nv_add_f32 v{Y+4}, v{Y+4}, v{Y+6}\nv_add_f32 v{Y}, v{Y}, v{Y+4}")
rnd(Y); a(f"v_add_f32 v{Y}, s74, v{Y}"); rnd(Y)
a(f"v_add_f32 v{Y}, v{Y}, v{VW}"); rnd(Y)
a(f"v_mul_f32 v{Y}, 0xbfb8aa3b, v{Y}\nv_exp_f32 v{Y}, v{Y}\ns_nop 0\nv_add_f32 v{Y}, 1.0, v{Y}\nv_rcp_f32 v{Y}, v{Y}\ns_nop 0\nv_cvt_pk_bf16_f32 v{Y}, v{Y}, v{Y}")
a(f"buffer_store_short v{Y}, v{Y+10}, s[8:11], 0 offen")
a("M_fin:")
PROBE = O("probe", -1)
if PROBE >= 0:
    a(f"s_cmp_lg_u32 s22, {SW}\ns_cbranch_scc1 M_end\ns_waitcnt vmcnt(0)")
    stamp()
    a(f"s_waitcnt lgkmcnt(0)\ns_sub_u32 s20, s{76+2*PROBE}, s64\ns_mul_i32 s20, s20, {O('gain', 10)}\ns_add_u32 s20, s20, 4000")
    a("PRB:\ns_memrealtime s[32:33]\ns_waitcnt lgkmcnt(0)\ns_sub_u32 s32, s32, s64\ns_cmp_lt_i32 s32, s20\ns_cbranch_scc1 PRB")
elif STAMP:
    a(f"s_cmp_lg_u32 s22, {SW}\ns_cbranch_scc1 M_end\ns_waitcnt vmcnt(0)")
    stamp()
    a("s_waitcnt lgkmcnt(0)")
    n = nst[0]
    if O("mt", 0):
        for k in range(n - 1, -1, -1): a(f"s_sub_u32 s{76+2*k}, s{76+2*k}, s76\ns_mov_b32 s{77+2*k}, 0")
    if CYC:
        n = 13
        for k in range(1, 12): a(f"s_sub_u32 s{76+2*k}, s{76+2*k}, s{78+2*k}\ns_mov_b32 s{77+2*k}, 0")
        a("s_mov_b32 s76, 0\ns_mov_b32 s77, 0\ns_mov_b32 s100, 0\ns_mov_b32 s101, 0")
    elif PADPRO: a("s_mov_b32 s76, s64\ns_and_b32 s77, s65, 0x7fffffff")
    a(f"s_mul_i32 s31, s2, {8*n}\ns_add_u32 s31, s31, 0x8000000\nv_mov_b32 v2, 0")
    for k in range(n):
        a(f"v_mov_b32 v4, s{76+2*k}\nv_mov_b32 v5, s{77+2*k}\nbuffer_store_dwordx2 v[4:5], v2, s[12:15], s31 offen offset:{8*k}\ns_waitcnt vmcnt(0)")
    print("nstamps", n)
a("M_end:\ns_endpgm")
a("L_first:")
a("s_waitcnt vmcnt(0)\ns_cmp_lg_u32 s22, 1\ns_cbranch_scc1 L_f2")
for o in line_flag_ops(38, WF): a(o)
a("s_branch L_G1\nL_f2:")
flag_store(38, WF)
a("s_branch L_G1")
for tg, sr, t in (("W", 39, RAW), ("Z", 29, T8), ("H", 39, HR), ("I", 39, HR)):
    a(f"{tg}_slow:")
    poll_check(sr, t, t+2)
    a(f"s_branch {tg}_back")
def cnt_slow(tag, ad):
    a(f"{tag}_slow:\ns_mov_b32 s21, 0\n{tag}_l:\nds_read_b32 v{ad+1}, v{ad}\ns_add_u32 s21, s21, 1\ns_waitcnt lgkmcnt(0)\nv_readfirstlane_b32 s20, v{ad+1}")
    a(f"s_cmp_ge_u32 s20, 8\ns_cbranch_scc1 {tag}_back\ns_cmp_lt_u32 s21, 0x100000\ns_cbranch_scc1 {tag}_l\ns_branch {tag}_back")
if CB: cnt_slow("K", A0)
if CB0: cnt_slow("J", RAW+6)
a("C_end:\ns_endpgm")
L = a.lines
errs = hazard.check_all(L[st:], "main")
a.raw(kernel_desc(MAIN, 256, 102, 256))
for e in sorted(set(errs)): print("HAZARD", e)
open(sys.argv[1], "w").write(a.text())
```

```python
import sys, re
from common import *
import hazard
opts = dict(x.split("=") for x in sys.argv[2:])
def O(k, d): return int(opts.get(k, d))
STAMP = O("stamp", 0); SW = O("sw", 7); SC = "sc1"; SLEEP = 1; RSLEEP = 2
WS_BYTES = 268435456
WFR = 4 << 20; PART = 8 << 20; FI = 16 << 20; FW = FI + 16384; F2 = FI + 32768; FE = FI + 65536; FX = 17 << 20; HX = 20 << 20
STG = 131072; XWL = STG + 25600; XB = 131072; XS = 3200; PADR = 128000
DOC = """;
; Generated by a script written for this kernel (gen/h2.py)."""
a = Asm()
a.raw(HEADER_COMMENT.rstrip("\n"))
a.raw("; @launch grid=(256,1,1) block=(512,1,1) lds=163840")
a.raw(DOC)
a.raw('.amdgcn_target "amdgcn-amd-amdhsa--gfx950"')
kernel_begin(a, MAIN)
LN = 0; VL16 = 1
TAB = 2; ACC = 66; WF = 130; POOL = 162; T8 = 210; GD = 218; IX = 234; SEL = 250; SIDX = 254; VT = 255
T = ACC; U = T8; WR_ = GD; AD = IX + 12; TD = POOL; FR = POOL + 4
FIN = 7
def rg(b, n): return f"v[{b}:{b+n-1}]"
nst = [0]; lab = [0]
SKIP = set(opts.get("skip", "").split(","))
CYC = O("cyc", 0)
def stamp(name="-"):
    if STAMP and name not in SKIP and not (CYC and nst[0] >= 1):
        k = nst[0]; nst[0] += 1
        assert k < 13
        a(f"{'s_memtime' if O('mt', 0) else 's_memrealtime'} s[{76+2*k}:{77+2*k}]")
def cyc_ops(): return [f"s_mov_b32 s{76+2*k}, s{74+2*k}" for k in range(12, 1, -1)] + ["s_memtime s[78:79]", "s_waitcnt lgkmcnt(0)"] if CYC else []
def cyc():
    for o in cyc_ops(): a(o)
def newlab(p):
    lab[0] += 1; return f"{p}{lab[0]}"
def rnd(r): a(f"v_cvt_pk_bf16_f32 v{r}, v{r}, v{r}\nv_lshlrev_b32 v{r}, 16, v{r}")
PADPRO = O("padpro", 0)
def pad(ticks):
    if not ticks: return
    l = newlab("PAD_")
    a(f"{l}:\ns_memrealtime s[32:33]\ns_waitcnt lgkmcnt(0)\ns_sub_u32 s32, s32, s64\ns_cmp_lt_i32 s32, {ticks}\ns_cbranch_scc1 {l}")
st = len(a.lines)
a("s_cmp_ge_u32 s2, 256\ns_cbranch_scc1 M_end")
stamp()
a("s_load_dwordx16 s[36:51], s[0:1], 0\ns_load_dwordx8 s[52:59], s[0:1], 64\ns_memrealtime s[64:65]")
NCP = O("ncp", 8)
a(f"s_getpc_b64 s[32:33]\nC_base:\ns_lshr_b32 s29, s2, 3\ns_mul_i32 s20, s29, {128*NCP}\nv_lshl_add_u32 v{VT}, v0, 7, s20\nv_min_u32 v{VT}, C_end-C_base, v{VT}")
a(f"v_cmp_gt_u32 vcc, {NCP}, v0\ns_and_saveexec_b64 s[20:21], vcc\ns_cbranch_execz C_skip\nglobal_load_dword v{VT}, v{VT}, s[32:33]\nC_skip:\ns_mov_b64 exec, -1")
a(f"v_lshrrev_b32 v{T}, 6, v0\nv_and_b32 v0, 63, v0\nv_lshlrev_b32 v1, 4, v0\nv_readfirstlane_b32 s22, v{T}")
if O("map", 1) == 0:
    a("s_and_b32 s20, s2, 7\ns_lshr_b32 s24, s20, 1\ns_and_b32 s20, s20, 1\ns_lshl_b32 s20, s20, 5\ns_add_u32 s25, s20, s29")
else:
    a("s_bfe_u32 s24, s2, 0x10002\ns_lshl_b32 s24, s24, 1\ns_and_b32 s20, s29, 1\ns_add_u32 s24, s24, s20\ns_and_b32 s20, s2, 3\ns_lshl_b32 s20, s20, 4\ns_lshr_b32 s25, s29, 1\ns_add_u32 s25, s25, s20")
a("s_lshl_b32 s34, s24, 6\ns_add_u32 s34, s34, s25")
a("s_lshl_b32 s35, s22, 8\ns_add_u32 s35, s35, s34")
a(f"v_lshrrev_b32 v{U}, 4, v0\nv_and_b32 v{U+1}, 15, v0\nv_lshlrev_b32 v{U+2}, 15, v{U}\nv_lshl_add_u32 v{U+2}, v{U+1}, 3, v{U+2}\nv_mov_b32 v{U+5}, 0")
a("s_lshr_b32 s20, s35, 5\ns_lshl_b32 s20, s20, 17\ns_bfe_u32 s21, s35, 0x30002\ns_lshl_b32 s21, s21, 12\ns_add_u32 s20, s20, s21\ns_and_b32 s21, s35, 3\ns_lshl_b32 s21, s21, 7\ns_add_u32 s31, s20, s21")
a(f"s_mul_i32 s20, s34, 25600\ns_mul_i32 s21, s22, 3200\ns_add_u32 s20, s20, s21\ns_add_u32 s33, s21, {STG}\ns_mov_b32 m0, s33")
a("s_lshl_b32 s23, s22, 13\ns_add_u32 s30, s23, 8064")
a("s_mov_b32 s18, 3276800\ns_mov_b32 s19, 0x00020000\ns_mov_b32 s6, 6553600\ns_mov_b32 s7, 0x00020000")
a("s_waitcnt lgkmcnt(0)")
stamp()
a("s_mov_b32 s16, s46\ns_and_b32 s17, s47, 0xffff\ns_mov_b32 s4, s36\ns_and_b32 s5, s37, 0xffff")
srd(a, 60, 56, 256)
srd(a, 12, 58, WS_BYTES)
a("s_cmp_lg_u32 s22, 6\ns_cbranch_scc1 P_n0\ns_cmp_ge_u32 s2, 8\ns_cbranch_scc1 P_n0")
a(f"v_mov_b32 v{T+4}, s64\nv_mov_b32 v{T+5}, s65\nv_mov_b32 v{T+6}, 0\nv_mov_b32 v{T+7}, 0\nv_or_b32 v{T+5}, 0x80000000, v{T+5}\ns_mov_b64 exec, 1")
a(f"buffer_atomic_cmpswap_x2 {rg(T+4,4)}, v{T+6}, s[60:63], 0 offen {SC}\ns_mov_b64 exec, -1\ns_nop 1")
a("P_n0:")
def w1_loads(sreg=31):
    for j8 in range(8):
        a(f"buffer_load_dwordx2 {rg(WR_+2*j8,2)}, v{U+2}, s[16:19], s{sreg} offen offset:{512*j8}")
a("s_cmp_lg_u32 s22, 0\ns_cbranch_scc1 P_now1")
w1_loads()
a("P_now1:")
for r in range(3):
    a(f"buffer_load_dwordx4 v1, s[4:7], s20 offen offset:{1024*r} lds")
a("s_mov_b64 exec, 0xff\nbuffer_load_dwordx4 v1, s[4:7], s20 offen offset:3072 lds\ns_mov_b64 exec, -1")
srd(a, 8, 38, 128000)
a("s_mov_b32 s66, 0x05040100\ns_mov_b32 s67, 0x07060302")
a("s_barrier")
a("s_cmp_lg_u32 s22, 5\ns_cbranch_scc1 P_n5\ns_load_dword s74, s[56:57], 192\nP_n5:")
a("s_cmp_lt_u32 s22, 4\ns_cbranch_scc1 P_lo\ns_cmp_lg_u32 s22, 4\ns_cbranch_scc1 P_skip")
a(f"v_and_b32 v{VT}, 31, v0\nv_lshlrev_b32 v{VT}, 7, v{VT}\ns_lshl_b32 s21, s29, 12\nbuffer_load_dword v{VT}, v{VT}, s[8:11], s21 offen\ns_branch P_skip")
def nonce_load(): a("s_load_dwordx2 s[64:65], s[56:57], 0")
def nonce_get():
    l = newlab("N_")
    a(f"s_waitcnt lgkmcnt(0)\ns_cmp_lt_i32 s65, 0\ns_cbranch_scc1 {l}ok\ns_mov_b32 s20, 0\nv_mov_b32 v{AD}, 0")
    a(f"{l}:")
    a(f"buffer_load_dwordx2 {rg(AD+2,2)}, v{AD}, s[60:63], 0 offen {SC}\ns_add_u32 s20, s20, 1\ns_waitcnt vmcnt(0)")
    a(f"v_readfirstlane_b32 s64, v{AD+2}\nv_readfirstlane_b32 s65, v{AD+3}\ns_cmp_lt_i32 s65, 0\ns_cbranch_scc1 {l}ok")
    a(f"s_sleep 1\ns_cmp_lt_u32 s20, 0x8000\ns_cbranch_scc1 {l}")
    a(f"{l}ok:")
def flag_ops(sreg, t):
    return [f"v_mov_b32 v{t+2}, 0", f"v_mov_b32 v{t}, s64", f"v_mov_b32 v{t+1}, s65", "s_mov_b64 exec, 1",
            f"buffer_store_dwordx2 {rg(t,2)}, v{t+2}, s[12:15], s{sreg} offen {SC}", "s_mov_b64 exec, -1"]
def line_flag_ops(sreg, t, tag=None):
    st_ = f"buffer_store_dwordx4 {rg(t,4)}, v1, s[12:15], s{sreg} offen {SC}"
    return [f"v_mov_b32 v{t}, s64", f"v_mov_b32 v{t+1}, s65", f"v_mov_b32 v{t+2}, s64", f"v_mov_b32 v{t+3}, s65", "s_mov_b64 exec, 0xff",
            (st_, tag) if tag else st_, "s_mov_b64 exec, -1"]
def flag_store(sreg, t=AD):
    for o in flag_ops(sreg, t): a(o)
def w1_process(PR, RB, sreg):
    for c in range(4):
        for d in range(4):
            a(f"v_perm_b32 v{PR+4*c+d}, v{WR_+2*(2*d+1)+(c>>1)}, v{WR_+2*(2*d)+(c>>1)}, s{66+(c&1)}")
    for c in range(4):
        a(f"ds_write_b128 v{U+3}, {rg(PR+4*c,4)} offset:{(c&1)*128 + (c>>1)*16}")
    a("s_waitcnt lgkmcnt(0)")
    for r in range(4):
        a(f"ds_read_b128 {rg(RB+4*r,4)}, v{U+4} offset:{r*4*272}")
    for r in range(4):
        a(f"s_waitcnt lgkmcnt({3-r})\nbuffer_store_dwordx4 {rg(RB+4*r,4)}, v{U+5}, s[12:15], s{sreg} offen {SC}\ns_add_u32 s{sreg}, s{sreg}, {4*65536}")
a("P_lo:")
a("s_cmp_ge_u32 s35, 800\ns_cbranch_scc1 P_skip")
a("s_add_u32 s21, s23, 0x10000")
a(f"v_mul_u32_u24 v{U+3}, 272, v{U+1}\nv_lshl_add_u32 v{U+3}, v{U}, 5, v{U+3}\nv_add_u32 v{U+3}, s21, v{U+3}")
a(f"v_mul_u32_u24 v{U+4}, 272, v{U}\nv_lshl_add_u32 v{U+4}, v{U+1}, 4, v{U+4}\nv_add_u32 v{U+4}, s21, v{U+4}")
a(f"v_lshlrev_b32 v{U+5}, 16, v{U}\nv_bfe_u32 v{U+6}, v0, 3, 1\nv_lshl_add_u32 v{U+5}, v{U+6}, 12, v{U+5}\nv_and_b32 v{U+6}, 7, v0\nv_lshl_add_u32 v{U+5}, v{U+6}, 4, v{U+5}")
a("s_and_b32 s26, s35, 3\ns_lshl_b32 s26, s26, 20\ns_lshr_b32 s21, s35, 7\ns_lshl_b32 s21, s21, 13\ns_add_u32 s26, s26, s21\ns_bfe_u32 s21, s35, 0x30002\ns_lshl_b32 s21, s21, 9\ns_add_u32 s26, s26, s21")
a(f"s_bfe_u32 s21, s35, 0x20005\ns_lshl_b32 s21, s21, 7\ns_add_u32 s26, s26, s21\ns_add_u32 s26, s26, {WFR}")
a(f"s_and_b32 s75, s35, 3\ns_lshl_b32 s75, s75, 11\ns_bfe_u32 s21, s35, 0x20003\ns_lshl_b32 s21, s21, 9\ns_add_u32 s75, s75, s21\ns_lshr_b32 s21, s35, 5\ns_lshl_b32 s21, s21, 4\ns_add_u32 s75, s75, s21\ns_bfe_u32 s21, s35, 0x10002\ns_lshl_b32 s21, s21, 3\ns_add_u32 s75, s75, s21\ns_add_u32 s75, s75, {FW}")
a("s_cmp_ge_u32 s22, 2\ns_cbranch_scc1 P_skip")
a("s_and_b32 s75, s35, 3\ns_lshl_b32 s75, s75, 14\ns_lshr_b32 s21, s35, 7\ns_lshl_b32 s21, s21, 12\ns_add_u32 s75, s75, s21\ns_bfe_u32 s21, s35, 0x20003\ns_lshl_b32 s21, s21, 10\ns_add_u32 s75, s75, s21")
a(f"s_bfe_u32 s21, s35, 0x20005\ns_lshl_b32 s21, s21, 8\ns_add_u32 s75, s75, s21\ns_bfe_u32 s21, s35, 0x10002\ns_lshl_b32 s21, s21, 7\ns_add_u32 s75, s75, s21\ns_add_u32 s75, s75, {FE}")
a("s_cmp_lg_u32 s22, 0\ns_cbranch_scc1 P_skip")
a("s_waitcnt vmcnt(4)")
w1_process(WF, WF+16, 26)
nonce_load()
a("P_skip:")
a(f"v_and_b32 v{T+4}, 7, v0\nv_lshrrev_b32 v{T+5}, 3, v0")
a(f"s_and_b32 s20, s34, 1\ns_lshl_b32 s20, s20, 3\nv_add_u32 v{T+6}, s20, v{T+4}")
a(f"v_mul_u32_u24 v{T+7}, 400, v{T+4}\nv_add_u32 v{T+7}, s33, v{T+7}")
a(f"v_and_b32 v{T+8}, 1, v{T+5}\nv_lshrrev_b32 v{T+9}, 1, v{T+5}")
a(f"v_lshlrev_b32 v{T+10}, 3, v{T+8}\nv_xor_b32 v{T+10}, v{T+10}, v{T+6}")
a(f"v_lshl_add_u32 v{T+11}, v{T+9}, 6, v{T+7}")
a(f"v_lshlrev_b32 v{T+9}, 14, v{T+9}\nv_lshl_add_u32 v{T+9}, v{T+8}, 10, v{T+9}\nv_lshl_add_u32 v{T+9}, v{T+4}, 4, v{T+9}")
SL, LA_, RD, PK, SS = T+12, T+20, T+28, T+44, T+52
for u in range(8):
    a(f"v_xor_b32 v{SL+u}, {u}, v{T+10}")
    a(f"v_lshl_add_u32 v{LA_+u}, v{SL+u}, 2, v{T+11}")
a(f"v_and_b32 v{T+10}, 3, v{T+4}")
for u in range(4):
    a(f"v_xor_b32 v{SS+u}, {u}, v{T+10}\nv_lshl_add_u32 v{SS+4+u}, v{SS+u}, 2, v{T+7}\nv_add_u32 v{SS+u}, 16384, v{SS+u}")
a("s_lshr_b32 s27, s34, 3\ns_mul_i32 s27, s27, 102400\ns_lshl_b32 s20, s22, 11\ns_add_u32 s28, s27, s20\ns_and_b32 s21, s34, 7\ns_lshl_b32 s20, s21, 7\ns_add_u32 s28, s28, s20")
a(f"s_lshl_b32 s20, s22, 9\ns_add_u32 s27, s27, s20\ns_lshl_b32 s20, s21, 6\ns_add_u32 s27, s27, s20\ns_add_u32 s27, s27, 98304\nv_lshlrev_b32 v{T+8}, 3, v{T+4}")
a(f"v_xor_b32 v{TD+1}, v{T+4}, v{U}\nv_lshlrev_b32 v{TD}, 7, v{T+5}\nv_lshl_add_u32 v{TD}, v{TD+1}, 4, v{TD}\nv_xor_b32 v{TD+1}, 64, v{TD}")
def table_dma(mt, s=27):
    a(f"s_add_u32 s{s}, s23, {4096*(mt & 1) + 65536*(mt >> 1)}\ns_mov_b32 m0, s{s}\ns_nop 0")
    for x in range(4): a(f"buffer_load_dwordx4 v{TD+(x&1)}, s[8:11], s{s} offen offset:{1024*x} lds")
a("s_cmp_lt_u32 s22, 4\ns_cbranch_scc1 P_np")
table_dma(2, 21); table_dma(3, 21)
a("s_waitcnt vmcnt(8)\ns_branch P_c9")
a("P_np:")
a("s_cmp_lg_u32 s22, 0\ns_cbranch_scc1 P_c0")
nonce_get()
a(f"v_mov_b32 v{AD}, s64\nv_mov_b32 v{AD+1}, s65\nv_mov_b32 v{AD+2}, s64\nv_mov_b32 v{AD+3}, s65\ns_mov_b64 exec, 0xff\ns_waitcnt vmcnt(0)")
a(f"buffer_store_dwordx4 {rg(AD,4)}, v1, s[12:15], s75 offen {SC}\ns_mov_b64 exec, -1")
a("s_mov_b32 s35, 4097\ns_branch P_c9\nP_c0:\ns_waitcnt vmcnt(0)\nP_c9:")
stamp()
for u in range(8): a(f"ds_read_b32 v{RD+u}, v{LA_+u}")
for u in range(8): a(f"ds_read_b32 v{RD+8+u}, v{LA_+u} offset:256")
for u in range(4): a(f"ds_read_b32 v{SS+8+u}, v{SS+4+u} offset:384")
def conv(k):
    for u in range(8):
        a(f"v_lshl_add_u32 v{RD+8*k+u}, v{RD+8*k+u}, 4, v{SL+u}")
    for d in range(4):
        a(f"v_lshl_or_b32 v{PK+4*k+d}, v{RD+8*k+2*d+1}, 16, v{RD+8*k+2*d}")
a("s_waitcnt lgkmcnt(12)")
conv(0)
a(f"buffer_store_dwordx4 {rg(PK,4)}, v{T+9}, s[12:15], s28 offen {SC}")
a("s_waitcnt lgkmcnt(0)")
nonce_load()
conv(1)
for u in range(4): a(f"v_lshrrev_b32 v{SS+4+u}, 1, v{SS+8+u}\nv_lshl_add_u32 v{SS+8+u}, v{SS+8+u}, 2, v{SS+u}\nv_and_b32 v{SS+4+u}, 2, v{SS+4+u}\nv_xor_b32 v{SS+8+u}, v{SS+8+u}, v{SS+4+u}")
a(f"v_lshl_or_b32 v{SS+4}, v{SS+9}, 16, v{SS+8}\nv_lshl_or_b32 v{SS+5}, v{SS+11}, 16, v{SS+10}")
a(f"s_add_u32 s28, s28, 65536\ns_mov_b32 exec_hi, 0\nbuffer_store_dwordx4 {rg(PK+4,4)}, v{T+9}, s[12:15], s28 offen {SC}")
a(f"s_mov_b64 exec, 0xff\nbuffer_store_dwordx2 {rg(SS+4,2)}, v{T+8}, s[12:15], s27 offen {SC}\ns_mov_b64 exec, -1")
a("s_mov_b32 s36, s31\ns_mov_b32 s37, s26\ns_mov_b32 s38, s75")
table_dma(0)
a("s_lshl_b32 s20, s25, 3\ns_add_u32 s48, s48, s20\ns_addc_u32 s49, s49, 0\ns_add_u32 s50, s50, s20\ns_addc_u32 s51, s51, 0")
nonce_get()
a(f"s_lshr_b32 s31, s34, 3\ns_lshl_b32 s31, s31, 9\ns_and_b32 s20, s34, 7\ns_lshl_b32 s20, s20, 6\ns_add_u32 s31, s31, s20\ns_lshl_b32 s20, s22, 3\ns_add_u32 s31, s31, s20\ns_add_u32 s31, s31, {FI}")
a("s_waitcnt vmcnt(0)")
stamp()
flag_store(31)
a("s_lshr_b32 s20, s22, 2\ns_add_u32 s20, s20, 1\ns_lshl_b32 s20, s20, 8\ns_add_u32 s20, s20, s34")
a("s_lshr_b32 s21, s20, 5\ns_lshl_b32 s21, s21, 17\ns_bfe_u32 s39, s20, 0x30002\ns_lshl_b32 s39, s39, 12\ns_add_u32 s21, s21, s39\ns_and_b32 s39, s20, 3\ns_lshl_b32 s39, s39, 7\ns_add_u32 s21, s21, s39")
a("s_and_b32 s39, s22, 3\ns_lshl_b32 s39, s39, 10\ns_add_u32 s21, s21, s39\ns_add_u32 s46, s46, s21\ns_addc_u32 s47, s47, 0")
for f4 in range(4):
    for r in range(2): a(f"s_load_dword s3, s[46:47], {f4*32768 + r*512}")
def pl_op(sreg, tmp, addr): return f"buffer_load_dwordx2 {rg(tmp,2)}, v{addr}, s[12:15], s{sreg} offen {SC}"
def poll_load(sreg, tmp, addr): a(pl_op(sreg, tmp, addr))
def poll_check(sreg, tmp, addr, first_wait=0):
    l = newlab("Q_")
    a(f"s_mov_b32 s20, 0\ns_waitcnt vmcnt({first_wait})")
    a(f"{l}:")
    a(f"v_cmp_ne_u64 vcc, s[64:65], {rg(tmp,2)}\ns_cbranch_vccz {l}ok")
    a(f"s_sleep {SLEEP}")
    poll_load(sreg, tmp, addr)
    a(f"s_add_u32 s20, s20, 1\ns_waitcnt vmcnt(0)\ns_cmp_lt_u32 s20, 0x8000\ns_cbranch_scc1 {l}")
    a(f"{l}ok:")
a("s_cmp_lt_u32 s22, 4\ns_cbranch_scc1 P_g")
a(f"s_and_b32 s21, s24, 1\ns_lshr_b32 s68, s25, 4\ns_lshl_b32 s68, s68, 14\ns_lshl_b32 s20, s21, 12\ns_add_u32 s68, s68, s20\ns_and_b32 s20, s22, 3\ns_lshl_b32 s20, s20, 10\ns_add_u32 s68, s68, s20\ns_add_u32 s68, s68, {FE}")
a(f"s_lshl_b32 s69, s25, 16\ns_lshl_b32 s21, s21, 13\ns_add_u32 s69, s69, s21\ns_add_u32 s69, s69, s20\ns_add_u32 s69, s69, {WFR}\ns_add_u32 s74, s69, 4096")
a(f"v_and_b32 v{IX+8}, 7, v0\nv_lshlrev_b32 v{IX+8}, 7, v{IX+8}")
poll_load(68, IX+10, IX+8)
table_dma(1)
poll_check(68, IX+10, IX+8, 4)
stamp("z1")
a(f"buffer_load_dwordx4 {rg(IX,4)}, v1, s[12:15], s69 offen {SC}\nbuffer_load_dwordx4 {rg(IX+4,4)}, v1, s[12:15], s74 offen {SC}")
a("s_branch P_e")
a("P_g:")
for mt in range(1, 4): table_dma(mt)
a("P_e:")
a("s_load_dwordx2 s[70:71], s[48:49], 0\ns_load_dwordx2 s[72:73], s[50:51], 0")
a(f"v_bfe_u32 v{T+2}, v0, 4, 1\nv_lshlrev_b32 v{T+2}, 1, v{T+2}\nv_bfe_u32 v{T}, v0, 2, 2\nv_mov_b32 v{T+1}, 0x3f80")
a(f"v_cmp_eq_u32 vcc, v{T+2}, v{T}\nv_add_u32 v{T+2}, 1, v{T+2}\ns_nop 0\nv_cndmask_b32 v{SEL}, 0, v{T+1}, vcc\nv_cmp_eq_u32 vcc, v{T+2}, v{T}")
a(f"v_mov_b32 v{SEL+1}, v{SEL}\nv_and_b32 v{T+2}, 3, v0\nv_cndmask_b32 v{SEL+2}, 0, v{T+1}, vcc\nv_mul_u32_u24 v{SIDX}, 0x5555, v{T+2}\nv_mov_b32 v{SEL+3}, v{SEL+2}")
PI = T + 3
def pi_ops(d, t): return [f"v_and_b32 v{d}, 24, v0", f"v_and_b32 v{t}, 3, v0", f"v_lshl_add_u32 v{d}, v{t}, 1, v{d}", f"v_bfe_u32 v{t}, v0, 2, 1", f"v_add_u32 v{d}, v{d}, v{t}"]
for o in pi_ops(PI, T): a(o)
a(f"v_lshrrev_b32 v{T}, 5, v0\nv_bfe_u32 v{T+1}, v{PI}, 1, 3\nv_xor_b32 v{T+1}, v{T+1}, v{T}\nv_lshlrev_b32 v{PI}, 7, v{PI}\nv_lshl_add_u32 v{PI}, v{T+1}, 4, v{PI}\nv_add_u32 v{FR}, s23, v{PI}")
for ks in range(1, 4): a(f"v_xor_b32 v{FR+ks}, {32*ks}, v{FR}")
for ks in range(4): a(f"v_add_u32 v{FR+4+ks}, 0x10000, v{FR+ks}")
a(f"v_add_u32 v{T+8}, s33, v1\nv_add_u32 v{T+9}, {XB}, v1\nv_lshlrev_b32 v{AD}, 3, v0")
a("s_and_b32 s21, s24, 1\ns_xor_b32 s20, s24, 1\ns_lshl_b32 s28, s20, 3\ns_add_u32 s28, s28, s22\ns_mul_i32 s28, s28, 102400\ns_lshl_b32 s27, s21, 14\ns_add_u32 s28, s28, s27")
a(f"s_lshl_b32 s68, s20, 3\ns_add_u32 s68, s68, s22\ns_lshl_b32 s68, s68, 9\ns_add_u32 s68, s68, {FI}\ns_xor_b32 s31, s68, 4096")
a(f"s_lshl_b32 s75, s24, 6\ns_lshl_b32 s27, s22, 3\ns_add_u32 s75, s75, s27\ns_lshl_b32 s75, s75, 6\ns_add_u32 s75, s75, s25\ns_lshl_b32 s75, s75, 8\ns_add_u32 s75, s75, {PART}")
a(f"s_lshr_b32 s29, s25, 4\ns_lshl_b32 s39, s29, 14\ns_lshl_b32 s29, s29, 11\ns_and_b32 s27, s22, 3\ns_lshl_b32 s27, s27, 9\ns_add_u32 s29, s29, s27\ns_add_u32 s29, s29, {FW + 256}")
a(f"s_lshl_b32 s27, s27, 1\ns_add_u32 s39, s39, s27\ns_lshl_b32 s27, s21, 12\ns_add_u32 s39, s39, s27\ns_add_u32 s39, s39, {FE + 8192}")
a(f"s_lshl_b32 s26, s25, 16\ns_lshl_b32 s27, s22, 10\ns_add_u32 s26, s26, s27\ns_lshl_b32 s27, s21, 13\ns_add_u32 s26, s26, s27\ns_add_u32 s26, s26, {WFR + 16384}")
a("s_waitcnt vmcnt(0)")
stamp()
a("s_cmp_lt_u32 s22, 4\ns_cbranch_scc1 P_h")
a(f"ds_write_b128 v{T+8}, {rg(IX,4)} offset:1024\nds_write_b128 v{T+8}, {rg(IX+4,4)} offset:2048")
a("P_h:")
for mt in range(4):
    for ks in range(4):
        a(f"ds_read_b128 {rg(TAB+16*mt+4*ks,4)}, v{FR+4*(mt>>1)+ks} offset:{4096*(mt&1)}")
a(f"v_mov_b32 v{T+10}, 163836\nv_mov_b32 v{T+11}, 0\nds_write_b32 v{T+10}, v{T+11}")
a("s_waitcnt lgkmcnt(0)\ns_barrier")
stamp()
for x in (0, 4, 1, 5, 2, 6, 3, 7):
    a(f"ds_read_b128 {rg(WF+4*x,4)}, v{T+9} offset:{XS*(4 + (x&3)) + 1024 + 1024*(x>>2)}")
poll_load(68, IX, AD)
poll_load(31, IX+2, AD)
a("s_cmp_ge_u32 s35, 800\ns_cbranch_scc1 P_u0")
w1_loads(36)
a("P_u0:")
a("s_and_b32 s21, s24, 1\ns_lshl_b32 s21, s21, 1\ns_sub_u32 s21, s21, 1\ns_mul_i32 s46, s21, 819200\ns_sub_u32 s47, 16384, s46\ns_sub_u32 s46, s46, 16384")
def tg_mfma(mt, ks, e, d):
    c = "0" if ks == 0 else rg(d, 16)
    return f"v_mfma_f32_32x32x16_bf16 {rg(d,16)}, {rg(TAB+16*mt+4*ks,4)}, {rg(WF+16*e+4*ks,4)}, {c}"
def wr_op(r, reg):
    off = r*256 if r < 32 else 57472 + (r-32)*256
    pre = ["s_mov_b32 m0, s30", "s_nop 0"] if r == 32 else []
    return pre + [f"ds_write_addtid_b32 v{reg} offset:{off}"]
a("s_mov_b32 m0, s23")
PD = [(ACC, ACC+16), (ACC+32, ACC+48), (ACC, ACC+16), (POOL+32, WF)]
PO = [POOL, POOL+16, POOL, POOL+32]
IXAT = O("ixat", 2); UPAT = O("upat", 2)
pend = []
for mt in range(4):
    d0, d1 = PD[mt]
    seq = [(ks, e) for ks in range(4) for e in range(2)] if mt < 3 else [(ks, 0) for ks in range(4)] + [(ks, 1) for ks in range(4)]
    if mt == UPAT and UPAT < IXAT:
        a("s_cmp_ge_u32 s35, 800\ns_cbranch_scc1 P_k2\ns_waitcnt vmcnt(0)")
        w1_process(POOL+32, WR_, 37)
        a("P_k2:")
    if mt == IXAT:
        if UPAT < IXAT:
            a("s_waitcnt vmcnt(0)\ns_cmp_ge_u32 s35, 800\ns_cbranch_scc1 P_k4\ns_cmp_lg_u32 s22, 1\ns_cbranch_scc1 P_k3")
            for o in line_flag_ops(38, IX+4): a(o)
            a("s_branch P_k4\nP_k3:")
            flag_store(38, IX+4)
            a("P_k4:\ns_mov_b32 s35, 4096")
            poll_check(68, IX, AD, 1)
            poll_check(31, IX+2, AD, 1)
        else:
            a("s_cmp_lt_u32 s35, 800\ns_cbranch_scc1 P_u2\ns_waitcnt vmcnt(0)\nP_u2:")
            poll_check(68, IX, AD, 8)
            poll_check(31, IX+2, AD, 8)
        stamp("y1")
        a("s_lshl_b32 s68, s70, 16\ns_and_b32 s69, s70, 0xffff0000\ns_lshl_b32 s70, s71, 16\ns_and_b32 s71, s71, 0xffff0000")
        for x in range(4):
            a(f"buffer_load_dwordx4 {rg(IX+4*x,4)}, v1, s[12:15], s28 offen offset:{1024*x} {SC}")
        a("s_add_u32 s28, s28, 4096")
        TCH = O("tch", 0)
        if TCH:
            a(f"v_bfe_u32 v{U+6}, v0, 2, 1\nv_mul_u32_u24 v{VT}, 819200, v{U+6}\nv_lshrrev_b32 v{U+6}, 3, v0\nv_lshl_add_u32 v{VT}, v{U+6}, 15, v{VT}\nv_and_b32 v{U+6}, 3, v0\nv_lshl_add_u32 v{VT}, v{U+6}, 7, v{VT}")
            a("s_and_b32 s20, s24, 2\ns_lshl_b32 s20, s20, 3\ns_add_u32 s20, s20, s22\ns_mul_i32 s20, s20, 102400\ns_and_b32 s21, s24, 1\ns_lshl_b32 s21, s21, 14\ns_add_u32 s20, s20, s21\ns_lshr_b32 s21, s2, 3\ns_lshl_b32 s21, s21, 9\ns_add_u32 s20, s20, s21")
            a(f"s_mov_b64 exec, 0xffffff\nbuffer_load_dword v{U+7}, v{VT}, s[12:15], s20 offen {SC}\ns_mov_b64 exec, -1")
        a(f"s_cmp_lg_u32 s22, {FIN}\ns_cbranch_scc1 P_f")
        srd(a, 4, 40, 16384*26)
        a(f"s_mov_b32 m0, {XWL}\ns_mul_i32 s20, s34, 1664\nbuffer_load_dwordx4 v1, s[4:7], s20 offen lds\nbuffer_load_dwordx4 v1, s[4:7], s20 offen offset:1024 lds")
        srd(a, 4, 44, 2)
        a(f"s_mov_b32 m0, {XWL+2048}\nv_mov_b32 v{VT}, 0\nbuffer_load_ushort v{VT}, s[4:7], 0 offen lds")
        srd(a, 4, 52, 2)
        a(f"s_mov_b32 m0, {XWL+2304}\ns_nop 0\nbuffer_load_ushort v{VT}, s[4:7], 0 offen lds")
        srd(a, 4, 42, 26)
        a(f"s_mov_b32 m0, {XWL+2560}\nv_lshlrev_b32 v{VT}, 1, v0\nbuffer_load_ushort v{VT}, s[4:7], 0 offen lds\ns_mov_b32 m0, s23")
        a("P_f:")
    if mt == UPAT and UPAT >= IXAT:
        a("s_cmp_ge_u32 s35, 800\ns_cbranch_scc1 P_k2\ns_waitcnt vmcnt(%d)" % (4 + TCH))
        w1_process(POOL+32, WR_, 37)
        a("P_k2:")
    for n, (ks, e) in enumerate(seq):
        if mt == 0: a(f"s_waitcnt lgkmcnt({7 - n})")
        a(tg_mfma(mt, ks, e, d0 if e == 0 else d1))
        take = (len(pend) + (7 - n)) // (8 - n)
        for o in pend[:take]: a(o)
        pend = pend[take:]
    assert not pend
    body = []
    for r in range(16):
        body.append(f"v_cvt_pk_bf16_f32 v{PO[mt]+r}, v{d0+r}, v{d1+r}")
        if r: body.extend(wr_op(16*mt + r - 1, PO[mt] + r - 1))
    body.extend(wr_op(16*mt + 15, PO[mt] + 15))
    fill = ["s_nop 5", "s_nop 5"]
    if mt == 2: fill = [f"v_mov_b32 v{ACC+32+4*s+c}, s{68+c}" for s in range(8) for c in range(4)]
    if mt == 3: fill = [f"v_mov_b32 v{ACC+x}, 0" for x in range(20, 32)]
    pend = fill + body
    if mt == 2: pend += [f"v_mov_b32 v{ACC+x}, 0" for x in range(20)]
stamp("y2")
for o in pend: a(o)
a(f"s_cmp_lt_u32 s35, 800\ns_cbranch_scc1 P_m7\ns_cmp_eq_u32 s22, {FIN}\ns_cbranch_scc1 P_m7\ns_waitcnt vmcnt({3+TCH})\nP_m7:\ns_waitcnt vmcnt({7+TCH})")
stamp()

PAT = opts.get("pat", "SACMRL")
def pre_ops():
    ops = [f"v_lshlrev_b32_sdwa v{GD + 2*x}, 3, v{IX + x//2} dst_sel:DWORD dst_unused:UNUSED_PAD src0_sel:DWORD src1_sel:WORD_{x&1}" for x in range(8)]
    return ops + [f"buffer_load_dwordx4 {rg(IX,4)}, v1, s[12:15], s28 offen {SC}"]
U0 = O("u0", 36)
BIGQ = [TAB + 28 + 4*q for q in range(9)] + [WF + 4*q for q in range(4)] + [POOL + 28 + 4*q for q in range(5)]
def gather_phase(nunits, mf, cv, extra, acc_of, head, tail=None):
    NB = nunits * 2; last = nunits == 36
    def ixreg(u): return BIGQ[u - U0] if last and u >= U0 else IX + 4*(u & 3)
    log = [("ix", u) for u in range(5)]
    def vm_wait(tag):
        idx = len(log) - 1 - log[::-1].index(tag)
        a(f"s_waitcnt vmcnt({len(log) - 1 - idx})")
    def A(b):
        if b >= NB: return
        u = b // 2
        if b % 2 == 0: vm_wait(("ix", u))
        for x in range(4):
            d = ixreg(u) + 2*(b & 1) + x//2
            a(f"v_lshlrev_b32_sdwa v{GD + (8*b) % 16 + 2*x}, 3, v{d} dst_sel:DWORD dst_unused:UNUSED_PAD src0_sel:DWORD src1_sel:WORD_{x&1}")
    def R(b):
        if b >= NB: return
        for x in range(4):
            q = GD + (8*b) % 16 + 2*x
            a(f"ds_read_b64 {rg(q,2)}, v{q}")
    def L(b):
        u = b // 2
        if b >= NB or b % 2 == 0 or (last and u + 4 >= min(nunits, U0)): return
        if last and u + 4 >= 32:
            for h in range(2):
                a(f"buffer_load_dwordx2 {rg(IX+4*(u&3)+2*h,2)}, v{VT}, s[12:15], s28 offen offset:{1024*(u&3)+512*h} {SC}")
                log.append(("ix", u + 4))
        else:
            a(f"buffer_load_dwordx4 {rg(IX+4*(u&3),4)}, v1, s[12:15], s28 offen offset:{1024*(u&3)} {SC}")
            log.append(("ix", u + 4))
        if u & 3 == 3:
            a("s_add_u32 s28, s28, 4096")
            if u + 4 == 15: a("s_add_u32 s28, s28, s46")
            if u + 4 == 31: a("s_add_u32 s28, s28, s47")
    def emit(ops):
        for o in ops:
            if o == "SYNC": continue
            if isinstance(o, tuple) and o[0] == "WAIT": vm_wait(o[1])
            elif isinstance(o, tuple):
                a(o[0]); log.append(o[1])
            else: a(o)
    sync = sorted(b for b, ops in extra.items() if "s_barrier" in ops or "SYNC" in ops) + [NB - 1]
    pr = {}; lo = 0
    for hi in sync:
        for q in range(4): pr[lo + ((hi + 1 - lo) * q) // 4] = 3 - q
        lo = hi + 1
    head()
    R(0); R(1)
    for b in range(NB):
        if b in pr and b: a(f"s_setprio {pr[b]}")
        nb = b + 2
        for ch in PAT:
            if ch == "S":
                a(f"s_waitcnt lgkmcnt({min(NB, nb) * 4 - 4*(b+1)})")
                if tail and b == NB - 1: tail()
                a(f"v_smfmac_f32_16x16x64_bf16 {rg(ACC+4*acc_of(b),4)}, {rg(SEL,4)}, {rg(GD + (8*b) % 16, 8)}, v{SIDX}")
            elif ch == "A": A(nb)
            elif ch == "R": R(nb)
            elif ch == "M": emit(mf.get(b, []))
            elif ch == "C": emit(cv.get(b, []))
            elif ch == "L": L(nb)
        emit(extra.get(b, []))
    return log, vm_wait
pad(PADPRO)
for o in pre_ops(): a(o)
g_start = len(a.lines)
RAW = POOL
P16, P32 = POOL + 16, POOL + 32
def add(d, b, ops): d.setdefault(b, []).extend(ops)
def cvt(d, x, y): return f"v_cvt_pk_bf16_f32 v{d}, v{x}, v{y}"
def selfpack(d, s): return [cvt(d + q, s + 2*q, s + 2*q + 1) for q in range(8)]
def combine(d):
    ops = []
    for q in range(7, -1, -1):
        ops += [f"v_perm_b32 v{d+2*q+1}, v{d+q}, v{T8+q}, s67", f"v_perm_b32 v{d+2*q}, v{d+q}, v{T8+q}, s66"]
    return ops
def tgen(start, per, nv):
    mf = {}; cv = {}; cur = [start]
    def M(ops):
        for i in range(0, len(ops), per):
            add(mf, cur[0], ops[i:i+per]); cur[0] += 1
    def V(ops, adv=True):
        b = cur[0] + 1
        for i in range(0, len(ops), nv):
            add(cv, b, ops[i:i+nv]); b += 1
        if adv: cur[0] = b - 1
    M([tg_mfma(0, ks, e, (P16, P32)[e]) for ks in range(4) for e in range(2)])
    V([cvt(POOL + r, P16 + r, P32 + r) for r in range(16)])
    M([tg_mfma(1, ks, e, (P16, P32)[e]) for ks in range(4) for e in range(2)])
    V([cvt(P16 + r, P16 + r, P32 + r) for r in range(16)])
    M([tg_mfma(2, ks, 0, P32) for ks in range(4)])
    V(selfpack(T8, P32))
    M([tg_mfma(3, ks, 0, P32) for ks in range(4)])
    V(selfpack(P32, P32), adv=False)
    M([tg_mfma(2, ks, 1, WF) for ks in range(4)])
    V(selfpack(WF, WF) + combine(WF) + [f"v_mov_b32 v{T8+q}, v{P32+q}" for q in range(8)])
    M([tg_mfma(3, ks, 1, P32) for ks in range(4)])
    lastm = cur[0]
    V(selfpack(P32, P32) + combine(P32))
    print("tile generation: last MFMA batch", lastm - 1, "ends at", cur[0])
    assert cur[0] <= 63
    return mf, cv, lastm
SRC = [POOL + r for r in range(32)] + [WF + r for r in range(16)] + [P32 + r for r in range(16)]
NX = WF + 16
def g_tail():
    a("s_barrier"); cyc()
    a("s_setprio 3")
    for r in range(4):
        for o in wr_op(r, SRC[r]): a(o)
PA = O("pa", 50)
def w_phase(tag, vm_wait, pre, wr, early=()):
    po = pre_ops(); fill = list(pre) + ["IXW"] + po[:8]
    for o in early: a(o)
    F0 = O("wf0", 8)
    for r in range(4, 64):
        if r % 16 == 0: a(f"s_setprio {3 - r // 16}")
        if r == 52: a(f"s_cmp_eq_u32 s22, 7\ns_cbranch_scc1 {tag}")
        for o in wr_op(r, SRC[r]): a(o)
        if r >= F0 and fill:
            o = fill.pop(0)
            if o == "IXW": vm_wait(("ix", 32))
            else: a(o)
        if r == PA:
            assert not fill
            a("s_waitcnt vmcnt(0)")
            for o in wr: a(o)
            a(po[8])
    a(f"{tag}:")
def part_off(d, t): return [f"v_lshrrev_b32 v{d}, 3, v0", f"v_lshlrev_b32 v{d}, 14, v{d}", f"v_and_b32 v{t}, 7, v0", f"v_lshl_add_u32 v{d}, v{t}, 4, v{d}"]
def wf_reads(ad): return [f"ds_read_b128 {rg(WF+4*x,4)}, v{ad} offset:{XS*x}" for x in (0, 4, 1, 5, 2, 6, 3, 7)]
PB = O("pb", 12); RB = O("rb", 16); XBAT = O("xb", 22); BB = O("bb", 26)
extra = {}
add(extra, PB, [f"v_min_u32 v{RAW+2}, 7, v0", f"v_lshlrev_b32 v{RAW+2}, 7, v{RAW+2}", (pl_op(39, RAW, RAW+2), ("wfl", 0))])
add(extra, RB, [("WAIT", ("wfl", 0)), f"v_cmp_ne_u64 vcc, s[64:65], {rg(RAW,2)}", "s_cbranch_vccnz W_slow", "W_back:",
                (f"buffer_load_dwordx4 {rg(RAW,4)}, v1, s[12:15], s26 offen {SC}", ("raw", 0)), "s_add_u32 s26, s26, 16384"])
CB0 = O("cb0", 1); C1 = 163836
add(extra, XBAT, [f"v_add_u32 v{RAW+4}, s33, v1", ("WAIT", ("raw", 0)), f"ds_write_b128 v{RAW+4}, {rg(RAW,4)}"])
if CB0:
    add(extra, XBAT, [f"v_mov_b32 v{RAW+6}, {C1}", f"v_mov_b32 v{RAW+7}, 1", "s_mov_b64 exec, 1", f"ds_add_u32 v{RAW+6}, v{RAW+7}", "s_mov_b64 exec, -1", "SYNC"])
    add(extra, BB - 2, [f"ds_read_b32 v{RAW+7}, v{RAW+6}"])
    add(extra, BB, [f"v_add_u32 v{RAW+4}, {XB}, v1", f"v_readfirstlane_b32 s20, v{RAW+7}", "s_cmp_lt_u32 s20, 8", "s_cbranch_scc1 J_slow", "J_back:"] + wf_reads(RAW+4))
else:
    add(extra, BB, [f"v_add_u32 v{RAW+4}, {XB}, v1", "s_barrier"] + wf_reads(RAW+4))
add(extra, BB + 1, [f"v_min_u32 v{T8+2}, 17, v0", f"v_lshlrev_b32 v{T8+2}, 3, v{T8+2}", (pl_op(29, T8, T8+2), ("wf2", 0))])
add(extra, BB + 9, [("WAIT", ("wf2", 0)), f"v_cmp_ne_u64 vcc, s[64:65], {rg(T8,2)}", "s_cbranch_vccnz Z_slow", "Z_back:"])
mf, cv, lastm = tgen(BB + 3, O("per0", 2), O("nv0", 6))
add(extra, max(lastm, 54), [(f"buffer_load_dwordx4 {rg(NX,4)}, v1, s[12:15], s26 offen {SC}", ("nx", 0)), "s_mov_b32 m0, s23"])
def g0_head():
    a("s_setprio 3\ns_waitcnt lgkmcnt(0)\ns_barrier"); cyc()
    a("s_cmp_lt_u32 s35, 800\ns_cbranch_scc1 L_first\nL_G1:")
_, vw = gather_phase(32, mf, cv, extra, lambda b: b // 4, g0_head, g_tail)
w_phase("W_e0", vw, [f"v_add_u32 v{T8+7}, s33, v1", f"v_add_u32 v{T8+6}, {XB}, v1"] + part_off(T8+4, T8+5) + [f"v_mov_b32 v{T8+x}, -1" for x in range(4)] +
        ["s_xor_b32 s27, s34, 64", "s_lshl_b32 s3, s27, 15", "s_lshl_b32 s20, s22, 12", "s_add_u32 s3, s3, s20", f"s_add_u32 s3, s3, {HX}",
         "s_lshl_b32 s38, s27, 11", "s_lshl_b32 s20, s22, 8", "s_add_u32 s38, s38, s20", f"s_add_u32 s38, s38, {FX}", "s_xor_b32 s39, s38, 0x20000", "s_xor_b32 s37, s3, 0x200000"],
        [f"ds_write_b128 v{T8+7}, {rg(NX,4)}"])
a(f"buffer_store_dwordx4 {rg(T8,4)}, v{T8+4}, s[12:15], s75 offen {SC}\nbuffer_store_dwordx4 {rg(T8,4)}, v{T8+4}, s[12:15], s75 offen offset:128 {SC}")
mf, cv, lastm = tgen(O("ts1", 1), O("per1", 1), O("nv1", 4))
extra = {}
add(extra, 2, [f"s_lshl_b32 s26, s25, 16", "s_lshl_b32 s27, s22, 10", "s_add_u32 s26, s26, s27", f"s_add_u32 s26, s26, {WFR + 6*8192}"])
add(extra, max(lastm, 54), [f"v_and_b32 v{NX}, 0x27f, v1", (f"buffer_load_dwordx4 {rg(NX,4)}, v{NX}, s[12:15], s26 offen {SC}", ("nx", 0)), "s_mov_b32 m0, s23"])
def g1_head():
    a("s_setprio 3\ns_waitcnt lgkmcnt(0)\ns_barrier"); cyc()
    for o in wf_reads(T8+6): a(o)
_, vw = gather_phase(32, mf, cv, extra, lambda b: b // 4, g1_head, g_tail)
A0 = T8 + 4; XW = POOL
mid = [f"v_lshrrev_b32 v{T8}, 5, v0", f"v_lshlrev_b32 v{T8}, 7, v{T8}", f"v_and_b32 v{T8+1}, 7, v0", f"v_lshl_add_u32 v{T8}, v{T8+1}, 4, v{T8}",
       "s_lshl_b32 s20, s22, 8", f"s_add_u32 s20, s20, {PADR}", f"v_add_u32 v{T8}, s20, v{T8}",
       f"v_and_b32 v{A0}, 1, v0", f"v_lshlrev_b32 v{A0}, 10, v{A0}", f"v_bfe_u32 v{A0+1}, v0, 1, 1", f"v_lshl_add_u32 v{A0}, v{A0+1}, 4, v{A0}",
       f"v_bfe_u32 v{A0+1}, v0, 3, 1", f"v_lshl_add_u32 v{A0}, v{A0+1}, 5, v{A0}", f"v_bfe_u32 v{A0+1}, v0, 2, 1", f"v_lshl_add_u32 v{A0}, v{A0+1}, 6, v{A0}",
       f"v_lshrrev_b32 v{A0+1}, 5, v0", f"v_lshl_add_u32 v{A0}, v{A0+1}, 7, v{A0}", f"v_add_u32 v{A0}, {PADR}, v{A0}",
       f"v_mov_b32 v{T8+2}, {PADR + 2048}", f"v_mov_b32 v{T8+1}, 0", f"ds_write_b32 v{T8+2}, v{T8+1}",
       "s_and_b32 s27, s24, 1", "s_xor_b32 s27, s27, 1", "s_lshl_b32 s47, s27, 14", f"v_lshlrev_b32 v{VT}, 3, v0"]
F2OPS = ["s_cmp_lg_u32 s22, 0", "s_cbranch_scc1 G_nf2", "s_lshl_b32 s31, s34, 3", f"s_add_u32 s31, s31, {F2}"] + flag_ops(31, T8) + ["G_nf2:"]
w_phase("W_e1", vw, mid, [f"ds_write_b128 v{T8}, {rg(NX,4)}"])
XW = WF + 16
a(f"s_cmp_lg_u32 s22, {FIN}\ns_cbranch_scc1 L_Glast")
a(f"v_and_b32 v{T8}, 7, v0\nv_bfe_u32 v{T8+1}, v0, 3, 1\nv_lshl_add_u32 v{T8}, v{T8+1}, 5, v{T8}\nv_lshrrev_b32 v{T8+1}, 4, v0\nv_lshl_add_u32 v{T8}, v{T8+1}, 3, v{T8}\nv_mul_u32_u24 v{T8}, 26, v{T8}\nv_add_u32 v{T8}, {XWL}, v{T8}\nv_mov_b32 v{T8+1}, {XWL+2048}\nv_lshl_add_u32 v{T8+2}, v0, 2, v{T8+1}")
for k in range(13): a(f"ds_read_u16_d16_hi v{XW+k}, v{T8} offset:{2*k}")
a(f"ds_read_u16_d16_hi v{XW+13}, v{T8+1}\nds_read_u16_d16_hi v{XW+14}, v{T8+1} offset:256\nds_read_u16_d16_hi v{XW+15}, v{T8+2} offset:512")
a("L_Glast:")
HR = TAB + 20
extra = {}; mf = {}; cv = {}
BB = 0
add(extra, 0, F2OPS)
VSP = T8 + 6
add(cv, BB + 1, pi_ops(VSP, VSP+1) + [f"v_lshlrev_b32 v{VSP}, 5, v{VSP}"])
add(cv, BB + 2, [f"v_lshrrev_b32 v{A0}, 5, v0", f"v_bfe_u32 v{VSP+1}, v0, 1, 1", f"v_xor_b32 v{VSP+1}, v{VSP+1}, v{A0}", f"v_lshl_add_u32 v{VSP}, v{VSP+1}, 4, v{VSP}",
                 "s_lshl_b32 s31, s22, 11", "s_add_u32 s31, s31, 131072", f"v_add_u32 v{VSP}, s31, v{VSP}"])
S0 = BB + 3
for mt in range(4):
    d = POOL + 16*(mt % 3)
    for ks in range(4):
        add(mf, S0 + 4*mt + ks, [f"v_mfma_f32_32x32x16_bf16 {rg(d,16)}, {rg(WF+4*ks,4)}, {rg(TAB+16*mt+4*ks,4)}, {'0' if ks == 0 else rg(d,16)}"])
    add(cv, S0 + 4*mt + 5, [cvt(d + x, d + 2*x, d + 2*x + 1) for x in range(4)])
    add(extra, S0 + 4*mt + 5, [f"ds_write_b128 v{VSP}, {rg(d,4)} offset:{(32*(mt & 1) + 512*(mt >> 1)) * 32}"])
if O("nosp", 0): mf = {}; extra = {k: [o for o in v if "ds_write_b128" not in str(o)] for k, v in extra.items()}
CB = O("cb", 0)
C2 = PADR + 2048
if CB:
    add(extra, S0 + 17, [f"v_mov_b32 v{A0}, {C2}", f"v_mov_b32 v{A0+1}, 1", "s_mov_b64 exec, 1", f"ds_add_u32 v{A0}, v{A0+1}", "s_mov_b64 exec, -1"])
    add(extra, 57, [f"ds_read_b32 v{A0+1}, v{A0}"])
    add(extra, 60, [f"v_readfirstlane_b32 s20, v{A0+1}", "s_cmp_lt_u32 s20, 8", "s_cbranch_scc1 K_slow", "K_back:"])
elif not O("nomb", 0): add(extra, O("mbat", 56), ["s_barrier"])
for t in range(4):
    b = 8*t + 9; s = ACC + 8*t
    add(cv, b, [cvt(s + x, s + 2*x, s + 2*x + 1) for x in range(4)])
    add(extra, b, [(f"buffer_store_dwordx4 {rg(s,4)}, v1, s[12:15], s3 offen offset:{1024*t} {SC}" if not O("nohs", 0) else f"buffer_load_dword v{HR+8}, v1, s[60:63], 0 offen", ("hs", t))])
def hl_op(t): return f"buffer_load_dwordx4 {rg(ACC+8*t+4,4)}, v1, s[12:15], s37 offen offset:{1024*t} {SC}"
NA = O("na", 3)
FA, PA_, CA, SA = O("fa", 8*NA + 7), O("pa1", 45), O("ca", 50), O("sa", 3)
FB, PB_, CB_ = O("fb", 39), O("pb1", 59), O("cb1", 64)
add(extra, FA, [("WAIT", ("hs", NA - 1)) if not O("hstrict", 1) else "s_waitcnt vmcnt(0)"] + line_flag_ops(38, HR + 4, ("fl", 0)) + ["s_add_u32 s38, s38, 128"])
if NA < 4: add(extra, FB, [("WAIT", ("hs", 3)) if not O("hstrict", 1) else "s_waitcnt vmcnt(0)"] + line_flag_ops(38, HR + 4, ("fl", 1)))
add(extra, PA_, [f"v_mov_b32 v{HR+2}, 0", (pl_op(39, HR, HR+2), ("hp", 0))])
add(extra, CA, [("WAIT", ("hp", 0)), f"v_cmp_ne_u64 vcc, s[64:65], {rg(HR,2)}", "s_cbranch_vccnz H_slow", "H_back:", "s_add_u32 s39, s39, 128"])
for t in range(NA): add(extra, CA + SA*t, [(hl_op(t), ("hl", t))])
if NA < 4: add(extra, PB_, [(pl_op(39, HR, HR+2), ("hp", 1))])
if NA == 4: add(extra, CB_, ["I_back:"])
else: add(extra, CB_, [("WAIT", ("hp", 1)), f"v_cmp_ne_u64 vcc, s[64:65], {rg(HR,2)}", "s_cbranch_vccnz I_slow", "I_back:"] + [(hl_op(t), ("hl", t)) for t in range(NA, 4)])
Y = TAB; K = ACC + 32
def epi(s):
    r = ACC + 8*(s >> 1) + 4 + 2*(s & 1); t = POOL + 24
    w = [("WAIT", ("hl", s >> 1))] if s % 2 == 0 else []
    return w + [f"v_lshlrev_b32 v{t}, 16, v{r}", f"v_and_b32 v{t+1}, s27, v{r}", f"v_lshlrev_b32 v{t+2}, 16, v{r+1}", f"v_and_b32 v{t+3}, s27, v{r+1}",
            f"v_pk_add_f32 {rg(t,2)}, {rg(t,2)}, {rg(K+4*s,2)}", f"v_pk_add_f32 {rg(t+2,2)}, {rg(t+2,2)}, {rg(K+4*s+2,2)}",
            cvt(POOL+2*s, t, t+1), cvt(POOL+2*s+1, t+2, t+3),
            f"v_pk_max_i16 v{POOL+2*s}, v{POOL+2*s}, 0", f"v_pk_max_i16 v{POOL+2*s+1}, v{POOL+2*s+1}, 0",
            f"v_dot2_f32_bf16 v{POOL+16+s}, v{POOL+2*s}, s72, 0", f"v_dot2_f32_bf16 v{POOL+16+s}, v{POOL+2*s+1}, s73, v{POOL+16+s}"]
def epi2(s): return [f"v_min_u32 v{POOL+16+s}, s33, v{POOL+16+s}"]
st0 = f"buffer_store_dwordx4 {rg(POOL+16,4)}, v{Y+14}, s[12:15], s75 offen {SC}"
st1 = f"buffer_store_dwordx4 {rg(POOL+20,4)}, v{Y+14}, s[12:15], s75 offen offset:128 {SC}"
add(extra, 62, ["s_lshl_b32 s31, s24, 9", f"s_add_u32 s31, s31, {F2}", "s_mov_b32 s33, -2", "s_mov_b32 s27, 0xffff0000", f"v_lshlrev_b32 v{Y+18}, 3, v0"])
add(extra, O("f2at", 66), [(pl_op(31, Y+16, Y+18), ("f2", 0))])
add(cv, 58, part_off(Y+14, Y+15) + [f"v_lshlrev_b32 v{Y+12}, 2, v0", f"v_add_u32 v{Y+12}, {PADR}, v{Y+12}"])
add(cv, 59, ["s_lshl_b32 s29, s34, 14", "s_lshl_b32 s20, s22, 11", "s_add_u32 s29, s29, s20", f"s_add_u32 s29, s29, {PART}", "s_lshl_b32 s20, s22, 8", f"v_add_u32 v{Y+13}, s20, v{Y+12}",
             f"v_and_b32 v{Y+10}, 7, v0", f"v_bfe_u32 v{Y+11}, v0, 3, 1", f"v_lshl_add_u32 v{Y+10}, v{Y+11}, 5, v{Y+10}"])
add(cv, 60, [f"v_lshrrev_b32 v{Y+11}, 4, v0", f"v_lshl_add_u32 v{Y+10}, v{Y+11}, 3, v{Y+10}", "s_lshl_b32 s20, s34, 6", f"v_add_u32 v{Y+10}, s20, v{Y+10}", f"v_lshlrev_b32 v{Y+10}, 1, v{Y+10}",
             "s_mov_b32 s8, s54", "s_and_b32 s9, s55, 0xffff", "s_mov_b32 s10, 32768", "s_mov_b32 s11, 0x00020000"])
for s in range(7): add(cv, 65 + s, epi(s) + (epi2(s-1) if s else []))
add(extra, 69, [(st0, ("st", 0))])
if CYC == 1:
    add(extra, 61, cyc_ops())
    add(extra, 30, cyc_ops())
if CYC == 2:
    for b in [int(x) for x in opts.get("at", "8,16,24,30,32,38,40,49,51,58,63,65").split(",")]: add(extra, b, cyc_ops())
if U0 < 36:
    B0 = O("b0", S0 + 18); BR = O("br", 1)
    add(extra, B0 - 1, ["s_lshl_b32 s21, s24, 3", "s_add_u32 s21, s21, s22", "s_mul_i32 s21, s21, 102400", "s_add_u32 s36, s21, 98304", "s_and_b32 s20, s24, 1", "s_lshl_b32 s20, s20, 14",
                        "s_add_u32 s21, s21, s20", f"s_add_u32 s21, s21, {65536 + 4096*((U0-16)//4)}"])
    for u in range(U0, 36):
        b = B0 + (u - U0) // BR; q = BIGQ[u - U0]
        if u < 32:
            add(extra, b, [(f"buffer_load_dwordx4 {rg(q,4)}, v1, s[12:15], s21 offen offset:{1024*(u&3)} {SC}", ("ix", u))] + (["s_add_u32 s21, s21, 4096"] if u & 3 == 3 else []))
        else:
            add(extra, b, [(f"buffer_load_dwordx2 {rg(q+2*h,2)}, v{VT}, s[12:15], s36 offen offset:{1024*(u&3)+512*h} {SC}", ("ix", u)) for h in range(2)])
def gl_head():
    a("s_setprio 3\ns_waitcnt lgkmcnt(0)\ns_barrier"); cyc()
    for x in range(4): a(f"ds_read_b128 {rg(WF+4*x,4)}, v{A0} offset:{256*x}")
gather_phase(36, mf, cv, extra, lambda b: b // 4 if b < 64 else b - 56, gl_head)
cyc()
stamp()
for o in epi(7) + epi2(6): a(o)
a("s_nop 1")
for o in epi2(7): a(o)
a(st1)
VW = T8
a(f"s_mov_b32 s20, 0\ns_cmp_lg_u32 s22, {FIN}\ns_cbranch_scc1 R_f2")
for k in range(16): a(f"v_and_b32 v{XW+k}, s27, v{XW+k}")
a("s_nop 0")
for k in range(13): a(f"v_readlane_b32 s{36+k}, v{XW+15}, {k}")
a(f"v_readfirstlane_b32 s74, v{XW+14}\nv_mul_f32 v{VW}, s36, v{XW}")
for k in range(1, 13): a(f"v_fmac_f32 v{VW}, s{36+k}, v{XW+k}")
rnd(VW); a(f"v_add_f32 v{VW}, v{VW}, v{XW+13}"); rnd(VW)
a("R_f2:")
a(f"s_waitcnt vmcnt(0)\nv_cmp_ne_u64 vcc, s[64:65], {rg(Y+16,2)}\ns_cbranch_vccz R_f2ok")
a(f"s_sleep 1\n{pl_op(31, Y+16, Y+18)}\ns_add_u32 s20, s20, 1\ns_cmp_lt_u32 s20, 0x8000\ns_cbranch_scc1 R_f2")
a("R_f2ok:")
a("s_mov_b32 s20, 0")
a("R_poll:")
a(f"buffer_load_dwordx4 {rg(Y,4)}, v1, s[12:15], s29 offen {SC}\nbuffer_load_dwordx4 {rg(Y+4,4)}, v1, s[12:15], s29 offen offset:1024 {SC}")
a("s_add_u32 s20, s20, 1\ns_waitcnt vmcnt(0)")
a(f"v_max3_u32 v{Y+8}, v{Y}, v{Y+1}, v{Y+2}\nv_max3_u32 v{Y+9}, v{Y+3}, v{Y+4}, v{Y+5}\nv_max3_u32 v{Y+8}, v{Y+8}, v{Y+6}, v{Y+7}\nv_max_u32 v{Y+8}, v{Y+8}, v{Y+9}")
a(f"v_cmp_eq_u32 vcc, -1, v{Y+8}\ns_cbranch_vccz R_ok")
a(f"s_sleep {RSLEEP}\ns_cmp_lt_u32 s20, 0x8000\ns_cbranch_scc1 R_poll")
a("R_ok:")
stamp("y3")
for x in range(4): a(f"v_add_f32 v{Y+x}, v{Y+x}, v{Y+4+x}")
a(f"s_nop 0\nv_permlane32_swap_b32 v{Y}, v{Y+2}\nv_permlane32_swap_b32 v{Y+1}, v{Y+3}\ns_nop 0\nv_add_f32 v{Y}, v{Y}, v{Y+2}\nv_add_f32 v{Y+1}, v{Y+1}, v{Y+3}\ns_nop 1\nv_permlane16_swap_b32 v{Y}, v{Y+1}\ns_nop 0\nv_add_f32 v{Y}, v{Y}, v{Y+1}")
a(f"ds_write_b32 v{Y+13}, v{Y}\ns_waitcnt lgkmcnt(0)\ns_barrier")
a(f"s_cmp_lg_u32 s22, {FIN}\ns_cbranch_scc1 M_fin")
for k in range(8): a(f"ds_read_b32 v{Y+k}, v{Y+12} offset:{256*k}")
a("s_waitcnt lgkmcnt(0)")
a(f"v_add_f32 v{Y}, v{Y}, v{Y+1}\nv_add_f32 v{Y+2}, v{Y+2}, v{Y+3}\nv_add_f32 v{Y+4}, v{Y+4}, v{Y+5}\nv_add_f32 v{Y+6}, v{Y+6}, v{Y+7}\nv_add_f32 v{Y}, v{Y}, v{Y+2}\nv_add_f32 v{Y+4}, v{Y+4}, v{Y+6}\nv_add_f32 v{Y}, v{Y}, v{Y+4}")
rnd(Y); a(f"v_add_f32 v{Y}, s74, v{Y}"); rnd(Y)
a(f"v_add_f32 v{Y}, v{Y}, v{VW}"); rnd(Y)
a(f"v_mul_f32 v{Y}, 0xbfb8aa3b, v{Y}\nv_exp_f32 v{Y}, v{Y}\ns_nop 0\nv_add_f32 v{Y}, 1.0, v{Y}\nv_rcp_f32 v{Y}, v{Y}\ns_nop 0\nv_cvt_pk_bf16_f32 v{Y}, v{Y}, v{Y}")
a(f"buffer_store_short v{Y}, v{Y+10}, s[8:11], 0 offen")
a("M_fin:")
PROBE = O("probe", -1)
if PROBE >= 0:
    a(f"s_cmp_lg_u32 s22, {SW}\ns_cbranch_scc1 M_end\ns_waitcnt vmcnt(0)")
    stamp()
    a(f"s_waitcnt lgkmcnt(0)\ns_sub_u32 s20, s{76+2*PROBE}, s64\ns_mul_i32 s20, s20, {O('gain', 10)}\ns_add_u32 s20, s20, 4000")
    a("PRB:\ns_memrealtime s[32:33]\ns_waitcnt lgkmcnt(0)\ns_sub_u32 s32, s32, s64\ns_cmp_lt_i32 s32, s20\ns_cbranch_scc1 PRB")
elif STAMP:
    a(f"s_cmp_lg_u32 s22, {SW}\ns_cbranch_scc1 M_end\ns_waitcnt vmcnt(0)")
    stamp()
    a("s_waitcnt lgkmcnt(0)")
    n = nst[0]
    if O("mt", 0):
        for k in range(n - 1, -1, -1): a(f"s_sub_u32 s{76+2*k}, s{76+2*k}, s76\ns_mov_b32 s{77+2*k}, 0")
    if CYC:
        n = 13
        for k in range(1, 12): a(f"s_sub_u32 s{76+2*k}, s{76+2*k}, s{78+2*k}\ns_mov_b32 s{77+2*k}, 0")
        a("s_mov_b32 s76, 0\ns_mov_b32 s77, 0\ns_mov_b32 s100, 0\ns_mov_b32 s101, 0")
    elif PADPRO: a("s_mov_b32 s76, s64\ns_and_b32 s77, s65, 0x7fffffff")
    a(f"s_mul_i32 s31, s2, {8*n}\ns_add_u32 s31, s31, 0x8000000\nv_mov_b32 v2, 0")
    for k in range(n):
        a(f"v_mov_b32 v4, s{76+2*k}\nv_mov_b32 v5, s{77+2*k}\nbuffer_store_dwordx2 v[4:5], v2, s[12:15], s31 offen offset:{8*k}\ns_waitcnt vmcnt(0)")
    print("nstamps", n)
a("M_end:\ns_endpgm")
a("L_first:")
a("s_waitcnt vmcnt(0)\ns_cmp_lg_u32 s22, 1\ns_cbranch_scc1 L_f2")
for o in line_flag_ops(38, WF): a(o)
a("s_branch L_G1\nL_f2:")
flag_store(38, WF)
a("s_branch L_G1")
for tg, sr, t in (("W", 39, RAW), ("Z", 29, T8), ("H", 39, HR), ("I", 39, HR)):
    a(f"{tg}_slow:")
    poll_check(sr, t, t+2)
    a(f"s_branch {tg}_back")
def cnt_slow(tag, ad):
    a(f"{tag}_slow:\ns_mov_b32 s21, 0\n{tag}_l:\nds_read_b32 v{ad+1}, v{ad}\ns_add_u32 s21, s21, 1\ns_waitcnt lgkmcnt(0)\nv_readfirstlane_b32 s20, v{ad+1}")
    a(f"s_cmp_ge_u32 s20, 8\ns_cbranch_scc1 {tag}_back\ns_cmp_lt_u32 s21, 0x100000\ns_cbranch_scc1 {tag}_l\ns_branch {tag}_back")
if CB: cnt_slow("K", A0)
if CB0: cnt_slow("J", RAW+6)
a("C_end:\ns_endpgm")
L = a.lines
errs = hazard.check_all(L[st:], "main")
a.raw(kernel_desc(MAIN, 256, 102, 256))
for e in sorted(set(errs)): print("HAZARD", e)
open(sys.argv[1], "w").write(a.text())
```

```python
import sys, re
from common import *
import hazard
opts = dict(x.split("=") for x in sys.argv[2:])
def O(k, d): return int(opts.get(k, d))
STAMP = O("stamp", 0); SW = O("sw", 7); SC = "sc1"; SLEEP = O("sleep", 1); RSLEEP = O("rsleep", 2)
WS_BYTES = 268435456
WFR = 4 << 20; PART = 8 << 20; FI = 16 << 20; FW = FI + 16384; F2 = FI + 32768; FE = FI + 65536; FX = 17 << 20; HX = 20 << 20
STG = 131072; XWL = STG + 25600; XB = 131072; XS = 3200; PADR = 128000
DOC = """;
; Generated by a script written for this kernel (gen/h2.py)."""
a = Asm()
a.raw(HEADER_COMMENT.rstrip("\n"))
a.raw("; @launch grid=(256,1,1) block=(512,1,1) lds=163840")
a.raw(DOC)
a.raw('.amdgcn_target "amdgcn-amd-amdhsa--gfx950"')
kernel_begin(a, MAIN)
LN = 0; VL16 = 1
TAB = 2; ACC = 66; WF = 130; POOL = 162; T8 = 210; GD = 218; IX = 234; SEL = 250; SIDX = 254; VT = 255
T = ACC; U = T8; WR_ = GD; AD = IX + 12; TD = POOL; FR = POOL + 4
FIN = 7
def rg(b, n): return f"v[{b}:{b+n-1}]"
nst = [0]; lab = [0]
SKIP = set(opts.get("skip", "").split(","))
CYC = O("cyc", 0)
def stamp(name="-"):
    if STAMP and name not in SKIP and not (CYC and nst[0] >= 1):
        k = nst[0]; nst[0] += 1
        assert k < 13
        a(f"{'s_memtime' if O('mt', 0) else 's_memrealtime'} s[{76+2*k}:{77+2*k}]")
def cyc_ops(): return [f"s_mov_b32 s{76+2*k}, s{74+2*k}" for k in range(12, 1, -1)] + ["s_memtime s[78:79]", "s_waitcnt lgkmcnt(0)"] if CYC else []
def cyc():
    for o in cyc_ops(): a(o)
def newlab(p):
    lab[0] += 1; return f"{p}{lab[0]}"
def rnd(r): a(f"v_cvt_pk_bf16_f32 v{r}, v{r}, v{r}\nv_lshlrev_b32 v{r}, 16, v{r}")
PADPRO = O("padpro", 0)
def pad(ticks):
    if not ticks: return
    l = newlab("PAD_")
    a(f"{l}:\ns_memrealtime s[32:33]\ns_waitcnt lgkmcnt(0)\ns_sub_u32 s32, s32, s64\ns_cmp_lt_i32 s32, {ticks}\ns_cbranch_scc1 {l}")
st = len(a.lines)
a("s_cmp_ge_u32 s2, 256\ns_cbranch_scc1 M_end")
stamp()
a("s_load_dwordx16 s[36:51], s[0:1], 0\ns_load_dwordx8 s[52:59], s[0:1], 64\ns_memrealtime s[64:65]")
NCP = O("ncp", 8)
a(f"s_getpc_b64 s[32:33]\nC_base:\ns_lshr_b32 s29, s2, 3\ns_mul_i32 s20, s29, {128*NCP}\nv_lshl_add_u32 v{VT}, v0, 7, s20\nv_min_u32 v{VT}, C_end-C_base, v{VT}")
a(f"v_cmp_gt_u32 vcc, {NCP}, v0\ns_and_saveexec_b64 s[20:21], vcc\ns_cbranch_execz C_skip\nglobal_load_dword v{VT}, v{VT}, s[32:33]\nC_skip:\ns_mov_b64 exec, -1")
a(f"v_lshrrev_b32 v{T}, 6, v0\nv_and_b32 v0, 63, v0\nv_lshlrev_b32 v1, 4, v0\nv_readfirstlane_b32 s22, v{T}")
if O("map", 1) == 0:
    a("s_and_b32 s20, s2, 7\ns_lshr_b32 s24, s20, 1\ns_and_b32 s20, s20, 1\ns_lshl_b32 s20, s20, 5\ns_add_u32 s25, s20, s29")
else:
    a("s_bfe_u32 s24, s2, 0x10002\ns_lshl_b32 s24, s24, 1\ns_and_b32 s20, s29, 1\ns_add_u32 s24, s24, s20\ns_and_b32 s20, s2, 3\ns_lshl_b32 s20, s20, 4\ns_lshr_b32 s25, s29, 1\ns_add_u32 s25, s25, s20")
a("s_lshl_b32 s34, s24, 6\ns_add_u32 s34, s34, s25")
a("s_lshl_b32 s35, s22, 8\ns_add_u32 s35, s35, s34")
a(f"v_lshrrev_b32 v{U}, 4, v0\nv_and_b32 v{U+1}, 15, v0\nv_lshlrev_b32 v{U+2}, 15, v{U}\nv_lshl_add_u32 v{U+2}, v{U+1}, 3, v{U+2}\nv_mov_b32 v{U+5}, 0")
a("s_lshr_b32 s20, s35, 5\ns_lshl_b32 s20, s20, 17\ns_bfe_u32 s21, s35, 0x30002\ns_lshl_b32 s21, s21, 12\ns_add_u32 s20, s20, s21\ns_and_b32 s21, s35, 3\ns_lshl_b32 s21, s21, 7\ns_add_u32 s31, s20, s21")
a(f"s_mul_i32 s20, s34, 25600\ns_mul_i32 s21, s22, 3200\ns_add_u32 s20, s20, s21\ns_add_u32 s33, s21, {STG}\ns_mov_b32 m0, s33")
a("s_lshl_b32 s23, s22, 13\ns_add_u32 s30, s23, 8064")
a("s_mov_b32 s18, 3276800\ns_mov_b32 s19, 0x00020000\ns_mov_b32 s6, 6553600\ns_mov_b32 s7, 0x00020000")
a("s_waitcnt lgkmcnt(0)")
stamp()
a("s_mov_b32 s16, s46\ns_and_b32 s17, s47, 0xffff\ns_mov_b32 s4, s36\ns_and_b32 s5, s37, 0xffff")
srd(a, 60, 56, 256)
srd(a, 12, 58, WS_BYTES)
a("s_cmp_lg_u32 s22, 6\ns_cbranch_scc1 P_n0\ns_cmp_ge_u32 s2, 8\ns_cbranch_scc1 P_n0")
a(f"v_mov_b32 v{T+4}, s64\nv_mov_b32 v{T+5}, s65\nv_mov_b32 v{T+6}, 0\nv_mov_b32 v{T+7}, 0\nv_or_b32 v{T+5}, 0x80000000, v{T+5}\ns_mov_b64 exec, 1")
a(f"buffer_atomic_cmpswap_x2 {rg(T+4,4)}, v{T+6}, s[60:63], 0 offen {SC}\ns_mov_b64 exec, -1\ns_nop 1")
a("P_n0:")
def w1_loads(sreg=31):
    for j8 in range(8):
        a(f"buffer_load_dwordx2 {rg(WR_+2*j8,2)}, v{U+2}, s[16:19], s{sreg} offen offset:{512*j8}")
a("s_cmp_lg_u32 s22, 0\ns_cbranch_scc1 P_now1")
w1_loads()
a("P_now1:")
for r in range(3):
    a(f"buffer_load_dwordx4 v1, s[4:7], s20 offen offset:{1024*r} lds")
a("s_mov_b64 exec, 0xff\nbuffer_load_dwordx4 v1, s[4:7], s20 offen offset:3072 lds\ns_mov_b64 exec, -1")
srd(a, 8, 38, 128000)
a("s_mov_b32 s66, 0x05040100\ns_mov_b32 s67, 0x07060302")
a("s_barrier")
a("s_cmp_lg_u32 s22, 5\ns_cbranch_scc1 P_n5\ns_load_dword s74, s[56:57], 192\nP_n5:")
a("s_cmp_lt_u32 s22, 4\ns_cbranch_scc1 P_lo\ns_cmp_lg_u32 s22, 4\ns_cbranch_scc1 P_skip")
a(f"v_and_b32 v{VT}, 31, v0\nv_lshlrev_b32 v{VT}, 7, v{VT}\ns_lshl_b32 s21, s29, 12\nbuffer_load_dword v{VT}, v{VT}, s[8:11], s21 offen\ns_branch P_skip")
def nonce_load(): a("s_load_dwordx2 s[64:65], s[56:57], 0")
def nonce_get():
    l = newlab("N_")
    a(f"s_waitcnt lgkmcnt(0)\ns_cmp_lt_i32 s65, 0\ns_cbranch_scc1 {l}ok\ns_mov_b32 s20, 0\nv_mov_b32 v{AD}, 0")
    a(f"{l}:")
    a(f"buffer_load_dwordx2 {rg(AD+2,2)}, v{AD}, s[60:63], 0 offen {SC}\ns_add_u32 s20, s20, 1\ns_waitcnt vmcnt(0)")
    a(f"v_readfirstlane_b32 s64, v{AD+2}\nv_readfirstlane_b32 s65, v{AD+3}\ns_cmp_lt_i32 s65, 0\ns_cbranch_scc1 {l}ok")
    a(f"s_sleep 1\ns_cmp_lt_u32 s20, 0x8000\ns_cbranch_scc1 {l}")
    a(f"{l}ok:")
def flag_ops(sreg, t):
    return [f"v_mov_b32 v{t+2}, 0", f"v_mov_b32 v{t}, s64", f"v_mov_b32 v{t+1}, s65", "s_mov_b64 exec, 1",
            f"buffer_store_dwordx2 {rg(t,2)}, v{t+2}, s[12:15], s{sreg} offen {SC}", "s_mov_b64 exec, -1"]
def line_flag_ops(sreg, t, tag=None):
    st_ = f"buffer_store_dwordx4 {rg(t,4)}, v1, s[12:15], s{sreg} offen {SC}"
    return [f"v_mov_b32 v{t}, s64", f"v_mov_b32 v{t+1}, s65", f"v_mov_b32 v{t+2}, s64", f"v_mov_b32 v{t+3}, s65", "s_mov_b64 exec, 0xff",
            (st_, tag) if tag else st_, "s_mov_b64 exec, -1"]
def flag_store(sreg, t=AD):
    for o in flag_ops(sreg, t): a(o)
def w1_process(PR, RB, sreg):
    for c in range(4):
        for d in range(4):
            a(f"v_perm_b32 v{PR+4*c+d}, v{WR_+2*(2*d+1)+(c>>1)}, v{WR_+2*(2*d)+(c>>1)}, s{66+(c&1)}")
    for c in range(4):
        a(f"ds_write_b128 v{U+3}, {rg(PR+4*c,4)} offset:{(c&1)*128 + (c>>1)*16}")
    a("s_waitcnt lgkmcnt(0)")
    for r in range(4):
        a(f"ds_read_b128 {rg(RB+4*r,4)}, v{U+4} offset:{r*4*272}")
    for r in range(4):
        a(f"s_waitcnt lgkmcnt({3-r})\nbuffer_store_dwordx4 {rg(RB+4*r,4)}, v{U+5}, s[12:15], s{sreg} offen {SC}\ns_add_u32 s{sreg}, s{sreg}, {4*65536}")
a("P_lo:")
a("s_cmp_ge_u32 s35, 800\ns_cbranch_scc1 P_skip")
a("s_add_u32 s21, s23, 0x10000")
a(f"v_mul_u32_u24 v{U+3}, 272, v{U+1}\nv_lshl_add_u32 v{U+3}, v{U}, 5, v{U+3}\nv_add_u32 v{U+3}, s21, v{U+3}")
a(f"v_mul_u32_u24 v{U+4}, 272, v{U}\nv_lshl_add_u32 v{U+4}, v{U+1}, 4, v{U+4}\nv_add_u32 v{U+4}, s21, v{U+4}")
a(f"v_lshlrev_b32 v{U+5}, 16, v{U}\nv_bfe_u32 v{U+6}, v0, 3, 1\nv_lshl_add_u32 v{U+5}, v{U+6}, 12, v{U+5}\nv_and_b32 v{U+6}, 7, v0\nv_lshl_add_u32 v{U+5}, v{U+6}, 4, v{U+5}")
a("s_and_b32 s26, s35, 3\ns_lshl_b32 s26, s26, 20\ns_lshr_b32 s21, s35, 7\ns_lshl_b32 s21, s21, 13\ns_add_u32 s26, s26, s21\ns_bfe_u32 s21, s35, 0x30002\ns_lshl_b32 s21, s21, 9\ns_add_u32 s26, s26, s21")
a(f"s_bfe_u32 s21, s35, 0x20005\ns_lshl_b32 s21, s21, 7\ns_add_u32 s26, s26, s21\ns_add_u32 s26, s26, {WFR}")
a(f"s_and_b32 s75, s35, 3\ns_lshl_b32 s75, s75, 11\ns_bfe_u32 s21, s35, 0x20003\ns_lshl_b32 s21, s21, 9\ns_add_u32 s75, s75, s21\ns_lshr_b32 s21, s35, 5\ns_lshl_b32 s21, s21, 4\ns_add_u32 s75, s75, s21\ns_bfe_u32 s21, s35, 0x10002\ns_lshl_b32 s21, s21, 3\ns_add_u32 s75, s75, s21\ns_add_u32 s75, s75, {FW}")
a("s_cmp_ge_u32 s22, 2\ns_cbranch_scc1 P_skip")
a("s_and_b32 s75, s35, 3\ns_lshl_b32 s75, s75, 14\ns_lshr_b32 s21, s35, 7\ns_lshl_b32 s21, s21, 12\ns_add_u32 s75, s75, s21\ns_bfe_u32 s21, s35, 0x20003\ns_lshl_b32 s21, s21, 10\ns_add_u32 s75, s75, s21")
a(f"s_bfe_u32 s21, s35, 0x20005\ns_lshl_b32 s21, s21, 8\ns_add_u32 s75, s75, s21\ns_bfe_u32 s21, s35, 0x10002\ns_lshl_b32 s21, s21, 7\ns_add_u32 s75, s75, s21\ns_add_u32 s75, s75, {FE}")
a("s_cmp_lg_u32 s22, 0\ns_cbranch_scc1 P_skip")
a("s_waitcnt vmcnt(4)")
w1_process(WF, WF+16, 26)
nonce_load()
a("P_skip:")
a(f"v_and_b32 v{T+4}, 7, v0\nv_lshrrev_b32 v{T+5}, 3, v0")
a(f"s_and_b32 s20, s34, 1\ns_lshl_b32 s20, s20, 3\nv_add_u32 v{T+6}, s20, v{T+4}")
a(f"v_mul_u32_u24 v{T+7}, 400, v{T+4}\nv_add_u32 v{T+7}, s33, v{T+7}")
a(f"v_and_b32 v{T+8}, 1, v{T+5}\nv_lshrrev_b32 v{T+9}, 1, v{T+5}")
a(f"v_lshlrev_b32 v{T+10}, 3, v{T+8}\nv_xor_b32 v{T+10}, v{T+10}, v{T+6}")
a(f"v_lshl_add_u32 v{T+11}, v{T+9}, 6, v{T+7}")
a(f"v_lshlrev_b32 v{T+9}, 14, v{T+9}\nv_lshl_add_u32 v{T+9}, v{T+8}, 10, v{T+9}\nv_lshl_add_u32 v{T+9}, v{T+4}, 4, v{T+9}")
SL, LA_, RD, PK, SS = T+12, T+20, T+28, T+44, T+52
for u in range(8):
    a(f"v_xor_b32 v{SL+u}, {u}, v{T+10}")
    a(f"v_lshl_add_u32 v{LA_+u}, v{SL+u}, 2, v{T+11}")
a(f"v_and_b32 v{T+10}, 3, v{T+4}")
for u in range(4):
    a(f"v_xor_b32 v{SS+u}, {u}, v{T+10}\nv_lshl_add_u32 v{SS+4+u}, v{SS+u}, 2, v{T+7}\nv_add_u32 v{SS+u}, 16384, v{SS+u}")
a("s_lshr_b32 s27, s34, 3\ns_mul_i32 s27, s27, 102400\ns_lshl_b32 s20, s22, 11\ns_add_u32 s28, s27, s20\ns_and_b32 s21, s34, 7\ns_lshl_b32 s20, s21, 7\ns_add_u32 s28, s28, s20")
a(f"s_lshl_b32 s20, s22, 9\ns_add_u32 s27, s27, s20\ns_lshl_b32 s20, s21, 6\ns_add_u32 s27, s27, s20\ns_add_u32 s27, s27, 98304\nv_lshlrev_b32 v{T+8}, 3, v{T+4}")
a(f"v_xor_b32 v{TD+1}, v{T+4}, v{U}\nv_lshlrev_b32 v{TD}, 7, v{T+5}\nv_lshl_add_u32 v{TD}, v{TD+1}, 4, v{TD}\nv_xor_b32 v{TD+1}, 64, v{TD}")
def table_dma(mt, s=27):
    a(f"s_add_u32 s{s}, s23, {4096*(mt & 1) + 65536*(mt >> 1)}\ns_mov_b32 m0, s{s}\ns_nop 0")
    for x in range(4): a(f"buffer_load_dwordx4 v{TD+(x&1)}, s[8:11], s{s} offen offset:{1024*x} lds")
a("s_cmp_lt_u32 s22, 4\ns_cbranch_scc1 P_np")
table_dma(2, 21); table_dma(3, 21)
a("s_waitcnt vmcnt(8)\ns_branch P_c9")
a("P_np:")
a("s_cmp_lg_u32 s22, 0\ns_cbranch_scc1 P_c0")
nonce_get()
a(f"v_mov_b32 v{AD}, s64\nv_mov_b32 v{AD+1}, s65\nv_mov_b32 v{AD+2}, s64\nv_mov_b32 v{AD+3}, s65\ns_mov_b64 exec, 0xff\ns_waitcnt vmcnt(0)")
a(f"buffer_store_dwordx4 {rg(AD,4)}, v1, s[12:15], s75 offen {SC}\ns_mov_b64 exec, -1")
a("s_mov_b32 s35, 4097\ns_branch P_c9\nP_c0:\ns_waitcnt vmcnt(0)\nP_c9:")
stamp()
for u in range(8): a(f"ds_read_b32 v{RD+u}, v{LA_+u}")
for u in range(8): a(f"ds_read_b32 v{RD+8+u}, v{LA_+u} offset:256")
for u in range(4): a(f"ds_read_b32 v{SS+8+u}, v{SS+4+u} offset:384")
def conv(k):
    for u in range(8):
        a(f"v_lshl_add_u32 v{RD+8*k+u}, v{RD+8*k+u}, 4, v{SL+u}")
    for d in range(4):
        a(f"v_lshl_or_b32 v{PK+4*k+d}, v{RD+8*k+2*d+1}, 16, v{RD+8*k+2*d}")
a("s_waitcnt lgkmcnt(12)")
conv(0)
a(f"buffer_store_dwordx4 {rg(PK,4)}, v{T+9}, s[12:15], s28 offen {SC}")
a("s_waitcnt lgkmcnt(0)")
nonce_load()
conv(1)
for u in range(4): a(f"v_lshrrev_b32 v{SS+4+u}, 1, v{SS+8+u}\nv_lshl_add_u32 v{SS+8+u}, v{SS+8+u}, 2, v{SS+u}\nv_and_b32 v{SS+4+u}, 2, v{SS+4+u}\nv_xor_b32 v{SS+8+u}, v{SS+8+u}, v{SS+4+u}")
a(f"v_lshl_or_b32 v{SS+4}, v{SS+9}, 16, v{SS+8}\nv_lshl_or_b32 v{SS+5}, v{SS+11}, 16, v{SS+10}")
a(f"s_add_u32 s28, s28, 65536\ns_mov_b32 exec_hi, 0\nbuffer_store_dwordx4 {rg(PK+4,4)}, v{T+9}, s[12:15], s28 offen {SC}")
a(f"s_mov_b64 exec, 0xff\nbuffer_store_dwordx2 {rg(SS+4,2)}, v{T+8}, s[12:15], s27 offen {SC}\ns_mov_b64 exec, -1")
a("s_mov_b32 s36, s31\ns_mov_b32 s37, s26\ns_mov_b32 s38, s75")
table_dma(0)
a("s_lshl_b32 s20, s25, 3\ns_add_u32 s48, s48, s20\ns_addc_u32 s49, s49, 0\ns_add_u32 s50, s50, s20\ns_addc_u32 s51, s51, 0")
nonce_get()
a(f"s_lshr_b32 s31, s34, 3\ns_lshl_b32 s31, s31, 9\ns_and_b32 s20, s34, 7\ns_lshl_b32 s20, s20, 6\ns_add_u32 s31, s31, s20\ns_lshl_b32 s20, s22, 3\ns_add_u32 s31, s31, s20\ns_add_u32 s31, s31, {FI}")
a("s_waitcnt vmcnt(0)")
stamp()
flag_store(31)
a("s_lshr_b32 s20, s22, 2\ns_add_u32 s20, s20, 1\ns_lshl_b32 s20, s20, 8\ns_add_u32 s20, s20, s34")
a("s_lshr_b32 s21, s20, 5\ns_lshl_b32 s21, s21, 17\ns_bfe_u32 s39, s20, 0x30002\ns_lshl_b32 s39, s39, 12\ns_add_u32 s21, s21, s39\ns_and_b32 s39, s20, 3\ns_lshl_b32 s39, s39, 7\ns_add_u32 s21, s21, s39")
a("s_and_b32 s39, s22, 3\ns_lshl_b32 s39, s39, 10\ns_add_u32 s21, s21, s39\ns_add_u32 s46, s46, s21\ns_addc_u32 s47, s47, 0")
for f4 in range(4):
    for r in range(2): a(f"s_load_dword s3, s[46:47], {f4*32768 + r*512}")
def pl_op(sreg, tmp, addr): return f"buffer_load_dwordx2 {rg(tmp,2)}, v{addr}, s[12:15], s{sreg} offen {SC}"
def poll_load(sreg, tmp, addr): a(pl_op(sreg, tmp, addr))
def poll_check(sreg, tmp, addr, first_wait=0):
    l = newlab("Q_")
    a(f"s_mov_b32 s20, 0\ns_waitcnt vmcnt({first_wait})")
    a(f"{l}:")
    a(f"v_cmp_ne_u64 vcc, s[64:65], {rg(tmp,2)}\ns_cbranch_vccz {l}ok")
    a(f"s_sleep {SLEEP}")
    poll_load(sreg, tmp, addr)
    a(f"s_add_u32 s20, s20, 1\ns_waitcnt vmcnt(0)\ns_cmp_lt_u32 s20, 0x8000\ns_cbranch_scc1 {l}")
    a(f"{l}ok:")
a("s_cmp_lt_u32 s22, 4\ns_cbranch_scc1 P_g")
a(f"s_and_b32 s21, s24, 1\ns_lshr_b32 s68, s25, 4\ns_lshl_b32 s68, s68, 14\ns_lshl_b32 s20, s21, 12\ns_add_u32 s68, s68, s20\ns_and_b32 s20, s22, 3\ns_lshl_b32 s20, s20, 10\ns_add_u32 s68, s68, s20\ns_add_u32 s68, s68, {FE}")
a(f"s_lshl_b32 s69, s25, 16\ns_lshl_b32 s21, s21, 13\ns_add_u32 s69, s69, s21\ns_add_u32 s69, s69, s20\ns_add_u32 s69, s69, {WFR}\ns_add_u32 s74, s69, 4096")
a(f"v_and_b32 v{IX+8}, 7, v0\nv_lshlrev_b32 v{IX+8}, 7, v{IX+8}")
poll_load(68, IX+10, IX+8)
table_dma(1)
poll_check(68, IX+10, IX+8, 4)
stamp("z1")
a(f"buffer_load_dwordx4 {rg(IX,4)}, v1, s[12:15], s69 offen {SC}\nbuffer_load_dwordx4 {rg(IX+4,4)}, v1, s[12:15], s74 offen {SC}")
a("s_branch P_e")
a("P_g:")
for mt in range(1, 4): table_dma(mt)
a("P_e:")
a("s_load_dwordx2 s[70:71], s[48:49], 0\ns_load_dwordx2 s[72:73], s[50:51], 0")
a(f"v_bfe_u32 v{T+2}, v0, 4, 1\nv_lshlrev_b32 v{T+2}, 1, v{T+2}\nv_bfe_u32 v{T}, v0, 2, 2\nv_mov_b32 v{T+1}, 0x3f80")
a(f"v_cmp_eq_u32 vcc, v{T+2}, v{T}\nv_add_u32 v{T+2}, 1, v{T+2}\ns_nop 0\nv_cndmask_b32 v{SEL}, 0, v{T+1}, vcc\nv_cmp_eq_u32 vcc, v{T+2}, v{T}")
a(f"v_mov_b32 v{SEL+1}, v{SEL}\nv_and_b32 v{T+2}, 3, v0\nv_cndmask_b32 v{SEL+2}, 0, v{T+1}, vcc\nv_mul_u32_u24 v{SIDX}, 0x5555, v{T+2}\nv_mov_b32 v{SEL+3}, v{SEL+2}")
PI = T + 3
def pi_ops(d, t): return [f"v_and_b32 v{d}, 24, v0", f"v_and_b32 v{t}, 3, v0", f"v_lshl_add_u32 v{d}, v{t}, 1, v{d}", f"v_bfe_u32 v{t}, v0, 2, 1", f"v_add_u32 v{d}, v{d}, v{t}"]
for o in pi_ops(PI, T): a(o)
a(f"v_lshrrev_b32 v{T}, 5, v0\nv_bfe_u32 v{T+1}, v{PI}, 1, 3\nv_xor_b32 v{T+1}, v{T+1}, v{T}\nv_lshlrev_b32 v{PI}, 7, v{PI}\nv_lshl_add_u32 v{PI}, v{T+1}, 4, v{PI}\nv_add_u32 v{FR}, s23, v{PI}")
for ks in range(1, 4): a(f"v_xor_b32 v{FR+ks}, {32*ks}, v{FR}")
for ks in range(4): a(f"v_add_u32 v{FR+4+ks}, 0x10000, v{FR+ks}")
a(f"v_add_u32 v{T+8}, s33, v1\nv_add_u32 v{T+9}, {XB}, v1\nv_lshlrev_b32 v{AD}, 3, v0")
a("s_and_b32 s21, s24, 1\ns_xor_b32 s20, s24, 1\ns_lshl_b32 s28, s20, 3\ns_add_u32 s28, s28, s22\ns_mul_i32 s28, s28, 102400\ns_lshl_b32 s27, s21, 14\ns_add_u32 s28, s28, s27")
a(f"s_lshl_b32 s68, s20, 3\ns_add_u32 s68, s68, s22\ns_lshl_b32 s68, s68, 9\ns_add_u32 s68, s68, {FI}\ns_xor_b32 s31, s68, 4096")
a(f"s_lshl_b32 s75, s24, 6\ns_lshl_b32 s27, s22, 3\ns_add_u32 s75, s75, s27\ns_lshl_b32 s75, s75, 6\ns_add_u32 s75, s75, s25\ns_lshl_b32 s75, s75, 8\ns_add_u32 s75, s75, {PART}")
a(f"s_lshr_b32 s29, s25, 4\ns_lshl_b32 s39, s29, 14\ns_lshl_b32 s29, s29, 11\ns_and_b32 s27, s22, 3\ns_lshl_b32 s27, s27, 9\ns_add_u32 s29, s29, s27\ns_add_u32 s29, s29, {FW + 256}")
a(f"s_lshl_b32 s27, s27, 1\ns_add_u32 s39, s39, s27\ns_lshl_b32 s27, s21, 12\ns_add_u32 s39, s39, s27\ns_add_u32 s39, s39, {FE + 8192}")
a(f"s_lshl_b32 s26, s25, 16\ns_lshl_b32 s27, s22, 10\ns_add_u32 s26, s26, s27\ns_lshl_b32 s27, s21, 13\ns_add_u32 s26, s26, s27\ns_add_u32 s26, s26, {WFR + 16384}")
a("s_waitcnt vmcnt(0)")
stamp()
a("s_cmp_lt_u32 s22, 4\ns_cbranch_scc1 P_h")
a(f"ds_write_b128 v{T+8}, {rg(IX,4)} offset:1024\nds_write_b128 v{T+8}, {rg(IX+4,4)} offset:2048")
a("P_h:")
for mt in range(4):
    for ks in range(4):
        a(f"ds_read_b128 {rg(TAB+16*mt+4*ks,4)}, v{FR+4*(mt>>1)+ks} offset:{4096*(mt&1)}")
a(f"v_mov_b32 v{T+10}, 163836\nv_mov_b32 v{T+11}, 0\nds_write_b32 v{T+10}, v{T+11}")
a("s_waitcnt lgkmcnt(0)\ns_barrier")
stamp()
for x in (0, 4, 1, 5, 2, 6, 3, 7):
    a(f"ds_read_b128 {rg(WF+4*x,4)}, v{T+9} offset:{XS*(4 + (x&3)) + 1024 + 1024*(x>>2)}")
poll_load(68, IX, AD)
poll_load(31, IX+2, AD)
a("s_cmp_ge_u32 s35, 800\ns_cbranch_scc1 P_u0")
w1_loads(36)
a("P_u0:")
a("s_and_b32 s21, s24, 1\ns_lshl_b32 s21, s21, 1\ns_sub_u32 s21, s21, 1\ns_mul_i32 s46, s21, 819200\ns_sub_u32 s47, 16384, s46\ns_sub_u32 s46, s46, 16384")
def tg_mfma(mt, ks, e, d):
    c = "0" if ks == 0 else rg(d, 16)
    return f"v_mfma_f32_32x32x16_bf16 {rg(d,16)}, {rg(TAB+16*mt+4*ks,4)}, {rg(WF+16*e+4*ks,4)}, {c}"
def wr_op(r, reg):
    off = r*256 if r < 32 else 57472 + (r-32)*256
    pre = ["s_mov_b32 m0, s30", "s_nop 0"] if r == 32 else []
    return pre + [f"ds_write_addtid_b32 v{reg} offset:{off}"]
a("s_mov_b32 m0, s23")
PD = [(ACC, ACC+16), (ACC+32, ACC+48), (ACC, ACC+16), (POOL+32, WF)]
PO = [POOL, POOL+16, POOL, POOL+32]
IXAT = O("ixat", 3); UPAT = O("upat", 2)
pend = []
for mt in range(4):
    d0, d1 = PD[mt]
    seq = [(ks, e) for ks in range(4) for e in range(2)] if mt < 3 else [(ks, 0) for ks in range(4)] + [(ks, 1) for ks in range(4)]
    if mt == UPAT and UPAT < IXAT:
        a("s_cmp_ge_u32 s35, 800\ns_cbranch_scc1 P_k2\ns_waitcnt vmcnt(0)")
        w1_process(POOL+32, WR_, 37)
        a("P_k2:")
    if mt == IXAT:
        if UPAT < IXAT:
            a("s_waitcnt vmcnt(0)\ns_cmp_ge_u32 s35, 800\ns_cbranch_scc1 P_k4\ns_cmp_lg_u32 s22, 1\ns_cbranch_scc1 P_k3")
            for o in line_flag_ops(38, IX+4): a(o)
            a("s_branch P_k4\nP_k3:")
            flag_store(38, IX+4)
            a("P_k4:\ns_mov_b32 s35, 4096")
            poll_check(68, IX, AD, 1)
            poll_check(31, IX+2, AD, 1)
        else:
            a("s_cmp_lt_u32 s35, 800\ns_cbranch_scc1 P_u2\ns_waitcnt vmcnt(0)\nP_u2:")
            poll_check(68, IX, AD, 8)
            poll_check(31, IX+2, AD, 8)
        stamp("y1")
        a("s_lshl_b32 s68, s70, 16\ns_and_b32 s69, s70, 0xffff0000\ns_lshl_b32 s70, s71, 16\ns_and_b32 s71, s71, 0xffff0000")
        for x in range(4):
            a(f"buffer_load_dwordx4 {rg(IX+4*x,4)}, v1, s[12:15], s28 offen offset:{1024*x} {SC}")
        a("s_add_u32 s28, s28, 4096")
        TCH = O("tch", 0)
        if TCH:
            a(f"v_bfe_u32 v{U+6}, v0, 3, 1\nv_mul_u32_u24 v{VT}, 819200, v{U+6}\nv_lshrrev_b32 v{U+6}, 4, v0\nv_lshl_add_u32 v{VT}, v{U+6}, 15, v{VT}\nv_and_b32 v{U+6}, 7, v0\nv_lshl_add_u32 v{VT}, v{U+6}, 7, v{VT}")
            a("s_and_b32 s20, s24, 2\ns_lshl_b32 s20, s20, 3\ns_add_u32 s20, s20, s22\ns_mul_i32 s20, s20, 102400\ns_and_b32 s21, s24, 1\ns_lshl_b32 s21, s21, 14\ns_add_u32 s20, s20, s21\ns_lshr_b32 s21, s2, 4\ns_lshl_b32 s21, s21, 10\ns_add_u32 s20, s20, s21")
            a(f"s_mov_b32 exec_hi, 0xffff\nbuffer_load_dword v{U+7}, v{VT}, s[12:15], s20 offen {SC}\ns_mov_b64 exec, -1")
        a(f"s_cmp_lg_u32 s22, {FIN}\ns_cbranch_scc1 P_f")
        srd(a, 4, 40, 16384*26)
        a(f"s_mov_b32 m0, {XWL}\ns_mul_i32 s20, s34, 1664\nbuffer_load_dwordx4 v1, s[4:7], s20 offen lds\nbuffer_load_dwordx4 v1, s[4:7], s20 offen offset:1024 lds")
        srd(a, 4, 44, 2)
        a(f"s_mov_b32 m0, {XWL+2048}\nv_mov_b32 v{VT}, 0\nbuffer_load_ushort v{VT}, s[4:7], 0 offen lds")
        srd(a, 4, 52, 2)
        a(f"s_mov_b32 m0, {XWL+2304}\ns_nop 0\nbuffer_load_ushort v{VT}, s[4:7], 0 offen lds")
        srd(a, 4, 42, 26)
        a(f"s_mov_b32 m0, {XWL+2560}\nv_lshlrev_b32 v{VT}, 1, v0\nbuffer_load_ushort v{VT}, s[4:7], 0 offen lds\ns_mov_b32 m0, s23")
        a("P_f:")
    if mt == UPAT and UPAT >= IXAT:
        a("s_cmp_ge_u32 s35, 800\ns_cbranch_scc1 P_k2\ns_waitcnt vmcnt(%d)" % (4 + TCH))
        w1_process(POOL+32, WR_, 37)
        a("P_k2:")
    for n, (ks, e) in enumerate(seq):
        if mt == 0: a(f"s_waitcnt lgkmcnt({7 - n})")
        a(tg_mfma(mt, ks, e, d0 if e == 0 else d1))
        take = (len(pend) + (7 - n)) // (8 - n)
        for o in pend[:take]: a(o)
        pend = pend[take:]
    assert not pend
    body = []
    for r in range(16):
        body.append(f"v_cvt_pk_bf16_f32 v{PO[mt]+r}, v{d0+r}, v{d1+r}")
        if r: body.extend(wr_op(16*mt + r - 1, PO[mt] + r - 1))
    body.extend(wr_op(16*mt + 15, PO[mt] + 15))
    fill = ["s_nop 5", "s_nop 5"]
    if mt == 2: fill = [f"v_mov_b32 v{ACC+32+4*s+c}, s{68+c}" for s in range(8) for c in range(4)]
    if mt == 3: fill = [f"v_mov_b32 v{ACC+x}, 0" for x in range(20, 32)]
    pend = fill + body
    if mt == 2: pend += [f"v_mov_b32 v{ACC+x}, 0" for x in range(20)]
stamp("y2")
for o in pend: a(o)
a(f"s_cmp_lt_u32 s35, 800\ns_cbranch_scc1 P_m7\ns_cmp_eq_u32 s22, {FIN}\ns_cbranch_scc1 P_m7\ns_waitcnt vmcnt({3+TCH})\nP_m7:\ns_waitcnt vmcnt({7+TCH})")
stamp()

PAT = opts.get("pat", "SACMRL")
def pre_ops():
    ops = [f"v_lshlrev_b32_sdwa v{GD + 2*x}, 3, v{IX + x//2} dst_sel:DWORD dst_unused:UNUSED_PAD src0_sel:DWORD src1_sel:WORD_{x&1}" for x in range(8)]
    return ops + [f"buffer_load_dwordx4 {rg(IX,4)}, v1, s[12:15], s28 offen {SC}"]
U0 = O("u0", 36)
BIGQ = [TAB + 28 + 4*q for q in range(9)] + [WF + 4*q for q in range(4)] + [POOL + 28 + 4*q for q in range(5)]
def gather_phase(nunits, mf, cv, extra, acc_of, head, tail=None):
    NB = nunits * 2; last = nunits == 36
    def ixreg(u): return BIGQ[u - U0] if last and u >= U0 else IX + 4*(u & 3)
    log = [("ix", u) for u in range(5)]
    def vm_wait(tag):
        idx = len(log) - 1 - log[::-1].index(tag)
        a(f"s_waitcnt vmcnt({len(log) - 1 - idx})")
    def A(b):
        if b >= NB: return
        u = b // 2
        if b % 2 == 0: vm_wait(("ix", u))
        for x in range(4):
            d = ixreg(u) + 2*(b & 1) + x//2
            a(f"v_lshlrev_b32_sdwa v{GD + (8*b) % 16 + 2*x}, 3, v{d} dst_sel:DWORD dst_unused:UNUSED_PAD src0_sel:DWORD src1_sel:WORD_{x&1}")
    def R(b):
        if b >= NB: return
        for x in range(4):
            q = GD + (8*b) % 16 + 2*x
            a(f"ds_read_b64 {rg(q,2)}, v{q}")
    def L(b):
        u = b // 2
        if b >= NB or b % 2 == 0 or (last and u + 4 >= min(nunits, U0)): return
        if last and u + 4 >= 32:
            for h in range(2):
                a(f"buffer_load_dwordx2 {rg(IX+4*(u&3)+2*h,2)}, v{VT}, s[12:15], s28 offen offset:{1024*(u&3)+512*h} {SC}")
                log.append(("ix", u + 4))
        else:
            a(f"buffer_load_dwordx4 {rg(IX+4*(u&3),4)}, v1, s[12:15], s28 offen offset:{1024*(u&3)} {SC}")
            log.append(("ix", u + 4))
        if u & 3 == 3:
            a("s_add_u32 s28, s28, 4096")
            if u + 4 == 15: a("s_add_u32 s28, s28, s46")
            if u + 4 == 31: a("s_add_u32 s28, s28, s47")
    def emit(ops):
        for o in ops:
            if o == "SYNC": continue
            if isinstance(o, tuple) and o[0] == "WAIT": vm_wait(o[1])
            elif isinstance(o, tuple):
                a(o[0]); log.append(o[1])
            else: a(o)
    sync = sorted(b for b, ops in extra.items() if "s_barrier" in ops or "SYNC" in ops) + [NB - 1]
    pr = {}; lo = 0
    for hi in sync:
        for q in range(4): pr[lo + ((hi + 1 - lo) * q) // 4] = 3 - q
        lo = hi + 1
    head()
    R(0); R(1)
    for b in range(NB):
        if b in pr and b: a(f"s_setprio {pr[b]}")
        nb = b + 2
        for ch in PAT:
            if ch == "S":
                a(f"s_waitcnt lgkmcnt({min(NB, nb) * 4 - 4*(b+1)})")
                if tail and b == NB - 1: tail()
                a(f"v_smfmac_f32_16x16x64_bf16 {rg(ACC+4*acc_of(b),4)}, {rg(SEL,4)}, {rg(GD + (8*b) % 16, 8)}, v{SIDX}")
            elif ch == "A": A(nb)
            elif ch == "R": R(nb)
            elif ch == "M": emit(mf.get(b, []))
            elif ch == "C": emit(cv.get(b, []))
            elif ch == "L": L(nb)
        emit(extra.get(b, []))
    return log, vm_wait
pad(PADPRO)
for o in pre_ops(): a(o)
g_start = len(a.lines)
RAW = POOL
P16, P32 = POOL + 16, POOL + 32
def add(d, b, ops): d.setdefault(b, []).extend(ops)
def cvt(d, x, y): return f"v_cvt_pk_bf16_f32 v{d}, v{x}, v{y}"
def selfpack(d, s): return [cvt(d + q, s + 2*q, s + 2*q + 1) for q in range(8)]
def combine(d):
    ops = []
    for q in range(7, -1, -1):
        ops += [f"v_perm_b32 v{d+2*q+1}, v{d+q}, v{T8+q}, s67", f"v_perm_b32 v{d+2*q}, v{d+q}, v{T8+q}, s66"]
    return ops
def tgen(start, per, nv):
    mf = {}; cv = {}; cur = [start]
    def M(ops):
        for i in range(0, len(ops), per):
            add(mf, cur[0], ops[i:i+per]); cur[0] += 1
    def V(ops, adv=True):
        b = cur[0] + 1
        for i in range(0, len(ops), nv):
            add(cv, b, ops[i:i+nv]); b += 1
        if adv: cur[0] = b - 1
    M([tg_mfma(0, ks, e, (P16, P32)[e]) for ks in range(4) for e in range(2)])
    V([cvt(POOL + r, P16 + r, P32 + r) for r in range(16)])
    M([tg_mfma(1, ks, e, (P16, P32)[e]) for ks in range(4) for e in range(2)])
    V([cvt(P16 + r, P16 + r, P32 + r) for r in range(16)])
    M([tg_mfma(2, ks, 0, P32) for ks in range(4)])
    V(selfpack(T8, P32))
    M([tg_mfma(3, ks, 0, P32) for ks in range(4)])
    V(selfpack(P32, P32), adv=False)
    M([tg_mfma(2, ks, 1, WF) for ks in range(4)])
    V(selfpack(WF, WF) + combine(WF) + [f"v_mov_b32 v{T8+q}, v{P32+q}" for q in range(8)])
    M([tg_mfma(3, ks, 1, P32) for ks in range(4)])
    lastm = cur[0]
    V(selfpack(P32, P32) + combine(P32))
    print("tile generation: last MFMA batch", lastm - 1, "ends at", cur[0])
    assert cur[0] <= 63
    return mf, cv, lastm
SRC = [POOL + r for r in range(32)] + [WF + r for r in range(16)] + [P32 + r for r in range(16)]
NX = WF + 16
def g_tail():
    a("s_barrier"); cyc()
    a("s_setprio 3")
    for r in range(4):
        for o in wr_op(r, SRC[r]): a(o)
PA = O("pa", 50)
def w_phase(tag, vm_wait, pre, wr, early=()):
    po = pre_ops(); fill = list(pre) + ["IXW"] + po[:8]
    for o in early: a(o)
    F0 = O("wf0", 8)
    for r in range(4, 64):
        if r % 16 == 0: a(f"s_setprio {3 - r // 16}")
        if r == 52: a(f"s_cmp_eq_u32 s22, 7\ns_cbranch_scc1 {tag}")
        for o in wr_op(r, SRC[r]): a(o)
        if r >= F0 and fill:
            o = fill.pop(0)
            if o == "IXW": vm_wait(("ix", 32))
            else: a(o)
        if r == PA:
            assert not fill
            a("s_waitcnt vmcnt(0)")
            for o in wr: a(o)
            a(po[8])
    a(f"{tag}:")
def part_off(d, t): return [f"v_lshrrev_b32 v{d}, 3, v0", f"v_lshlrev_b32 v{d}, 14, v{d}", f"v_and_b32 v{t}, 7, v0", f"v_lshl_add_u32 v{d}, v{t}, 4, v{d}"]
def wf_reads(ad): return [f"ds_read_b128 {rg(WF+4*x,4)}, v{ad} offset:{XS*x}" for x in (0, 4, 1, 5, 2, 6, 3, 7)]
PB = O("pb", 9); RB = O("rb", 13); XBAT = O("xb", 20); BB = O("bb", 23)
extra = {}
add(extra, PB, [f"v_min_u32 v{RAW+2}, 7, v0", f"v_lshlrev_b32 v{RAW+2}, 7, v{RAW+2}", (pl_op(39, RAW, RAW+2), ("wfl", 0))])
add(extra, RB, [("WAIT", ("wfl", 0)), f"v_cmp_ne_u64 vcc, s[64:65], {rg(RAW,2)}", "s_cbranch_vccnz W_slow", "W_back:",
                (f"buffer_load_dwordx4 {rg(RAW,4)}, v1, s[12:15], s26 offen {SC}", ("raw", 0)), "s_add_u32 s26, s26, 16384"])
CB0 = O("cb0", 1); C1 = 163836
add(extra, XBAT, [f"v_add_u32 v{RAW+4}, s33, v1", ("WAIT", ("raw", 0)), f"ds_write_b128 v{RAW+4}, {rg(RAW,4)}"])
if CB0:
    add(extra, XBAT, [f"v_mov_b32 v{RAW+6}, {C1}", f"v_mov_b32 v{RAW+7}, 1", "s_mov_b64 exec, 1", f"ds_add_u32 v{RAW+6}, v{RAW+7}", "s_mov_b64 exec, -1", "SYNC"])
    add(extra, BB - 2, [f"ds_read_b32 v{RAW+7}, v{RAW+6}"])
    add(extra, BB, [f"v_add_u32 v{RAW+4}, {XB}, v1", f"v_readfirstlane_b32 s20, v{RAW+7}", "s_cmp_lt_u32 s20, 8", "s_cbranch_scc1 J_slow", "J_back:"] + wf_reads(RAW+4))
else:
    add(extra, BB, [f"v_add_u32 v{RAW+4}, {XB}, v1", "s_barrier"] + wf_reads(RAW+4))
add(extra, BB + 1, [f"v_min_u32 v{T8+2}, 17, v0", f"v_lshlrev_b32 v{T8+2}, 3, v{T8+2}", (pl_op(29, T8, T8+2), ("wf2", 0))])
add(extra, BB + 9, [("WAIT", ("wf2", 0)), f"v_cmp_ne_u64 vcc, s[64:65], {rg(T8,2)}", "s_cbranch_vccnz Z_slow", "Z_back:"])
mf, cv, lastm = tgen(BB + 3, O("per0", 2), O("nv0", 6))
add(extra, max(lastm, 54), [(f"buffer_load_dwordx4 {rg(NX,4)}, v1, s[12:15], s26 offen {SC}", ("nx", 0)), "s_mov_b32 m0, s23"])
def g0_head():
    a("s_setprio 3\ns_waitcnt lgkmcnt(0)\ns_barrier"); cyc()
    a("s_cmp_lt_u32 s35, 800\ns_cbranch_scc1 L_first\nL_G1:")
_, vw = gather_phase(32, mf, cv, extra, lambda b: b // 4, g0_head, g_tail)
w_phase("W_e0", vw, [f"v_add_u32 v{T8+7}, s33, v1", f"v_add_u32 v{T8+6}, {XB}, v1"] + part_off(T8+4, T8+5) + [f"v_mov_b32 v{T8+x}, -1" for x in range(4)] +
        ["s_xor_b32 s27, s34, 64", "s_lshl_b32 s3, s27, 15", "s_lshl_b32 s20, s22, 12", "s_add_u32 s3, s3, s20", f"s_add_u32 s3, s3, {HX}",
         "s_lshl_b32 s38, s27, 11", "s_lshl_b32 s20, s22, 8", "s_add_u32 s38, s38, s20", f"s_add_u32 s38, s38, {FX}", "s_xor_b32 s39, s38, 0x20000", "s_xor_b32 s37, s3, 0x200000"],
        [f"ds_write_b128 v{T8+7}, {rg(NX,4)}"])
a(f"buffer_store_dwordx4 {rg(T8,4)}, v{T8+4}, s[12:15], s75 offen {SC}\nbuffer_store_dwordx4 {rg(T8,4)}, v{T8+4}, s[12:15], s75 offen offset:128 {SC}")
mf, cv, lastm = tgen(O("ts1", 1), O("per1", 1), O("nv1", 4))
extra = {}
add(extra, 2, [f"s_lshl_b32 s26, s25, 16", "s_lshl_b32 s27, s22, 10", "s_add_u32 s26, s26, s27", f"s_add_u32 s26, s26, {WFR + 6*8192}"])
add(extra, max(lastm, 54), [f"v_and_b32 v{NX}, 0x27f, v1", (f"buffer_load_dwordx4 {rg(NX,4)}, v{NX}, s[12:15], s26 offen {SC}", ("nx", 0)), "s_mov_b32 m0, s23"])
def g1_head():
    a("s_setprio 3\ns_waitcnt lgkmcnt(0)\ns_barrier"); cyc()
    for o in wf_reads(T8+6): a(o)
_, vw = gather_phase(32, mf, cv, extra, lambda b: b // 4, g1_head, g_tail)
A0 = T8 + 4; XW = POOL
mid = [f"v_lshrrev_b32 v{T8}, 5, v0", f"v_lshlrev_b32 v{T8}, 7, v{T8}", f"v_and_b32 v{T8+1}, 7, v0", f"v_lshl_add_u32 v{T8}, v{T8+1}, 4, v{T8}",
       "s_lshl_b32 s20, s22, 8", f"s_add_u32 s20, s20, {PADR}", f"v_add_u32 v{T8}, s20, v{T8}",
       f"v_and_b32 v{A0}, 1, v0", f"v_lshlrev_b32 v{A0}, 10, v{A0}", f"v_bfe_u32 v{A0+1}, v0, 1, 1", f"v_lshl_add_u32 v{A0}, v{A0+1}, 4, v{A0}",
       f"v_bfe_u32 v{A0+1}, v0, 3, 1", f"v_lshl_add_u32 v{A0}, v{A0+1}, 5, v{A0}", f"v_bfe_u32 v{A0+1}, v0, 2, 1", f"v_lshl_add_u32 v{A0}, v{A0+1}, 6, v{A0}",
       f"v_lshrrev_b32 v{A0+1}, 5, v0", f"v_lshl_add_u32 v{A0}, v{A0+1}, 7, v{A0}", f"v_add_u32 v{A0}, {PADR}, v{A0}",
       f"v_mov_b32 v{T8+2}, {PADR + 2048}", f"v_mov_b32 v{T8+1}, 0", f"ds_write_b32 v{T8+2}, v{T8+1}",
       "s_and_b32 s27, s24, 1", "s_xor_b32 s27, s27, 1", "s_lshl_b32 s47, s27, 14", f"v_lshlrev_b32 v{VT}, 3, v0"]
F2OPS = ["s_cmp_lg_u32 s22, 0", "s_cbranch_scc1 G_nf2", "s_lshl_b32 s31, s34, 3", f"s_add_u32 s31, s31, {F2}"] + flag_ops(31, T8) + ["G_nf2:"]
w_phase("W_e1", vw, mid, [f"ds_write_b128 v{T8}, {rg(NX,4)}"])
XW = WF + 16
a(f"s_cmp_lg_u32 s22, {FIN}\ns_cbranch_scc1 L_Glast")
a(f"v_and_b32 v{T8}, 7, v0\nv_bfe_u32 v{T8+1}, v0, 3, 1\nv_lshl_add_u32 v{T8}, v{T8+1}, 5, v{T8}\nv_lshrrev_b32 v{T8+1}, 4, v0\nv_lshl_add_u32 v{T8}, v{T8+1}, 3, v{T8}\nv_mul_u32_u24 v{T8}, 26, v{T8}\nv_add_u32 v{T8}, {XWL}, v{T8}\nv_mov_b32 v{T8+1}, {XWL+2048}\nv_lshl_add_u32 v{T8+2}, v0, 2, v{T8+1}")
for k in range(13): a(f"ds_read_u16_d16_hi v{XW+k}, v{T8} offset:{2*k}")
a(f"ds_read_u16_d16_hi v{XW+13}, v{T8+1}\nds_read_u16_d16_hi v{XW+14}, v{T8+1} offset:256\nds_read_u16_d16_hi v{XW+15}, v{T8+2} offset:512")
a("L_Glast:")
HR = TAB + 20
extra = {}; mf = {}; cv = {}
BB = 0
add(extra, 0, F2OPS)
VSP = T8 + 6
add(cv, BB + 1, pi_ops(VSP, VSP+1) + [f"v_lshlrev_b32 v{VSP}, 5, v{VSP}"])
add(cv, BB + 2, [f"v_lshrrev_b32 v{A0}, 5, v0", f"v_bfe_u32 v{VSP+1}, v0, 1, 1", f"v_xor_b32 v{VSP+1}, v{VSP+1}, v{A0}", f"v_lshl_add_u32 v{VSP}, v{VSP+1}, 4, v{VSP}",
                 "s_lshl_b32 s31, s22, 11", "s_add_u32 s31, s31, 131072", f"v_add_u32 v{VSP}, s31, v{VSP}"])
S0 = BB + 3
for mt in range(4):
    d = POOL + 16*(mt % 3)
    for ks in range(4):
        add(mf, S0 + 4*mt + ks, [f"v_mfma_f32_32x32x16_bf16 {rg(d,16)}, {rg(WF+4*ks,4)}, {rg(TAB+16*mt+4*ks,4)}, {'0' if ks == 0 else rg(d,16)}"])
    add(cv, S0 + 4*mt + 5, [cvt(d + x, d + 2*x, d + 2*x + 1) for x in range(4)])
    add(extra, S0 + 4*mt + 5, [f"ds_write_b128 v{VSP}, {rg(d,4)} offset:{(32*(mt & 1) + 512*(mt >> 1)) * 32}"])
if O("nosp", 0): mf = {}; extra = {k: [o for o in v if "ds_write_b128" not in str(o)] for k, v in extra.items()}
CB = O("cb", 0)
C2 = PADR + 2048
if CB:
    add(extra, S0 + 17, [f"v_mov_b32 v{A0}, {C2}", f"v_mov_b32 v{A0+1}, 1", "s_mov_b64 exec, 1", f"ds_add_u32 v{A0}, v{A0+1}", "s_mov_b64 exec, -1"])
    add(extra, 57, [f"ds_read_b32 v{A0+1}, v{A0}"])
    add(extra, 60, [f"v_readfirstlane_b32 s20, v{A0+1}", "s_cmp_lt_u32 s20, 8", "s_cbranch_scc1 K_slow", "K_back:"])
elif not O("nomb", 0): add(extra, O("mbat", 58), ["s_barrier"])
for t in range(4):
    b = 8*t + 9; s = ACC + 8*t
    add(cv, b, [cvt(s + x, s + 2*x, s + 2*x + 1) for x in range(4)])
    add(extra, b, [(f"buffer_store_dwordx4 {rg(s,4)}, v1, s[12:15], s3 offen offset:{1024*t} {SC}" if not O("nohs", 0) else f"buffer_load_dword v{HR+8}, v1, s[60:63], 0 offen", ("hs", t))])
def hl_op(t): return f"buffer_load_dwordx4 {rg(ACC+8*t+4,4)}, v1, s[12:15], s37 offen offset:{1024*t} {SC}"
NA = O("na", 2)
FA, PA_, CA, SA = O("fa", 8*NA + 7), O("pa1", 40), O("ca", 45), O("sa", 4)
FB, PB_, CB_ = O("fb", 39), O("pb1", 56), O("cb1", 61)
add(extra, FA, [("WAIT", ("hs", NA - 1)) if not O("hstrict", 1) else "s_waitcnt vmcnt(0)"] + line_flag_ops(38, HR + 4, ("fl", 0)) + ["s_add_u32 s38, s38, 128"])
if NA < 4: add(extra, FB, [("WAIT", ("hs", 3)) if not O("hstrict", 1) else "s_waitcnt vmcnt(0)"] + line_flag_ops(38, HR + 4, ("fl", 1)))
add(extra, PA_, [f"v_mov_b32 v{HR+2}, 0", (pl_op(39, HR, HR+2), ("hp", 0))])
add(extra, CA, [("WAIT", ("hp", 0)), f"v_cmp_ne_u64 vcc, s[64:65], {rg(HR,2)}", "s_cbranch_vccnz H_slow", "H_back:", "s_add_u32 s39, s39, 128"])
for t in range(NA): add(extra, CA + SA*t, [(hl_op(t), ("hl", t))])
if NA < 4: add(extra, PB_, [(pl_op(39, HR, HR+2), ("hp", 1))])
if NA == 4: add(extra, CB_, ["I_back:"])
else: add(extra, CB_, [("WAIT", ("hp", 1)), f"v_cmp_ne_u64 vcc, s[64:65], {rg(HR,2)}", "s_cbranch_vccnz I_slow", "I_back:"] + [(hl_op(t), ("hl", t)) for t in range(NA, 4)])
Y = TAB; K = ACC + 32
def epi(s):
    r = ACC + 8*(s >> 1) + 4 + 2*(s & 1); t = POOL + 24
    w = [("WAIT", ("hl", s >> 1))] if s % 2 == 0 else []
    return w + [f"v_lshlrev_b32 v{t}, 16, v{r}", f"v_and_b32 v{t+1}, s27, v{r}", f"v_lshlrev_b32 v{t+2}, 16, v{r+1}", f"v_and_b32 v{t+3}, s27, v{r+1}",
            f"v_pk_add_f32 {rg(t,2)}, {rg(t,2)}, {rg(K+4*s,2)}", f"v_pk_add_f32 {rg(t+2,2)}, {rg(t+2,2)}, {rg(K+4*s+2,2)}",
            cvt(POOL+2*s, t, t+1), cvt(POOL+2*s+1, t+2, t+3),
            f"v_pk_max_i16 v{POOL+2*s}, v{POOL+2*s}, 0", f"v_pk_max_i16 v{POOL+2*s+1}, v{POOL+2*s+1}, 0",
            f"v_dot2_f32_bf16 v{POOL+16+s}, v{POOL+2*s}, s72, 0", f"v_dot2_f32_bf16 v{POOL+16+s}, v{POOL+2*s+1}, s73, v{POOL+16+s}"]
def epi2(s): return [f"v_min_u32 v{POOL+16+s}, s33, v{POOL+16+s}"]
st0 = f"buffer_store_dwordx4 {rg(POOL+16,4)}, v{Y+14}, s[12:15], s75 offen {SC}"
st1 = f"buffer_store_dwordx4 {rg(POOL+20,4)}, v{Y+14}, s[12:15], s75 offen offset:128 {SC}"
add(extra, 62, ["s_mov_b32 s33, -2", "s_mov_b32 s27, 0xffff0000"])
add(extra, O("f2at", 35), ["s_lshl_b32 s31, s24, 9", f"s_add_u32 s31, s31, {F2}", f"v_lshlrev_b32 v{Y+18}, 3, v0", (pl_op(31, Y+16, Y+18), ("f2", 0))])
add(cv, 58, part_off(Y+14, Y+15) + [f"v_lshlrev_b32 v{Y+12}, 2, v0", f"v_add_u32 v{Y+12}, {PADR}, v{Y+12}"])
add(cv, 59, ["s_lshl_b32 s29, s34, 14", "s_lshl_b32 s20, s22, 11", "s_add_u32 s29, s29, s20", f"s_add_u32 s29, s29, {PART}", "s_lshl_b32 s20, s22, 8", f"v_add_u32 v{Y+13}, s20, v{Y+12}",
             f"v_and_b32 v{Y+10}, 7, v0", f"v_bfe_u32 v{Y+11}, v0, 3, 1", f"v_lshl_add_u32 v{Y+10}, v{Y+11}, 5, v{Y+10}"])
add(cv, 60, [f"v_lshrrev_b32 v{Y+11}, 4, v0", f"v_lshl_add_u32 v{Y+10}, v{Y+11}, 3, v{Y+10}", "s_lshl_b32 s20, s34, 6", f"v_add_u32 v{Y+10}, s20, v{Y+10}", f"v_lshlrev_b32 v{Y+10}, 1, v{Y+10}",
             "s_mov_b32 s8, s54", "s_and_b32 s9, s55, 0xffff", "s_mov_b32 s10, 32768", "s_mov_b32 s11, 0x00020000"])
for s in range(7): add(cv, 65 + s, epi(s) + (epi2(s-1) if s else []))
add(extra, 69, [(st0, ("st", 0))])
if CYC == 1:
    add(extra, 61, cyc_ops())
    add(extra, 30, cyc_ops())
if CYC == 2:
    for b in [int(x) for x in opts.get("at", "8,16,24,30,32,38,40,49,51,58,63,65").split(",")]: add(extra, b, cyc_ops())
if U0 < 36:
    B0 = O("b0", S0 + 18); BR = O("br", 1)
    add(extra, B0 - 1, ["s_lshl_b32 s21, s24, 3", "s_add_u32 s21, s21, s22", "s_mul_i32 s21, s21, 102400", "s_add_u32 s36, s21, 98304", "s_and_b32 s20, s24, 1", "s_lshl_b32 s20, s20, 14",
                        "s_add_u32 s21, s21, s20", f"s_add_u32 s21, s21, {65536 + 4096*((U0-16)//4)}"])
    for u in range(U0, 36):
        b = B0 + (u - U0) // BR; q = BIGQ[u - U0]
        if u < 32:
            add(extra, b, [(f"buffer_load_dwordx4 {rg(q,4)}, v1, s[12:15], s21 offen offset:{1024*(u&3)} {SC}", ("ix", u))] + (["s_add_u32 s21, s21, 4096"] if u & 3 == 3 else []))
        else:
            add(extra, b, [(f"buffer_load_dwordx2 {rg(q+2*h,2)}, v{VT}, s[12:15], s36 offen offset:{1024*(u&3)+512*h} {SC}", ("ix", u)) for h in range(2)])
def gl_head():
    a("s_setprio 3\ns_waitcnt lgkmcnt(0)\ns_barrier"); cyc()
    for x in range(4): a(f"ds_read_b128 {rg(WF+4*x,4)}, v{A0} offset:{256*x}")
gather_phase(36, mf, cv, extra, lambda b: b // 4 if b < 64 else b - 56, gl_head)
cyc()
stamp()
for o in epi(7) + epi2(6): a(o)
a("s_nop 1")
for o in epi2(7): a(o)
a(st1)
VW = T8
a(f"s_mov_b32 s20, 0\ns_cmp_lg_u32 s22, {FIN}\ns_cbranch_scc1 R_f2")
for k in range(16): a(f"v_and_b32 v{XW+k}, s27, v{XW+k}")
a("s_nop 0")
for k in range(13): a(f"v_readlane_b32 s{36+k}, v{XW+15}, {k}")
a(f"v_readfirstlane_b32 s74, v{XW+14}\nv_mul_f32 v{VW}, s36, v{XW}")
for k in range(1, 13): a(f"v_fmac_f32 v{VW}, s{36+k}, v{XW+k}")
rnd(VW); a(f"v_add_f32 v{VW}, v{VW}, v{XW+13}"); rnd(VW)
a("R_f2:")
a(f"s_waitcnt vmcnt(0)\nv_cmp_ne_u64 vcc, s[64:65], {rg(Y+16,2)}\ns_cbranch_vccz R_f2ok")
a(f"s_sleep 1\n{pl_op(31, Y+16, Y+18)}\ns_add_u32 s20, s20, 1\ns_cmp_lt_u32 s20, 0x8000\ns_cbranch_scc1 R_f2")
a("R_f2ok:")
a("s_mov_b32 s20, 0")
a("R_poll:")
a(f"buffer_load_dwordx4 {rg(Y,4)}, v1, s[12:15], s29 offen {SC}\nbuffer_load_dwordx4 {rg(Y+4,4)}, v1, s[12:15], s29 offen offset:1024 {SC}")
a("s_add_u32 s20, s20, 1\ns_waitcnt vmcnt(0)")
a(f"v_max3_u32 v{Y+8}, v{Y}, v{Y+1}, v{Y+2}\nv_max3_u32 v{Y+9}, v{Y+3}, v{Y+4}, v{Y+5}\nv_max3_u32 v{Y+8}, v{Y+8}, v{Y+6}, v{Y+7}\nv_max_u32 v{Y+8}, v{Y+8}, v{Y+9}")
a(f"v_cmp_eq_u32 vcc, -1, v{Y+8}\ns_cbranch_vccz R_ok")
if O("rmask", 0): a("s_mov_b64 exec, vcc")
a(f"s_sleep {RSLEEP}\ns_cmp_lt_u32 s20, 0x8000\ns_cbranch_scc1 R_poll")
a("R_ok:")
if O("rmask", 0): a("s_mov_b64 exec, -1")
stamp("y3")
for x in range(4): a(f"v_add_f32 v{Y+x}, v{Y+x}, v{Y+4+x}")
a(f"s_nop 0\nv_permlane32_swap_b32 v{Y}, v{Y+2}\nv_permlane32_swap_b32 v{Y+1}, v{Y+3}\ns_nop 0\nv_add_f32 v{Y}, v{Y}, v{Y+2}\nv_add_f32 v{Y+1}, v{Y+1}, v{Y+3}\ns_nop 1\nv_permlane16_swap_b32 v{Y}, v{Y+1}\ns_nop 0\nv_add_f32 v{Y}, v{Y}, v{Y+1}")
a(f"ds_write_b32 v{Y+13}, v{Y}\ns_waitcnt lgkmcnt(0)\ns_barrier")
a(f"s_cmp_lg_u32 s22, {FIN}\ns_cbranch_scc1 M_fin")
for k in range(8): a(f"ds_read_b32 v{Y+k}, v{Y+12} offset:{256*k}")
a("s_waitcnt lgkmcnt(0)")
a(f"v_add_f32 v{Y}, v{Y}, v{Y+1}\nv_add_f32 v{Y+2}, v{Y+2}, v{Y+3}\nv_add_f32 v{Y+4}, v{Y+4}, v{Y+5}\nv_add_f32 v{Y+6}, v{Y+6}, v{Y+7}\nv_add_f32 v{Y}, v{Y}, v{Y+2}\nv_add_f32 v{Y+4}, v{Y+4}, v{Y+6}\nv_add_f32 v{Y}, v{Y}, v{Y+4}")
rnd(Y); a(f"v_add_f32 v{Y}, s74, v{Y}"); rnd(Y)
a(f"v_add_f32 v{Y}, v{Y}, v{VW}"); rnd(Y)
a(f"v_mul_f32 v{Y}, 0xbfb8aa3b, v{Y}\nv_exp_f32 v{Y}, v{Y}\ns_nop 0\nv_add_f32 v{Y}, 1.0, v{Y}\nv_rcp_f32 v{Y}, v{Y}\ns_nop 0\nv_cvt_pk_bf16_f32 v{Y}, v{Y}, v{Y}")
a(f"buffer_store_short v{Y}, v{Y+10}, s[8:11], 0 offen")
a("M_fin:")
PROBE = O("probe", -1)
if PROBE >= 0:
    a(f"s_cmp_lg_u32 s22, {SW}\ns_cbranch_scc1 M_end\ns_waitcnt vmcnt(0)")
    if O("pwg", -1) >= 0: a(f"s_cmp_lg_u32 s2, {O('pwg', 0)}\ns_cbranch_scc1 M_end")
    stamp()
    a(f"s_waitcnt lgkmcnt(0)\ns_sub_u32 s20, s{76+2*PROBE}, s64\ns_mul_i32 s20, s20, {O('gain', 10)}\ns_add_u32 s20, s20, 4000")
    a("PRB:\ns_memrealtime s[32:33]\ns_waitcnt lgkmcnt(0)\ns_sub_u32 s32, s32, s64\ns_cmp_lt_i32 s32, s20\ns_cbranch_scc1 PRB")
elif STAMP:
    a(f"s_cmp_lg_u32 s22, {SW}\ns_cbranch_scc1 M_end\ns_waitcnt vmcnt(0)")
    stamp()
    a("s_waitcnt lgkmcnt(0)")
    n = nst[0]
    if O("mt", 0):
        for k in range(n - 1, -1, -1): a(f"s_sub_u32 s{76+2*k}, s{76+2*k}, s76\ns_mov_b32 s{77+2*k}, 0")
    if CYC:
        n = 13
        for k in range(1, 12): a(f"s_sub_u32 s{76+2*k}, s{76+2*k}, s{78+2*k}\ns_mov_b32 s{77+2*k}, 0")
        a("s_mov_b32 s76, 0\ns_mov_b32 s77, 0\ns_mov_b32 s100, 0\ns_mov_b32 s101, 0")
    elif PADPRO: a("s_mov_b32 s76, s64\ns_and_b32 s77, s65, 0x7fffffff")
    a(f"s_mul_i32 s31, s2, {8*n}\ns_add_u32 s31, s31, 0x8000000\nv_mov_b32 v2, 0")
    for k in range(n):
        a(f"v_mov_b32 v4, s{76+2*k}\nv_mov_b32 v5, s{77+2*k}\nbuffer_store_dwordx2 v[4:5], v2, s[12:15], s31 offen offset:{8*k}\ns_waitcnt vmcnt(0)")
    print("nstamps", n)
a("M_end:\ns_endpgm")
a("L_first:")
a("s_waitcnt vmcnt(0)\ns_cmp_lg_u32 s22, 1\ns_cbranch_scc1 L_f2")
for o in line_flag_ops(38, WF): a(o)
a("s_branch L_G1\nL_f2:")
flag_store(38, WF)
a("s_branch L_G1")
for tg, sr, t in (("W", 39, RAW), ("Z", 29, T8), ("H", 39, HR), ("I", 39, HR)):
    a(f"{tg}_slow:")
    poll_check(sr, t, t+2)
    a(f"s_branch {tg}_back")
def cnt_slow(tag, ad):
    a(f"{tag}_slow:\ns_mov_b32 s21, 0\n{tag}_l:\nds_read_b32 v{ad+1}, v{ad}\ns_add_u32 s21, s21, 1\ns_waitcnt lgkmcnt(0)\nv_readfirstlane_b32 s20, v{ad+1}")
    a(f"s_cmp_ge_u32 s20, 8\ns_cbranch_scc1 {tag}_back\ns_cmp_lt_u32 s21, 0x100000\ns_cbranch_scc1 {tag}_l\ns_branch {tag}_back")
if CB: cnt_slow("K", A0)
if CB0: cnt_slow("J", RAW+6)
a("C_end:\ns_endpgm")
L = a.lines
errs = hazard.check_all(L[st:], "main")
a.raw(kernel_desc(MAIN, 256, 102, 256))
for e in sorted(set(errs)): print("HAZARD", e)
open(sys.argv[1], "w").write(a.text())
```

```python
import sys, re
from common import *
import hazard
opts = dict(x.split("=") for x in sys.argv[2:])
def O(k, d): return int(opts.get(k, d))
STAMP = O("stamp", 0); SW = O("sw", 7); SC = "sc1"; SLEEP = O("sleep", 1); RSLEEP = O("rsleep", 2)
WS_BYTES = 268435456
WFR = 4 << 20; PART = 8 << 20; FI = 16 << 20; FW = FI + 16384; F2 = FI + 32768; FE = FI + 65536; FX = 17 << 20; HX = 20 << 20
STG = 131072; XWL = STG + 25600; XB = 131072; XS = 3200; PADR = 128000
DOC = """;
; Generated by a script written for this kernel (gen/h2.py)."""
a = Asm()
a.raw(HEADER_COMMENT.rstrip("\n"))
a.raw("; @launch grid=(256,1,1) block=(512,1,1) lds=163840")
a.raw(DOC)
a.raw('.amdgcn_target "amdgcn-amd-amdhsa--gfx950"')
kernel_begin(a, MAIN)
LN = 0; VL16 = 1
TAB = 2; ACC = 66; WF = 130; POOL = 162; T8 = 210; GD = 218; IX = 234; SEL = 250; SIDX = 254; VT = 255
T = ACC; U = T8; WR_ = GD; AD = IX + 12; TD = POOL; FR = POOL + 4
FIN = 7
def rg(b, n): return f"v[{b}:{b+n-1}]"
nst = [0]; lab = [0]
SKIP = set(opts.get("skip", "g1,gl,b33,b60").split(","))
CYC = O("cyc", 0)
def stamp(name="-"):
    if STAMP and name not in SKIP and not (CYC and nst[0] >= 1):
        k = nst[0]; nst[0] += 1
        assert k < 13
        a(f"{'s_memtime' if O('mt', 0) else 's_memrealtime'} s[{76+2*k}:{77+2*k}]")
def cyc_ops(): return [f"s_mov_b32 s{76+2*k}, s{74+2*k}" for k in range(12, 1, -1)] + ["s_memtime s[78:79]", "s_waitcnt lgkmcnt(0)"] if CYC else []
def cyc():
    for o in cyc_ops(): a(o)
def newlab(p):
    lab[0] += 1; return f"{p}{lab[0]}"
def rnd(r): a(f"v_cvt_pk_bf16_f32 v{r}, v{r}, v{r}\nv_lshlrev_b32 v{r}, 16, v{r}")
PADPRO = O("padpro", 0)
def pad(ticks):
    if not ticks: return
    l = newlab("PAD_")
    a(f"{l}:\ns_memrealtime s[32:33]\ns_waitcnt lgkmcnt(0)\ns_sub_u32 s32, s32, s64\ns_cmp_lt_i32 s32, {ticks}\ns_cbranch_scc1 {l}")
st = len(a.lines)
a("s_cmp_ge_u32 s2, 256\ns_cbranch_scc1 M_end")
stamp()
a("s_load_dwordx16 s[36:51], s[0:1], 0\ns_load_dwordx8 s[52:59], s[0:1], 64\ns_memrealtime s[64:65]")
NCP = O("ncp", 8)
a(f"s_getpc_b64 s[32:33]\nC_base:\ns_lshr_b32 s29, s2, 3\ns_mul_i32 s20, s29, {128*NCP}\nv_lshl_add_u32 v{VT}, v0, 7, s20\nv_min_u32 v{VT}, C_end-C_base, v{VT}")
a(f"v_cmp_gt_u32 vcc, {NCP}, v0\ns_and_saveexec_b64 s[20:21], vcc\ns_cbranch_execz C_skip\nglobal_load_dword v{VT}, v{VT}, s[32:33]\nC_skip:\ns_mov_b64 exec, -1")
a(f"v_lshrrev_b32 v{T}, 6, v0\nv_and_b32 v0, 63, v0\nv_lshlrev_b32 v1, 4, v0\nv_readfirstlane_b32 s22, v{T}")
if O("map", 1) == 0:
    a("s_and_b32 s20, s2, 7\ns_lshr_b32 s24, s20, 1\ns_and_b32 s20, s20, 1\ns_lshl_b32 s20, s20, 5\ns_add_u32 s25, s20, s29")
else:
    a("s_bfe_u32 s24, s2, 0x10002\ns_lshl_b32 s24, s24, 1\ns_and_b32 s20, s29, 1\ns_add_u32 s24, s24, s20\ns_and_b32 s20, s2, 3\ns_lshl_b32 s20, s20, 4\ns_lshr_b32 s25, s29, 1\ns_add_u32 s25, s25, s20")
a("s_lshl_b32 s34, s24, 6\ns_add_u32 s34, s34, s25")
a("s_lshl_b32 s35, s22, 8\ns_add_u32 s35, s35, s34")
a(f"v_lshrrev_b32 v{U}, 4, v0\nv_and_b32 v{U+1}, 15, v0\nv_lshlrev_b32 v{U+2}, 15, v{U}\nv_lshl_add_u32 v{U+2}, v{U+1}, 3, v{U+2}\nv_mov_b32 v{U+5}, 0")
a("s_lshr_b32 s20, s35, 5\ns_lshl_b32 s20, s20, 17\ns_bfe_u32 s21, s35, 0x30002\ns_lshl_b32 s21, s21, 12\ns_add_u32 s20, s20, s21\ns_and_b32 s21, s35, 3\ns_lshl_b32 s21, s21, 7\ns_add_u32 s31, s20, s21")
a(f"s_mul_i32 s20, s34, 25600\ns_mul_i32 s21, s22, 3200\ns_add_u32 s20, s20, s21\ns_add_u32 s33, s21, {STG}\ns_mov_b32 m0, s33")
a("s_lshl_b32 s23, s22, 13\ns_add_u32 s30, s23, 8064")
a("s_mov_b32 s18, 3276800\ns_mov_b32 s19, 0x00020000\ns_mov_b32 s6, 6553600\ns_mov_b32 s7, 0x00020000")
a("s_waitcnt lgkmcnt(0)")
stamp()
a("s_mov_b32 s16, s46\ns_and_b32 s17, s47, 0xffff\ns_mov_b32 s4, s36\ns_and_b32 s5, s37, 0xffff")
srd(a, 60, 56, 256)
srd(a, 12, 58, WS_BYTES)
a("s_cmp_lg_u32 s22, 6\ns_cbranch_scc1 P_n0\ns_cmp_ge_u32 s2, 8\ns_cbranch_scc1 P_n0")
a(f"v_mov_b32 v{T+4}, s64\nv_mov_b32 v{T+5}, s65\nv_mov_b32 v{T+6}, 0\nv_mov_b32 v{T+7}, 0\nv_or_b32 v{T+5}, 0x80000000, v{T+5}\ns_mov_b64 exec, 1")
a(f"buffer_atomic_cmpswap_x2 {rg(T+4,4)}, v{T+6}, s[60:63], 0 offen {SC}\ns_mov_b64 exec, -1\ns_nop 1")
a("P_n0:")
def w1_loads(sreg=31):
    for j8 in range(8):
        a(f"buffer_load_dwordx2 {rg(WR_+2*j8,2)}, v{U+2}, s[16:19], s{sreg} offen offset:{512*j8}")
a("s_cmp_lg_u32 s22, 0\ns_cbranch_scc1 P_now1")
w1_loads()
a("P_now1:")
for r in range(3):
    a(f"buffer_load_dwordx4 v1, s[4:7], s20 offen offset:{1024*r} lds")
a("s_mov_b64 exec, 0xff\nbuffer_load_dwordx4 v1, s[4:7], s20 offen offset:3072 lds\ns_mov_b64 exec, -1")
srd(a, 8, 38, 128000)
a("s_mov_b32 s66, 0x05040100\ns_mov_b32 s67, 0x07060302")
a("s_barrier")
a("s_cmp_lg_u32 s22, 5\ns_cbranch_scc1 P_n5\ns_load_dword s74, s[56:57], 192\nP_n5:")
a("s_cmp_lt_u32 s22, 4\ns_cbranch_scc1 P_lo\ns_cmp_lg_u32 s22, 4\ns_cbranch_scc1 P_skip")
a(f"v_and_b32 v{VT}, 31, v0\nv_lshlrev_b32 v{VT}, 7, v{VT}\ns_lshl_b32 s21, s29, 12\nbuffer_load_dword v{VT}, v{VT}, s[8:11], s21 offen\ns_branch P_skip")
def nonce_load(): a("s_load_dwordx2 s[64:65], s[56:57], 0")
def nonce_get():
    l = newlab("N_")
    a(f"s_waitcnt lgkmcnt(0)\ns_cmp_lt_i32 s65, 0\ns_cbranch_scc1 {l}ok\ns_mov_b32 s20, 0\nv_mov_b32 v{AD}, 0")
    a(f"{l}:")
    a(f"buffer_load_dwordx2 {rg(AD+2,2)}, v{AD}, s[60:63], 0 offen {SC}\ns_add_u32 s20, s20, 1\ns_waitcnt vmcnt(0)")
    a(f"v_readfirstlane_b32 s64, v{AD+2}\nv_readfirstlane_b32 s65, v{AD+3}\ns_cmp_lt_i32 s65, 0\ns_cbranch_scc1 {l}ok")
    a(f"s_sleep 1\ns_cmp_lt_u32 s20, 0x8000\ns_cbranch_scc1 {l}")
    a(f"{l}ok:")
def flag_ops(sreg, t):
    return [f"v_mov_b32 v{t+2}, 0", f"v_mov_b32 v{t}, s64", f"v_mov_b32 v{t+1}, s65", "s_mov_b64 exec, 1",
            f"buffer_store_dwordx2 {rg(t,2)}, v{t+2}, s[12:15], s{sreg} offen {SC}", "s_mov_b64 exec, -1"]
def line_flag_ops(sreg, t, tag=None):
    st_ = f"buffer_store_dwordx4 {rg(t,4)}, v1, s[12:15], s{sreg} offen {SC}"
    return [f"v_mov_b32 v{t}, s64", f"v_mov_b32 v{t+1}, s65", f"v_mov_b32 v{t+2}, s64", f"v_mov_b32 v{t+3}, s65", "s_mov_b64 exec, 0xff",
            (st_, tag) if tag else st_, "s_mov_b64 exec, -1"]
def flag_store(sreg, t=AD):
    for o in flag_ops(sreg, t): a(o)
def w1_process(PR, RB, sreg):
    for c in range(4):
        for d in range(4):
            a(f"v_perm_b32 v{PR+4*c+d}, v{WR_+2*(2*d+1)+(c>>1)}, v{WR_+2*(2*d)+(c>>1)}, s{66+(c&1)}")
    for c in range(4):
        a(f"ds_write_b128 v{U+3}, {rg(PR+4*c,4)} offset:{(c&1)*128 + (c>>1)*16}")
    a("s_waitcnt lgkmcnt(0)")
    for r in range(4):
        a(f"ds_read_b128 {rg(RB+4*r,4)}, v{U+4} offset:{r*4*272}")
    for r in range(4):
        a(f"s_waitcnt lgkmcnt({3-r})\nbuffer_store_dwordx4 {rg(RB+4*r,4)}, v{U+5}, s[12:15], s{sreg} offen {SC}\ns_add_u32 s{sreg}, s{sreg}, {4*65536}")
a("P_lo:")
a("s_cmp_ge_u32 s35, 800\ns_cbranch_scc1 P_skip")
a("s_add_u32 s21, s23, 0x10000")
a(f"v_mul_u32_u24 v{U+3}, 272, v{U+1}\nv_lshl_add_u32 v{U+3}, v{U}, 5, v{U+3}\nv_add_u32 v{U+3}, s21, v{U+3}")
a(f"v_mul_u32_u24 v{U+4}, 272, v{U}\nv_lshl_add_u32 v{U+4}, v{U+1}, 4, v{U+4}\nv_add_u32 v{U+4}, s21, v{U+4}")
a(f"v_lshlrev_b32 v{U+5}, 16, v{U}\nv_bfe_u32 v{U+6}, v0, 3, 1\nv_lshl_add_u32 v{U+5}, v{U+6}, 12, v{U+5}\nv_and_b32 v{U+6}, 7, v0\nv_lshl_add_u32 v{U+5}, v{U+6}, 4, v{U+5}")
a("s_and_b32 s26, s35, 3\ns_lshl_b32 s26, s26, 20\ns_lshr_b32 s21, s35, 7\ns_lshl_b32 s21, s21, 13\ns_add_u32 s26, s26, s21\ns_bfe_u32 s21, s35, 0x30002\ns_lshl_b32 s21, s21, 9\ns_add_u32 s26, s26, s21")
a(f"s_bfe_u32 s21, s35, 0x20005\ns_lshl_b32 s21, s21, 7\ns_add_u32 s26, s26, s21\ns_add_u32 s26, s26, {WFR}")
a(f"s_and_b32 s75, s35, 3\ns_lshl_b32 s75, s75, 11\ns_bfe_u32 s21, s35, 0x20003\ns_lshl_b32 s21, s21, 9\ns_add_u32 s75, s75, s21\ns_lshr_b32 s21, s35, 5\ns_lshl_b32 s21, s21, 4\ns_add_u32 s75, s75, s21\ns_bfe_u32 s21, s35, 0x10002\ns_lshl_b32 s21, s21, 3\ns_add_u32 s75, s75, s21\ns_add_u32 s75, s75, {FW}")
a("s_cmp_ge_u32 s22, 2\ns_cbranch_scc1 P_skip")
a("s_and_b32 s75, s35, 3\ns_lshl_b32 s75, s75, 14\ns_lshr_b32 s21, s35, 7\ns_lshl_b32 s21, s21, 12\ns_add_u32 s75, s75, s21\ns_bfe_u32 s21, s35, 0x20003\ns_lshl_b32 s21, s21, 10\ns_add_u32 s75, s75, s21")
a(f"s_bfe_u32 s21, s35, 0x20005\ns_lshl_b32 s21, s21, 8\ns_add_u32 s75, s75, s21\ns_bfe_u32 s21, s35, 0x10002\ns_lshl_b32 s21, s21, 7\ns_add_u32 s75, s75, s21\ns_add_u32 s75, s75, {FE}")
a("s_cmp_lg_u32 s22, 0\ns_cbranch_scc1 P_skip")
a("s_waitcnt vmcnt(4)")
w1_process(WF, WF+16, 26)
nonce_load()
a("P_skip:")
a(f"v_and_b32 v{T+4}, 7, v0\nv_lshrrev_b32 v{T+5}, 3, v0")
a(f"s_and_b32 s20, s34, 1\ns_lshl_b32 s20, s20, 3\nv_add_u32 v{T+6}, s20, v{T+4}")
a(f"v_mul_u32_u24 v{T+7}, 400, v{T+4}\nv_add_u32 v{T+7}, s33, v{T+7}")
a(f"v_and_b32 v{T+8}, 1, v{T+5}\nv_lshrrev_b32 v{T+9}, 1, v{T+5}")
a(f"v_lshlrev_b32 v{T+10}, 3, v{T+8}\nv_xor_b32 v{T+10}, v{T+10}, v{T+6}")
a(f"v_lshl_add_u32 v{T+11}, v{T+9}, 6, v{T+7}")
a(f"v_lshlrev_b32 v{T+9}, 14, v{T+9}\nv_lshl_add_u32 v{T+9}, v{T+8}, 10, v{T+9}\nv_lshl_add_u32 v{T+9}, v{T+4}, 4, v{T+9}")
SL, LA_, RD, PK, SS = T+12, T+20, T+28, T+44, T+52
for u in range(8):
    a(f"v_xor_b32 v{SL+u}, {u}, v{T+10}")
    a(f"v_lshl_add_u32 v{LA_+u}, v{SL+u}, 2, v{T+11}")
a(f"v_and_b32 v{T+10}, 3, v{T+4}")
for u in range(4):
    a(f"v_xor_b32 v{SS+u}, {u}, v{T+10}\nv_lshl_add_u32 v{SS+4+u}, v{SS+u}, 2, v{T+7}\nv_add_u32 v{SS+u}, 16384, v{SS+u}")
a("s_lshr_b32 s27, s34, 3\ns_mul_i32 s27, s27, 102400\ns_lshl_b32 s20, s22, 11\ns_add_u32 s28, s27, s20\ns_and_b32 s21, s34, 7\ns_lshl_b32 s20, s21, 7\ns_add_u32 s28, s28, s20")
a(f"s_lshl_b32 s20, s22, 9\ns_add_u32 s27, s27, s20\ns_lshl_b32 s20, s21, 6\ns_add_u32 s27, s27, s20\ns_add_u32 s27, s27, 98304\nv_lshlrev_b32 v{T+8}, 3, v{T+4}")
a(f"v_xor_b32 v{TD+1}, v{T+4}, v{U}\nv_lshlrev_b32 v{TD}, 7, v{T+5}\nv_lshl_add_u32 v{TD}, v{TD+1}, 4, v{TD}\nv_xor_b32 v{TD+1}, 64, v{TD}")
def table_dma(mt, s=27):
    a(f"s_add_u32 s{s}, s23, {4096*(mt & 1) + 65536*(mt >> 1)}\ns_mov_b32 m0, s{s}\ns_nop 0")
    for x in range(4): a(f"buffer_load_dwordx4 v{TD+(x&1)}, s[8:11], s{s} offen offset:{1024*x} lds")
a("s_cmp_lt_u32 s22, 4\ns_cbranch_scc1 P_np")
table_dma(2, 21); table_dma(3, 21)
a("s_waitcnt vmcnt(8)\ns_branch P_c9")
a("P_np:")
a("s_cmp_lg_u32 s22, 0\ns_cbranch_scc1 P_c0")
nonce_get()
a(f"v_mov_b32 v{AD}, s64\nv_mov_b32 v{AD+1}, s65\nv_mov_b32 v{AD+2}, s64\nv_mov_b32 v{AD+3}, s65\ns_mov_b64 exec, 0xff\ns_waitcnt vmcnt(0)")
a(f"buffer_store_dwordx4 {rg(AD,4)}, v1, s[12:15], s75 offen {SC}\ns_mov_b64 exec, -1")
a("s_mov_b32 s35, 4097\ns_branch P_c9\nP_c0:\ns_waitcnt vmcnt(0)\nP_c9:")
stamp()
for u in range(8): a(f"ds_read_b32 v{RD+u}, v{LA_+u}")
for u in range(8): a(f"ds_read_b32 v{RD+8+u}, v{LA_+u} offset:256")
for u in range(4): a(f"ds_read_b32 v{SS+8+u}, v{SS+4+u} offset:384")
def conv(k):
    for u in range(8):
        a(f"v_lshl_add_u32 v{RD+8*k+u}, v{RD+8*k+u}, 4, v{SL+u}")
    for d in range(4):
        a(f"v_lshl_or_b32 v{PK+4*k+d}, v{RD+8*k+2*d+1}, 16, v{RD+8*k+2*d}")
a("s_waitcnt lgkmcnt(12)")
conv(0)
a(f"buffer_store_dwordx4 {rg(PK,4)}, v{T+9}, s[12:15], s28 offen {SC}")
a("s_waitcnt lgkmcnt(0)")
nonce_load()
conv(1)
for u in range(4): a(f"v_lshrrev_b32 v{SS+4+u}, 1, v{SS+8+u}\nv_lshl_add_u32 v{SS+8+u}, v{SS+8+u}, 2, v{SS+u}\nv_and_b32 v{SS+4+u}, 2, v{SS+4+u}\nv_xor_b32 v{SS+8+u}, v{SS+8+u}, v{SS+4+u}")
a(f"v_lshl_or_b32 v{SS+4}, v{SS+9}, 16, v{SS+8}\nv_lshl_or_b32 v{SS+5}, v{SS+11}, 16, v{SS+10}")
a(f"s_add_u32 s28, s28, 65536\ns_mov_b32 exec_hi, 0\nbuffer_store_dwordx4 {rg(PK+4,4)}, v{T+9}, s[12:15], s28 offen {SC}")
a(f"s_mov_b64 exec, 0xff\nbuffer_store_dwordx2 {rg(SS+4,2)}, v{T+8}, s[12:15], s27 offen {SC}\ns_mov_b64 exec, -1")
a("s_mov_b32 s36, s31\ns_mov_b32 s37, s26\ns_mov_b32 s38, s75")
table_dma(0)
a("s_lshl_b32 s20, s25, 3\ns_add_u32 s48, s48, s20\ns_addc_u32 s49, s49, 0\ns_add_u32 s50, s50, s20\ns_addc_u32 s51, s51, 0")
nonce_get()
a(f"s_lshr_b32 s31, s34, 3\ns_lshl_b32 s31, s31, 9\ns_and_b32 s20, s34, 7\ns_lshl_b32 s20, s20, 6\ns_add_u32 s31, s31, s20\ns_lshl_b32 s20, s22, 3\ns_add_u32 s31, s31, s20\ns_add_u32 s31, s31, {FI}")
a("s_waitcnt vmcnt(0)")
stamp()
flag_store(31)
a("s_lshr_b32 s20, s22, 2\ns_add_u32 s20, s20, 1\ns_lshl_b32 s20, s20, 8\ns_add_u32 s20, s20, s34")
a("s_lshr_b32 s21, s20, 5\ns_lshl_b32 s21, s21, 17\ns_bfe_u32 s39, s20, 0x30002\ns_lshl_b32 s39, s39, 12\ns_add_u32 s21, s21, s39\ns_and_b32 s39, s20, 3\ns_lshl_b32 s39, s39, 7\ns_add_u32 s21, s21, s39")
a("s_and_b32 s39, s22, 3\ns_lshl_b32 s39, s39, 10\ns_add_u32 s21, s21, s39\ns_add_u32 s46, s46, s21\ns_addc_u32 s47, s47, 0")
for f4 in range(4):
    for r in range(2): a(f"s_load_dword s3, s[46:47], {f4*32768 + r*512}")
def pl_op(sreg, tmp, addr): return f"buffer_load_dwordx2 {rg(tmp,2)}, v{addr}, s[12:15], s{sreg} offen {SC}"
def poll_load(sreg, tmp, addr): a(pl_op(sreg, tmp, addr))
def poll_check(sreg, tmp, addr, first_wait=0):
    l = newlab("Q_")
    a(f"s_mov_b32 s20, 0\ns_waitcnt vmcnt({first_wait})")
    a(f"{l}:")
    a(f"v_cmp_ne_u64 vcc, s[64:65], {rg(tmp,2)}\ns_cbranch_vccz {l}ok")
    a(f"s_sleep {SLEEP}")
    poll_load(sreg, tmp, addr)
    a(f"s_add_u32 s20, s20, 1\ns_waitcnt vmcnt(0)\ns_cmp_lt_u32 s20, 0x8000\ns_cbranch_scc1 {l}")
    a(f"{l}ok:")
a("s_cmp_lt_u32 s22, 4\ns_cbranch_scc1 P_g")
a(f"s_and_b32 s21, s24, 1\ns_lshr_b32 s68, s25, 4\ns_lshl_b32 s68, s68, 14\ns_lshl_b32 s20, s21, 12\ns_add_u32 s68, s68, s20\ns_and_b32 s20, s22, 3\ns_lshl_b32 s20, s20, 10\ns_add_u32 s68, s68, s20\ns_add_u32 s68, s68, {FE}")
a(f"s_lshl_b32 s69, s25, 16\ns_lshl_b32 s21, s21, 13\ns_add_u32 s69, s69, s21\ns_add_u32 s69, s69, s20\ns_add_u32 s69, s69, {WFR}\ns_add_u32 s74, s69, 4096")
a(f"v_and_b32 v{IX+8}, 7, v0\nv_lshlrev_b32 v{IX+8}, 7, v{IX+8}")
poll_load(68, IX+10, IX+8)
table_dma(1)
poll_check(68, IX+10, IX+8, 4)
stamp("z1")
a(f"buffer_load_dwordx4 {rg(IX,4)}, v1, s[12:15], s69 offen {SC}\nbuffer_load_dwordx4 {rg(IX+4,4)}, v1, s[12:15], s74 offen {SC}")
a("s_branch P_e")
a("P_g:")
for mt in range(1, 4): table_dma(mt)
a("P_e:")
a("s_load_dwordx2 s[70:71], s[48:49], 0\ns_load_dwordx2 s[72:73], s[50:51], 0")
a(f"v_bfe_u32 v{T+2}, v0, 4, 1\nv_lshlrev_b32 v{T+2}, 1, v{T+2}\nv_bfe_u32 v{T}, v0, 2, 2\nv_mov_b32 v{T+1}, 0x3f80")
a(f"v_cmp_eq_u32 vcc, v{T+2}, v{T}\nv_add_u32 v{T+2}, 1, v{T+2}\ns_nop 0\nv_cndmask_b32 v{SEL}, 0, v{T+1}, vcc\nv_cmp_eq_u32 vcc, v{T+2}, v{T}")
a(f"v_mov_b32 v{SEL+1}, v{SEL}\nv_and_b32 v{T+2}, 3, v0\nv_cndmask_b32 v{SEL+2}, 0, v{T+1}, vcc\nv_mul_u32_u24 v{SIDX}, 0x5555, v{T+2}\nv_mov_b32 v{SEL+3}, v{SEL+2}")
PI = T + 3
def pi_ops(d, t): return [f"v_and_b32 v{d}, 24, v0", f"v_and_b32 v{t}, 3, v0", f"v_lshl_add_u32 v{d}, v{t}, 1, v{d}", f"v_bfe_u32 v{t}, v0, 2, 1", f"v_add_u32 v{d}, v{d}, v{t}"]
for o in pi_ops(PI, T): a(o)
a(f"v_lshrrev_b32 v{T}, 5, v0\nv_bfe_u32 v{T+1}, v{PI}, 1, 3\nv_xor_b32 v{T+1}, v{T+1}, v{T}\nv_lshlrev_b32 v{PI}, 7, v{PI}\nv_lshl_add_u32 v{PI}, v{T+1}, 4, v{PI}\nv_add_u32 v{FR}, s23, v{PI}")
for ks in range(1, 4): a(f"v_xor_b32 v{FR+ks}, {32*ks}, v{FR}")
for ks in range(4): a(f"v_add_u32 v{FR+4+ks}, 0x10000, v{FR+ks}")
a(f"v_add_u32 v{T+8}, s33, v1\nv_add_u32 v{T+9}, {XB}, v1\nv_lshlrev_b32 v{AD}, 3, v0")
a("s_and_b32 s21, s24, 1\ns_xor_b32 s20, s24, 1\ns_lshl_b32 s28, s20, 3\ns_add_u32 s28, s28, s22\ns_mul_i32 s28, s28, 102400\ns_lshl_b32 s27, s21, 14\ns_add_u32 s28, s28, s27")
a(f"s_lshl_b32 s68, s20, 3\ns_add_u32 s68, s68, s22\ns_lshl_b32 s68, s68, 9\ns_add_u32 s68, s68, {FI}\ns_xor_b32 s31, s68, 4096")
a(f"s_lshl_b32 s75, s24, 6\ns_lshl_b32 s27, s22, 3\ns_add_u32 s75, s75, s27\ns_lshl_b32 s75, s75, 6\ns_add_u32 s75, s75, s25\ns_lshl_b32 s75, s75, 8\ns_add_u32 s75, s75, {PART}")
a(f"s_lshr_b32 s29, s25, 4\ns_lshl_b32 s39, s29, 14\ns_lshl_b32 s29, s29, 11\ns_and_b32 s27, s22, 3\ns_lshl_b32 s27, s27, 9\ns_add_u32 s29, s29, s27\ns_add_u32 s29, s29, {FW + 256}")
a(f"s_lshl_b32 s27, s27, 1\ns_add_u32 s39, s39, s27\ns_lshl_b32 s27, s21, 12\ns_add_u32 s39, s39, s27\ns_add_u32 s39, s39, {FE + 8192}")
a(f"s_lshl_b32 s26, s25, 16\ns_lshl_b32 s27, s22, 10\ns_add_u32 s26, s26, s27\ns_lshl_b32 s27, s21, 13\ns_add_u32 s26, s26, s27\ns_add_u32 s26, s26, {WFR + 16384}")
a("s_waitcnt vmcnt(0)")
stamp()
a("s_cmp_lt_u32 s22, 4\ns_cbranch_scc1 P_h")
a(f"ds_write_b128 v{T+8}, {rg(IX,4)} offset:1024\nds_write_b128 v{T+8}, {rg(IX+4,4)} offset:2048")
a("P_h:")
for mt in range(4):
    for ks in range(4):
        a(f"ds_read_b128 {rg(TAB+16*mt+4*ks,4)}, v{FR+4*(mt>>1)+ks} offset:{4096*(mt&1)}")
a(f"v_mov_b32 v{T+10}, 163836\nv_mov_b32 v{T+11}, 0\nds_write_b32 v{T+10}, v{T+11}")
a("s_waitcnt lgkmcnt(0)\ns_barrier")
stamp()
for x in (0, 4, 1, 5, 2, 6, 3, 7):
    a(f"ds_read_b128 {rg(WF+4*x,4)}, v{T+9} offset:{XS*(4 + (x&3)) + 1024 + 1024*(x>>2)}")
poll_load(68, IX, AD)
poll_load(31, IX+2, AD)
a("s_cmp_ge_u32 s35, 800\ns_cbranch_scc1 P_u0")
w1_loads(36)
a("P_u0:")
a("s_and_b32 s21, s24, 1\ns_lshl_b32 s21, s21, 1\ns_sub_u32 s21, s21, 1\ns_mul_i32 s46, s21, 819200\ns_sub_u32 s47, 16384, s46\ns_sub_u32 s46, s46, 16384")
def tg_mfma(mt, ks, e, d):
    c = "0" if ks == 0 else rg(d, 16)
    return f"v_mfma_f32_32x32x16_bf16 {rg(d,16)}, {rg(TAB+16*mt+4*ks,4)}, {rg(WF+16*e+4*ks,4)}, {c}"
def wr_op(r, reg):
    off = r*256 if r < 32 else 57472 + (r-32)*256
    pre = ["s_mov_b32 m0, s30", "s_nop 0"] if r == 32 else []
    return pre + [f"ds_write_addtid_b32 v{reg} offset:{off}"]
a("s_mov_b32 m0, s23")
PD = [(ACC, ACC+16), (ACC+32, ACC+48), (ACC, ACC+16), (POOL+32, WF)]
PO = [POOL, POOL+16, POOL, POOL+32]
IXAT = O("ixat", 3); UPAT = O("upat", 2)
pend = []
for mt in range(4):
    d0, d1 = PD[mt]
    seq = [(ks, e) for ks in range(4) for e in range(2)] if mt < 3 else [(ks, 0) for ks in range(4)] + [(ks, 1) for ks in range(4)]
    if mt == UPAT and UPAT < IXAT:
        a("s_cmp_ge_u32 s35, 800\ns_cbranch_scc1 P_k2\ns_waitcnt vmcnt(0)")
        w1_process(POOL+32, WR_, 37)
        a("P_k2:")
    if mt == IXAT:
        if UPAT < IXAT:
            a("s_waitcnt vmcnt(0)\ns_cmp_ge_u32 s35, 800\ns_cbranch_scc1 P_k4\ns_cmp_lg_u32 s22, 1\ns_cbranch_scc1 P_k3")
            for o in line_flag_ops(38, IX+4): a(o)
            a("s_branch P_k4\nP_k3:")
            flag_store(38, IX+4)
            a("P_k4:\ns_mov_b32 s35, 4096")
            poll_check(68, IX, AD, 1)
            poll_check(31, IX+2, AD, 1)
        else:
            a("s_cmp_lt_u32 s35, 800\ns_cbranch_scc1 P_u2\ns_waitcnt vmcnt(0)\nP_u2:")
            poll_check(68, IX, AD, 8)
            poll_check(31, IX+2, AD, 8)
        stamp("y1")
        a("s_lshl_b32 s68, s70, 16\ns_and_b32 s69, s70, 0xffff0000\ns_lshl_b32 s70, s71, 16\ns_and_b32 s71, s71, 0xffff0000")
        for x in range(4):
            a(f"buffer_load_dwordx4 {rg(IX+4*x,4)}, v1, s[12:15], s28 offen offset:{1024*x} {SC}")
        a("s_add_u32 s28, s28, 4096")
        TCH = O("tch", 0)
        if TCH:
            a(f"v_bfe_u32 v{U+6}, v0, 3, 1\nv_mul_u32_u24 v{VT}, 819200, v{U+6}\nv_lshrrev_b32 v{U+6}, 4, v0\nv_lshl_add_u32 v{VT}, v{U+6}, 15, v{VT}\nv_and_b32 v{U+6}, 7, v0\nv_lshl_add_u32 v{VT}, v{U+6}, 7, v{VT}")
            a("s_and_b32 s20, s24, 2\ns_lshl_b32 s20, s20, 3\ns_add_u32 s20, s20, s22\ns_mul_i32 s20, s20, 102400\ns_and_b32 s21, s24, 1\ns_lshl_b32 s21, s21, 14\ns_add_u32 s20, s20, s21\ns_lshr_b32 s21, s2, 4\ns_lshl_b32 s21, s21, 10\ns_add_u32 s20, s20, s21")
            a(f"s_mov_b32 exec_hi, 0xffff\nbuffer_load_dword v{U+7}, v{VT}, s[12:15], s20 offen {SC}\ns_mov_b64 exec, -1")
        a(f"s_cmp_lg_u32 s22, {FIN}\ns_cbranch_scc1 P_f")
        srd(a, 4, 40, 16384*26)
        a(f"s_mov_b32 m0, {XWL}\ns_mul_i32 s20, s34, 1664\nbuffer_load_dwordx4 v1, s[4:7], s20 offen lds\nbuffer_load_dwordx4 v1, s[4:7], s20 offen offset:1024 lds")
        srd(a, 4, 44, 2)
        a(f"s_mov_b32 m0, {XWL+2048}\nv_mov_b32 v{VT}, 0\nbuffer_load_ushort v{VT}, s[4:7], 0 offen lds")
        srd(a, 4, 52, 2)
        a(f"s_mov_b32 m0, {XWL+2304}\ns_nop 0\nbuffer_load_ushort v{VT}, s[4:7], 0 offen lds")
        srd(a, 4, 42, 26)
        a(f"s_mov_b32 m0, {XWL+2560}\nv_lshlrev_b32 v{VT}, 1, v0\nbuffer_load_ushort v{VT}, s[4:7], 0 offen lds\ns_mov_b32 m0, s23")
        a("P_f:")
    if mt == UPAT and UPAT >= IXAT:
        a("s_cmp_ge_u32 s35, 800\ns_cbranch_scc1 P_k2\ns_waitcnt vmcnt(%d)" % (4 + TCH))
        w1_process(POOL+32, WR_, 37)
        a("P_k2:")
    for n, (ks, e) in enumerate(seq):
        if mt == 0: a(f"s_waitcnt lgkmcnt({7 - n})")
        a(tg_mfma(mt, ks, e, d0 if e == 0 else d1))
        take = (len(pend) + (7 - n)) // (8 - n)
        for o in pend[:take]: a(o)
        pend = pend[take:]
    assert not pend
    body = []
    for r in range(16):
        body.append(f"v_cvt_pk_bf16_f32 v{PO[mt]+r}, v{d0+r}, v{d1+r}")
        if r: body.extend(wr_op(16*mt + r - 1, PO[mt] + r - 1))
    body.extend(wr_op(16*mt + 15, PO[mt] + 15))
    fill = ["s_nop 5", "s_nop 5"]
    if mt == 2: fill = [f"v_mov_b32 v{ACC+32+4*s+c}, s{68+c}" for s in range(8) for c in range(4)]
    if mt == 3: fill = [f"v_mov_b32 v{ACC+x}, 0" for x in range(20, 32)]
    pend = fill + body
    if mt == 2: pend += [f"v_mov_b32 v{ACC+x}, 0" for x in range(20)]
stamp("y2")
for o in pend: a(o)
a(f"s_cmp_lt_u32 s35, 800\ns_cbranch_scc1 P_m7\ns_cmp_eq_u32 s22, {FIN}\ns_cbranch_scc1 P_m7\ns_waitcnt vmcnt({3+TCH})\nP_m7:\ns_waitcnt vmcnt({7+TCH})")
stamp()

PAT = opts.get("pat", "SACMRL")
def pre_ops():
    ops = [f"v_lshlrev_b32_sdwa v{GD + 2*x}, 3, v{IX + x//2} dst_sel:DWORD dst_unused:UNUSED_PAD src0_sel:DWORD src1_sel:WORD_{x&1}" for x in range(8)]
    return ops + [f"buffer_load_dwordx4 {rg(IX,4)}, v1, s[12:15], s28 offen {SC}"]
U0 = O("u0", 36)
BIGQ = [TAB + 28 + 4*q for q in range(9)] + [WF + 4*q for q in range(4)] + [POOL + 28 + 4*q for q in range(5)]
def gather_phase(nunits, mf, cv, extra, acc_of, head, tail=None):
    NB = nunits * 2; last = nunits == 36
    def ixreg(u): return BIGQ[u - U0] if last and u >= U0 else IX + 4*(u & 3)
    log = [("ix", u) for u in range(5)]
    def vm_wait(tag):
        idx = len(log) - 1 - log[::-1].index(tag)
        a(f"s_waitcnt vmcnt({len(log) - 1 - idx})")
    def A(b):
        if b >= NB: return
        u = b // 2
        if b % 2 == 0: vm_wait(("ix", u))
        for x in range(4):
            d = ixreg(u) + 2*(b & 1) + x//2
            a(f"v_lshlrev_b32_sdwa v{GD + (8*b) % 16 + 2*x}, 3, v{d} dst_sel:DWORD dst_unused:UNUSED_PAD src0_sel:DWORD src1_sel:WORD_{x&1}")
    def R(b):
        if b >= NB: return
        for x in range(4):
            q = GD + (8*b) % 16 + 2*x
            a(f"ds_read_b64 {rg(q,2)}, v{q}")
    def L(b):
        u = b // 2
        if b >= NB or b % 2 == 0 or (last and u + 4 >= min(nunits, U0)): return
        if last and u + 4 >= 32:
            for h in range(2):
                a(f"buffer_load_dwordx2 {rg(IX+4*(u&3)+2*h,2)}, v{VT}, s[12:15], s28 offen offset:{1024*(u&3)+512*h} {SC}")
                log.append(("ix", u + 4))
        else:
            a(f"buffer_load_dwordx4 {rg(IX+4*(u&3),4)}, v1, s[12:15], s28 offen offset:{1024*(u&3)} {SC}")
            log.append(("ix", u + 4))
        if u & 3 == 3:
            a("s_add_u32 s28, s28, 4096")
            if u + 4 == 15: a("s_add_u32 s28, s28, s46")
            if u + 4 == 31: a("s_add_u32 s28, s28, s47")
    def emit(ops):
        for o in ops:
            if o == "SYNC": continue
            if isinstance(o, str) and o.startswith("STAMP"):
                stamp(o[6:]); continue
            if isinstance(o, tuple) and o[0] == "WAIT": vm_wait(o[1])
            elif isinstance(o, tuple):
                a(o[0]); log.append(o[1])
            else: a(o)
    sync = sorted(b for b, ops in extra.items() if "s_barrier" in ops or "SYNC" in ops) + [NB - 1]
    pr = {}; lo = 0
    for hi in sync:
        for q in range(4): pr[lo + ((hi + 1 - lo) * q) // 4] = 3 - q
        lo = hi + 1
    head()
    R(0); R(1)
    for b in range(NB):
        if b in pr and b: a(f"s_setprio {pr[b]}")
        nb = b + 2
        for ch in PAT:
            if ch == "S":
                a(f"s_waitcnt lgkmcnt({min(NB, nb) * 4 - 4*(b+1)})")
                if tail and b == NB - 1: tail()
                a(f"v_smfmac_f32_16x16x64_bf16 {rg(ACC+4*acc_of(b),4)}, {rg(SEL,4)}, {rg(GD + (8*b) % 16, 8)}, v{SIDX}")
            elif ch == "A": A(nb)
            elif ch == "R": R(nb)
            elif ch == "M": emit(mf.get(b, []))
            elif ch == "C": emit(cv.get(b, []))
            elif ch == "L": L(nb)
        emit(extra.get(b, []))
    return log, vm_wait
pad(PADPRO)
for o in pre_ops(): a(o)
g_start = len(a.lines)
RAW = POOL
P16, P32 = POOL + 16, POOL + 32
def add(d, b, ops): d.setdefault(b, []).extend(ops)
def cvt(d, x, y): return f"v_cvt_pk_bf16_f32 v{d}, v{x}, v{y}"
def selfpack(d, s): return [cvt(d + q, s + 2*q, s + 2*q + 1) for q in range(8)]
def combine(d):
    ops = []
    for q in range(7, -1, -1):
        ops += [f"v_perm_b32 v{d+2*q+1}, v{d+q}, v{T8+q}, s67", f"v_perm_b32 v{d+2*q}, v{d+q}, v{T8+q}, s66"]
    return ops
def tgen(start, per, nv):
    mf = {}; cv = {}; cur = [start]
    def M(ops):
        for i in range(0, len(ops), per):
            add(mf, cur[0], ops[i:i+per]); cur[0] += 1
    def V(ops, adv=True):
        b = cur[0] + 1
        for i in range(0, len(ops), nv):
            add(cv, b, ops[i:i+nv]); b += 1
        if adv: cur[0] = b - 1
    M([tg_mfma(0, ks, e, (P16, P32)[e]) for ks in range(4) for e in range(2)])
    V([cvt(POOL + r, P16 + r, P32 + r) for r in range(16)])
    M([tg_mfma(1, ks, e, (P16, P32)[e]) for ks in range(4) for e in range(2)])
    V([cvt(P16 + r, P16 + r, P32 + r) for r in range(16)])
    M([tg_mfma(2, ks, 0, P32) for ks in range(4)])
    V(selfpack(T8, P32))
    M([tg_mfma(3, ks, 0, P32) for ks in range(4)])
    V(selfpack(P32, P32), adv=False)
    M([tg_mfma(2, ks, 1, WF) for ks in range(4)])
    V(selfpack(WF, WF) + combine(WF) + [f"v_mov_b32 v{T8+q}, v{P32+q}" for q in range(8)])
    M([tg_mfma(3, ks, 1, P32) for ks in range(4)])
    lastm = cur[0]
    V(selfpack(P32, P32) + combine(P32))
    print("tile generation: last MFMA batch", lastm - 1, "ends at", cur[0])
    assert cur[0] <= 63
    return mf, cv, lastm
SRC = [POOL + r for r in range(32)] + [WF + r for r in range(16)] + [P32 + r for r in range(16)]
NX = WF + 16
def g_tail():
    a("s_barrier"); cyc()
    a("s_setprio 3")
    for r in range(4):
        for o in wr_op(r, SRC[r]): a(o)
PA = O("pa", 50)
def w_phase(tag, vm_wait, pre, wr, early=()):
    po = pre_ops(); fill = list(pre) + ["IXW"] + po[:8]
    for o in early: a(o)
    F0 = O("wf0", 8)
    for r in range(4, 64):
        if r % 16 == 0: a(f"s_setprio {3 - r // 16}")
        if r == 52: a(f"s_cmp_eq_u32 s22, 7\ns_cbranch_scc1 {tag}")
        for o in wr_op(r, SRC[r]): a(o)
        if r >= F0 and fill:
            o = fill.pop(0)
            if o == "IXW": vm_wait(("ix", 32))
            else: a(o)
        if r == PA:
            assert not fill
            a("s_waitcnt vmcnt(0)")
            for o in wr: a(o)
            a(po[8])
    a(f"{tag}:")
def part_off(d, t): return [f"v_lshrrev_b32 v{d}, 3, v0", f"v_lshlrev_b32 v{d}, 14, v{d}", f"v_and_b32 v{t}, 7, v0", f"v_lshl_add_u32 v{d}, v{t}, 4, v{d}"]
def wf_reads(ad): return [f"ds_read_b128 {rg(WF+4*x,4)}, v{ad} offset:{XS*x}" for x in (0, 4, 1, 5, 2, 6, 3, 7)]
PB = O("pb", 9); RB = O("rb", 13); XBAT = O("xb", 20); BB = O("bb", 23)
extra = {}
add(extra, PB, [f"v_min_u32 v{RAW+2}, 7, v0", f"v_lshlrev_b32 v{RAW+2}, 7, v{RAW+2}", (pl_op(39, RAW, RAW+2), ("wfl", 0))])
add(extra, RB, [("WAIT", ("wfl", 0)), f"v_cmp_ne_u64 vcc, s[64:65], {rg(RAW,2)}", "s_cbranch_vccnz W_slow", "W_back:",
                (f"buffer_load_dwordx4 {rg(RAW,4)}, v1, s[12:15], s26 offen {SC}", ("raw", 0)), "s_add_u32 s26, s26, 16384"])
CB0 = O("cb0", 1); C1 = 163836
add(extra, XBAT, [f"v_add_u32 v{RAW+4}, s33, v1", ("WAIT", ("raw", 0)), f"ds_write_b128 v{RAW+4}, {rg(RAW,4)}"])
if CB0:
    add(extra, XBAT, [f"v_mov_b32 v{RAW+6}, {C1}", f"v_mov_b32 v{RAW+7}, 1", "s_mov_b64 exec, 1", f"ds_add_u32 v{RAW+6}, v{RAW+7}", "s_mov_b64 exec, -1", "SYNC"])
    add(extra, BB - 2, [f"ds_read_b32 v{RAW+7}, v{RAW+6}"])
    add(extra, BB, [f"v_add_u32 v{RAW+4}, {XB}, v1", f"v_readfirstlane_b32 s20, v{RAW+7}", "s_cmp_lt_u32 s20, 8", "s_cbranch_scc1 J_slow", "J_back:"] + wf_reads(RAW+4))
else:
    add(extra, BB, [f"v_add_u32 v{RAW+4}, {XB}, v1", "s_barrier"] + wf_reads(RAW+4))
add(extra, BB + 1, [f"v_min_u32 v{T8+2}, 17, v0", f"v_lshlrev_b32 v{T8+2}, 3, v{T8+2}", (pl_op(29, T8, T8+2), ("wf2", 0))])
add(extra, BB + 9, [("WAIT", ("wf2", 0)), f"v_cmp_ne_u64 vcc, s[64:65], {rg(T8,2)}", "s_cbranch_vccnz Z_slow", "Z_back:"])
mf, cv, lastm = tgen(BB + 3, O("per0", 2), O("nv0", 6))
add(extra, max(lastm, 54), [(f"buffer_load_dwordx4 {rg(NX,4)}, v1, s[12:15], s26 offen {SC}", ("nx", 0)), "s_mov_b32 m0, s23"])
def g0_head():
    a("s_setprio 3\ns_waitcnt lgkmcnt(0)\ns_barrier"); cyc()
    a("s_cmp_lt_u32 s35, 800\ns_cbranch_scc1 L_first\nL_G1:")
_, vw = gather_phase(32, mf, cv, extra, lambda b: b // 4, g0_head, g_tail)
w_phase("W_e0", vw, [f"v_add_u32 v{T8+7}, s33, v1", f"v_add_u32 v{T8+6}, {XB}, v1"] + part_off(T8+4, T8+5) + [f"v_mov_b32 v{T8+x}, -1" for x in range(4)] +
        ["s_xor_b32 s27, s34, 64", "s_lshl_b32 s3, s27, 15", "s_lshl_b32 s20, s22, 12", "s_add_u32 s3, s3, s20", f"s_add_u32 s3, s3, {HX}",
         "s_lshl_b32 s38, s27, 11", "s_lshl_b32 s20, s22, 8", "s_add_u32 s38, s38, s20", f"s_add_u32 s38, s38, {FX}", "s_xor_b32 s39, s38, 0x20000", "s_xor_b32 s37, s3, 0x200000"],
        [f"ds_write_b128 v{T8+7}, {rg(NX,4)}"])
a(f"buffer_store_dwordx4 {rg(T8,4)}, v{T8+4}, s[12:15], s75 offen {SC}\nbuffer_store_dwordx4 {rg(T8,4)}, v{T8+4}, s[12:15], s75 offen offset:128 {SC}")
mf, cv, lastm = tgen(O("ts1", 1), O("per1", 1), O("nv1", 4))
extra = {}
add(extra, 2, [f"s_lshl_b32 s26, s25, 16", "s_lshl_b32 s27, s22, 10", "s_add_u32 s26, s26, s27", f"s_add_u32 s26, s26, {WFR + 6*8192}"])
add(extra, max(lastm, 54), [f"v_and_b32 v{NX}, 0x27f, v1", (f"buffer_load_dwordx4 {rg(NX,4)}, v{NX}, s[12:15], s26 offen {SC}", ("nx", 0)), "s_mov_b32 m0, s23"])
def g1_head():
    a("s_setprio 3\ns_waitcnt lgkmcnt(0)\ns_barrier"); cyc()
    stamp("g1")
    for o in wf_reads(T8+6): a(o)
_, vw = gather_phase(32, mf, cv, extra, lambda b: b // 4, g1_head, g_tail)
A0 = T8 + 4; XW = POOL
mid = [f"v_lshrrev_b32 v{T8}, 5, v0", f"v_lshlrev_b32 v{T8}, 7, v{T8}", f"v_and_b32 v{T8+1}, 7, v0", f"v_lshl_add_u32 v{T8}, v{T8+1}, 4, v{T8}",
       "s_lshl_b32 s20, s22, 8", f"s_add_u32 s20, s20, {PADR}", f"v_add_u32 v{T8}, s20, v{T8}",
       f"v_and_b32 v{A0}, 1, v0", f"v_lshlrev_b32 v{A0}, 10, v{A0}", f"v_bfe_u32 v{A0+1}, v0, 1, 1", f"v_lshl_add_u32 v{A0}, v{A0+1}, 4, v{A0}",
       f"v_bfe_u32 v{A0+1}, v0, 3, 1", f"v_lshl_add_u32 v{A0}, v{A0+1}, 5, v{A0}", f"v_bfe_u32 v{A0+1}, v0, 2, 1", f"v_lshl_add_u32 v{A0}, v{A0+1}, 6, v{A0}",
       f"v_lshrrev_b32 v{A0+1}, 5, v0", f"v_lshl_add_u32 v{A0}, v{A0+1}, 7, v{A0}", f"v_add_u32 v{A0}, {PADR}, v{A0}",
       f"v_mov_b32 v{T8+2}, {PADR + 2048}", f"v_mov_b32 v{T8+1}, 0", f"ds_write_b32 v{T8+2}, v{T8+1}",
       "s_and_b32 s27, s24, 1", "s_xor_b32 s27, s27, 1", "s_lshl_b32 s47, s27, 14", f"v_lshlrev_b32 v{VT}, 3, v0"]
F2OPS = ["s_cmp_lg_u32 s22, 0", "s_cbranch_scc1 G_nf2", "s_lshl_b32 s31, s34, 3", f"s_add_u32 s31, s31, {F2}"] + flag_ops(31, T8) + ["G_nf2:"]
w_phase("W_e1", vw, mid, [f"ds_write_b128 v{T8}, {rg(NX,4)}"])
XW = WF + 16
a(f"s_cmp_lg_u32 s22, {FIN}\ns_cbranch_scc1 L_Glast")
a(f"v_and_b32 v{T8}, 7, v0\nv_bfe_u32 v{T8+1}, v0, 3, 1\nv_lshl_add_u32 v{T8}, v{T8+1}, 5, v{T8}\nv_lshrrev_b32 v{T8+1}, 4, v0\nv_lshl_add_u32 v{T8}, v{T8+1}, 3, v{T8}\nv_mul_u32_u24 v{T8}, 26, v{T8}\nv_add_u32 v{T8}, {XWL}, v{T8}\nv_mov_b32 v{T8+1}, {XWL+2048}\nv_lshl_add_u32 v{T8+2}, v0, 2, v{T8+1}")
for k in range(13): a(f"ds_read_u16_d16_hi v{XW+k}, v{T8} offset:{2*k}")
a(f"ds_read_u16_d16_hi v{XW+13}, v{T8+1}\nds_read_u16_d16_hi v{XW+14}, v{T8+1} offset:256\nds_read_u16_d16_hi v{XW+15}, v{T8+2} offset:512")
a("L_Glast:")
HR = TAB + 20
extra = {}; mf = {}; cv = {}
BB = 0
add(extra, 0, F2OPS)
VSP = T8 + 6
add(cv, BB + 1, pi_ops(VSP, VSP+1) + [f"v_lshlrev_b32 v{VSP}, 5, v{VSP}"])
add(cv, BB + 2, [f"v_lshrrev_b32 v{A0}, 5, v0", f"v_bfe_u32 v{VSP+1}, v0, 1, 1", f"v_xor_b32 v{VSP+1}, v{VSP+1}, v{A0}", f"v_lshl_add_u32 v{VSP}, v{VSP+1}, 4, v{VSP}",
                 "s_lshl_b32 s31, s22, 11", "s_add_u32 s31, s31, 131072", f"v_add_u32 v{VSP}, s31, v{VSP}"])
S0 = BB + 3
for mt in range(4):
    d = POOL + 16*(mt % 3)
    for ks in range(4):
        add(mf, S0 + 4*mt + ks, [f"v_mfma_f32_32x32x16_bf16 {rg(d,16)}, {rg(WF+4*ks,4)}, {rg(TAB+16*mt+4*ks,4)}, {'0' if ks == 0 else rg(d,16)}"])
    add(cv, S0 + 4*mt + 5, [cvt(d + x, d + 2*x, d + 2*x + 1) for x in range(4)])
    add(extra, S0 + 4*mt + 5, [f"ds_write_b128 v{VSP}, {rg(d,4)} offset:{(32*(mt & 1) + 512*(mt >> 1)) * 32}"])
if O("nosp", 0): mf = {}; extra = {k: [o for o in v if "ds_write_b128" not in str(o)] for k, v in extra.items()}
CB = O("cb", 0)
C2 = PADR + 2048
if CB:
    add(extra, S0 + 17, [f"v_mov_b32 v{A0}, {C2}", f"v_mov_b32 v{A0+1}, 1", "s_mov_b64 exec, 1", f"ds_add_u32 v{A0}, v{A0+1}", "s_mov_b64 exec, -1"])
    add(extra, 57, [f"ds_read_b32 v{A0+1}, v{A0}"])
    add(extra, 60, [f"v_readfirstlane_b32 s20, v{A0+1}", "s_cmp_lt_u32 s20, 8", "s_cbranch_scc1 K_slow", "K_back:"])
elif not O("nomb", 0): add(extra, O("mbat", 58), ["s_barrier"])
for t in range(4):
    b = 8*t + 9; s = ACC + 8*t
    add(cv, b, [cvt(s + x, s + 2*x, s + 2*x + 1) for x in range(4)])
    add(extra, b, [(f"buffer_store_dwordx4 {rg(s,4)}, v1, s[12:15], s3 offen offset:{1024*t} {SC}" if not O("nohs", 0) else f"buffer_load_dword v{HR+8}, v1, s[60:63], 0 offen", ("hs", t))])
def hl_op(t): return f"buffer_load_dwordx4 {rg(ACC+8*t+4,4)}, v1, s[12:15], s37 offen offset:{1024*t} {SC}"
NA = O("na", 2)
FA, PA_, CA, SA = O("fa", 8*NA + 7), O("pa1", 40), O("ca", 45), O("sa", 4)
FB, PB_, CB_ = O("fb", 39), O("pb1", 56), O("cb1", 61)
add(extra, FA, [("WAIT", ("hs", NA - 1)) if not O("hstrict", 1) else "s_waitcnt vmcnt(0)"] + line_flag_ops(38, HR + 4, ("fl", 0)) + ["s_add_u32 s38, s38, 128"])
if NA < 4: add(extra, FB, [("WAIT", ("hs", 3)) if not O("hstrict", 1) else "s_waitcnt vmcnt(0)"] + line_flag_ops(38, HR + 4, ("fl", 1)))
add(extra, PA_, [f"v_mov_b32 v{HR+2}, 0", (pl_op(39, HR, HR+2), ("hp", 0))])
add(extra, CA, [("WAIT", ("hp", 0)), f"v_cmp_ne_u64 vcc, s[64:65], {rg(HR,2)}", "s_cbranch_vccnz H_slow", "H_back:", "s_add_u32 s39, s39, 128"])
for t in range(NA): add(extra, CA + SA*t, [(hl_op(t), ("hl", t))])
if NA < 4: add(extra, PB_, [(pl_op(39, HR, HR+2), ("hp", 1))])
if NA == 4: add(extra, CB_, ["I_back:"])
else: add(extra, CB_, [("WAIT", ("hp", 1)), f"v_cmp_ne_u64 vcc, s[64:65], {rg(HR,2)}", "s_cbranch_vccnz I_slow", "I_back:"] + [(hl_op(t), ("hl", t)) for t in range(NA, 4)])
Y = TAB; K = ACC + 32
def epi(s):
    r = ACC + 8*(s >> 1) + 4 + 2*(s & 1); t = POOL + 24
    w = [("WAIT", ("hl", s >> 1))] if s % 2 == 0 else []
    return w + [f"v_lshlrev_b32 v{t}, 16, v{r}", f"v_and_b32 v{t+1}, s27, v{r}", f"v_lshlrev_b32 v{t+2}, 16, v{r+1}", f"v_and_b32 v{t+3}, s27, v{r+1}",
            f"v_pk_add_f32 {rg(t,2)}, {rg(t,2)}, {rg(K+4*s,2)}", f"v_pk_add_f32 {rg(t+2,2)}, {rg(t+2,2)}, {rg(K+4*s+2,2)}",
            cvt(POOL+2*s, t, t+1), cvt(POOL+2*s+1, t+2, t+3),
            f"v_pk_max_i16 v{POOL+2*s}, v{POOL+2*s}, 0", f"v_pk_max_i16 v{POOL+2*s+1}, v{POOL+2*s+1}, 0",
            f"v_dot2_f32_bf16 v{POOL+16+s}, v{POOL+2*s}, s72, 0", f"v_dot2_f32_bf16 v{POOL+16+s}, v{POOL+2*s+1}, s73, v{POOL+16+s}"]
def epi2(s): return [f"v_min_u32 v{POOL+16+s}, s33, v{POOL+16+s}"]
st0 = f"buffer_store_dwordx4 {rg(POOL+16,4)}, v{Y+14}, s[12:15], s75 offen {SC}"
st1 = f"buffer_store_dwordx4 {rg(POOL+20,4)}, v{Y+14}, s[12:15], s75 offen offset:128 {SC}"
add(extra, 62, ["s_mov_b32 s33, -2", "s_mov_b32 s27, 0xffff0000"])
add(extra, O("f2at", 35), ["s_lshl_b32 s31, s24, 9", f"s_add_u32 s31, s31, {F2}", f"v_lshlrev_b32 v{Y+18}, 3, v0", (pl_op(31, Y+16, Y+18), ("f2", 0))])
add(cv, 58, part_off(Y+14, Y+15) + [f"v_lshlrev_b32 v{Y+12}, 2, v0", f"v_add_u32 v{Y+12}, {PADR}, v{Y+12}"])
add(cv, 59, ["s_lshl_b32 s29, s34, 14", "s_lshl_b32 s20, s22, 11", "s_add_u32 s29, s29, s20", f"s_add_u32 s29, s29, {PART}", "s_lshl_b32 s20, s22, 8", f"v_add_u32 v{Y+13}, s20, v{Y+12}",
             f"v_and_b32 v{Y+10}, 7, v0", f"v_bfe_u32 v{Y+11}, v0, 3, 1", f"v_lshl_add_u32 v{Y+10}, v{Y+11}, 5, v{Y+10}"])
add(cv, 60, [f"v_lshrrev_b32 v{Y+11}, 4, v0", f"v_lshl_add_u32 v{Y+10}, v{Y+11}, 3, v{Y+10}", "s_lshl_b32 s20, s34, 6", f"v_add_u32 v{Y+10}, s20, v{Y+10}", f"v_lshlrev_b32 v{Y+10}, 1, v{Y+10}",
             "s_mov_b32 s8, s54", "s_and_b32 s9, s55, 0xffff", "s_mov_b32 s10, 32768", "s_mov_b32 s11, 0x00020000"])
for s in range(7): add(cv, 65 + s, epi(s) + (epi2(s-1) if s else []))
add(extra, 69, [(st0, ("st", 0))])
add(extra, 36, ["STAMP b33"]); add(extra, 59, ["STAMP b60"])
if CYC == 1:
    add(extra, 61, cyc_ops())
    add(extra, 30, cyc_ops())
if CYC == 2:
    for b in [int(x) for x in opts.get("at", "8,16,24,30,32,38,40,49,51,58,63,65").split(",")]: add(extra, b, cyc_ops())
if U0 < 36:
    B0 = O("b0", S0 + 18); BR = O("br", 1)
    add(extra, B0 - 1, ["s_lshl_b32 s21, s24, 3", "s_add_u32 s21, s21, s22", "s_mul_i32 s21, s21, 102400", "s_add_u32 s36, s21, 98304", "s_and_b32 s20, s24, 1", "s_lshl_b32 s20, s20, 14",
                        "s_add_u32 s21, s21, s20", f"s_add_u32 s21, s21, {65536 + 4096*((U0-16)//4)}"])
    for u in range(U0, 36):
        b = B0 + (u - U0) // BR; q = BIGQ[u - U0]
        if u < 32:
            add(extra, b, [(f"buffer_load_dwordx4 {rg(q,4)}, v1, s[12:15], s21 offen offset:{1024*(u&3)} {SC}", ("ix", u))] + (["s_add_u32 s21, s21, 4096"] if u & 3 == 3 else []))
        else:
            add(extra, b, [(f"buffer_load_dwordx2 {rg(q+2*h,2)}, v{VT}, s[12:15], s36 offen offset:{1024*(u&3)+512*h} {SC}", ("ix", u)) for h in range(2)])
def gl_head():
    a("s_setprio 3\ns_waitcnt lgkmcnt(0)\ns_barrier"); cyc()
    stamp("gl")
    for x in range(4): a(f"ds_read_b128 {rg(WF+4*x,4)}, v{A0} offset:{256*x}")
gather_phase(36, mf, cv, extra, lambda b: b // 4 if b < 64 else b - 56, gl_head)
cyc()
stamp()
for o in epi(7) + epi2(6): a(o)
a("s_nop 1")
for o in epi2(7): a(o)
a(st1)
VW = T8
a(f"s_mov_b32 s20, 0\ns_cmp_lg_u32 s22, {FIN}\ns_cbranch_scc1 R_f2")
for k in range(16): a(f"v_and_b32 v{XW+k}, s27, v{XW+k}")
a("s_nop 0")
for k in range(13): a(f"v_readlane_b32 s{36+k}, v{XW+15}, {k}")
a(f"v_readfirstlane_b32 s74, v{XW+14}\nv_mul_f32 v{VW}, s36, v{XW}")
for k in range(1, 13): a(f"v_fmac_f32 v{VW}, s{36+k}, v{XW+k}")
rnd(VW); a(f"v_add_f32 v{VW}, v{VW}, v{XW+13}"); rnd(VW)
a("R_f2:")
a(f"s_waitcnt vmcnt(0)\nv_cmp_ne_u64 vcc, s[64:65], {rg(Y+16,2)}\ns_cbranch_vccz R_f2ok")
a(f"s_sleep 1\n{pl_op(31, Y+16, Y+18)}\ns_add_u32 s20, s20, 1\ns_cmp_lt_u32 s20, 0x8000\ns_cbranch_scc1 R_f2")
a("R_f2ok:")
a("s_mov_b32 s20, 0")
a("R_poll:")
a(f"buffer_load_dwordx4 {rg(Y,4)}, v1, s[12:15], s29 offen {SC}\nbuffer_load_dwordx4 {rg(Y+4,4)}, v1, s[12:15], s29 offen offset:1024 {SC}")
a("s_add_u32 s20, s20, 1\ns_waitcnt vmcnt(0)")
a(f"v_max3_u32 v{Y+8}, v{Y}, v{Y+1}, v{Y+2}\nv_max3_u32 v{Y+9}, v{Y+3}, v{Y+4}, v{Y+5}\nv_max3_u32 v{Y+8}, v{Y+8}, v{Y+6}, v{Y+7}\nv_max_u32 v{Y+8}, v{Y+8}, v{Y+9}")
a(f"v_cmp_eq_u32 vcc, -1, v{Y+8}\ns_cbranch_vccz R_ok")
if O("rmask", 0): a("s_mov_b64 exec, vcc")
a(f"s_sleep {RSLEEP}\ns_cmp_lt_u32 s20, 0x8000\ns_cbranch_scc1 R_poll")
a("R_ok:")
if O("rmask", 0): a("s_mov_b64 exec, -1")
stamp("y3")
for x in range(4): a(f"v_add_f32 v{Y+x}, v{Y+x}, v{Y+4+x}")
a(f"s_nop 0\nv_permlane32_swap_b32 v{Y}, v{Y+2}\nv_permlane32_swap_b32 v{Y+1}, v{Y+3}\ns_nop 0\nv_add_f32 v{Y}, v{Y}, v{Y+2}\nv_add_f32 v{Y+1}, v{Y+1}, v{Y+3}\ns_nop 1\nv_permlane16_swap_b32 v{Y}, v{Y+1}\ns_nop 0\nv_add_f32 v{Y}, v{Y}, v{Y+1}")
a(f"ds_write_b32 v{Y+13}, v{Y}\ns_waitcnt lgkmcnt(0)\ns_barrier")
a(f"s_cmp_lg_u32 s22, {FIN}\ns_cbranch_scc1 M_fin")
for k in range(8): a(f"ds_read_b32 v{Y+k}, v{Y+12} offset:{256*k}")
a("s_waitcnt lgkmcnt(0)")
a(f"v_add_f32 v{Y}, v{Y}, v{Y+1}\nv_add_f32 v{Y+2}, v{Y+2}, v{Y+3}\nv_add_f32 v{Y+4}, v{Y+4}, v{Y+5}\nv_add_f32 v{Y+6}, v{Y+6}, v{Y+7}\nv_add_f32 v{Y}, v{Y}, v{Y+2}\nv_add_f32 v{Y+4}, v{Y+4}, v{Y+6}\nv_add_f32 v{Y}, v{Y}, v{Y+4}")
rnd(Y); a(f"v_add_f32 v{Y}, s74, v{Y}"); rnd(Y)
a(f"v_add_f32 v{Y}, v{Y}, v{VW}"); rnd(Y)
a(f"v_mul_f32 v{Y}, 0xbfb8aa3b, v{Y}\nv_exp_f32 v{Y}, v{Y}\ns_nop 0\nv_add_f32 v{Y}, 1.0, v{Y}\nv_rcp_f32 v{Y}, v{Y}\ns_nop 0\nv_cvt_pk_bf16_f32 v{Y}, v{Y}, v{Y}")
a(f"buffer_store_short v{Y}, v{Y+10}, s[8:11], 0 offen")
a("M_fin:")
PROBE = O("probe", -1)
if PROBE >= 0:
    a(f"s_cmp_lg_u32 s22, {SW}\ns_cbranch_scc1 M_end\ns_waitcnt vmcnt(0)")
    if O("pwg", -1) >= 0: a(f"s_cmp_lg_u32 s2, {O('pwg', 0)}\ns_cbranch_scc1 M_end")
    stamp()
    a(f"s_waitcnt lgkmcnt(0)\ns_sub_u32 s20, s{76+2*PROBE}, s64\ns_mul_i32 s20, s20, {O('gain', 10)}\ns_add_u32 s20, s20, 4000")
    a("PRB:\ns_memrealtime s[32:33]\ns_waitcnt lgkmcnt(0)\ns_sub_u32 s32, s32, s64\ns_cmp_lt_i32 s32, s20\ns_cbranch_scc1 PRB")
elif STAMP:
    a(f"s_cmp_lg_u32 s22, {SW}\ns_cbranch_scc1 M_end\ns_waitcnt vmcnt(0)")
    stamp()
    a("s_waitcnt lgkmcnt(0)")
    n = nst[0]
    if O("mt", 0):
        for k in range(n - 1, -1, -1): a(f"s_sub_u32 s{76+2*k}, s{76+2*k}, s76\ns_mov_b32 s{77+2*k}, 0")
    if CYC:
        n = 13
        for k in range(1, 12): a(f"s_sub_u32 s{76+2*k}, s{76+2*k}, s{78+2*k}\ns_mov_b32 s{77+2*k}, 0")
        a("s_mov_b32 s76, 0\ns_mov_b32 s77, 0\ns_mov_b32 s100, 0\ns_mov_b32 s101, 0")
    elif PADPRO: a("s_mov_b32 s76, s64\ns_and_b32 s77, s65, 0x7fffffff")
    a(f"s_mul_i32 s31, s2, {8*n}\ns_add_u32 s31, s31, 0x8000000\nv_mov_b32 v2, 0")
    for k in range(n):
        a(f"v_mov_b32 v4, s{76+2*k}\nv_mov_b32 v5, s{77+2*k}\nbuffer_store_dwordx2 v[4:5], v2, s[12:15], s31 offen offset:{8*k}\ns_waitcnt vmcnt(0)")
    print("nstamps", n)
a("M_end:\ns_endpgm")
a("L_first:")
a("s_waitcnt vmcnt(0)\ns_cmp_lg_u32 s22, 1\ns_cbranch_scc1 L_f2")
for o in line_flag_ops(38, WF): a(o)
a("s_branch L_G1\nL_f2:")
flag_store(38, WF)
a("s_branch L_G1")
for tg, sr, t in (("W", 39, RAW), ("Z", 29, T8), ("H", 39, HR), ("I", 39, HR)):
    a(f"{tg}_slow:")
    poll_check(sr, t, t+2)
    a(f"s_branch {tg}_back")
def cnt_slow(tag, ad):
    a(f"{tag}_slow:\ns_mov_b32 s21, 0\n{tag}_l:\nds_read_b32 v{ad+1}, v{ad}\ns_add_u32 s21, s21, 1\ns_waitcnt lgkmcnt(0)\nv_readfirstlane_b32 s20, v{ad+1}")
    a(f"s_cmp_ge_u32 s20, 8\ns_cbranch_scc1 {tag}_back\ns_cmp_lt_u32 s21, 0x100000\ns_cbranch_scc1 {tag}_l\ns_branch {tag}_back")
if CB: cnt_slow("K", A0)
if CB0: cnt_slow("J", RAW+6)
a("C_end:\ns_endpgm")
L = a.lines
errs = hazard.check_all(L[st:], "main")
a.raw(kernel_desc(MAIN, 256, 102, 256))
for e in sorted(set(errs)): print("HAZARD", e)
open(sys.argv[1], "w").write(a.text())
```

```python
import sys, re
from common import *
import hazard
opts = dict(x.split("=") for x in sys.argv[2:])
def O(k, d): return int(opts.get(k, d))
STAMP = O("stamp", 0); SW = O("sw", 7); SC = "sc1"; SLEEP = O("sleep", 1); RSLEEP = O("rsleep", 2)
WS_BYTES = 268435456
WFR = 4 << 20; PART = 8 << 20; FI = 16 << 20; FW = FI + 16384; F2 = FI + 32768; FE = FI + 65536; FX = 17 << 20; HX = 20 << 20
STG = 131072; XWL = STG + 25600; XB = 131072; XS = 3200; PADR = 128000
DOC = """;
; Generated by a script written for this kernel (gen/h2.py)."""
a = Asm()
a.raw(HEADER_COMMENT.rstrip("\n"))
a.raw("; @launch grid=(256,1,1) block=(512,1,1) lds=163840")
a.raw(DOC)
a.raw('.amdgcn_target "amdgcn-amd-amdhsa--gfx950"')
kernel_begin(a, MAIN)
LN = 0; VL16 = 1
TAB = 2; ACC = 66; WF = 130; POOL = 162; T8 = 210; GD = 218; IX = 234; SEL = 250; SIDX = 254; VT = 255
T = ACC; U = T8; WR_ = GD; AD = IX + 12; TD = POOL; FR = POOL + 4
FIN = 7
def rg(b, n): return f"v[{b}:{b+n-1}]"
nst = [0]; lab = [0]
SKIP = set(opts.get("skip", "g1,gl,b33,b60").split(","))
CYC = O("cyc", 0)
def stamp(name="-"):
    if STAMP and name not in SKIP and not (CYC and nst[0] >= 1):
        k = nst[0]; nst[0] += 1
        assert k < 13
        a(f"{'s_memtime' if O('mt', 0) else 's_memrealtime'} s[{76+2*k}:{77+2*k}]")
def cyc_ops(): return [f"s_mov_b32 s{76+2*k}, s{74+2*k}" for k in range(12, 1, -1)] + ["s_memtime s[78:79]", "s_waitcnt lgkmcnt(0)"] if CYC else []
def cyc():
    for o in cyc_ops(): a(o)
def newlab(p):
    lab[0] += 1; return f"{p}{lab[0]}"
def rnd(r): a(f"v_cvt_pk_bf16_f32 v{r}, v{r}, v{r}\nv_lshlrev_b32 v{r}, 16, v{r}")
PADPRO = O("padpro", 0)
def pad(ticks):
    if not ticks: return
    l = newlab("PAD_")
    a(f"{l}:\ns_memrealtime s[32:33]\ns_waitcnt lgkmcnt(0)\ns_sub_u32 s32, s32, s64\ns_cmp_lt_i32 s32, {ticks}\ns_cbranch_scc1 {l}")
st = len(a.lines)
a("s_cmp_ge_u32 s2, 256\ns_cbranch_scc1 M_end")
stamp()
a("s_load_dwordx16 s[36:51], s[0:1], 0\ns_load_dwordx8 s[52:59], s[0:1], 64\ns_memrealtime s[64:65]")
NCP = O("ncp", 8)
a(f"s_getpc_b64 s[32:33]\nC_base:\ns_lshr_b32 s29, s2, 3\ns_mul_i32 s20, s29, {128*NCP}\nv_lshl_add_u32 v{VT}, v0, 7, s20\nv_min_u32 v{VT}, C_end-C_base, v{VT}")
a(f"v_cmp_gt_u32 vcc, {NCP}, v0\ns_and_saveexec_b64 s[20:21], vcc\ns_cbranch_execz C_skip\nglobal_load_dword v{VT}, v{VT}, s[32:33]\nC_skip:\ns_mov_b64 exec, -1")
a(f"v_lshrrev_b32 v{T}, 6, v0\nv_and_b32 v0, 63, v0\nv_lshlrev_b32 v1, 4, v0\nv_readfirstlane_b32 s22, v{T}")
if O("map", 1) == 0:
    a("s_and_b32 s20, s2, 7\ns_lshr_b32 s24, s20, 1\ns_and_b32 s20, s20, 1\ns_lshl_b32 s20, s20, 5\ns_add_u32 s25, s20, s29")
else:
    a("s_bfe_u32 s24, s2, 0x10002\ns_lshl_b32 s24, s24, 1\ns_and_b32 s20, s29, 1\ns_add_u32 s24, s24, s20\ns_and_b32 s20, s2, 3\ns_lshl_b32 s20, s20, 4\ns_lshr_b32 s25, s29, 1\ns_add_u32 s25, s25, s20")
a("s_lshl_b32 s34, s24, 6\ns_add_u32 s34, s34, s25")
a("s_lshl_b32 s35, s22, 8\ns_add_u32 s35, s35, s34")
a(f"v_lshrrev_b32 v{U}, 4, v0\nv_and_b32 v{U+1}, 15, v0\nv_lshlrev_b32 v{U+2}, 15, v{U}\nv_lshl_add_u32 v{U+2}, v{U+1}, 3, v{U+2}\nv_mov_b32 v{U+5}, 0")
a("s_lshr_b32 s20, s35, 5\ns_lshl_b32 s20, s20, 17\ns_bfe_u32 s21, s35, 0x30002\ns_lshl_b32 s21, s21, 12\ns_add_u32 s20, s20, s21\ns_and_b32 s21, s35, 3\ns_lshl_b32 s21, s21, 7\ns_add_u32 s31, s20, s21")
a(f"s_mul_i32 s20, s34, 25600\ns_mul_i32 s21, s22, 3200\ns_add_u32 s20, s20, s21\ns_add_u32 s33, s21, {STG}\ns_mov_b32 m0, s33")
a("s_lshl_b32 s23, s22, 13\ns_add_u32 s30, s23, 8064")
a("s_mov_b32 s18, 3276800\ns_mov_b32 s19, 0x00020000\ns_mov_b32 s6, 6553600\ns_mov_b32 s7, 0x00020000")
a("s_waitcnt lgkmcnt(0)")
stamp()
a("s_mov_b32 s16, s46\ns_and_b32 s17, s47, 0xffff\ns_mov_b32 s4, s36\ns_and_b32 s5, s37, 0xffff")
srd(a, 60, 56, 256)
srd(a, 12, 58, WS_BYTES)
a("s_cmp_lg_u32 s22, 6\ns_cbranch_scc1 P_n0\ns_cmp_ge_u32 s2, 8\ns_cbranch_scc1 P_n0")
a(f"v_mov_b32 v{T+4}, s64\nv_mov_b32 v{T+5}, s65\nv_mov_b32 v{T+6}, 0\nv_mov_b32 v{T+7}, 0\nv_or_b32 v{T+5}, 0x80000000, v{T+5}\ns_mov_b64 exec, 1")
a(f"buffer_atomic_cmpswap_x2 {rg(T+4,4)}, v{T+6}, s[60:63], 0 offen {SC}\ns_mov_b64 exec, -1\ns_nop 1")
a("P_n0:")
def w1_loads(sreg=31):
    for j8 in range(8):
        a(f"buffer_load_dwordx2 {rg(WR_+2*j8,2)}, v{U+2}, s[16:19], s{sreg} offen offset:{512*j8}")
a("s_cmp_lg_u32 s22, 0\ns_cbranch_scc1 P_now1")
w1_loads()
a("P_now1:")
for r in range(3):
    a(f"buffer_load_dwordx4 v1, s[4:7], s20 offen offset:{1024*r} lds")
a("s_mov_b64 exec, 0xff\nbuffer_load_dwordx4 v1, s[4:7], s20 offen offset:3072 lds\ns_mov_b64 exec, -1")
srd(a, 8, 38, 128000)
a("s_mov_b32 s66, 0x05040100\ns_mov_b32 s67, 0x07060302")
a("s_barrier")
a("s_cmp_lg_u32 s22, 5\ns_cbranch_scc1 P_n5\ns_load_dword s74, s[56:57], 192\nP_n5:")
a("s_cmp_lt_u32 s22, 4\ns_cbranch_scc1 P_lo\ns_cmp_lg_u32 s22, 4\ns_cbranch_scc1 P_skip")
a(f"v_and_b32 v{VT}, 31, v0\nv_lshlrev_b32 v{VT}, 7, v{VT}\ns_lshl_b32 s21, s29, 12\nbuffer_load_dword v{VT}, v{VT}, s[8:11], s21 offen\ns_branch P_skip")
def nonce_load(): a("s_load_dwordx2 s[64:65], s[56:57], 0")
def nonce_get():
    l = newlab("N_")
    a(f"s_waitcnt lgkmcnt(0)\ns_cmp_lt_i32 s65, 0\ns_cbranch_scc1 {l}ok\ns_mov_b32 s20, 0\nv_mov_b32 v{AD}, 0")
    a(f"{l}:")
    a(f"buffer_load_dwordx2 {rg(AD+2,2)}, v{AD}, s[60:63], 0 offen {SC}\ns_add_u32 s20, s20, 1\ns_waitcnt vmcnt(0)")
    a(f"v_readfirstlane_b32 s64, v{AD+2}\nv_readfirstlane_b32 s65, v{AD+3}\ns_cmp_lt_i32 s65, 0\ns_cbranch_scc1 {l}ok")
    a(f"s_sleep 1\ns_cmp_lt_u32 s20, 0x8000\ns_cbranch_scc1 {l}")
    a(f"{l}ok:")
def flag_ops(sreg, t):
    return [f"v_mov_b32 v{t+2}, 0", f"v_mov_b32 v{t}, s64", f"v_mov_b32 v{t+1}, s65", "s_mov_b64 exec, 1",
            f"buffer_store_dwordx2 {rg(t,2)}, v{t+2}, s[12:15], s{sreg} offen {SC}", "s_mov_b64 exec, -1"]
def line_flag_ops(sreg, t, tag=None):
    st_ = f"buffer_store_dwordx4 {rg(t,4)}, v1, s[12:15], s{sreg} offen {SC}"
    return [f"v_mov_b32 v{t}, s64", f"v_mov_b32 v{t+1}, s65", f"v_mov_b32 v{t+2}, s64", f"v_mov_b32 v{t+3}, s65", "s_mov_b64 exec, 0xff",
            (st_, tag) if tag else st_, "s_mov_b64 exec, -1"]
def flag_store(sreg, t=AD):
    for o in flag_ops(sreg, t): a(o)
def w1_process(PR, RB, sreg):
    for c in range(4):
        for d in range(4):
            a(f"v_perm_b32 v{PR+4*c+d}, v{WR_+2*(2*d+1)+(c>>1)}, v{WR_+2*(2*d)+(c>>1)}, s{66+(c&1)}")
    for c in range(4):
        a(f"ds_write_b128 v{U+3}, {rg(PR+4*c,4)} offset:{(c&1)*128 + (c>>1)*16}")
    a("s_waitcnt lgkmcnt(0)")
    for r in range(4):
        a(f"ds_read_b128 {rg(RB+4*r,4)}, v{U+4} offset:{r*4*272}")
    for r in range(4):
        a(f"s_waitcnt lgkmcnt({3-r})\nbuffer_store_dwordx4 {rg(RB+4*r,4)}, v{U+5}, s[12:15], s{sreg} offen {SC}\ns_add_u32 s{sreg}, s{sreg}, {4*65536}")
a("P_lo:")
a("s_cmp_ge_u32 s35, 800\ns_cbranch_scc1 P_skip")
a("s_add_u32 s21, s23, 0x10000")
a(f"v_mul_u32_u24 v{U+3}, 272, v{U+1}\nv_lshl_add_u32 v{U+3}, v{U}, 5, v{U+3}\nv_add_u32 v{U+3}, s21, v{U+3}")
a(f"v_mul_u32_u24 v{U+4}, 272, v{U}\nv_lshl_add_u32 v{U+4}, v{U+1}, 4, v{U+4}\nv_add_u32 v{U+4}, s21, v{U+4}")
a(f"v_lshlrev_b32 v{U+5}, 16, v{U}\nv_bfe_u32 v{U+6}, v0, 3, 1\nv_lshl_add_u32 v{U+5}, v{U+6}, 12, v{U+5}\nv_and_b32 v{U+6}, 7, v0\nv_lshl_add_u32 v{U+5}, v{U+6}, 4, v{U+5}")
a("s_and_b32 s26, s35, 3\ns_lshl_b32 s26, s26, 20\ns_lshr_b32 s21, s35, 7\ns_lshl_b32 s21, s21, 13\ns_add_u32 s26, s26, s21\ns_bfe_u32 s21, s35, 0x30002\ns_lshl_b32 s21, s21, 9\ns_add_u32 s26, s26, s21")
a(f"s_bfe_u32 s21, s35, 0x20005\ns_lshl_b32 s21, s21, 7\ns_add_u32 s26, s26, s21\ns_add_u32 s26, s26, {WFR}")
a(f"s_and_b32 s75, s35, 3\ns_lshl_b32 s75, s75, 11\ns_bfe_u32 s21, s35, 0x20003\ns_lshl_b32 s21, s21, 9\ns_add_u32 s75, s75, s21\ns_lshr_b32 s21, s35, 5\ns_lshl_b32 s21, s21, 4\ns_add_u32 s75, s75, s21\ns_bfe_u32 s21, s35, 0x10002\ns_lshl_b32 s21, s21, 3\ns_add_u32 s75, s75, s21\ns_add_u32 s75, s75, {FW}")
a("s_cmp_ge_u32 s22, 2\ns_cbranch_scc1 P_skip")
a("s_and_b32 s75, s35, 3\ns_lshl_b32 s75, s75, 14\ns_lshr_b32 s21, s35, 7\ns_lshl_b32 s21, s21, 12\ns_add_u32 s75, s75, s21\ns_bfe_u32 s21, s35, 0x20003\ns_lshl_b32 s21, s21, 10\ns_add_u32 s75, s75, s21")
a(f"s_bfe_u32 s21, s35, 0x20005\ns_lshl_b32 s21, s21, 8\ns_add_u32 s75, s75, s21\ns_bfe_u32 s21, s35, 0x10002\ns_lshl_b32 s21, s21, 7\ns_add_u32 s75, s75, s21\ns_add_u32 s75, s75, {FE}")
EPRE = O("epre", 0)
if EPRE:
    for x in range(4): a(f"v_mov_b32 v{AD+x}, 0")
    if EPRE == 1: a("s_cmp_eq_u32 s22, 0\ns_cbranch_scc1 P_e0")
    a(f"s_mov_b64 exec, 0xff\nbuffer_store_dwordx4 {rg(AD,4)}, v1, s[12:15], s75 offen {SC}\ns_mov_b64 exec, -1")
a("s_cmp_lg_u32 s22, 0\ns_cbranch_scc1 P_skip\nP_e0:")
a(f"s_waitcnt vmcnt({5 if EPRE == 2 else 4})")
w1_process(WF, WF+16, 26)
nonce_load()
a("P_skip:")
a(f"v_and_b32 v{T+4}, 7, v0\nv_lshrrev_b32 v{T+5}, 3, v0")
a(f"s_and_b32 s20, s34, 1\ns_lshl_b32 s20, s20, 3\nv_add_u32 v{T+6}, s20, v{T+4}")
a(f"v_mul_u32_u24 v{T+7}, 400, v{T+4}\nv_add_u32 v{T+7}, s33, v{T+7}")
a(f"v_and_b32 v{T+8}, 1, v{T+5}\nv_lshrrev_b32 v{T+9}, 1, v{T+5}")
a(f"v_lshlrev_b32 v{T+10}, 3, v{T+8}\nv_xor_b32 v{T+10}, v{T+10}, v{T+6}")
a(f"v_lshl_add_u32 v{T+11}, v{T+9}, 6, v{T+7}")
a(f"v_lshlrev_b32 v{T+9}, 14, v{T+9}\nv_lshl_add_u32 v{T+9}, v{T+8}, 10, v{T+9}\nv_lshl_add_u32 v{T+9}, v{T+4}, 4, v{T+9}")
SL, LA_, RD, PK, SS = T+12, T+20, T+28, T+44, T+52
for u in range(8):
    a(f"v_xor_b32 v{SL+u}, {u}, v{T+10}")
    a(f"v_lshl_add_u32 v{LA_+u}, v{SL+u}, 2, v{T+11}")
a(f"v_and_b32 v{T+10}, 3, v{T+4}")
for u in range(4):
    a(f"v_xor_b32 v{SS+u}, {u}, v{T+10}\nv_lshl_add_u32 v{SS+4+u}, v{SS+u}, 2, v{T+7}\nv_add_u32 v{SS+u}, 16384, v{SS+u}")
a("s_lshr_b32 s27, s34, 3\ns_mul_i32 s27, s27, 102400\ns_lshl_b32 s20, s22, 11\ns_add_u32 s28, s27, s20\ns_and_b32 s21, s34, 7\ns_lshl_b32 s20, s21, 7\ns_add_u32 s28, s28, s20")
a(f"s_lshl_b32 s20, s22, 9\ns_add_u32 s27, s27, s20\ns_lshl_b32 s20, s21, 6\ns_add_u32 s27, s27, s20\ns_add_u32 s27, s27, 98304\nv_lshlrev_b32 v{T+8}, 3, v{T+4}")
a(f"v_xor_b32 v{TD+1}, v{T+4}, v{U}\nv_lshlrev_b32 v{TD}, 7, v{T+5}\nv_lshl_add_u32 v{TD}, v{TD+1}, 4, v{TD}\nv_xor_b32 v{TD+1}, 64, v{TD}")
def table_dma(mt, s=27):
    a(f"s_add_u32 s{s}, s23, {4096*(mt & 1) + 65536*(mt >> 1)}\ns_mov_b32 m0, s{s}\ns_nop 0")
    for x in range(4): a(f"buffer_load_dwordx4 v{TD+(x&1)}, s[8:11], s{s} offen offset:{1024*x} lds")
a("s_cmp_lt_u32 s22, 4\ns_cbranch_scc1 P_np")
table_dma(2, 21); table_dma(3, 21)
a("s_waitcnt vmcnt(8)\ns_branch P_c9")
a("P_np:")
a("s_cmp_lg_u32 s22, 0\ns_cbranch_scc1 P_c0")
nonce_get()
a(f"v_mov_b32 v{AD}, s64\nv_mov_b32 v{AD+1}, s65\nv_mov_b32 v{AD+2}, s64\nv_mov_b32 v{AD+3}, s65\ns_mov_b64 exec, 0xff\ns_waitcnt vmcnt(0)")
a(f"buffer_store_dwordx4 {rg(AD,4)}, v1, s[12:15], s75 offen {SC}\ns_mov_b64 exec, -1")
a("s_mov_b32 s35, 4097\ns_branch P_c9\nP_c0:\ns_waitcnt vmcnt(0)\nP_c9:")
stamp()
for u in range(8): a(f"ds_read_b32 v{RD+u}, v{LA_+u}")
for u in range(8): a(f"ds_read_b32 v{RD+8+u}, v{LA_+u} offset:256")
for u in range(4): a(f"ds_read_b32 v{SS+8+u}, v{SS+4+u} offset:384")
def conv(k):
    for u in range(8):
        a(f"v_lshl_add_u32 v{RD+8*k+u}, v{RD+8*k+u}, 4, v{SL+u}")
    for d in range(4):
        a(f"v_lshl_or_b32 v{PK+4*k+d}, v{RD+8*k+2*d+1}, 16, v{RD+8*k+2*d}")
a("s_waitcnt lgkmcnt(12)")
conv(0)
a(f"buffer_store_dwordx4 {rg(PK,4)}, v{T+9}, s[12:15], s28 offen {SC}")
a("s_waitcnt lgkmcnt(0)")
nonce_load()
conv(1)
for u in range(4): a(f"v_lshrrev_b32 v{SS+4+u}, 1, v{SS+8+u}\nv_lshl_add_u32 v{SS+8+u}, v{SS+8+u}, 2, v{SS+u}\nv_and_b32 v{SS+4+u}, 2, v{SS+4+u}\nv_xor_b32 v{SS+8+u}, v{SS+8+u}, v{SS+4+u}")
a(f"v_lshl_or_b32 v{SS+4}, v{SS+9}, 16, v{SS+8}\nv_lshl_or_b32 v{SS+5}, v{SS+11}, 16, v{SS+10}")
a(f"s_add_u32 s28, s28, 65536\ns_mov_b32 exec_hi, 0\nbuffer_store_dwordx4 {rg(PK+4,4)}, v{T+9}, s[12:15], s28 offen {SC}")
a(f"s_mov_b64 exec, 0xff\nbuffer_store_dwordx2 {rg(SS+4,2)}, v{T+8}, s[12:15], s27 offen {SC}\ns_mov_b64 exec, -1")
a("s_mov_b32 s36, s31\ns_mov_b32 s37, s26\ns_mov_b32 s38, s75")
table_dma(0)
a("s_lshl_b32 s20, s25, 3\ns_add_u32 s48, s48, s20\ns_addc_u32 s49, s49, 0\ns_add_u32 s50, s50, s20\ns_addc_u32 s51, s51, 0")
nonce_get()
a(f"s_lshr_b32 s31, s34, 3\ns_lshl_b32 s31, s31, 9\ns_and_b32 s20, s34, 7\ns_lshl_b32 s20, s20, 6\ns_add_u32 s31, s31, s20\ns_lshl_b32 s20, s22, 3\ns_add_u32 s31, s31, s20\ns_add_u32 s31, s31, {FI}")
a("s_waitcnt vmcnt(0)")
stamp()
flag_store(31)
a("s_lshr_b32 s20, s22, 2\ns_add_u32 s20, s20, 1\ns_lshl_b32 s20, s20, 8\ns_add_u32 s20, s20, s34")
a("s_lshr_b32 s21, s20, 5\ns_lshl_b32 s21, s21, 17\ns_bfe_u32 s39, s20, 0x30002\ns_lshl_b32 s39, s39, 12\ns_add_u32 s21, s21, s39\ns_and_b32 s39, s20, 3\ns_lshl_b32 s39, s39, 7\ns_add_u32 s21, s21, s39")
a("s_and_b32 s39, s22, 3\ns_lshl_b32 s39, s39, 10\ns_add_u32 s21, s21, s39\ns_add_u32 s46, s46, s21\ns_addc_u32 s47, s47, 0")
for f4 in range(4):
    for r in range(2): a(f"s_load_dword s3, s[46:47], {f4*32768 + r*512}")
def pl_op(sreg, tmp, addr): return f"buffer_load_dwordx2 {rg(tmp,2)}, v{addr}, s[12:15], s{sreg} offen {SC}"
def poll_load(sreg, tmp, addr): a(pl_op(sreg, tmp, addr))
def poll_check(sreg, tmp, addr, first_wait=0, slp=None):
    l = newlab("Q_")
    a(f"s_mov_b32 s20, 0\ns_waitcnt vmcnt({first_wait})")
    a(f"{l}:")
    a(f"v_cmp_ne_u64 vcc, s[64:65], {rg(tmp,2)}\ns_cbranch_vccz {l}ok")
    a(f"s_sleep {SLEEP if slp is None else slp}")
    poll_load(sreg, tmp, addr)
    a(f"s_add_u32 s20, s20, 1\ns_waitcnt vmcnt(0)\ns_cmp_lt_u32 s20, 0x8000\ns_cbranch_scc1 {l}")
    a(f"{l}ok:")
a("s_cmp_lt_u32 s22, 4\ns_cbranch_scc1 P_g")
a(f"s_and_b32 s21, s24, 1\ns_lshr_b32 s68, s25, 4\ns_lshl_b32 s68, s68, 14\ns_lshl_b32 s20, s21, 12\ns_add_u32 s68, s68, s20\ns_and_b32 s20, s22, 3\ns_lshl_b32 s20, s20, 10\ns_add_u32 s68, s68, s20\ns_add_u32 s68, s68, {FE}")
a(f"s_lshl_b32 s69, s25, 16\ns_lshl_b32 s21, s21, 13\ns_add_u32 s69, s69, s21\ns_add_u32 s69, s69, s20\ns_add_u32 s69, s69, {WFR}\ns_add_u32 s74, s69, 4096")
a(f"v_and_b32 v{IX+8}, 7, v0\nv_lshlrev_b32 v{IX+8}, 7, v{IX+8}")
poll_load(68, IX+10, IX+8)
table_dma(1)
poll_check(68, IX+10, IX+8, 4)
stamp("z1")
a(f"buffer_load_dwordx4 {rg(IX,4)}, v1, s[12:15], s69 offen {SC}\nbuffer_load_dwordx4 {rg(IX+4,4)}, v1, s[12:15], s74 offen {SC}")
a("s_branch P_e")
a("P_g:")
for mt in range(1, 4): table_dma(mt)
a("P_e:")
a("s_load_dwordx2 s[70:71], s[48:49], 0\ns_load_dwordx2 s[72:73], s[50:51], 0")
a(f"v_bfe_u32 v{T+2}, v0, 4, 1\nv_lshlrev_b32 v{T+2}, 1, v{T+2}\nv_bfe_u32 v{T}, v0, 2, 2\nv_mov_b32 v{T+1}, 0x3f80")
a(f"v_cmp_eq_u32 vcc, v{T+2}, v{T}\nv_add_u32 v{T+2}, 1, v{T+2}\ns_nop 0\nv_cndmask_b32 v{SEL}, 0, v{T+1}, vcc\nv_cmp_eq_u32 vcc, v{T+2}, v{T}")
a(f"v_mov_b32 v{SEL+1}, v{SEL}\nv_and_b32 v{T+2}, 3, v0\nv_cndmask_b32 v{SEL+2}, 0, v{T+1}, vcc\nv_mul_u32_u24 v{SIDX}, 0x5555, v{T+2}\nv_mov_b32 v{SEL+3}, v{SEL+2}")
PI = T + 3
def pi_ops(d, t): return [f"v_and_b32 v{d}, 24, v0", f"v_and_b32 v{t}, 3, v0", f"v_lshl_add_u32 v{d}, v{t}, 1, v{d}", f"v_bfe_u32 v{t}, v0, 2, 1", f"v_add_u32 v{d}, v{d}, v{t}"]
for o in pi_ops(PI, T): a(o)
a(f"v_lshrrev_b32 v{T}, 5, v0\nv_bfe_u32 v{T+1}, v{PI}, 1, 3\nv_xor_b32 v{T+1}, v{T+1}, v{T}\nv_lshlrev_b32 v{PI}, 7, v{PI}\nv_lshl_add_u32 v{PI}, v{T+1}, 4, v{PI}\nv_add_u32 v{FR}, s23, v{PI}")
for ks in range(1, 4): a(f"v_xor_b32 v{FR+ks}, {32*ks}, v{FR}")
for ks in range(4): a(f"v_add_u32 v{FR+4+ks}, 0x10000, v{FR+ks}")
a(f"v_add_u32 v{T+8}, s33, v1\nv_add_u32 v{T+9}, {XB}, v1\nv_lshlrev_b32 v{AD}, 3, v0")
a("s_and_b32 s21, s24, 1\ns_xor_b32 s20, s24, 1\ns_lshl_b32 s28, s20, 3\ns_add_u32 s28, s28, s22\ns_mul_i32 s28, s28, 102400\ns_lshl_b32 s27, s21, 14\ns_add_u32 s28, s28, s27")
a(f"s_lshl_b32 s68, s20, 3\ns_add_u32 s68, s68, s22\ns_lshl_b32 s68, s68, 9\ns_add_u32 s68, s68, {FI}\ns_xor_b32 s31, s68, 4096")
a(f"s_lshl_b32 s75, s24, 6\ns_lshl_b32 s27, s22, 3\ns_add_u32 s75, s75, s27\ns_lshl_b32 s75, s75, 6\ns_add_u32 s75, s75, s25\ns_lshl_b32 s75, s75, 8\ns_add_u32 s75, s75, {PART}")
a(f"s_lshr_b32 s29, s25, 4\ns_lshl_b32 s39, s29, 14\ns_lshl_b32 s29, s29, 11\ns_and_b32 s27, s22, 3\ns_lshl_b32 s27, s27, 9\ns_add_u32 s29, s29, s27\ns_add_u32 s29, s29, {FW + 256}")
a(f"s_lshl_b32 s27, s27, 1\ns_add_u32 s39, s39, s27\ns_lshl_b32 s27, s21, 12\ns_add_u32 s39, s39, s27\ns_add_u32 s39, s39, {FE + 8192}")
a(f"s_lshl_b32 s26, s25, 16\ns_lshl_b32 s27, s22, 10\ns_add_u32 s26, s26, s27\ns_lshl_b32 s27, s21, 13\ns_add_u32 s26, s26, s27\ns_add_u32 s26, s26, {WFR + 16384}")
a("s_waitcnt vmcnt(0)")
stamp()
a("s_cmp_lt_u32 s22, 4\ns_cbranch_scc1 P_h")
a(f"ds_write_b128 v{T+8}, {rg(IX,4)} offset:1024\nds_write_b128 v{T+8}, {rg(IX+4,4)} offset:2048")
a("P_h:")
for mt in range(4):
    for ks in range(4):
        a(f"ds_read_b128 {rg(TAB+16*mt+4*ks,4)}, v{FR+4*(mt>>1)+ks} offset:{4096*(mt&1)}")
a(f"v_mov_b32 v{T+10}, 163836\nv_mov_b32 v{T+11}, 0\nds_write_b32 v{T+10}, v{T+11}")
a("s_waitcnt lgkmcnt(0)\ns_barrier")
stamp()
for x in (0, 4, 1, 5, 2, 6, 3, 7):
    a(f"ds_read_b128 {rg(WF+4*x,4)}, v{T+9} offset:{XS*(4 + (x&3)) + 1024 + 1024*(x>>2)}")
poll_load(68, IX, AD)
poll_load(31, IX+2, AD)
a("s_cmp_ge_u32 s35, 800\ns_cbranch_scc1 P_u0")
w1_loads(36)
a("P_u0:")
a("s_and_b32 s21, s24, 1\ns_lshl_b32 s21, s21, 1\ns_sub_u32 s21, s21, 1\ns_mul_i32 s46, s21, 819200\ns_sub_u32 s47, 16384, s46\ns_sub_u32 s46, s46, 16384")
def tg_mfma(mt, ks, e, d):
    c = "0" if ks == 0 else rg(d, 16)
    return f"v_mfma_f32_32x32x16_bf16 {rg(d,16)}, {rg(TAB+16*mt+4*ks,4)}, {rg(WF+16*e+4*ks,4)}, {c}"
def wr_op(r, reg):
    off = r*256 if r < 32 else 57472 + (r-32)*256
    pre = ["s_mov_b32 m0, s30", "s_nop 0"] if r == 32 else []
    return pre + [f"ds_write_addtid_b32 v{reg} offset:{off}"]
a("s_mov_b32 m0, s23")
PD = [(ACC, ACC+16), (ACC+32, ACC+48), (ACC, ACC+16), (POOL+32, WF)]
PO = [POOL, POOL+16, POOL, POOL+32]
IXAT = O("ixat", 3); UPAT = O("upat", 2)
pend = []
for mt in range(4):
    d0, d1 = PD[mt]
    seq = [(ks, e) for ks in range(4) for e in range(2)] if mt < 3 else [(ks, 0) for ks in range(4)] + [(ks, 1) for ks in range(4)]
    if mt == UPAT and UPAT < IXAT:
        a("s_cmp_ge_u32 s35, 800\ns_cbranch_scc1 P_k2\ns_waitcnt vmcnt(0)")
        w1_process(POOL+32, WR_, 37)
        a("P_k2:")
    if mt == IXAT:
        if UPAT < IXAT:
            a("s_waitcnt vmcnt(0)\ns_cmp_ge_u32 s35, 800\ns_cbranch_scc1 P_k4\ns_cmp_lg_u32 s22, 1\ns_cbranch_scc1 P_k3")
            for o in line_flag_ops(38, IX+4): a(o)
            a("s_branch P_k4\nP_k3:")
            flag_store(38, IX+4)
            a("P_k4:\ns_mov_b32 s35, 4096")
            poll_check(68, IX, AD, 1)
            poll_check(31, IX+2, AD, 1)
        else:
            a("s_cmp_lt_u32 s35, 800\ns_cbranch_scc1 P_u2\ns_waitcnt vmcnt(0)\nP_u2:")
            poll_check(68, IX, AD, 8)
            poll_check(31, IX+2, AD, 8)
        stamp("y1")
        a("s_lshl_b32 s68, s70, 16\ns_and_b32 s69, s70, 0xffff0000\ns_lshl_b32 s70, s71, 16\ns_and_b32 s71, s71, 0xffff0000")
        for x in range(4):
            a(f"buffer_load_dwordx4 {rg(IX+4*x,4)}, v1, s[12:15], s28 offen offset:{1024*x} {SC}")
        a("s_add_u32 s28, s28, 4096")
        TCH = O("tch", 0)
        if TCH:
            a(f"v_bfe_u32 v{U+6}, v0, 3, 1\nv_mul_u32_u24 v{VT}, 819200, v{U+6}\nv_lshrrev_b32 v{U+6}, 4, v0\nv_lshl_add_u32 v{VT}, v{U+6}, 15, v{VT}\nv_and_b32 v{U+6}, 7, v0\nv_lshl_add_u32 v{VT}, v{U+6}, 7, v{VT}")
            a("s_and_b32 s20, s24, 2\ns_lshl_b32 s20, s20, 3\ns_add_u32 s20, s20, s22\ns_mul_i32 s20, s20, 102400\ns_and_b32 s21, s24, 1\ns_lshl_b32 s21, s21, 14\ns_add_u32 s20, s20, s21\ns_lshr_b32 s21, s2, 4\ns_lshl_b32 s21, s21, 10\ns_add_u32 s20, s20, s21")
            a(f"s_mov_b32 exec_hi, 0xffff\nbuffer_load_dword v{U+7}, v{VT}, s[12:15], s20 offen {SC}\ns_mov_b64 exec, -1")
        a(f"s_cmp_lg_u32 s22, {FIN}\ns_cbranch_scc1 P_f")
        srd(a, 4, 40, 16384*26)
        a(f"s_mov_b32 m0, {XWL}\ns_mul_i32 s20, s34, 1664\nbuffer_load_dwordx4 v1, s[4:7], s20 offen lds\nbuffer_load_dwordx4 v1, s[4:7], s20 offen offset:1024 lds")
        srd(a, 4, 44, 2)
        a(f"s_mov_b32 m0, {XWL+2048}\nv_mov_b32 v{VT}, 0\nbuffer_load_ushort v{VT}, s[4:7], 0 offen lds")
        srd(a, 4, 52, 2)
        a(f"s_mov_b32 m0, {XWL+2304}\ns_nop 0\nbuffer_load_ushort v{VT}, s[4:7], 0 offen lds")
        srd(a, 4, 42, 26)
        a(f"s_mov_b32 m0, {XWL+2560}\nv_lshlrev_b32 v{VT}, 1, v0\nbuffer_load_ushort v{VT}, s[4:7], 0 offen lds\ns_mov_b32 m0, s23")
        a("P_f:")
    if mt == UPAT and UPAT >= IXAT:
        a("s_cmp_ge_u32 s35, 800\ns_cbranch_scc1 P_k2\ns_waitcnt vmcnt(%d)" % (4 + TCH))
        w1_process(POOL+32, WR_, 37)
        a("P_k2:")
    for n, (ks, e) in enumerate(seq):
        if mt == 0: a(f"s_waitcnt lgkmcnt({7 - n})")
        a(tg_mfma(mt, ks, e, d0 if e == 0 else d1))
        take = (len(pend) + (7 - n)) // (8 - n)
        for o in pend[:take]: a(o)
        pend = pend[take:]
    assert not pend
    body = []
    for r in range(16):
        body.append(f"v_cvt_pk_bf16_f32 v{PO[mt]+r}, v{d0+r}, v{d1+r}")
        if r: body.extend(wr_op(16*mt + r - 1, PO[mt] + r - 1))
    body.extend(wr_op(16*mt + 15, PO[mt] + 15))
    fill = ["s_nop 5", "s_nop 5"]
    if mt == 2: fill = [f"v_mov_b32 v{ACC+32+4*s+c}, s{68+c}" for s in range(8) for c in range(4)]
    if mt == 3: fill = [f"v_mov_b32 v{ACC+x}, 0" for x in range(20, 32)]
    pend = fill + body
    if mt == 2: pend += [f"v_mov_b32 v{ACC+x}, 0" for x in range(20)]
stamp("y2")
for o in pend: a(o)
a(f"s_cmp_lt_u32 s35, 800\ns_cbranch_scc1 P_m7\ns_cmp_eq_u32 s22, {FIN}\ns_cbranch_scc1 P_m7\ns_waitcnt vmcnt({3+TCH})\nP_m7:\ns_waitcnt vmcnt({7+TCH})")
stamp()

PAT = opts.get("pat", "SACMRL")
def pre_ops():
    ops = [f"v_lshlrev_b32_sdwa v{GD + 2*x}, 3, v{IX + x//2} dst_sel:DWORD dst_unused:UNUSED_PAD src0_sel:DWORD src1_sel:WORD_{x&1}" for x in range(8)]
    return ops + [f"buffer_load_dwordx4 {rg(IX,4)}, v1, s[12:15], s28 offen {SC}"]
U0 = O("u0", 36)
BIGQ = [TAB + 28 + 4*q for q in range(9)] + [WF + 4*q for q in range(4)] + [POOL + 28 + 4*q for q in range(5)]
def gather_phase(nunits, mf, cv, extra, acc_of, head, tail=None):
    NB = nunits * 2; last = nunits == 36
    def ixreg(u): return BIGQ[u - U0] if last and u >= U0 else IX + 4*(u & 3)
    log = [("ix", u) for u in range(5)]
    def vm_wait(tag):
        idx = len(log) - 1 - log[::-1].index(tag)
        a(f"s_waitcnt vmcnt({len(log) - 1 - idx})")
    def A(b):
        if b >= NB: return
        u = b // 2
        if b % 2 == 0: vm_wait(("ix", u))
        for x in range(4):
            d = ixreg(u) + 2*(b & 1) + x//2
            a(f"v_lshlrev_b32_sdwa v{GD + (8*b) % 16 + 2*x}, 3, v{d} dst_sel:DWORD dst_unused:UNUSED_PAD src0_sel:DWORD src1_sel:WORD_{x&1}")
    def R(b):
        if b >= NB: return
        for x in range(4):
            q = GD + (8*b) % 16 + 2*x
            a(f"ds_read_b64 {rg(q,2)}, v{q}")
    def L(b):
        u = b // 2
        if b >= NB or b % 2 == 0 or (last and u + 4 >= min(nunits, U0)): return
        if last and u + 4 >= 32:
            for h in range(2):
                a(f"buffer_load_dwordx2 {rg(IX+4*(u&3)+2*h,2)}, v{VT}, s[12:15], s28 offen offset:{1024*(u&3)+512*h} {SC}")
                log.append(("ix", u + 4))
        else:
            a(f"buffer_load_dwordx4 {rg(IX+4*(u&3),4)}, v1, s[12:15], s28 offen offset:{1024*(u&3)} {SC}")
            log.append(("ix", u + 4))
        if u & 3 == 3:
            a("s_add_u32 s28, s28, 4096")
            if u + 4 == 15: a("s_add_u32 s28, s28, s46")
            if u + 4 == 31: a("s_add_u32 s28, s28, s47")
    def emit(ops):
        for o in ops:
            if o == "SYNC": continue
            if isinstance(o, str) and o.startswith("STAMP"):
                stamp(o[6:]); continue
            if isinstance(o, tuple) and o[0] == "WAIT": vm_wait(o[1])
            elif isinstance(o, tuple):
                a(o[0]); log.append(o[1])
            else: a(o)
    sync = sorted(b for b, ops in extra.items() if "s_barrier" in ops or "SYNC" in ops) + [NB - 1]
    pr = {}; lo = 0
    for hi in sync:
        for q in range(4): pr[lo + ((hi + 1 - lo) * q) // 4] = 3 - q
        lo = hi + 1
    head()
    R(0); R(1)
    for b in range(NB):
        if b in pr and b: a(f"s_setprio {pr[b]}")
        nb = b + 2
        for ch in PAT:
            if ch == "S":
                a(f"s_waitcnt lgkmcnt({min(NB, nb) * 4 - 4*(b+1)})")
                if tail and b == NB - 1: tail()
                a(f"v_smfmac_f32_16x16x64_bf16 {rg(ACC+4*acc_of(b),4)}, {rg(SEL,4)}, {rg(GD + (8*b) % 16, 8)}, v{SIDX}")
            elif ch == "A": A(nb)
            elif ch == "R": R(nb)
            elif ch == "M": emit(mf.get(b, []))
            elif ch == "C": emit(cv.get(b, []))
            elif ch == "L": L(nb)
        emit(extra.get(b, []))
    return log, vm_wait
pad(PADPRO)
for o in pre_ops(): a(o)
g_start = len(a.lines)
RAW = POOL
P16, P32 = POOL + 16, POOL + 32
def add(d, b, ops): d.setdefault(b, []).extend(ops)
def cvt(d, x, y): return f"v_cvt_pk_bf16_f32 v{d}, v{x}, v{y}"
def selfpack(d, s): return [cvt(d + q, s + 2*q, s + 2*q + 1) for q in range(8)]
def combine(d):
    ops = []
    for q in range(7, -1, -1):
        ops += [f"v_perm_b32 v{d+2*q+1}, v{d+q}, v{T8+q}, s67", f"v_perm_b32 v{d+2*q}, v{d+q}, v{T8+q}, s66"]
    return ops
def tgen(start, per, nv):
    mf = {}; cv = {}; cur = [start]
    def M(ops):
        for i in range(0, len(ops), per):
            add(mf, cur[0], ops[i:i+per]); cur[0] += 1
    def V(ops, adv=True):
        b = cur[0] + 1
        for i in range(0, len(ops), nv):
            add(cv, b, ops[i:i+nv]); b += 1
        if adv: cur[0] = b - 1
    M([tg_mfma(0, ks, e, (P16, P32)[e]) for ks in range(4) for e in range(2)])
    V([cvt(POOL + r, P16 + r, P32 + r) for r in range(16)])
    M([tg_mfma(1, ks, e, (P16, P32)[e]) for ks in range(4) for e in range(2)])
    V([cvt(P16 + r, P16 + r, P32 + r) for r in range(16)])
    M([tg_mfma(2, ks, 0, P32) for ks in range(4)])
    V(selfpack(T8, P32))
    M([tg_mfma(3, ks, 0, P32) for ks in range(4)])
    V(selfpack(P32, P32), adv=False)
    M([tg_mfma(2, ks, 1, WF) for ks in range(4)])
    V(selfpack(WF, WF) + combine(WF) + [f"v_mov_b32 v{T8+q}, v{P32+q}" for q in range(8)])
    M([tg_mfma(3, ks, 1, P32) for ks in range(4)])
    lastm = cur[0]
    V(selfpack(P32, P32) + combine(P32))
    print("tile generation: last MFMA batch", lastm - 1, "ends at", cur[0])
    assert cur[0] <= 63
    return mf, cv, lastm
SRC = [POOL + r for r in range(32)] + [WF + r for r in range(16)] + [P32 + r for r in range(16)]
NX = WF + 16
def g_tail():
    a("s_barrier"); cyc()
    a("s_setprio 3")
    for r in range(4):
        for o in wr_op(r, SRC[r]): a(o)
PA = O("pa", 50)
def w_phase(tag, vm_wait, pre, wr, early=()):
    po = pre_ops(); fill = list(pre) + ["IXW"] + po[:8]
    for o in early: a(o)
    F0 = O("wf0", 8)
    for r in range(4, 64):
        if r % 16 == 0: a(f"s_setprio {3 - r // 16}")
        if r == 52: a(f"s_cmp_eq_u32 s22, 7\ns_cbranch_scc1 {tag}")
        for o in wr_op(r, SRC[r]): a(o)
        if r >= F0 and fill:
            o = fill.pop(0)
            if o == "IXW": vm_wait(("ix", 32))
            else: a(o)
        if r == PA:
            assert not fill
            a("s_waitcnt vmcnt(0)")
            for o in wr: a(o)
            a(po[8])
    a(f"{tag}:")
def part_off(d, t): return [f"v_lshrrev_b32 v{d}, 3, v0", f"v_lshlrev_b32 v{d}, 14, v{d}", f"v_and_b32 v{t}, 7, v0", f"v_lshl_add_u32 v{d}, v{t}, 4, v{d}"]
def wf_reads(ad): return [f"ds_read_b128 {rg(WF+4*x,4)}, v{ad} offset:{XS*x}" for x in (0, 4, 1, 5, 2, 6, 3, 7)]
PB = O("pb", 6); RB = O("rb", 10); XBAT = O("xb", 17); BB = O("bb", 20)
extra = {}
add(extra, PB, [f"v_min_u32 v{RAW+2}, 7, v0", f"v_lshlrev_b32 v{RAW+2}, 7, v{RAW+2}", (pl_op(39, RAW, RAW+2), ("wfl", 0))])
add(extra, RB, [("WAIT", ("wfl", 0)), f"v_cmp_ne_u64 vcc, s[64:65], {rg(RAW,2)}", "s_cbranch_vccnz W_slow", "W_back:",
                (f"buffer_load_dwordx4 {rg(RAW,4)}, v1, s[12:15], s26 offen {SC}", ("raw", 0)), "s_add_u32 s26, s26, 16384"])
CB0 = O("cb0", 1); C1 = 163836
add(extra, XBAT, [f"v_add_u32 v{RAW+4}, s33, v1", ("WAIT", ("raw", 0)), f"ds_write_b128 v{RAW+4}, {rg(RAW,4)}"])
if CB0:
    add(extra, XBAT, [f"v_mov_b32 v{RAW+6}, {C1}", f"v_mov_b32 v{RAW+7}, 1", "s_mov_b64 exec, 1", f"ds_add_u32 v{RAW+6}, v{RAW+7}", "s_mov_b64 exec, -1", "SYNC"])
    add(extra, BB - 2, [f"ds_read_b32 v{RAW+7}, v{RAW+6}"])
    add(extra, BB, [f"v_add_u32 v{RAW+4}, {XB}, v1", f"v_readfirstlane_b32 s20, v{RAW+7}", "s_cmp_lt_u32 s20, 8", "s_cbranch_scc1 J_slow", "J_back:"] + wf_reads(RAW+4))
else:
    add(extra, BB, [f"v_add_u32 v{RAW+4}, {XB}, v1", "s_barrier"] + wf_reads(RAW+4))
add(extra, BB + 1, [f"v_min_u32 v{T8+2}, 17, v0", f"v_lshlrev_b32 v{T8+2}, 3, v{T8+2}", (pl_op(29, T8, T8+2), ("wf2", 0))])
add(extra, BB + 9, [("WAIT", ("wf2", 0)), f"v_cmp_ne_u64 vcc, s[64:65], {rg(T8,2)}", "s_cbranch_vccnz Z_slow", "Z_back:"])
mf, cv, lastm = tgen(BB + 3, O("per0", 2), O("nv0", 5))
add(extra, max(lastm, 54), [(f"buffer_load_dwordx4 {rg(NX,4)}, v1, s[12:15], s26 offen {SC}", ("nx", 0)), "s_mov_b32 m0, s23"])
def g0_head():
    a("s_setprio 3\ns_waitcnt lgkmcnt(0)\ns_barrier"); cyc()
    a("s_cmp_lt_u32 s35, 800\ns_cbranch_scc1 L_first\nL_G1:")
_, vw = gather_phase(32, mf, cv, extra, lambda b: b // 4, g0_head, g_tail)
w_phase("W_e0", vw, [f"v_add_u32 v{T8+7}, s33, v1", f"v_add_u32 v{T8+6}, {XB}, v1"] + part_off(T8+4, T8+5) + [f"v_mov_b32 v{T8+x}, -1" for x in range(4)] +
        ["s_xor_b32 s27, s34, 64", "s_lshl_b32 s3, s27, 15", "s_lshl_b32 s20, s22, 12", "s_add_u32 s3, s3, s20", f"s_add_u32 s3, s3, {HX}",
         "s_lshl_b32 s38, s27, 11", "s_lshl_b32 s20, s22, 8", "s_add_u32 s38, s38, s20", f"s_add_u32 s38, s38, {FX}", "s_xor_b32 s39, s38, 0x20000", "s_xor_b32 s37, s3, 0x200000"],
        [f"ds_write_b128 v{T8+7}, {rg(NX,4)}",
         f"buffer_store_dwordx4 {rg(T8,4)}, v{T8+4}, s[12:15], s75 offen {SC}", f"buffer_store_dwordx4 {rg(T8,4)}, v{T8+4}, s[12:15], s75 offen offset:128 {SC}",
         "s_mov_b64 exec, 0xffff", f"buffer_store_dwordx4 {rg(T8,4)}, v1, s[12:15], s38 offen {SC}", "s_mov_b64 exec, -1"])
mf, cv, lastm = tgen(O("ts1", 1), O("per1", 1), O("nv1", 4))
extra = {}
add(extra, 2, [f"s_lshl_b32 s26, s25, 16", "s_lshl_b32 s27, s22, 10", "s_add_u32 s26, s26, s27", f"s_add_u32 s26, s26, {WFR + 6*8192}"])
add(extra, max(lastm, 54), [f"v_and_b32 v{NX}, 0x27f, v1", (f"buffer_load_dwordx4 {rg(NX,4)}, v{NX}, s[12:15], s26 offen {SC}", ("nx", 0)), "s_mov_b32 m0, s23"])
def g1_head():
    a("s_setprio 3\ns_waitcnt lgkmcnt(0)\ns_barrier"); cyc()
    stamp("g1")
    for o in wf_reads(T8+6): a(o)
_, vw = gather_phase(32, mf, cv, extra, lambda b: b // 4, g1_head, g_tail)
A0 = T8 + 4; XW = POOL
mid = [f"v_lshrrev_b32 v{T8}, 5, v0", f"v_lshlrev_b32 v{T8}, 7, v{T8}", f"v_and_b32 v{T8+1}, 7, v0", f"v_lshl_add_u32 v{T8}, v{T8+1}, 4, v{T8}",
       "s_lshl_b32 s20, s22, 8", f"s_add_u32 s20, s20, {PADR}", f"v_add_u32 v{T8}, s20, v{T8}",
       f"v_and_b32 v{A0}, 1, v0", f"v_lshlrev_b32 v{A0}, 10, v{A0}", f"v_bfe_u32 v{A0+1}, v0, 1, 1", f"v_lshl_add_u32 v{A0}, v{A0+1}, 4, v{A0}",
       f"v_bfe_u32 v{A0+1}, v0, 3, 1", f"v_lshl_add_u32 v{A0}, v{A0+1}, 5, v{A0}", f"v_bfe_u32 v{A0+1}, v0, 2, 1", f"v_lshl_add_u32 v{A0}, v{A0+1}, 6, v{A0}",
       f"v_lshrrev_b32 v{A0+1}, 5, v0", f"v_lshl_add_u32 v{A0}, v{A0+1}, 7, v{A0}", f"v_add_u32 v{A0}, {PADR}, v{A0}",
       f"v_mov_b32 v{T8+2}, {PADR + 2048}", f"v_mov_b32 v{T8+1}, 0", f"ds_write_b32 v{T8+2}, v{T8+1}",
       "s_and_b32 s27, s24, 1", "s_xor_b32 s27, s27, 1", "s_lshl_b32 s47, s27, 14", f"v_lshlrev_b32 v{VT}, 3, v0"]
F2OPS = ["s_cmp_lg_u32 s22, 0", "s_cbranch_scc1 G_nf2", "s_lshl_b32 s31, s34, 3", f"s_add_u32 s31, s31, {F2}"] + flag_ops(31, T8) + ["G_nf2:"]
w_phase("W_e1", vw, mid, [f"ds_write_b128 v{T8}, {rg(NX,4)}"])
XW = WF + 16
a(f"s_cmp_lg_u32 s22, {FIN}\ns_cbranch_scc1 L_Glast")
a(f"v_and_b32 v{T8}, 7, v0\nv_bfe_u32 v{T8+1}, v0, 3, 1\nv_lshl_add_u32 v{T8}, v{T8+1}, 5, v{T8}\nv_lshrrev_b32 v{T8+1}, 4, v0\nv_lshl_add_u32 v{T8}, v{T8+1}, 3, v{T8}\nv_mul_u32_u24 v{T8}, 26, v{T8}\nv_add_u32 v{T8}, {XWL}, v{T8}\nv_mov_b32 v{T8+1}, {XWL+2048}\nv_lshl_add_u32 v{T8+2}, v0, 2, v{T8+1}")
for k in range(13): a(f"ds_read_u16_d16_hi v{XW+k}, v{T8} offset:{2*k}")
a(f"ds_read_u16_d16_hi v{XW+13}, v{T8+1}\nds_read_u16_d16_hi v{XW+14}, v{T8+1} offset:256\nds_read_u16_d16_hi v{XW+15}, v{T8+2} offset:512")
a("L_Glast:")
HR = TAB + 20
extra = {}; mf = {}; cv = {}
BB = 0
add(extra, 0, F2OPS)
VSP = T8 + 6
add(cv, BB + 1, pi_ops(VSP, VSP+1) + [f"v_lshlrev_b32 v{VSP}, 5, v{VSP}"])
add(cv, BB + 2, [f"v_lshrrev_b32 v{A0}, 5, v0", f"v_bfe_u32 v{VSP+1}, v0, 1, 1", f"v_xor_b32 v{VSP+1}, v{VSP+1}, v{A0}", f"v_lshl_add_u32 v{VSP}, v{VSP+1}, 4, v{VSP}",
                 "s_lshl_b32 s31, s22, 11", "s_add_u32 s31, s31, 131072", f"v_add_u32 v{VSP}, s31, v{VSP}"])
S0 = BB + 3
for mt in range(4):
    d = POOL + 16*(mt % 3)
    for ks in range(4):
        add(mf, S0 + 4*mt + ks, [f"v_mfma_f32_32x32x16_bf16 {rg(d,16)}, {rg(WF+4*ks,4)}, {rg(TAB+16*mt+4*ks,4)}, {'0' if ks == 0 else rg(d,16)}"])
    add(cv, S0 + 4*mt + 5, [cvt(d + x, d + 2*x, d + 2*x + 1) for x in range(4)])
    add(extra, S0 + 4*mt + 5, [f"ds_write_b128 v{VSP}, {rg(d,4)} offset:{(32*(mt & 1) + 512*(mt >> 1)) * 32}"])
if O("nosp", 0): mf = {}; extra = {k: [o for o in v if "ds_write_b128" not in str(o)] for k, v in extra.items()}
CB = O("cb", 0)
C2 = PADR + 2048
if CB:
    add(extra, S0 + 17, [f"v_mov_b32 v{A0}, {C2}", f"v_mov_b32 v{A0+1}, 1", "s_mov_b64 exec, 1", f"ds_add_u32 v{A0}, v{A0+1}", "s_mov_b64 exec, -1"])
    add(extra, 57, [f"ds_read_b32 v{A0+1}, v{A0}"])
    add(extra, 60, [f"v_readfirstlane_b32 s20, v{A0+1}", "s_cmp_lt_u32 s20, 8", "s_cbranch_scc1 K_slow", "K_back:"])
elif not O("nomb", 0): add(extra, O("mbat", 58), ["s_barrier"])
for t in range(4):
    b = 8*t + 9; s = ACC + 8*t
    add(cv, b, [cvt(s + x, s + 2*x, s + 2*x + 1) for x in range(4)])
    add(extra, b, [(f"buffer_store_dwordx4 {rg(s,4)}, v1, s[12:15], s3 offen offset:{1024*t} {SC}" if not O("nohs", 0) else f"buffer_load_dword v{HR+8}, v1, s[60:63], 0 offen", ("hs", t))])
def hl_op(t): return f"buffer_load_dwordx4 {rg(ACC+8*t+4,4)}, v1, s[12:15], s37 offen offset:{1024*t} {SC}"
NA = O("na", 2)
FA, PA_, CA, SA = O("fa", 8*NA + 7), O("pa1", 40), O("ca", 45), O("sa", 4)
FB, PB_, CB_ = O("fb", 39), O("pb1", 56), O("cb1", 61)
add(extra, FA, [("WAIT", ("hs", NA - 1)) if not O("hstrict", 0) else "s_waitcnt vmcnt(0)"] + line_flag_ops(38, HR + 4, ("fl", 0)) + ["s_add_u32 s38, s38, 128"])
if NA < 4: add(extra, FB, [("WAIT", ("hs", 3)) if not O("hstrict", 0) else "s_waitcnt vmcnt(0)"] + line_flag_ops(38, HR + 4, ("fl", 1)))
add(extra, PA_, [f"v_mov_b32 v{HR+2}, 0", (pl_op(39, HR, HR+2), ("hp", 0))])
add(extra, CA, [("WAIT", ("hp", 0)), f"v_cmp_ne_u64 vcc, s[64:65], {rg(HR,2)}", "s_cbranch_vccnz H_slow", "H_back:", "s_add_u32 s39, s39, 128"])
for t in range(NA): add(extra, CA + SA*t, [(hl_op(t), ("hl", t))])
if NA < 4: add(extra, PB_, [(pl_op(39, HR, HR+2), ("hp", 1))])
if NA == 4: add(extra, CB_, ["I_back:"])
else: add(extra, CB_, [("WAIT", ("hp", 1)), f"v_cmp_ne_u64 vcc, s[64:65], {rg(HR,2)}", "s_cbranch_vccnz I_slow", "I_back:"] + [(hl_op(t), ("hl", t)) for t in range(NA, 4)])
Y = TAB; K = ACC + 32
def epi(s):
    r = ACC + 8*(s >> 1) + 4 + 2*(s & 1); t = POOL + 24
    w = [("WAIT", ("hl", s >> 1))] if s % 2 == 0 else []
    return w + [f"v_lshlrev_b32 v{t}, 16, v{r}", f"v_and_b32 v{t+1}, s27, v{r}", f"v_lshlrev_b32 v{t+2}, 16, v{r+1}", f"v_and_b32 v{t+3}, s27, v{r+1}",
            f"v_pk_add_f32 {rg(t,2)}, {rg(t,2)}, {rg(K+4*s,2)}", f"v_pk_add_f32 {rg(t+2,2)}, {rg(t+2,2)}, {rg(K+4*s+2,2)}",
            cvt(POOL+2*s, t, t+1), cvt(POOL+2*s+1, t+2, t+3),
            f"v_pk_max_i16 v{POOL+2*s}, v{POOL+2*s}, 0", f"v_pk_max_i16 v{POOL+2*s+1}, v{POOL+2*s+1}, 0",
            f"v_dot2_f32_bf16 v{POOL+16+s}, v{POOL+2*s}, s72, 0", f"v_dot2_f32_bf16 v{POOL+16+s}, v{POOL+2*s+1}, s73, v{POOL+16+s}"]
def epi2(s): return [f"v_min_u32 v{POOL+16+s}, s33, v{POOL+16+s}"]
st0 = f"buffer_store_dwordx4 {rg(POOL+16,4)}, v{Y+14}, s[12:15], s75 offen {SC}"
st1 = f"buffer_store_dwordx4 {rg(POOL+20,4)}, v{Y+14}, s[12:15], s75 offen offset:128 {SC}"
add(extra, 62, ["s_mov_b32 s33, -2", "s_mov_b32 s27, 0xffff0000"])
add(extra, O("f2at", 35), ["s_lshl_b32 s31, s24, 9", f"s_add_u32 s31, s31, {F2}", f"v_lshlrev_b32 v{Y+18}, 3, v0", (pl_op(31, Y+16, Y+18), ("f2", 0))])
add(cv, 58, part_off(Y+14, Y+15) + [f"v_lshlrev_b32 v{Y+12}, 2, v0", f"v_add_u32 v{Y+12}, {PADR}, v{Y+12}"])
add(cv, 59, ["s_lshl_b32 s29, s34, 14", "s_lshl_b32 s20, s22, 11", "s_add_u32 s29, s29, s20", f"s_add_u32 s29, s29, {PART}", "s_lshl_b32 s20, s22, 8", f"v_add_u32 v{Y+13}, s20, v{Y+12}",
             f"v_and_b32 v{Y+10}, 7, v0", f"v_bfe_u32 v{Y+11}, v0, 3, 1", f"v_lshl_add_u32 v{Y+10}, v{Y+11}, 5, v{Y+10}"])
add(cv, 60, [f"v_lshrrev_b32 v{Y+11}, 4, v0", f"v_lshl_add_u32 v{Y+10}, v{Y+11}, 3, v{Y+10}", "s_lshl_b32 s20, s34, 6", f"v_add_u32 v{Y+10}, s20, v{Y+10}", f"v_lshlrev_b32 v{Y+10}, 1, v{Y+10}",
             "s_mov_b32 s8, s54", "s_and_b32 s9, s55, 0xffff", "s_mov_b32 s10, 32768", "s_mov_b32 s11, 0x00020000"])
for s in range(7): add(cv, 65 + s, epi(s) + (epi2(s-1) if s else []))
add(extra, 69, [(st0, ("st", 0))])
add(extra, 36, ["STAMP b33"]); add(extra, 59, ["STAMP b60"])
if CYC == 1:
    add(extra, 61, cyc_ops())
    add(extra, 30, cyc_ops())
if CYC == 2:
    for b in [int(x) for x in opts.get("at", "8,16,24,30,32,38,40,49,51,58,63,65").split(",")]: add(extra, b, cyc_ops())
if U0 < 36:
    B0 = O("b0", S0 + 18); BR = O("br", 1)
    add(extra, B0 - 1, ["s_lshl_b32 s21, s24, 3", "s_add_u32 s21, s21, s22", "s_mul_i32 s21, s21, 102400", "s_add_u32 s36, s21, 98304", "s_and_b32 s20, s24, 1", "s_lshl_b32 s20, s20, 14",
                        "s_add_u32 s21, s21, s20", f"s_add_u32 s21, s21, {65536 + 4096*((U0-16)//4)}"])
    for u in range(U0, 36):
        b = B0 + (u - U0) // BR; q = BIGQ[u - U0]
        if u < 32:
            add(extra, b, [(f"buffer_load_dwordx4 {rg(q,4)}, v1, s[12:15], s21 offen offset:{1024*(u&3)} {SC}", ("ix", u))] + (["s_add_u32 s21, s21, 4096"] if u & 3 == 3 else []))
        else:
            add(extra, b, [(f"buffer_load_dwordx2 {rg(q+2*h,2)}, v{VT}, s[12:15], s36 offen offset:{1024*(u&3)+512*h} {SC}", ("ix", u)) for h in range(2)])
def gl_head():
    a("s_setprio 3\ns_waitcnt lgkmcnt(0)\ns_barrier"); cyc()
    stamp("gl")
    for x in range(4): a(f"ds_read_b128 {rg(WF+4*x,4)}, v{A0} offset:{256*x}")
gather_phase(36, mf, cv, extra, lambda b: b // 4 if b < 64 else b - 56, gl_head)
cyc()
stamp()
for o in epi(7) + epi2(6): a(o)
a("s_nop 1")
for o in epi2(7): a(o)
a(st1)
VW = T8
a(f"s_mov_b32 s20, 0\ns_cmp_lg_u32 s22, {FIN}\ns_cbranch_scc1 R_f2")
for k in range(16): a(f"v_and_b32 v{XW+k}, s27, v{XW+k}")
a("s_nop 0")
for k in range(13): a(f"v_readlane_b32 s{36+k}, v{XW+15}, {k}")
a(f"v_readfirstlane_b32 s74, v{XW+14}\nv_mul_f32 v{VW}, s36, v{XW}")
for k in range(1, 13): a(f"v_fmac_f32 v{VW}, s{36+k}, v{XW+k}")
rnd(VW); a(f"v_add_f32 v{VW}, v{VW}, v{XW+13}"); rnd(VW)
a("R_f2:")
a(f"s_waitcnt vmcnt(0)\nv_cmp_ne_u64 vcc, s[64:65], {rg(Y+16,2)}\ns_cbranch_vccz R_f2ok")
a(f"s_sleep 1\n{pl_op(31, Y+16, Y+18)}\ns_add_u32 s20, s20, 1\ns_cmp_lt_u32 s20, 0x8000\ns_cbranch_scc1 R_f2")
a("R_f2ok:")
a("s_mov_b32 s20, 0")
a("R_poll:")
a(f"buffer_load_dwordx4 {rg(Y,4)}, v1, s[12:15], s29 offen {SC}\nbuffer_load_dwordx4 {rg(Y+4,4)}, v1, s[12:15], s29 offen offset:1024 {SC}")
a("s_add_u32 s20, s20, 1\ns_waitcnt vmcnt(0)")
a(f"v_max3_u32 v{Y+8}, v{Y}, v{Y+1}, v{Y+2}\nv_max3_u32 v{Y+9}, v{Y+3}, v{Y+4}, v{Y+5}\nv_max3_u32 v{Y+8}, v{Y+8}, v{Y+6}, v{Y+7}\nv_max_u32 v{Y+8}, v{Y+8}, v{Y+9}")
a(f"v_cmp_eq_u32 vcc, -1, v{Y+8}\ns_cbranch_vccz R_ok")
if O("rmask", 0): a("s_mov_b64 exec, vcc")
a(f"s_sleep {RSLEEP}\ns_cmp_lt_u32 s20, 0x8000\ns_cbranch_scc1 R_poll")
a("R_ok:")
if O("rmask", 0): a("s_mov_b64 exec, -1")
stamp("y3")
for x in range(4): a(f"v_add_f32 v{Y+x}, v{Y+x}, v{Y+4+x}")
a(f"s_nop 0\nv_permlane32_swap_b32 v{Y}, v{Y+2}\nv_permlane32_swap_b32 v{Y+1}, v{Y+3}\ns_nop 0\nv_add_f32 v{Y}, v{Y}, v{Y+2}\nv_add_f32 v{Y+1}, v{Y+1}, v{Y+3}\ns_nop 1\nv_permlane16_swap_b32 v{Y}, v{Y+1}\ns_nop 0\nv_add_f32 v{Y}, v{Y}, v{Y+1}")
a(f"ds_write_b32 v{Y+13}, v{Y}\ns_waitcnt lgkmcnt(0)\ns_barrier")
a(f"s_cmp_lg_u32 s22, {FIN}\ns_cbranch_scc1 M_fin")
for k in range(8): a(f"ds_read_b32 v{Y+k}, v{Y+12} offset:{256*k}")
a("s_waitcnt lgkmcnt(0)")
a(f"v_add_f32 v{Y}, v{Y}, v{Y+1}\nv_add_f32 v{Y+2}, v{Y+2}, v{Y+3}\nv_add_f32 v{Y+4}, v{Y+4}, v{Y+5}\nv_add_f32 v{Y+6}, v{Y+6}, v{Y+7}\nv_add_f32 v{Y}, v{Y}, v{Y+2}\nv_add_f32 v{Y+4}, v{Y+4}, v{Y+6}\nv_add_f32 v{Y}, v{Y}, v{Y+4}")
rnd(Y); a(f"v_add_f32 v{Y}, s74, v{Y}"); rnd(Y)
a(f"v_add_f32 v{Y}, v{Y}, v{VW}"); rnd(Y)
a(f"v_mul_f32 v{Y}, 0xbfb8aa3b, v{Y}\nv_exp_f32 v{Y}, v{Y}\ns_nop 0\nv_add_f32 v{Y}, 1.0, v{Y}\nv_rcp_f32 v{Y}, v{Y}\ns_nop 0\nv_cvt_pk_bf16_f32 v{Y}, v{Y}, v{Y}")
a(f"buffer_store_short v{Y}, v{Y+10}, s[8:11], 0 offen")
a("M_fin:")
PROBE = O("probe", -1)
if PROBE >= 0:
    a(f"s_cmp_lg_u32 s22, {SW}\ns_cbranch_scc1 M_end\ns_waitcnt vmcnt(0)")
    if O("pwg", -1) >= 0: a(f"s_cmp_lg_u32 s2, {O('pwg', 0)}\ns_cbranch_scc1 M_end")
    stamp()
    a(f"s_waitcnt lgkmcnt(0)\ns_sub_u32 s20, s{76+2*PROBE}, s64\ns_mul_i32 s20, s20, {O('gain', 10)}\ns_add_u32 s20, s20, 4000")
    a("PRB:\ns_memrealtime s[32:33]\ns_waitcnt lgkmcnt(0)\ns_sub_u32 s32, s32, s64\ns_cmp_lt_i32 s32, s20\ns_cbranch_scc1 PRB")
elif STAMP:
    a(f"s_cmp_lg_u32 s22, {SW}\ns_cbranch_scc1 M_end\ns_waitcnt vmcnt(0)")
    stamp()
    a("s_waitcnt lgkmcnt(0)")
    n = nst[0]
    if O("mt", 0):
        for k in range(n - 1, -1, -1): a(f"s_sub_u32 s{76+2*k}, s{76+2*k}, s76\ns_mov_b32 s{77+2*k}, 0")
    if CYC:
        n = 13
        for k in range(1, 12): a(f"s_sub_u32 s{76+2*k}, s{76+2*k}, s{78+2*k}\ns_mov_b32 s{77+2*k}, 0")
        a("s_mov_b32 s76, 0\ns_mov_b32 s77, 0\ns_mov_b32 s100, 0\ns_mov_b32 s101, 0")
    elif PADPRO: a("s_mov_b32 s76, s64\ns_and_b32 s77, s65, 0x7fffffff")
    a(f"s_mul_i32 s31, s2, {8*n}\ns_add_u32 s31, s31, 0x8000000\nv_mov_b32 v2, 0")
    for k in range(n):
        a(f"v_mov_b32 v4, s{76+2*k}\nv_mov_b32 v5, s{77+2*k}\nbuffer_store_dwordx2 v[4:5], v2, s[12:15], s31 offen offset:{8*k}\ns_waitcnt vmcnt(0)")
    print("nstamps", n)
a("M_end:\ns_endpgm")
a("L_first:")
a("s_waitcnt vmcnt(0)\ns_cmp_lg_u32 s22, 1\ns_cbranch_scc1 L_f2")
for o in line_flag_ops(38, WF): a(o)
a("s_branch L_G1\nL_f2:")
flag_store(38, WF)
a("s_branch L_G1")
for tg, sr, t in (("W", 39, RAW), ("Z", 29, T8), ("H", 39, HR), ("I", 39, HR)):
    a(f"{tg}_slow:")
    poll_check(sr, t, t+2, 63, O("hsleep", 1))
    a(f"s_branch {tg}_back")
def cnt_slow(tag, ad):
    a(f"{tag}_slow:\ns_mov_b32 s21, 0\n{tag}_l:\nds_read_b32 v{ad+1}, v{ad}\ns_add_u32 s21, s21, 1\ns_waitcnt lgkmcnt(0)\nv_readfirstlane_b32 s20, v{ad+1}")
    a(f"s_cmp_ge_u32 s20, 8\ns_cbranch_scc1 {tag}_back\ns_cmp_lt_u32 s21, 0x100000\ns_cbranch_scc1 {tag}_l\ns_branch {tag}_back")
if CB: cnt_slow("K", A0)
if CB0: cnt_slow("J", RAW+6)
a("C_end:\ns_endpgm")
L = a.lines
errs = hazard.check_all(L[st:], "main")
a.raw(kernel_desc(MAIN, 256, 102, 256))
for e in sorted(set(errs)): print("HAZARD", e)
open(sys.argv[1], "w").write(a.text())
```

```python
import sys, re
from common import *
import hazard
opts = dict(x.split("=") for x in sys.argv[2:])
def O(k, d): return int(opts.get(k, d))
STAMP = O("stamp", 0); SW = O("sw", 7); SC = "sc1"; SLEEP = O("sleep", 1); RSLEEP = O("rsleep", 2)
WS_BYTES = 268435456
WFR = 4 << 20; PART = 8 << 20; FI = 16 << 20; FW = FI + 16384; F2 = FI + 32768; FE = FI + 65536; FX = 17 << 20; HX = 20 << 20
STG = 131072; XWL = STG + 25600; XB = 131072; XS = 3200; PADR = 128000
DOC = """;
; Generated by a script written for this kernel (gen/h4.py)."""
a = Asm()
a.raw(HEADER_COMMENT.rstrip("\n"))
a.raw("; @launch grid=(256,1,1) block=(512,1,1) lds=163840")
a.raw(DOC)
a.raw('.amdgcn_target "amdgcn-amd-amdhsa--gfx950"')
kernel_begin(a, MAIN)
LN = 0; VL16 = 1
TAB = 2; ACC = 66; WF = 130; POOL = 162; T8 = 210; GD = 218; IX = 234; SEL = 250; SIDX = 254; VT = 255
T = ACC; U = T8; WR_ = GD; AD = IX + 12; TD = POOL; FR = POOL + 4
FIN = 7
def rg(b, n): return f"v[{b}:{b+n-1}]"
nst = [0]; lab = [0]
SKIP = set(opts.get("skip", "g0,g1,gl,b33,b60").split(","))
CYC = O("cyc", 0)
def stamp(name="-"):
    if STAMP and name not in SKIP and not (CYC and nst[0] >= 1):
        k = nst[0]; nst[0] += 1
        assert k < 13
        a(f"{'s_memtime' if O('mt', 0) else 's_memrealtime'} s[{76+2*k}:{77+2*k}]")
def cyc_ops(): return [f"s_mov_b32 s{76+2*k}, s{74+2*k}" for k in range(12, 1, -1)] + ["s_memtime s[78:79]", "s_waitcnt lgkmcnt(0)"] if CYC else []
def cyc():
    for o in cyc_ops(): a(o)
def newlab(p):
    lab[0] += 1; return f"{p}{lab[0]}"
def rnd(r): a(f"v_cvt_pk_bf16_f32 v{r}, v{r}, v{r}\nv_lshlrev_b32 v{r}, 16, v{r}")
PADPRO = O("padpro", 0)
def pad(ticks):
    if not ticks: return
    l = newlab("PAD_")
    a(f"{l}:\ns_memrealtime s[32:33]\ns_waitcnt lgkmcnt(0)\ns_sub_u32 s32, s32, s64\ns_cmp_lt_i32 s32, {ticks}\ns_cbranch_scc1 {l}")
st = len(a.lines)
a("s_cmp_ge_u32 s2, 256\ns_cbranch_scc1 M_end")
stamp()
a("s_load_dwordx16 s[36:51], s[0:1], 0\ns_load_dwordx8 s[52:59], s[0:1], 64\ns_memrealtime s[64:65]")
NCP = O("ncp", 8)
a(f"s_getpc_b64 s[32:33]\nC_base:\ns_lshr_b32 s29, s2, 3\ns_mul_i32 s20, s29, {128*NCP}\nv_lshl_add_u32 v{VT}, v0, 7, s20\nv_min_u32 v{VT}, C_end-C_base, v{VT}")
a(f"v_cmp_gt_u32 vcc, {NCP}, v0\ns_and_saveexec_b64 s[20:21], vcc\ns_cbranch_execz C_skip\nglobal_load_dword v{VT}, v{VT}, s[32:33]\nC_skip:\ns_mov_b64 exec, -1")
a(f"v_lshrrev_b32 v{T}, 6, v0\nv_and_b32 v0, 63, v0\nv_lshlrev_b32 v1, 4, v0\nv_readfirstlane_b32 s22, v{T}")
if O("map", 1) == 0:
    a("s_and_b32 s20, s2, 7\ns_lshr_b32 s24, s20, 1\ns_and_b32 s20, s20, 1\ns_lshl_b32 s20, s20, 5\ns_add_u32 s25, s20, s29")
else:
    a("s_bfe_u32 s24, s2, 0x10002\ns_lshl_b32 s24, s24, 1\ns_and_b32 s20, s29, 1\ns_add_u32 s24, s24, s20\ns_and_b32 s20, s2, 3\ns_lshl_b32 s20, s20, 4\ns_lshr_b32 s25, s29, 1\ns_add_u32 s25, s25, s20")
a("s_lshl_b32 s34, s24, 6\ns_add_u32 s34, s34, s25")
a("s_lshl_b32 s35, s22, 8\ns_add_u32 s35, s35, s34")
a(f"v_lshrrev_b32 v{U}, 4, v0\nv_and_b32 v{U+1}, 15, v0\nv_lshlrev_b32 v{U+2}, 15, v{U}\nv_lshl_add_u32 v{U+2}, v{U+1}, 3, v{U+2}\nv_mov_b32 v{U+5}, 0")
a("s_lshr_b32 s20, s35, 5\ns_lshl_b32 s20, s20, 17\ns_bfe_u32 s21, s35, 0x30002\ns_lshl_b32 s21, s21, 12\ns_add_u32 s20, s20, s21\ns_and_b32 s21, s35, 3\ns_lshl_b32 s21, s21, 7\ns_add_u32 s31, s20, s21")
a(f"s_mul_i32 s20, s34, 25600\ns_mul_i32 s21, s22, 3200\ns_add_u32 s20, s20, s21\ns_add_u32 s33, s21, {STG}\ns_mov_b32 m0, s33")
a("s_lshl_b32 s23, s22, 13\ns_add_u32 s30, s23, 8064")
a("s_mov_b32 s18, 3276800\ns_mov_b32 s19, 0x00020000\ns_mov_b32 s6, 6553600\ns_mov_b32 s7, 0x00020000")
a("s_waitcnt lgkmcnt(0)")
stamp()
a("s_mov_b32 s16, s46\ns_and_b32 s17, s47, 0xffff\ns_mov_b32 s4, s36\ns_and_b32 s5, s37, 0xffff")
srd(a, 60, 56, 256)
srd(a, 12, 58, WS_BYTES)
a("s_cmp_lg_u32 s22, 6\ns_cbranch_scc1 P_n0\ns_cmp_ge_u32 s2, 8\ns_cbranch_scc1 P_n0")
a(f"v_mov_b32 v{T+4}, s64\nv_mov_b32 v{T+5}, s65\nv_mov_b32 v{T+6}, 0\nv_mov_b32 v{T+7}, 0\nv_or_b32 v{T+5}, 0x80000000, v{T+5}\ns_mov_b64 exec, 1")
a(f"buffer_atomic_cmpswap_x2 {rg(T+4,4)}, v{T+6}, s[60:63], 0 offen {SC}\ns_mov_b64 exec, -1\ns_nop 1")
a("P_n0:")
def w1_loads(sreg=31):
    for j8 in range(8):
        a(f"buffer_load_dwordx2 {rg(WR_+2*j8,2)}, v{U+2}, s[16:19], s{sreg} offen offset:{512*j8}")
a("s_cmp_lg_u32 s22, 0\ns_cbranch_scc1 P_now1")
w1_loads()
a("P_now1:")
for r in range(3):
    a(f"buffer_load_dwordx4 v1, s[4:7], s20 offen offset:{1024*r} lds")
a("s_mov_b64 exec, 0xff\nbuffer_load_dwordx4 v1, s[4:7], s20 offen offset:3072 lds\ns_mov_b64 exec, -1")
srd(a, 8, 38, 128000)
a("s_mov_b32 s66, 0x05040100\ns_mov_b32 s67, 0x07060302")
a("s_barrier")
a("s_cmp_lg_u32 s22, 5\ns_cbranch_scc1 P_n5\ns_load_dword s74, s[56:57], 192\nP_n5:")
a("s_cmp_lt_u32 s22, 4\ns_cbranch_scc1 P_lo\ns_cmp_lg_u32 s22, 4\ns_cbranch_scc1 P_skip")
a(f"v_and_b32 v{VT}, 31, v0\nv_lshlrev_b32 v{VT}, 7, v{VT}\ns_lshl_b32 s21, s29, 12\nbuffer_load_dword v{VT}, v{VT}, s[8:11], s21 offen\ns_branch P_skip")
def nonce_load(): a("s_load_dwordx2 s[64:65], s[56:57], 0")
def nonce_get():
    l = newlab("N_")
    a(f"s_waitcnt lgkmcnt(0)\ns_cmp_lt_i32 s65, 0\ns_cbranch_scc1 {l}ok\ns_mov_b32 s20, 0\nv_mov_b32 v{AD}, 0")
    a(f"{l}:")
    a(f"buffer_load_dwordx2 {rg(AD+2,2)}, v{AD}, s[60:63], 0 offen {SC}\ns_add_u32 s20, s20, 1\ns_waitcnt vmcnt(0)")
    a(f"v_readfirstlane_b32 s64, v{AD+2}\nv_readfirstlane_b32 s65, v{AD+3}\ns_cmp_lt_i32 s65, 0\ns_cbranch_scc1 {l}ok")
    a(f"s_sleep 1\ns_cmp_lt_u32 s20, 0x8000\ns_cbranch_scc1 {l}")
    a(f"{l}ok:")
def flag_ops(sreg, t):
    return [f"v_mov_b32 v{t+2}, 0", f"v_mov_b32 v{t}, s64", f"v_mov_b32 v{t+1}, s65", "s_mov_b64 exec, 1",
            f"buffer_store_dwordx2 {rg(t,2)}, v{t+2}, s[12:15], s{sreg} offen {SC}", "s_mov_b64 exec, -1"]
def line_flag_ops(sreg, t, tag=None):
    st_ = f"buffer_store_dwordx4 {rg(t,4)}, v1, s[12:15], s{sreg} offen {SC}"
    return [f"v_mov_b32 v{t}, s64", f"v_mov_b32 v{t+1}, s65", f"v_mov_b32 v{t+2}, s64", f"v_mov_b32 v{t+3}, s65", "s_mov_b64 exec, 0xff",
            (st_, tag) if tag else st_, "s_mov_b64 exec, -1"]
def flag_store(sreg, t=AD):
    for o in flag_ops(sreg, t): a(o)
def w1_process(PR, RB, sreg):
    for c in range(4):
        for d in range(4):
            a(f"v_perm_b32 v{PR+4*c+d}, v{WR_+2*(2*d+1)+(c>>1)}, v{WR_+2*(2*d)+(c>>1)}, s{66+(c&1)}")
    for c in range(4):
        a(f"ds_write_b128 v{U+3}, {rg(PR+4*c,4)} offset:{(c&1)*128 + (c>>1)*16}")
    a("s_waitcnt lgkmcnt(0)")
    for r in range(4):
        a(f"ds_read_b128 {rg(RB+4*r,4)}, v{U+4} offset:{r*4*272}")
    for r in range(4):
        a(f"s_waitcnt lgkmcnt({3-r})\nbuffer_store_dwordx4 {rg(RB+4*r,4)}, v{U+5}, s[12:15], s{sreg} offen {SC}\ns_add_u32 s{sreg}, s{sreg}, {4*65536}")
a("P_lo:")
a("s_cmp_ge_u32 s35, 800\ns_cbranch_scc1 P_skip")
a("s_add_u32 s21, s23, 0x10000")
a(f"v_mul_u32_u24 v{U+3}, 272, v{U+1}\nv_lshl_add_u32 v{U+3}, v{U}, 5, v{U+3}\nv_add_u32 v{U+3}, s21, v{U+3}")
a(f"v_mul_u32_u24 v{U+4}, 272, v{U}\nv_lshl_add_u32 v{U+4}, v{U+1}, 4, v{U+4}\nv_add_u32 v{U+4}, s21, v{U+4}")
a(f"v_lshlrev_b32 v{U+5}, 16, v{U}\nv_bfe_u32 v{U+6}, v0, 3, 1\nv_lshl_add_u32 v{U+5}, v{U+6}, 12, v{U+5}\nv_and_b32 v{U+6}, 7, v0\nv_lshl_add_u32 v{U+5}, v{U+6}, 4, v{U+5}")
a("s_and_b32 s26, s35, 3\ns_lshl_b32 s26, s26, 20\ns_lshr_b32 s21, s35, 7\ns_lshl_b32 s21, s21, 13\ns_add_u32 s26, s26, s21\ns_bfe_u32 s21, s35, 0x30002\ns_lshl_b32 s21, s21, 9\ns_add_u32 s26, s26, s21")
a(f"s_bfe_u32 s21, s35, 0x20005\ns_lshl_b32 s21, s21, 7\ns_add_u32 s26, s26, s21\ns_add_u32 s26, s26, {WFR}")
a(f"s_and_b32 s75, s35, 3\ns_lshl_b32 s75, s75, 11\ns_bfe_u32 s21, s35, 0x20003\ns_lshl_b32 s21, s21, 9\ns_add_u32 s75, s75, s21\ns_lshr_b32 s21, s35, 5\ns_lshl_b32 s21, s21, 4\ns_add_u32 s75, s75, s21\ns_bfe_u32 s21, s35, 0x10002\ns_lshl_b32 s21, s21, 3\ns_add_u32 s75, s75, s21\ns_add_u32 s75, s75, {FW}")
a("s_cmp_ge_u32 s22, 2\ns_cbranch_scc1 P_skip")
a("s_and_b32 s75, s35, 3\ns_lshl_b32 s75, s75, 14\ns_lshr_b32 s21, s35, 7\ns_lshl_b32 s21, s21, 12\ns_add_u32 s75, s75, s21\ns_bfe_u32 s21, s35, 0x20003\ns_lshl_b32 s21, s21, 10\ns_add_u32 s75, s75, s21")
a(f"s_bfe_u32 s21, s35, 0x20005\ns_lshl_b32 s21, s21, 8\ns_add_u32 s75, s75, s21\ns_bfe_u32 s21, s35, 0x10002\ns_lshl_b32 s21, s21, 7\ns_add_u32 s75, s75, s21\ns_add_u32 s75, s75, {FE}")
EPRE = O("epre", 0)
if EPRE:
    for x in range(4): a(f"v_mov_b32 v{AD+x}, 0")
    if EPRE == 1: a("s_cmp_eq_u32 s22, 0\ns_cbranch_scc1 P_e0")
    a(f"s_mov_b64 exec, 0xff\nbuffer_store_dwordx4 {rg(AD,4)}, v1, s[12:15], s75 offen {SC}\ns_mov_b64 exec, -1")
a("s_cmp_lg_u32 s22, 0\ns_cbranch_scc1 P_skip\nP_e0:")
a(f"s_waitcnt vmcnt({5 if EPRE == 2 else 4})")
w1_process(WF, WF+16, 26)
nonce_load()
a("P_skip:")
a(f"v_and_b32 v{T+4}, 7, v0\nv_lshrrev_b32 v{T+5}, 3, v0")
a(f"s_and_b32 s20, s34, 1\ns_lshl_b32 s20, s20, 3\nv_add_u32 v{T+6}, s20, v{T+4}")
a(f"v_mul_u32_u24 v{T+7}, 400, v{T+4}\nv_add_u32 v{T+7}, s33, v{T+7}")
a(f"v_and_b32 v{T+8}, 1, v{T+5}\nv_lshrrev_b32 v{T+9}, 1, v{T+5}")
a(f"v_lshlrev_b32 v{T+10}, 3, v{T+8}\nv_xor_b32 v{T+10}, v{T+10}, v{T+6}")
a(f"v_lshl_add_u32 v{T+11}, v{T+9}, 6, v{T+7}")
a(f"v_lshlrev_b32 v{T+9}, 14, v{T+9}\nv_lshl_add_u32 v{T+9}, v{T+8}, 10, v{T+9}\nv_lshl_add_u32 v{T+9}, v{T+4}, 4, v{T+9}")
SL, LA_, RD, PK, SS = T+12, T+20, T+28, T+44, T+52
for u in range(8):
    a(f"v_xor_b32 v{SL+u}, {u}, v{T+10}")
    a(f"v_lshl_add_u32 v{LA_+u}, v{SL+u}, 2, v{T+11}")
a(f"v_and_b32 v{T+10}, 3, v{T+4}")
for u in range(4):
    a(f"v_xor_b32 v{SS+u}, {u}, v{T+10}\nv_lshl_add_u32 v{SS+4+u}, v{SS+u}, 2, v{T+7}\nv_add_u32 v{SS+u}, 16384, v{SS+u}")
a("s_lshr_b32 s27, s34, 3\ns_mul_i32 s27, s27, 102400\ns_lshl_b32 s20, s22, 11\ns_add_u32 s28, s27, s20\ns_and_b32 s21, s34, 7\ns_lshl_b32 s20, s21, 7\ns_add_u32 s28, s28, s20")
a(f"s_lshl_b32 s20, s22, 9\ns_add_u32 s27, s27, s20\ns_lshl_b32 s20, s21, 6\ns_add_u32 s27, s27, s20\ns_add_u32 s27, s27, 98304\nv_lshlrev_b32 v{T+8}, 3, v{T+4}")
a(f"v_xor_b32 v{TD+1}, v{T+4}, v{U}\nv_lshlrev_b32 v{TD}, 7, v{T+5}\nv_lshl_add_u32 v{TD}, v{TD+1}, 4, v{TD}\nv_xor_b32 v{TD+1}, 64, v{TD}")
def table_dma(mt, s=27):
    a(f"s_add_u32 s{s}, s23, {4096*(mt & 1) + 65536*(mt >> 1)}\ns_mov_b32 m0, s{s}\ns_nop 0")
    for x in range(4): a(f"buffer_load_dwordx4 v{TD+(x&1)}, s[8:11], s{s} offen offset:{1024*x} lds")
a("s_cmp_lt_u32 s22, 4\ns_cbranch_scc1 P_np")
table_dma(2, 21); table_dma(3, 21)
a("s_waitcnt vmcnt(8)\ns_branch P_c9")
a("P_np:")
a("s_cmp_lg_u32 s22, 0\ns_cbranch_scc1 P_c0")
nonce_get()
a(f"v_mov_b32 v{AD}, s64\nv_mov_b32 v{AD+1}, s65\nv_mov_b32 v{AD+2}, s64\nv_mov_b32 v{AD+3}, s65\ns_mov_b64 exec, 0xff\ns_waitcnt vmcnt(0)")
a(f"buffer_store_dwordx4 {rg(AD,4)}, v1, s[12:15], s75 offen {SC}\ns_mov_b64 exec, -1")
a("s_mov_b32 s35, 4097\ns_branch P_c9\nP_c0:\ns_waitcnt vmcnt(0)\nP_c9:")
stamp()
for u in range(8): a(f"ds_read_b32 v{RD+u}, v{LA_+u}")
for u in range(8): a(f"ds_read_b32 v{RD+8+u}, v{LA_+u} offset:256")
for u in range(4): a(f"ds_read_b32 v{SS+8+u}, v{SS+4+u} offset:384")
def conv(k):
    for u in range(8):
        a(f"v_lshl_add_u32 v{RD+8*k+u}, v{RD+8*k+u}, 4, v{SL+u}")
    for d in range(4):
        a(f"v_lshl_or_b32 v{PK+4*k+d}, v{RD+8*k+2*d+1}, 16, v{RD+8*k+2*d}")
a("s_waitcnt lgkmcnt(12)")
conv(0)
a(f"buffer_store_dwordx4 {rg(PK,4)}, v{T+9}, s[12:15], s28 offen {SC}")
a("s_waitcnt lgkmcnt(0)")
nonce_load()
a("s_lshl_b32 s20, s25, 3\ns_add_u32 s48, s48, s20\ns_addc_u32 s49, s49, 0\ns_add_u32 s50, s50, s20\ns_addc_u32 s51, s51, 0")
a("s_load_dwordx2 s[70:71], s[48:49], 0\ns_load_dwordx2 s[72:73], s[50:51], 0")
conv(1)
for u in range(4): a(f"v_lshrrev_b32 v{SS+4+u}, 1, v{SS+8+u}\nv_lshl_add_u32 v{SS+8+u}, v{SS+8+u}, 2, v{SS+u}\nv_and_b32 v{SS+4+u}, 2, v{SS+4+u}\nv_xor_b32 v{SS+8+u}, v{SS+8+u}, v{SS+4+u}")
a(f"v_lshl_or_b32 v{SS+4}, v{SS+9}, 16, v{SS+8}\nv_lshl_or_b32 v{SS+5}, v{SS+11}, 16, v{SS+10}")
a(f"s_add_u32 s28, s28, 65536\ns_mov_b32 exec_hi, 0\nbuffer_store_dwordx4 {rg(PK+4,4)}, v{T+9}, s[12:15], s28 offen {SC}")
a(f"s_mov_b64 exec, 0xff\nbuffer_store_dwordx2 {rg(SS+4,2)}, v{T+8}, s[12:15], s27 offen {SC}\ns_mov_b64 exec, -1")
a("s_mov_b32 s36, s31\ns_mov_b32 s37, s26\ns_mov_b32 s38, s75")
if O("nounit", 0) == 1: a("s_mov_b32 s35, 4097")
if O("nounit", 0) == 2: a("s_cmp_ge_u32 s22, 2\ns_cselect_b32 s35, 4097, s35")
table_dma(0)
nonce_get()
a(f"s_lshr_b32 s31, s34, 3\ns_lshl_b32 s31, s31, 9\ns_and_b32 s20, s34, 7\ns_lshl_b32 s20, s20, 6\ns_add_u32 s31, s31, s20\ns_lshl_b32 s20, s22, 3\ns_add_u32 s31, s31, s20\ns_add_u32 s31, s31, {FI}")
a("s_waitcnt vmcnt(0)")
stamp()
flag_store(31)
a("s_lshr_b32 s20, s22, 2\ns_add_u32 s20, s20, 1\ns_lshl_b32 s20, s20, 8\ns_add_u32 s20, s20, s34")
a("s_lshr_b32 s21, s20, 5\ns_lshl_b32 s21, s21, 17\ns_bfe_u32 s39, s20, 0x30002\ns_lshl_b32 s39, s39, 12\ns_add_u32 s21, s21, s39\ns_and_b32 s39, s20, 3\ns_lshl_b32 s39, s39, 7\ns_add_u32 s21, s21, s39")
a("s_and_b32 s39, s22, 3\ns_lshl_b32 s39, s39, 10\ns_add_u32 s21, s21, s39\ns_add_u32 s46, s46, s21\ns_addc_u32 s47, s47, 0")
for f4 in range(4):
    for r in range(2): a(f"s_load_dword s3, s[46:47], {f4*32768 + r*512}")
def pl_op(sreg, tmp, addr): return f"buffer_load_dwordx2 {rg(tmp,2)}, v{addr}, s[12:15], s{sreg} offen {SC}"
def poll_load(sreg, tmp, addr): a(pl_op(sreg, tmp, addr))
def poll_check(sreg, tmp, addr, first_wait=0, slp=None):
    l = newlab("Q_")
    a(f"s_mov_b32 s20, 0\ns_waitcnt vmcnt({first_wait})")
    a(f"{l}:")
    a(f"v_cmp_ne_u64 vcc, s[64:65], {rg(tmp,2)}\ns_cbranch_vccz {l}ok")
    a(f"s_sleep {SLEEP if slp is None else slp}")
    poll_load(sreg, tmp, addr)
    a(f"s_add_u32 s20, s20, 1\ns_waitcnt vmcnt(0)\ns_cmp_lt_u32 s20, 0x8000\ns_cbranch_scc1 {l}")
    a(f"{l}ok:")
a("s_cmp_lt_u32 s22, 4\ns_cbranch_scc1 P_g")
a(f"s_and_b32 s21, s24, 1\ns_lshr_b32 s68, s25, 4\ns_lshl_b32 s68, s68, 14\ns_lshl_b32 s20, s21, 12\ns_add_u32 s68, s68, s20\ns_and_b32 s20, s22, 3\ns_lshl_b32 s20, s20, 10\ns_add_u32 s68, s68, s20\ns_add_u32 s68, s68, {FE}")
a(f"s_lshl_b32 s69, s25, 16\ns_lshl_b32 s21, s21, 13\ns_add_u32 s69, s69, s21\ns_add_u32 s69, s69, s20\ns_add_u32 s69, s69, {WFR}\ns_add_u32 s74, s69, 4096")
a(f"v_and_b32 v{IX+8}, 7, v0\nv_lshlrev_b32 v{IX+8}, 7, v{IX+8}")
poll_load(68, IX+10, IX+8)
table_dma(1)
poll_check(68, IX+10, IX+8, 4)
stamp("z1")
a(f"buffer_load_dwordx4 {rg(IX,4)}, v1, s[12:15], s69 offen {SC}\nbuffer_load_dwordx4 {rg(IX+4,4)}, v1, s[12:15], s74 offen {SC}")
a("s_branch P_e")
a("P_g:")
for mt in range(1, 4): table_dma(mt)
a("P_e:")
a(f"v_bfe_u32 v{T+2}, v0, 4, 1\nv_lshlrev_b32 v{T+2}, 1, v{T+2}\nv_bfe_u32 v{T}, v0, 2, 2\nv_mov_b32 v{T+1}, 0x3f80")
a(f"v_cmp_eq_u32 vcc, v{T+2}, v{T}\nv_add_u32 v{T+2}, 1, v{T+2}\ns_nop 0\nv_cndmask_b32 v{SEL}, 0, v{T+1}, vcc\nv_cmp_eq_u32 vcc, v{T+2}, v{T}")
a(f"v_mov_b32 v{SEL+1}, v{SEL}\nv_and_b32 v{T+2}, 3, v0\nv_cndmask_b32 v{SEL+2}, 0, v{T+1}, vcc\nv_mul_u32_u24 v{SIDX}, 0x5555, v{T+2}\nv_mov_b32 v{SEL+3}, v{SEL+2}")
PI = T + 3
def pi_ops(d, t): return [f"v_and_b32 v{d}, 24, v0", f"v_and_b32 v{t}, 3, v0", f"v_lshl_add_u32 v{d}, v{t}, 1, v{d}", f"v_bfe_u32 v{t}, v0, 2, 1", f"v_add_u32 v{d}, v{d}, v{t}"]
for o in pi_ops(PI, T): a(o)
a(f"v_lshrrev_b32 v{T}, 5, v0\nv_bfe_u32 v{T+1}, v{PI}, 1, 3\nv_xor_b32 v{T+1}, v{T+1}, v{T}\nv_lshlrev_b32 v{PI}, 7, v{PI}\nv_lshl_add_u32 v{PI}, v{T+1}, 4, v{PI}\nv_add_u32 v{FR}, s23, v{PI}")
for ks in range(1, 4): a(f"v_xor_b32 v{FR+ks}, {32*ks}, v{FR}")
for ks in range(4): a(f"v_add_u32 v{FR+4+ks}, 0x10000, v{FR+ks}")
a(f"v_add_u32 v{POOL+12}, s33, v1\nv_add_u32 v{POOL+13}, {XB}, v1\nv_lshlrev_b32 v{AD}, 3, v0")
a("s_and_b32 s21, s24, 1\ns_xor_b32 s20, s24, 1\ns_lshl_b32 s28, s20, 3\ns_add_u32 s28, s28, s22\ns_mul_i32 s28, s28, 102400\ns_lshl_b32 s27, s21, 14\ns_add_u32 s28, s28, s27")
a(f"s_lshl_b32 s68, s20, 3\ns_add_u32 s68, s68, s22\ns_lshl_b32 s68, s68, 9\ns_add_u32 s68, s68, {FI}\ns_xor_b32 s31, s68, 4096")
a(f"s_lshl_b32 s75, s24, 6\ns_lshl_b32 s27, s22, 3\ns_add_u32 s75, s75, s27\ns_lshl_b32 s75, s75, 6\ns_add_u32 s75, s75, s25\ns_lshl_b32 s75, s75, 8\ns_add_u32 s75, s75, {PART}")
a(f"s_lshr_b32 s29, s25, 4\ns_lshl_b32 s39, s29, 14\ns_lshl_b32 s29, s29, 11\ns_and_b32 s27, s22, 3\ns_lshl_b32 s27, s27, 9\ns_add_u32 s29, s29, s27\ns_add_u32 s29, s29, {FW + 256}")
a(f"s_lshl_b32 s27, s27, 1\ns_add_u32 s39, s39, s27\ns_lshl_b32 s27, s21, 12\ns_add_u32 s39, s39, s27\ns_add_u32 s39, s39, {FE + 8192}")
a(f"s_lshl_b32 s26, s25, 16\ns_lshl_b32 s27, s22, 10\ns_add_u32 s26, s26, s27\ns_lshl_b32 s27, s21, 13\ns_add_u32 s26, s26, s27\ns_add_u32 s26, s26, {WFR + 16384}")
a("s_lshl_b32 s48, s70, 16\ns_and_b32 s49, s70, 0xffff0000\ns_lshl_b32 s50, s71, 16\ns_and_b32 s51, s71, 0xffff0000")
for x in range(16): a(f"v_mov_b64 {rg(ACC+2*x,2)}, 0")
for x in range(16): a(f"v_mov_b64 {rg(ACC+32+2*x,2)}, s[{48+2*(x&1)}:{49+2*(x&1)}]")
a("s_waitcnt vmcnt(0)")
stamp()
a("s_cmp_lt_u32 s22, 4\ns_cbranch_scc1 P_h")
a(f"ds_write_b128 v{POOL+12}, {rg(IX,4)} offset:1024\nds_write_b128 v{POOL+12}, {rg(IX+4,4)} offset:2048")
a("P_h:")
for mt in range(4):
    for ks in range(4):
        a(f"ds_read_b128 {rg(TAB+16*mt+4*ks,4)}, v{FR+4*(mt>>1)+ks} offset:{4096*(mt&1)}")
a(f"v_mov_b32 v{POOL+14}, 163836\nv_mov_b32 v{POOL+15}, 0\nds_write_b32 v{POOL+14}, v{POOL+15}")
a("s_waitcnt lgkmcnt(0)\ns_barrier")
stamp()
for x in (0, 4, 1, 5, 2, 6, 3, 7):
    a(f"ds_read_b128 {rg(WF+4*x,4)}, v{POOL+13} offset:{XS*(4 + (x&3)) + 1024 + 1024*(x>>2)}")
poll_load(68, IX, AD)
poll_load(31, IX+2, AD)
a("s_cmp_ge_u32 s35, 800\ns_cbranch_scc1 P_u0")
w1_loads(36)
a("P_u0:")
a("s_and_b32 s21, s24, 1\ns_lshl_b32 s21, s21, 1\ns_sub_u32 s21, s21, 1\ns_mul_i32 s46, s21, 819200\ns_sub_u32 s47, 16384, s46\ns_sub_u32 s46, s46, 16384")
def tg_mfma(mt, ks, e, d):
    c = "0" if ks == 0 else rg(d, 16)
    return f"v_mfma_f32_32x32x16_bf16 {rg(d,16)}, {rg(TAB+16*mt+4*ks,4)}, {rg(WF+16*e+4*ks,4)}, {c}"
def wr_op(r, reg):
    off = r*256 if r < 32 else 57472 + (r-32)*256
    pre = ["s_mov_b32 m0, s30", "s_nop 0"] if r == 32 else []
    return pre + [f"ds_write_addtid_b32 v{reg} offset:{off}"]
a("s_mov_b32 m0, s23")
PD = [(POOL+16, POOL+32)] * 4
PO = [POOL+16] * 4
IXAT = O("ixat", 3); UPAT = O("upat", 2); FE_ = O("fe", 0)
pend = []
for mt in range(4):
    d0, d1 = PD[mt]
    seq = [(ks, e) for ks in range(4) for e in range(2)]
    if mt == UPAT and UPAT < IXAT:
        a("s_cmp_ge_u32 s35, 800\ns_cbranch_scc1 P_k2\ns_waitcnt vmcnt(0)")
        w1_process(POOL, WR_, 37)
        a("P_k2:")
    if mt == IXAT:
        if UPAT < IXAT and FE_:
            a("s_cmp_lt_u32 s35, 800\ns_cbranch_scc1 P_u2\ns_waitcnt vmcnt(0)\nP_u2:")
            poll_check(68, IX, AD, 4)
            poll_check(31, IX+2, AD, 4)
        elif UPAT < IXAT:
            a("s_waitcnt vmcnt(0)\ns_cmp_ge_u32 s35, 800\ns_cbranch_scc1 P_k4\ns_cmp_lg_u32 s22, 1\ns_cbranch_scc1 P_k3")
            for o in line_flag_ops(38, IX+4): a(o)
            a("s_branch P_k4\nP_k3:")
            flag_store(38, IX+4)
            a("P_k4:\ns_mov_b32 s35, 4096")
            poll_check(68, IX, AD, 1)
            poll_check(31, IX+2, AD, 1)
        else:
            a("s_cmp_lt_u32 s35, 800\ns_cbranch_scc1 P_u2\ns_waitcnt vmcnt(0)\nP_u2:")
            poll_check(68, IX, AD, 8)
            poll_check(31, IX+2, AD, 8)
        stamp("y1")
        for x in range(4):
            a(f"buffer_load_dwordx4 {rg(IX+4*x,4)}, v1, s[12:15], s28 offen offset:{1024*x} {SC}")
        a("s_add_u32 s28, s28, 4096")
        TCH = O("tch", 0)
        if TCH:
            a(f"v_bfe_u32 v{U+6}, v0, 3, 1\nv_mul_u32_u24 v{VT}, 819200, v{U+6}\nv_lshrrev_b32 v{U+6}, 4, v0\nv_lshl_add_u32 v{VT}, v{U+6}, 15, v{VT}\nv_and_b32 v{U+6}, 7, v0\nv_lshl_add_u32 v{VT}, v{U+6}, 7, v{VT}")
            a("s_and_b32 s20, s24, 2\ns_lshl_b32 s20, s20, 3\ns_add_u32 s20, s20, s22\ns_mul_i32 s20, s20, 102400\ns_and_b32 s21, s24, 1\ns_lshl_b32 s21, s21, 14\ns_add_u32 s20, s20, s21\ns_lshr_b32 s21, s2, 4\ns_lshl_b32 s21, s21, 10\ns_add_u32 s20, s20, s21")
            a(f"s_mov_b32 exec_hi, 0xffff\nbuffer_load_dword v{U+7}, v{VT}, s[12:15], s20 offen {SC}\ns_mov_b64 exec, -1")
        a(f"s_cmp_lg_u32 s22, {FIN}\ns_cbranch_scc1 P_f")
        srd(a, 4, 40, 16384*26)
        a(f"s_mov_b32 m0, {XWL}\ns_mul_i32 s20, s34, 1664\nbuffer_load_dwordx4 v1, s[4:7], s20 offen lds\nbuffer_load_dwordx4 v1, s[4:7], s20 offen offset:1024 lds")
        srd(a, 4, 44, 2)
        a(f"s_mov_b32 m0, {XWL+2048}\nv_mov_b32 v{VT}, 0\nbuffer_load_ushort v{VT}, s[4:7], 0 offen lds")
        srd(a, 4, 52, 2)
        a(f"s_mov_b32 m0, {XWL+2304}\ns_nop 0\nbuffer_load_ushort v{VT}, s[4:7], 0 offen lds")
        srd(a, 4, 42, 26)
        a(f"s_mov_b32 m0, {XWL+2560}\nv_lshlrev_b32 v{VT}, 1, v0\nbuffer_load_ushort v{VT}, s[4:7], 0 offen lds\ns_mov_b32 m0, s{30 if mt == 3 else 23}")
        a("P_f:")
    if mt == UPAT and UPAT >= IXAT:
        a("s_cmp_ge_u32 s35, 800\ns_cbranch_scc1 P_k2\ns_waitcnt vmcnt(%d)" % (4 + TCH))
        w1_process(POOL, WR_, 37)
        a("P_k2:")
    for n, (ks, e) in enumerate(seq):
        if mt == 0: a(f"s_waitcnt lgkmcnt({7 - n})")
        a(tg_mfma(mt, ks, e, d0 if e == 0 else d1))
        take = (len(pend) + (7 - n)) // (8 - n)
        for o in pend[:take]: a(o)
        pend = pend[take:]
    a("s_nop 11")
    wrs = [wr_op(16*mt + r, PO[mt] + r) for r in range(16)]
    LATE = O("late", 0) if mt < 3 else 0
    for r in range(16):
        a(f"v_cvt_pk_bf16_f32 v{PO[mt]+r}, v{d0+r}, v{d1+r}")
        if 1 <= r <= 16 - LATE:
            for o in wrs[r-1]: a(o)
    if LATE == 0:
        for o in wrs[15]: a(o)
    pend = [o for w in wrs[16 - LATE:] for o in w] if LATE else []
stamp("y2")
for o in pend: a(o)
if FE_:
    a("s_cmp_ge_u32 s35, 800\ns_cbranch_scc1 P_k4\ns_waitcnt vmcnt(0)\ns_cmp_lg_u32 s22, 1\ns_cbranch_scc1 P_k3")
    for o in line_flag_ops(38, POOL): a(o)
    a("s_branch P_k4\nP_k3:")
    flag_store(38, POOL)
    a("P_k4:\ns_mov_b32 s35, 4096")
a(f"s_cmp_lt_u32 s35, 800\ns_cbranch_scc1 P_m7\ns_cmp_eq_u32 s22, {FIN}\ns_cbranch_scc1 P_m7\ns_waitcnt vmcnt({3+TCH})\nP_m7:\ns_waitcnt vmcnt({7+TCH})")
stamp()

PAT = opts.get("pat", "SACMRL")
def pre_ops():
    ops = [f"v_lshlrev_b32_sdwa v{GD + 2*x}, 3, v{IX + x//2} dst_sel:DWORD dst_unused:UNUSED_PAD src0_sel:DWORD src1_sel:WORD_{x&1}" for x in range(8)]
    return ops + [f"buffer_load_dwordx4 {rg(IX,4)}, v1, s[12:15], s28 offen {SC}"]
U0 = O("u0", 36)
BIGQ = [TAB + 28 + 4*q for q in range(9)] + [WF + 4*q for q in range(4)] + [POOL + 28 + 4*q for q in range(5)]
def gather_phase(nunits, mf, cv, extra, acc_of, head, tail=None):
    NB = nunits * 2; last = nunits == 36
    def ixreg(u): return BIGQ[u - U0] if last and u >= U0 else IX + 4*(u & 3)
    log = [("ix", u) for u in range(5)]
    def vm_wait(tag):
        idx = len(log) - 1 - log[::-1].index(tag)
        a(f"s_waitcnt vmcnt({len(log) - 1 - idx})")
    def A(b):
        if b >= NB: return
        u = b // 2
        if b % 2 == 0: vm_wait(("ix", u))
        for x in range(4):
            d = ixreg(u) + 2*(b & 1) + x//2
            a(f"v_lshlrev_b32_sdwa v{GD + (8*b) % 16 + 2*x}, 3, v{d} dst_sel:DWORD dst_unused:UNUSED_PAD src0_sel:DWORD src1_sel:WORD_{x&1}")
    def R(b):
        if b >= NB: return
        for x in range(4):
            q = GD + (8*b) % 16 + 2*x
            a(f"ds_read_b64 {rg(q,2)}, v{q}")
    def L(b):
        u = b // 2
        if b >= NB or b % 2 == 0 or (last and u + 4 >= min(nunits, U0)): return
        if last and u + 4 >= 32:
            for h in range(2):
                a(f"buffer_load_dwordx2 {rg(IX+4*(u&3)+2*h,2)}, v{VT}, s[12:15], s28 offen offset:{1024*(u&3)+512*h} {SC}")
                log.append(("ix", u + 4))
        else:
            a(f"buffer_load_dwordx4 {rg(IX+4*(u&3),4)}, v1, s[12:15], s28 offen offset:{1024*(u&3)} {SC}")
            log.append(("ix", u + 4))
        if u & 3 == 3:
            a("s_add_u32 s28, s28, 4096")
            if u + 4 == 15: a("s_add_u32 s28, s28, s46")
            if u + 4 == 31: a("s_add_u32 s28, s28, s47")
    def emit(ops):
        for o in ops:
            if o == "SYNC": continue
            if isinstance(o, str) and o.startswith("STAMP"):
                stamp(o[6:]); continue
            if isinstance(o, tuple) and o[0] == "WAIT": vm_wait(o[1])
            elif isinstance(o, tuple):
                a(o[0]); log.append(o[1])
            else: a(o)
    sync = sorted(b for b, ops in extra.items() if "s_barrier" in ops or "SYNC" in ops) + [NB - 1]
    pr = {}; lo = 0
    for hi in sync:
        for q in range(4): pr[lo + ((hi + 1 - lo) * q) // 4] = 3 - q
        lo = hi + 1
    head()
    R(0); R(1)
    for b in range(NB):
        if b in pr and b: a(f"s_setprio {pr[b]}")
        nb = b + 2
        for ch in PAT:
            if ch == "S":
                a(f"s_waitcnt lgkmcnt({min(NB, nb) * 4 - 4*(b+1)})")
                if tail and b == NB - 1: tail()
                a(f"v_smfmac_f32_16x16x64_bf16 {rg(ACC+4*acc_of(b),4)}, {rg(SEL,4)}, {rg(GD + (8*b) % 16, 8)}, v{SIDX}")
            elif ch == "A": A(nb)
            elif ch == "R": R(nb)
            elif ch == "M": emit(mf.get(b, []))
            elif ch == "C": emit(cv.get(b, []))
            elif ch == "L": L(nb)
        emit(extra.get(b, []))
    return log, vm_wait
pad(PADPRO)
for o in pre_ops(): a(o)
g_start = len(a.lines)
RAW = POOL
P16, P32 = POOL + 16, POOL + 32
def add(d, b, ops): d.setdefault(b, []).extend(ops)
def cvt(d, x, y): return f"v_cvt_pk_bf16_f32 v{d}, v{x}, v{y}"
def selfpack(d, s): return [cvt(d + q, s + 2*q, s + 2*q + 1) for q in range(8)]
def combine(d):
    ops = []
    for q in range(7, -1, -1):
        ops += [f"v_perm_b32 v{d+2*q+1}, v{d+q}, v{T8+q}, s67", f"v_perm_b32 v{d+2*q}, v{d+q}, v{T8+q}, s66"]
    return ops
def tgen(start, per, nv):
    mf = {}; cv = {}; cur = [start]
    def M(ops):
        for i in range(0, len(ops), per):
            add(mf, cur[0], ops[i:i+per]); cur[0] += 1
    def V(ops, adv=True):
        b = cur[0] + 1
        for i in range(0, len(ops), nv):
            add(cv, b, ops[i:i+nv]); b += 1
        if adv: cur[0] = b - 1
    M([tg_mfma(0, ks, e, (P16, P32)[e]) for ks in range(4) for e in range(2)])
    V([cvt(POOL + r, P16 + r, P32 + r) for r in range(16)])
    M([tg_mfma(1, ks, e, (P16, P32)[e]) for ks in range(4) for e in range(2)])
    V([cvt(P16 + r, P16 + r, P32 + r) for r in range(16)])
    M([tg_mfma(2, ks, 0, P32) for ks in range(4)])
    V(selfpack(T8, P32))
    M([tg_mfma(3, ks, 0, P32) for ks in range(4)])
    V(selfpack(P32, P32), adv=False)
    M([tg_mfma(2, ks, 1, WF) for ks in range(4)])
    V(selfpack(WF, WF) + combine(WF) + [f"v_mov_b32 v{T8+q}, v{P32+q}" for q in range(8)])
    M([tg_mfma(3, ks, 1, P32) for ks in range(4)])
    lastm = cur[0]
    V(selfpack(P32, P32) + combine(P32))
    print("tile generation: last MFMA batch", lastm - 1, "ends at", cur[0])
    assert cur[0] <= 63
    return mf, cv, lastm
SRC = [POOL + r for r in range(32)] + [WF + r for r in range(16)] + [P32 + r for r in range(16)]
NX = WF + 16
def g_tail():
    a("s_barrier"); cyc()
    a("s_setprio 3")
    for r in range(4):
        for o in wr_op(r, SRC[r]): a(o)
PA = O("pa", 50)
def w_phase(tag, vm_wait, pre, wr, early=()):
    po = pre_ops(); fill = list(pre) + ["IXW"] + po[:8]
    for o in early: a(o)
    F0 = O("wf0", 8)
    for r in range(4, 64):
        if r % 16 == 0: a(f"s_setprio {3 - r // 16}")
        if r == 52: a(f"s_cmp_eq_u32 s22, 7\ns_cbranch_scc1 {tag}")
        for o in wr_op(r, SRC[r]): a(o)
        if r >= F0 and fill:
            o = fill.pop(0)
            if o == "IXW": vm_wait(("ix", 32))
            else: a(o)
        if r == PA:
            assert not fill
            a("s_waitcnt vmcnt(0)")
            for o in wr: a(o)
            a(po[8])
    a(f"{tag}:")
def part_off(d, t): return [f"v_lshrrev_b32 v{d}, 3, v0", f"v_lshlrev_b32 v{d}, 14, v{d}", f"v_and_b32 v{t}, 7, v0", f"v_lshl_add_u32 v{d}, v{t}, 4, v{d}"]
def wf_reads(ad): return [f"ds_read_b128 {rg(WF+4*x,4)}, v{ad} offset:{XS*x}" for x in (0, 4, 1, 5, 2, 6, 3, 7)]
PB = O("pb", 6); RB = O("rb", 10); XBAT = O("xb", 17); BB = O("bb", 20)
extra = {}
add(extra, PB, [f"v_min_u32 v{RAW+2}, 7, v0", f"v_lshlrev_b32 v{RAW+2}, 7, v{RAW+2}", (pl_op(39, RAW, RAW+2), ("wfl", 0))])
add(extra, RB, [("WAIT", ("wfl", 0)), f"v_cmp_ne_u64 vcc, s[64:65], {rg(RAW,2)}", "s_cbranch_vccnz W_slow" if O("nounit", 0) != 1 else "s_nop 0", "W_back:",
                (f"buffer_load_dwordx4 {rg(RAW,4)}, v1, s[12:15], s26 offen {SC}", ("raw", 0)), "s_add_u32 s26, s26, 16384"])
CB0 = O("cb0", 1); C1 = 163836
add(extra, XBAT, [f"v_add_u32 v{RAW+4}, s33, v1", ("WAIT", ("raw", 0)), f"ds_write_b128 v{RAW+4}, {rg(RAW,4)}"])
if CB0:
    add(extra, XBAT, [f"v_mov_b32 v{RAW+6}, {C1}", f"v_mov_b32 v{RAW+7}, 1", "s_mov_b64 exec, 1", f"ds_add_u32 v{RAW+6}, v{RAW+7}", "s_mov_b64 exec, -1", "SYNC"])
    add(extra, BB - 2, [f"ds_read_b32 v{RAW+7}, v{RAW+6}"])
    add(extra, BB, [f"v_add_u32 v{RAW+4}, {XB}, v1", f"v_readfirstlane_b32 s20, v{RAW+7}", "s_cmp_lt_u32 s20, 8", "s_cbranch_scc1 J_slow", "J_back:"] + wf_reads(RAW+4))
else:
    add(extra, BB, [f"v_add_u32 v{RAW+4}, {XB}, v1", "s_barrier"] + wf_reads(RAW+4))
add(extra, BB + 1, [f"v_min_u32 v{T8+2}, 17, v0", f"v_lshlrev_b32 v{T8+2}, 3, v{T8+2}", (pl_op(29, T8, T8+2), ("wf2", 0))])
add(extra, BB + 9, [("WAIT", ("wf2", 0)), f"v_cmp_ne_u64 vcc, s[64:65], {rg(T8,2)}", "s_cbranch_vccnz Z_slow" if not O("nounit", 0) else "s_nop 0", "Z_back:"])
mf, cv, lastm = tgen(BB + 3, O("per0", 2), O("nv0", 5))
add(extra, max(lastm, 54), [(f"buffer_load_dwordx4 {rg(NX,4)}, v1, s[12:15], s26 offen {SC}", ("nx", 0)), "s_mov_b32 m0, s23"])
def g0_head():
    a("s_setprio 3\ns_waitcnt lgkmcnt(0)\ns_barrier"); cyc()
    stamp("g0")
    a("s_cmp_lt_u32 s35, 800\ns_cbranch_scc1 L_first\nL_G1:")
_, vw = gather_phase(32, mf, cv, extra, lambda b: b // 4, g0_head, g_tail)
w_phase("W_e0", vw, [f"v_add_u32 v{T8+7}, s33, v1", f"v_add_u32 v{T8+6}, {XB}, v1"] + part_off(T8+4, T8+5) + [f"v_mov_b32 v{T8+x}, -1" for x in range(4)] +
        ["s_xor_b32 s27, s34, 64", "s_lshl_b32 s3, s27, 15", "s_lshl_b32 s20, s22, 12", "s_add_u32 s3, s3, s20", f"s_add_u32 s3, s3, {HX}",
         "s_lshl_b32 s38, s27, 11", "s_lshl_b32 s20, s22, 8", "s_add_u32 s38, s38, s20", f"s_add_u32 s38, s38, {FX}", "s_xor_b32 s39, s38, 0x20000", "s_xor_b32 s37, s3, 0x200000"],
        [f"ds_write_b128 v{T8+7}, {rg(NX,4)}",
         f"buffer_store_dwordx4 {rg(T8,4)}, v{T8+4}, s[12:15], s75 offen {SC}", f"buffer_store_dwordx4 {rg(T8,4)}, v{T8+4}, s[12:15], s75 offen offset:128 {SC}",
         "s_mov_b64 exec, 0xffff", f"buffer_store_dwordx4 {rg(T8,4)}, v1, s[12:15], s38 offen {SC}", "s_mov_b64 exec, -1"])
mf, cv, lastm = tgen(O("ts1", 1), O("per1", 1), O("nv1", 4))
extra = {}
add(extra, 2, [f"s_lshl_b32 s26, s25, 16", "s_lshl_b32 s27, s22, 10", "s_add_u32 s26, s26, s27", f"s_add_u32 s26, s26, {WFR + 6*8192}"])
add(extra, max(lastm, 54), [f"v_and_b32 v{NX}, 0x27f, v1", (f"buffer_load_dwordx4 {rg(NX,4)}, v{NX}, s[12:15], s26 offen {SC}", ("nx", 0)), "s_mov_b32 m0, s23"])
def g1_head():
    a("s_setprio 3\ns_waitcnt lgkmcnt(0)\ns_barrier"); cyc()
    stamp("g1")
    for o in wf_reads(T8+6): a(o)
_, vw = gather_phase(32, mf, cv, extra, lambda b: b // 4, g1_head, g_tail)
A0 = T8 + 4; XW = POOL
mid = [f"v_lshrrev_b32 v{T8}, 5, v0", f"v_lshlrev_b32 v{T8}, 7, v{T8}", f"v_and_b32 v{T8+1}, 7, v0", f"v_lshl_add_u32 v{T8}, v{T8+1}, 4, v{T8}",
       "s_lshl_b32 s20, s22, 8", f"s_add_u32 s20, s20, {PADR}", f"v_add_u32 v{T8}, s20, v{T8}",
       f"v_and_b32 v{A0}, 1, v0", f"v_lshlrev_b32 v{A0}, 10, v{A0}", f"v_bfe_u32 v{A0+1}, v0, 1, 1", f"v_lshl_add_u32 v{A0}, v{A0+1}, 4, v{A0}",
       f"v_bfe_u32 v{A0+1}, v0, 3, 1", f"v_lshl_add_u32 v{A0}, v{A0+1}, 5, v{A0}", f"v_bfe_u32 v{A0+1}, v0, 2, 1", f"v_lshl_add_u32 v{A0}, v{A0+1}, 6, v{A0}",
       f"v_lshrrev_b32 v{A0+1}, 5, v0", f"v_lshl_add_u32 v{A0}, v{A0+1}, 7, v{A0}", f"v_add_u32 v{A0}, {PADR}, v{A0}",
       f"v_mov_b32 v{T8+2}, {PADR + 2048}", f"v_mov_b32 v{T8+1}, 0", f"ds_write_b32 v{T8+2}, v{T8+1}",
       "s_and_b32 s27, s24, 1", "s_xor_b32 s27, s27, 1", "s_lshl_b32 s47, s27, 14", f"v_lshlrev_b32 v{VT}, 3, v0"]
F2OPS = ["s_cmp_lg_u32 s22, 0", "s_cbranch_scc1 G_nf2", "s_lshl_b32 s31, s34, 3", f"s_add_u32 s31, s31, {F2}"] + flag_ops(31, T8) + ["G_nf2:"]
w_phase("W_e1", vw, mid, [f"ds_write_b128 v{T8}, {rg(NX,4)}"])
XW = WF + 16
a(f"s_cmp_lg_u32 s22, {FIN}\ns_cbranch_scc1 L_Glast")
a(f"v_and_b32 v{T8}, 7, v0\nv_bfe_u32 v{T8+1}, v0, 3, 1\nv_lshl_add_u32 v{T8}, v{T8+1}, 5, v{T8}\nv_lshrrev_b32 v{T8+1}, 4, v0\nv_lshl_add_u32 v{T8}, v{T8+1}, 3, v{T8}\nv_mul_u32_u24 v{T8}, 26, v{T8}\nv_add_u32 v{T8}, {XWL}, v{T8}\nv_mov_b32 v{T8+1}, {XWL+2048}\nv_lshl_add_u32 v{T8+2}, v0, 2, v{T8+1}")
for k in range(13): a(f"ds_read_u16_d16_hi v{XW+k}, v{T8} offset:{2*k}")
a(f"ds_read_u16_d16_hi v{XW+13}, v{T8+1}\nds_read_u16_d16_hi v{XW+14}, v{T8+1} offset:256\nds_read_u16_d16_hi v{XW+15}, v{T8+2} offset:512")
a("L_Glast:")
HR = TAB + 20
extra = {}; mf = {}; cv = {}
BB = 0
add(extra, 0, F2OPS)
VSP = T8 + 6
add(cv, BB + 1, pi_ops(VSP, VSP+1) + [f"v_lshlrev_b32 v{VSP}, 5, v{VSP}"])
add(cv, BB + 2, [f"v_lshrrev_b32 v{A0}, 5, v0", f"v_bfe_u32 v{VSP+1}, v0, 1, 1", f"v_xor_b32 v{VSP+1}, v{VSP+1}, v{A0}", f"v_lshl_add_u32 v{VSP}, v{VSP+1}, 4, v{VSP}",
                 "s_lshl_b32 s31, s22, 11", "s_add_u32 s31, s31, 131072", f"v_add_u32 v{VSP}, s31, v{VSP}"])
S0 = BB + 3
for mt in range(4):
    d = POOL + 16*(mt % 3)
    for ks in range(4):
        add(mf, S0 + 4*mt + ks, [f"v_mfma_f32_32x32x16_bf16 {rg(d,16)}, {rg(WF+4*ks,4)}, {rg(TAB+16*mt+4*ks,4)}, {'0' if ks == 0 else rg(d,16)}"])
    add(cv, S0 + 4*mt + 5, [cvt(d + x, d + 2*x, d + 2*x + 1) for x in range(4)])
    add(extra, S0 + 4*mt + 5, [f"ds_write_b128 v{VSP}, {rg(d,4)} offset:{(32*(mt & 1) + 512*(mt >> 1)) * 32}"])
if O("nosp", 0): mf = {}; extra = {k: [o for o in v if "ds_write_b128" not in str(o)] for k, v in extra.items()}
CB = O("cb", 0)
C2 = PADR + 2048
if CB:
    add(extra, S0 + 17, [f"v_mov_b32 v{A0}, {C2}", f"v_mov_b32 v{A0+1}, 1", "s_mov_b64 exec, 1", f"ds_add_u32 v{A0}, v{A0+1}", "s_mov_b64 exec, -1"])
    add(extra, 57, [f"ds_read_b32 v{A0+1}, v{A0}"])
    add(extra, 60, [f"v_readfirstlane_b32 s20, v{A0+1}", "s_cmp_lt_u32 s20, 8", "s_cbranch_scc1 K_slow", "K_back:"])
elif not O("nomb", 0): add(extra, O("mbat", 58), ["s_barrier"])
for t in range(4):
    b = 8*t + 9; s = ACC + 8*t
    add(cv, b, [cvt(s + x, s + 2*x, s + 2*x + 1) for x in range(4)])
    add(extra, b, [(f"buffer_store_dwordx4 {rg(s,4)}, v1, s[12:15], s3 offen offset:{1024*t} {SC}" if not O("nohs", 0) else f"buffer_load_dword v{HR+8}, v1, s[60:63], 0 offen", ("hs", t))])
def hl_op(t): return f"buffer_load_dwordx4 {rg(ACC+8*t+4,4)}, v1, s[12:15], s37 offen offset:{1024*t} {SC}"
NA = O("na", 2)
FA, PA_, CA, SA = O("fa", 8*NA + 7), O("pa1", 40), O("ca", 45), O("sa", 4)
FB, PB_, CB_ = O("fb", 39), O("pb1", 56), O("cb1", 61)
add(extra, FA, [("WAIT", ("hs", NA - 1)) if not O("hstrict", 0) else "s_waitcnt vmcnt(0)"] + line_flag_ops(38, HR + 4, ("fl", 0)) + ["s_add_u32 s38, s38, 128"])
if NA < 4: add(extra, FB, [("WAIT", ("hs", 3)) if not O("hstrict", 0) else "s_waitcnt vmcnt(0)"] + line_flag_ops(38, HR + 4, ("fl", 1)))
add(extra, PA_, [f"v_mov_b32 v{HR+2}, 0", (pl_op(39, HR, HR+2), ("hp", 0))])
add(extra, CA, [("WAIT", ("hp", 0)), f"v_cmp_ne_u64 vcc, s[64:65], {rg(HR,2)}", "s_cbranch_vccnz H_slow", "H_back:", "s_add_u32 s39, s39, 128"])
for t in range(NA): add(extra, CA + SA*t, [(hl_op(t), ("hl", t))])
if NA < 4: add(extra, PB_, [(pl_op(39, HR, HR+2), ("hp", 1))])
if NA == 4: add(extra, CB_, ["I_back:"])
else: add(extra, CB_, [("WAIT", ("hp", 1)), f"v_cmp_ne_u64 vcc, s[64:65], {rg(HR,2)}", "s_cbranch_vccnz I_slow", "I_back:"] + [(hl_op(t), ("hl", t)) for t in range(NA, 4)])
Y = TAB; K = ACC + 32
def epi(s):
    r = ACC + 8*(s >> 1) + 4 + 2*(s & 1); t = POOL + 24
    w = [("WAIT", ("hl", s >> 1))] if s % 2 == 0 else []
    return w + [f"v_lshlrev_b32 v{t}, 16, v{r}", f"v_and_b32 v{t+1}, s27, v{r}", f"v_lshlrev_b32 v{t+2}, 16, v{r+1}", f"v_and_b32 v{t+3}, s27, v{r+1}",
            f"v_pk_add_f32 {rg(t,2)}, {rg(t,2)}, {rg(K+4*s,2)}", f"v_pk_add_f32 {rg(t+2,2)}, {rg(t+2,2)}, {rg(K+4*s+2,2)}",
            cvt(POOL+2*s, t, t+1), cvt(POOL+2*s+1, t+2, t+3),
            f"v_pk_max_i16 v{POOL+2*s}, v{POOL+2*s}, 0", f"v_pk_max_i16 v{POOL+2*s+1}, v{POOL+2*s+1}, 0",
            f"v_dot2_f32_bf16 v{POOL+16+s}, v{POOL+2*s}, s72, 0", f"v_dot2_f32_bf16 v{POOL+16+s}, v{POOL+2*s+1}, s73, v{POOL+16+s}"]
def epi2(s): return [f"v_min_u32 v{POOL+16+s}, s33, v{POOL+16+s}"]
st0 = f"buffer_store_dwordx4 {rg(POOL+16,4)}, v{Y+14}, s[12:15], s75 offen {SC}"
st1 = f"buffer_store_dwordx4 {rg(POOL+20,4)}, v{Y+14}, s[12:15], s75 offen offset:128 {SC}"
add(extra, 62, ["s_mov_b32 s33, -2", "s_mov_b32 s27, 0xffff0000"])
add(extra, O("f2at", 35), ["s_lshl_b32 s31, s24, 9", f"s_add_u32 s31, s31, {F2}", f"v_lshlrev_b32 v{Y+18}, 3, v0", (pl_op(31, Y+16, Y+18), ("f2", 0))])
add(cv, 58, part_off(Y+14, Y+15) + [f"v_lshlrev_b32 v{Y+12}, 2, v0", f"v_add_u32 v{Y+12}, {PADR}, v{Y+12}"])
add(cv, 59, ["s_lshl_b32 s29, s34, 14", "s_lshl_b32 s20, s22, 11", "s_add_u32 s29, s29, s20", f"s_add_u32 s29, s29, {PART}", "s_lshl_b32 s20, s22, 8", f"v_add_u32 v{Y+13}, s20, v{Y+12}",
             f"v_and_b32 v{Y+10}, 7, v0", f"v_bfe_u32 v{Y+11}, v0, 3, 1", f"v_lshl_add_u32 v{Y+10}, v{Y+11}, 5, v{Y+10}"])
add(cv, 60, [f"v_lshrrev_b32 v{Y+11}, 4, v0", f"v_lshl_add_u32 v{Y+10}, v{Y+11}, 3, v{Y+10}", "s_lshl_b32 s20, s34, 6", f"v_add_u32 v{Y+10}, s20, v{Y+10}", f"v_lshlrev_b32 v{Y+10}, 1, v{Y+10}",
             "s_mov_b32 s8, s54", "s_and_b32 s9, s55, 0xffff", "s_mov_b32 s10, 32768", "s_mov_b32 s11, 0x00020000"])
for s in range(7): add(cv, 65 + s, epi(s) + (epi2(s-1) if s else []))
add(extra, 69, [(st0, ("st", 0))])
add(extra, 36, ["STAMP b33"]); add(extra, 59, ["STAMP b60"])
if CYC == 1:
    add(extra, 61, cyc_ops())
    add(extra, 30, cyc_ops())
if CYC == 2:
    for b in [int(x) for x in opts.get("at", "8,16,24,30,32,38,40,49,51,58,63,65").split(",")]: add(extra, b, cyc_ops())
if U0 < 36:
    B0 = O("b0", S0 + 18); BR = O("br", 1)
    add(extra, B0 - 1, ["s_lshl_b32 s21, s24, 3", "s_add_u32 s21, s21, s22", "s_mul_i32 s21, s21, 102400", "s_add_u32 s36, s21, 98304", "s_and_b32 s20, s24, 1", "s_lshl_b32 s20, s20, 14",
                        "s_add_u32 s21, s21, s20", f"s_add_u32 s21, s21, {65536 + 4096*((U0-16)//4)}"])
    for u in range(U0, 36):
        b = B0 + (u - U0) // BR; q = BIGQ[u - U0]
        if u < 32:
            add(extra, b, [(f"buffer_load_dwordx4 {rg(q,4)}, v1, s[12:15], s21 offen offset:{1024*(u&3)} {SC}", ("ix", u))] + (["s_add_u32 s21, s21, 4096"] if u & 3 == 3 else []))
        else:
            add(extra, b, [(f"buffer_load_dwordx2 {rg(q+2*h,2)}, v{VT}, s[12:15], s36 offen offset:{1024*(u&3)+512*h} {SC}", ("ix", u)) for h in range(2)])
def gl_head():
    a("s_setprio 3\ns_waitcnt lgkmcnt(0)\ns_barrier"); cyc()
    stamp("gl")
    for x in range(4): a(f"ds_read_b128 {rg(WF+4*x,4)}, v{A0} offset:{256*x}")
gather_phase(36, mf, cv, extra, lambda b: b // 4 if b < 64 else b - 56, gl_head)
cyc()
stamp()
for o in epi(7) + epi2(6): a(o)
a("s_nop 1")
for o in epi2(7): a(o)
a(st1)
VW = T8
a(f"s_mov_b32 s20, 0\ns_cmp_lg_u32 s22, {FIN}\ns_cbranch_scc1 R_f2")
for k in range(16): a(f"v_and_b32 v{XW+k}, s27, v{XW+k}")
a("s_nop 0")
for k in range(13): a(f"v_readlane_b32 s{36+k}, v{XW+15}, {k}")
a(f"v_readfirstlane_b32 s74, v{XW+14}\nv_mul_f32 v{VW}, s36, v{XW}")
for k in range(1, 13): a(f"v_fmac_f32 v{VW}, s{36+k}, v{XW+k}")
rnd(VW); a(f"v_add_f32 v{VW}, v{VW}, v{XW+13}"); rnd(VW)
a("R_f2:")
a(f"s_waitcnt vmcnt(0)\nv_cmp_ne_u64 vcc, s[64:65], {rg(Y+16,2)}\ns_cbranch_vccz R_f2ok")
a(f"s_sleep 1\n{pl_op(31, Y+16, Y+18)}\ns_add_u32 s20, s20, 1\ns_cmp_lt_u32 s20, 0x8000\ns_cbranch_scc1 R_f2")
a("R_f2ok:")
a("s_mov_b32 s20, 0")
a("R_poll:")
a(f"buffer_load_dwordx4 {rg(Y,4)}, v1, s[12:15], s29 offen {SC}\nbuffer_load_dwordx4 {rg(Y+4,4)}, v1, s[12:15], s29 offen offset:1024 {SC}")
a("s_add_u32 s20, s20, 1\ns_waitcnt vmcnt(0)")
a(f"v_max3_u32 v{Y+8}, v{Y}, v{Y+1}, v{Y+2}\nv_max3_u32 v{Y+9}, v{Y+3}, v{Y+4}, v{Y+5}\nv_max3_u32 v{Y+8}, v{Y+8}, v{Y+6}, v{Y+7}\nv_max_u32 v{Y+8}, v{Y+8}, v{Y+9}")
a(f"v_cmp_eq_u32 vcc, -1, v{Y+8}\ns_cbranch_vccz R_ok")
if O("rmask", 0): a("s_mov_b64 exec, vcc")
a(f"s_sleep {RSLEEP}\ns_cmp_lt_u32 s20, 0x8000\ns_cbranch_scc1 R_poll")
a("R_ok:")
if O("rmask", 0): a("s_mov_b64 exec, -1")
stamp("y3")
for x in range(4): a(f"v_add_f32 v{Y+x}, v{Y+x}, v{Y+4+x}")
a(f"s_nop 0\nv_permlane32_swap_b32 v{Y}, v{Y+2}\nv_permlane32_swap_b32 v{Y+1}, v{Y+3}\ns_nop 0\nv_add_f32 v{Y}, v{Y}, v{Y+2}\nv_add_f32 v{Y+1}, v{Y+1}, v{Y+3}\ns_nop 1\nv_permlane16_swap_b32 v{Y}, v{Y+1}\ns_nop 0\nv_add_f32 v{Y}, v{Y}, v{Y+1}")
a(f"ds_write_b32 v{Y+13}, v{Y}\ns_waitcnt lgkmcnt(0)\ns_barrier")
a(f"s_cmp_lg_u32 s22, {FIN}\ns_cbranch_scc1 M_fin")
for k in range(8): a(f"ds_read_b32 v{Y+k}, v{Y+12} offset:{256*k}")
a("s_waitcnt lgkmcnt(0)")
a(f"v_add_f32 v{Y}, v{Y}, v{Y+1}\nv_add_f32 v{Y+2}, v{Y+2}, v{Y+3}\nv_add_f32 v{Y+4}, v{Y+4}, v{Y+5}\nv_add_f32 v{Y+6}, v{Y+6}, v{Y+7}\nv_add_f32 v{Y}, v{Y}, v{Y+2}\nv_add_f32 v{Y+4}, v{Y+4}, v{Y+6}\nv_add_f32 v{Y}, v{Y}, v{Y+4}")
rnd(Y); a(f"v_add_f32 v{Y}, s74, v{Y}"); rnd(Y)
a(f"v_add_f32 v{Y}, v{Y}, v{VW}"); rnd(Y)
a(f"v_mul_f32 v{Y}, 0xbfb8aa3b, v{Y}\nv_exp_f32 v{Y}, v{Y}\ns_nop 0\nv_add_f32 v{Y}, 1.0, v{Y}\nv_rcp_f32 v{Y}, v{Y}\ns_nop 0\nv_cvt_pk_bf16_f32 v{Y}, v{Y}, v{Y}")
a(f"buffer_store_short v{Y}, v{Y+10}, s[8:11], 0 offen sc0 sc1")
a("M_fin:")
PROBE = O("probe", -1)
if PROBE >= 0:
    a(f"s_cmp_lg_u32 s22, {SW}\ns_cbranch_scc1 M_end\ns_waitcnt vmcnt(0)")
    if O("pwg", -1) >= 0: a(f"s_cmp_lg_u32 s2, {O('pwg', 0)}\ns_cbranch_scc1 M_end")
    stamp()
    a(f"s_waitcnt lgkmcnt(0)\ns_sub_u32 s20, s{76+2*PROBE}, s64\ns_mul_i32 s20, s20, {O('gain', 10)}\ns_add_u32 s20, s20, 4000")
    a("PRB:\ns_memrealtime s[32:33]\ns_waitcnt lgkmcnt(0)\ns_sub_u32 s32, s32, s64\ns_cmp_lt_i32 s32, s20\ns_cbranch_scc1 PRB")
elif STAMP:
    a(f"s_cmp_lg_u32 s22, {SW}\ns_cbranch_scc1 M_end\ns_waitcnt vmcnt(0)")
    stamp()
    a("s_waitcnt lgkmcnt(0)")
    n = nst[0]
    if O("mt", 0):
        for k in range(n - 1, -1, -1): a(f"s_sub_u32 s{76+2*k}, s{76+2*k}, s76\ns_mov_b32 s{77+2*k}, 0")
    if CYC:
        n = 13
        for k in range(1, 12): a(f"s_sub_u32 s{76+2*k}, s{76+2*k}, s{78+2*k}\ns_mov_b32 s{77+2*k}, 0")
        a("s_mov_b32 s76, 0\ns_mov_b32 s77, 0\ns_mov_b32 s100, 0\ns_mov_b32 s101, 0")
    elif PADPRO: a("s_mov_b32 s76, s64\ns_and_b32 s77, s65, 0x7fffffff")
    a(f"s_mul_i32 s31, s2, {8*n}\ns_add_u32 s31, s31, 0x8000000\nv_mov_b32 v2, 0")
    for k in range(n):
        a(f"v_mov_b32 v4, s{76+2*k}\nv_mov_b32 v5, s{77+2*k}\nbuffer_store_dwordx2 v[4:5], v2, s[12:15], s31 offen offset:{8*k}\ns_waitcnt vmcnt(0)")
    print("nstamps", n)
a("M_end:\ns_endpgm")
a("L_first:")
a("s_waitcnt vmcnt(0)\ns_cmp_lg_u32 s22, 1\ns_cbranch_scc1 L_f2")
for o in line_flag_ops(38, WF): a(o)
a("s_branch L_G1\nL_f2:")
flag_store(38, WF)
a("s_branch L_G1")
for tg, sr, t in (("W", 39, RAW), ("Z", 29, T8), ("H", 39, HR), ("I", 39, HR)):
    a(f"{tg}_slow:")
    poll_check(sr, t, t+2, 63, O("hsleep", 1))
    a(f"s_branch {tg}_back")
def cnt_slow(tag, ad):
    a(f"{tag}_slow:\ns_mov_b32 s21, 0\n{tag}_l:\nds_read_b32 v{ad+1}, v{ad}\ns_add_u32 s21, s21, 1\ns_waitcnt lgkmcnt(0)\nv_readfirstlane_b32 s20, v{ad+1}")
    a(f"s_cmp_ge_u32 s20, 8\ns_cbranch_scc1 {tag}_back\ns_cmp_lt_u32 s21, 0x100000\ns_cbranch_scc1 {tag}_l\ns_branch {tag}_back")
if CB: cnt_slow("K", A0)
if CB0: cnt_slow("J", RAW+6)
a("C_end:\ns_endpgm")
L = a.lines
errs = hazard.check_all(L[st:], "main")
a.raw(kernel_desc(MAIN, 256, 102, 256))
for e in sorted(set(errs))[:5]: print("HAZARD", e)
open(sys.argv[1], "w").write(a.text())
```

```python
import sys, re
from common import *
import hazard
opts = dict(x.split("=") for x in sys.argv[2:])
def O(k, d): return int(opts.get(k, d))
STAMP = O("stamp", 0); SW = O("sw", 7); SC = "sc1"; SLEEP = O("sleep", 1); RSLEEP = O("rsleep", 2)
WS_BYTES = 268435456
WFR = 4 << 20; PART = 8 << 20; FI = 16 << 20; FW = FI + 16384; F2 = FI + 32768; FE = FI + 65536; FX = 17 << 20; HX = 20 << 20
STG = 131072; XWL = STG + 25600; XB = 131072; XS = 3200; PADR = 128000
DOC = """;
; Generated by a script written for this kernel (gen/h4.py)."""
a = Asm()
a.raw(HEADER_COMMENT.rstrip("\n"))
a.raw("; @launch grid=(256,1,1) block=(512,1,1) lds=163840")
a.raw(DOC)
a.raw('.amdgcn_target "amdgcn-amd-amdhsa--gfx950"')
kernel_begin(a, MAIN)
LN = 0; VL16 = 1
TAB = 2; ACC = 66; WF = 130; POOL = 162; T8 = 210; GD = 218; IX = 234; SEL = 250; SIDX = 254; VT = 255
T = ACC; U = T8; WR_ = GD; AD = IX + 12; TD = POOL; FR = POOL + 4
FIN = 7
def rg(b, n): return f"v[{b}:{b+n-1}]"
nst = [0]; lab = [0]
SKIP = set(opts.get("skip", "g0,g1,gl,b33,b60").split(","))
CYC = O("cyc", 0)
def stamp(name="-"):
    if STAMP and name not in SKIP and not (CYC and nst[0] >= 1):
        k = nst[0]; nst[0] += 1
        assert k < 13
        a(f"{'s_memtime' if O('mt', 0) else 's_memrealtime'} s[{76+2*k}:{77+2*k}]")
def cyc_ops(): return [f"s_mov_b32 s{76+2*k}, s{74+2*k}" for k in range(12, 1, -1)] + ["s_memtime s[78:79]", "s_waitcnt lgkmcnt(0)"] if CYC else []
def cyc():
    for o in cyc_ops(): a(o)
def newlab(p):
    lab[0] += 1; return f"{p}{lab[0]}"
def rnd(r): a(f"v_cvt_pk_bf16_f32 v{r}, v{r}, v{r}\nv_lshlrev_b32 v{r}, 16, v{r}")
PADPRO = O("padpro", 0)
def pad(ticks):
    if not ticks: return
    l = newlab("PAD_")
    a(f"{l}:\ns_memrealtime s[32:33]\ns_waitcnt lgkmcnt(0)\ns_sub_u32 s32, s32, s64\ns_cmp_lt_i32 s32, {ticks}\ns_cbranch_scc1 {l}")
st = len(a.lines)
a("s_cmp_ge_u32 s2, 256\ns_cbranch_scc1 M_end")
stamp()
a("s_load_dwordx16 s[36:51], s[0:1], 0\ns_load_dwordx8 s[52:59], s[0:1], 64\ns_memrealtime s[64:65]")
NCP = O("ncp", 8)
a(f"s_getpc_b64 s[32:33]\nC_base:\ns_lshr_b32 s29, s2, 3\ns_mul_i32 s20, s29, {128*NCP}\nv_lshl_add_u32 v{VT}, v0, 7, s20\nv_min_u32 v{VT}, C_end-C_base, v{VT}")
a(f"v_cmp_gt_u32 vcc, {NCP}, v0\ns_and_saveexec_b64 s[20:21], vcc\ns_cbranch_execz C_skip\nglobal_load_dword v{VT}, v{VT}, s[32:33]\nC_skip:\ns_mov_b64 exec, -1")
a(f"v_lshrrev_b32 v{T}, 6, v0\nv_and_b32 v0, 63, v0\nv_lshlrev_b32 v1, 4, v0\nv_readfirstlane_b32 s22, v{T}")
if O("map", 1) == 0:
    a("s_and_b32 s20, s2, 7\ns_lshr_b32 s24, s20, 1\ns_and_b32 s20, s20, 1\ns_lshl_b32 s20, s20, 5\ns_add_u32 s25, s20, s29")
else:
    a("s_bfe_u32 s24, s2, 0x10002\ns_lshl_b32 s24, s24, 1\ns_and_b32 s20, s29, 1\ns_add_u32 s24, s24, s20\ns_and_b32 s20, s2, 3\ns_lshl_b32 s20, s20, 4\ns_lshr_b32 s25, s29, 1\ns_add_u32 s25, s25, s20")
a("s_lshl_b32 s34, s24, 6\ns_add_u32 s34, s34, s25")
a("s_lshl_b32 s35, s22, 8\ns_add_u32 s35, s35, s34")
a(f"v_lshrrev_b32 v{U}, 4, v0\nv_and_b32 v{U+1}, 15, v0\nv_lshlrev_b32 v{U+2}, 15, v{U}\nv_lshl_add_u32 v{U+2}, v{U+1}, 3, v{U+2}\nv_mov_b32 v{U+5}, 0")
a("s_lshr_b32 s20, s35, 5\ns_lshl_b32 s20, s20, 17\ns_bfe_u32 s21, s35, 0x30002\ns_lshl_b32 s21, s21, 12\ns_add_u32 s20, s20, s21\ns_and_b32 s21, s35, 3\ns_lshl_b32 s21, s21, 7\ns_add_u32 s31, s20, s21")
a(f"s_mul_i32 s20, s34, 25600\ns_mul_i32 s21, s22, 3200\ns_add_u32 s20, s20, s21\ns_add_u32 s33, s21, {STG}\ns_mov_b32 m0, s33")
a("s_lshl_b32 s23, s22, 13\ns_add_u32 s30, s23, 8064")
a("s_mov_b32 s18, 3276800\ns_mov_b32 s19, 0x00020000\ns_mov_b32 s6, 6553600\ns_mov_b32 s7, 0x00020000")
a(f"s_mov_b32 s62, 256\ns_mov_b32 s63, 0x00020000\ns_mov_b32 s14, {WS_BYTES}\ns_mov_b32 s15, 0x00020000\ns_mov_b32 s10, 128000\ns_mov_b32 s11, 0x00020000")
a("s_mov_b32 s66, 0x05040100\ns_mov_b32 s67, 0x07060302")
a("s_waitcnt lgkmcnt(0)")
stamp()
a("s_mov_b32 s16, s46\ns_and_b32 s17, s47, 0xffff\ns_mov_b32 s4, s36\ns_and_b32 s5, s37, 0xffff")
a("s_mov_b32 s60, s56\ns_and_b32 s61, s57, 0xffff")
a("s_cmp_lg_u32 s22, 6\ns_cbranch_scc1 P_n0\ns_cmp_ge_u32 s2, 8\ns_cbranch_scc1 P_n0")
a(f"v_mov_b32 v{T+4}, s64\nv_mov_b32 v{T+5}, s65\nv_mov_b32 v{T+6}, 0\nv_mov_b32 v{T+7}, 0\nv_or_b32 v{T+5}, 0x80000000, v{T+5}\ns_mov_b64 exec, 1")
a(f"buffer_atomic_cmpswap_x2 {rg(T+4,4)}, v{T+6}, s[60:63], 0 offen {SC}\ns_mov_b64 exec, -1\ns_nop 1")
a("P_n0:")
def w1_loads(sreg=31):
    for j8 in range(8):
        a(f"buffer_load_dwordx2 {rg(WR_+2*j8,2)}, v{U+2}, s[16:19], s{sreg} offen offset:{512*j8}")
a("s_cmp_lg_u32 s22, 0\ns_cbranch_scc1 P_now1")
w1_loads()
a("P_now1:")
for r in range(3):
    a(f"buffer_load_dwordx4 v1, s[4:7], s20 offen offset:{1024*r} lds")
a("s_mov_b64 exec, 0xff\nbuffer_load_dwordx4 v1, s[4:7], s20 offen offset:3072 lds\ns_mov_b64 exec, -1")
a("s_mov_b32 s8, s38\ns_and_b32 s9, s39, 0xffff\ns_mov_b32 s12, s58\ns_and_b32 s13, s59, 0xffff")
a("s_barrier")
a("s_cmp_lg_u32 s22, 5\ns_cbranch_scc1 P_n5\ns_load_dword s74, s[56:57], 192\nP_n5:")
a("s_cmp_lt_u32 s22, 4\ns_cbranch_scc1 P_lo\ns_cmp_lg_u32 s22, 4\ns_cbranch_scc1 P_skip")
a(f"v_and_b32 v{VT}, 31, v0\nv_lshlrev_b32 v{VT}, 7, v{VT}\ns_lshl_b32 s21, s29, 12\nbuffer_load_dword v{VT}, v{VT}, s[8:11], s21 offen\ns_branch P_skip")
def nonce_load(): a("s_load_dwordx2 s[64:65], s[56:57], 0")
def nonce_get():
    l = newlab("N_")
    a(f"s_waitcnt lgkmcnt(0)\ns_cmp_lt_i32 s65, 0\ns_cbranch_scc1 {l}ok\ns_mov_b32 s20, 0\nv_mov_b32 v{AD}, 0")
    a(f"{l}:")
    a(f"buffer_load_dwordx2 {rg(AD+2,2)}, v{AD}, s[60:63], 0 offen {SC}\ns_add_u32 s20, s20, 1\ns_waitcnt vmcnt(0)")
    a(f"v_readfirstlane_b32 s64, v{AD+2}\nv_readfirstlane_b32 s65, v{AD+3}\ns_cmp_lt_i32 s65, 0\ns_cbranch_scc1 {l}ok")
    a(f"s_sleep 1\ns_cmp_lt_u32 s20, 0x8000\ns_cbranch_scc1 {l}")
    a(f"{l}ok:")
def flag_ops(sreg, t):
    return [f"v_mov_b32 v{t+2}, 0", f"v_mov_b32 v{t}, s64", f"v_mov_b32 v{t+1}, s65", "s_mov_b64 exec, 1",
            f"buffer_store_dwordx2 {rg(t,2)}, v{t+2}, s[12:15], s{sreg} offen {SC}", "s_mov_b64 exec, -1"]
def line_flag_ops(sreg, t, tag=None):
    st_ = f"buffer_store_dwordx4 {rg(t,4)}, v1, s[12:15], s{sreg} offen {SC}"
    return [f"v_mov_b32 v{t}, s64", f"v_mov_b32 v{t+1}, s65", f"v_mov_b32 v{t+2}, s64", f"v_mov_b32 v{t+3}, s65", "s_mov_b64 exec, 0xff",
            (st_, tag) if tag else st_, "s_mov_b64 exec, -1"]
def flag_store(sreg, t=AD):
    for o in flag_ops(sreg, t): a(o)
def w1_process(PR, RB, sreg):
    for c in range(4):
        for d in range(4):
            a(f"v_perm_b32 v{PR+4*c+d}, v{WR_+2*(2*d+1)+(c>>1)}, v{WR_+2*(2*d)+(c>>1)}, s{66+(c&1)}")
    for c in range(4):
        a(f"ds_write_b128 v{U+3}, {rg(PR+4*c,4)} offset:{(c&1)*128 + (c>>1)*16}")
    a("s_waitcnt lgkmcnt(0)")
    for r in range(4):
        a(f"ds_read_b128 {rg(RB+4*r,4)}, v{U+4} offset:{r*4*272}")
    for r in range(4):
        a(f"s_waitcnt lgkmcnt({3-r})\nbuffer_store_dwordx4 {rg(RB+4*r,4)}, v{U+5}, s[12:15], s{sreg} offen {SC}\ns_add_u32 s{sreg}, s{sreg}, {4*65536}")
a("P_lo:")
a("s_cmp_ge_u32 s35, 800\ns_cbranch_scc1 P_skip")
a("s_add_u32 s21, s23, 0x10000")
a(f"v_mul_u32_u24 v{U+3}, 272, v{U+1}\nv_lshl_add_u32 v{U+3}, v{U}, 5, v{U+3}\nv_add_u32 v{U+3}, s21, v{U+3}")
a(f"v_mul_u32_u24 v{U+4}, 272, v{U}\nv_lshl_add_u32 v{U+4}, v{U+1}, 4, v{U+4}\nv_add_u32 v{U+4}, s21, v{U+4}")
a(f"v_lshlrev_b32 v{U+5}, 16, v{U}\nv_bfe_u32 v{U+6}, v0, 3, 1\nv_lshl_add_u32 v{U+5}, v{U+6}, 12, v{U+5}\nv_and_b32 v{U+6}, 7, v0\nv_lshl_add_u32 v{U+5}, v{U+6}, 4, v{U+5}")
a("s_and_b32 s26, s35, 3\ns_lshl_b32 s26, s26, 20\ns_lshr_b32 s21, s35, 7\ns_lshl_b32 s21, s21, 13\ns_add_u32 s26, s26, s21\ns_bfe_u32 s21, s35, 0x30002\ns_lshl_b32 s21, s21, 9\ns_add_u32 s26, s26, s21")
a(f"s_bfe_u32 s21, s35, 0x20005\ns_lshl_b32 s21, s21, 7\ns_add_u32 s26, s26, s21\ns_add_u32 s26, s26, {WFR}")
a(f"s_and_b32 s75, s35, 3\ns_lshl_b32 s75, s75, 11\ns_bfe_u32 s21, s35, 0x20003\ns_lshl_b32 s21, s21, 9\ns_add_u32 s75, s75, s21\ns_lshr_b32 s21, s35, 5\ns_lshl_b32 s21, s21, 4\ns_add_u32 s75, s75, s21\ns_bfe_u32 s21, s35, 0x10002\ns_lshl_b32 s21, s21, 3\ns_add_u32 s75, s75, s21\ns_add_u32 s75, s75, {FW}")
a("s_cmp_ge_u32 s22, 2\ns_cbranch_scc1 P_skip")
a("s_and_b32 s75, s35, 3\ns_lshl_b32 s75, s75, 14\ns_lshr_b32 s21, s35, 7\ns_lshl_b32 s21, s21, 12\ns_add_u32 s75, s75, s21\ns_bfe_u32 s21, s35, 0x20003\ns_lshl_b32 s21, s21, 10\ns_add_u32 s75, s75, s21")
a(f"s_bfe_u32 s21, s35, 0x20005\ns_lshl_b32 s21, s21, 8\ns_add_u32 s75, s75, s21\ns_bfe_u32 s21, s35, 0x10002\ns_lshl_b32 s21, s21, 7\ns_add_u32 s75, s75, s21\ns_add_u32 s75, s75, {FE}")
EPRE = O("epre", 0)
if EPRE:
    for x in range(4): a(f"v_mov_b32 v{AD+x}, 0")
    if EPRE == 1: a("s_cmp_eq_u32 s22, 0\ns_cbranch_scc1 P_e0")
    a(f"s_mov_b64 exec, 0xff\nbuffer_store_dwordx4 {rg(AD,4)}, v1, s[12:15], s75 offen {SC}\ns_mov_b64 exec, -1")
a("s_cmp_lg_u32 s22, 0\ns_cbranch_scc1 P_skip\nP_e0:")
a(f"s_waitcnt vmcnt({5 if EPRE == 2 else 4})")
w1_process(WF, WF+16, 26)
nonce_load()
a("P_skip:")
a(f"v_and_b32 v{T+4}, 7, v0\nv_lshrrev_b32 v{T+5}, 3, v0")
a(f"s_and_b32 s20, s34, 1\ns_lshl_b32 s20, s20, 3\nv_add_u32 v{T+6}, s20, v{T+4}")
a(f"v_mul_u32_u24 v{T+7}, 400, v{T+4}\nv_add_u32 v{T+7}, s33, v{T+7}")
a(f"v_and_b32 v{T+8}, 1, v{T+5}\nv_lshrrev_b32 v{T+9}, 1, v{T+5}")
a(f"v_lshlrev_b32 v{T+10}, 3, v{T+8}\nv_xor_b32 v{T+10}, v{T+10}, v{T+6}")
a(f"v_lshl_add_u32 v{T+11}, v{T+9}, 6, v{T+7}")
a(f"v_lshlrev_b32 v{T+9}, 14, v{T+9}\nv_lshl_add_u32 v{T+9}, v{T+8}, 10, v{T+9}\nv_lshl_add_u32 v{T+9}, v{T+4}, 4, v{T+9}")
SL, LA_, RD, PK, SS = T+12, T+20, T+28, T+44, T+52
for u in range(8):
    a(f"v_xor_b32 v{SL+u}, {u}, v{T+10}")
    a(f"v_lshl_add_u32 v{LA_+u}, v{SL+u}, 2, v{T+11}")
a(f"v_and_b32 v{T+10}, 3, v{T+4}")
for u in range(4):
    a(f"v_xor_b32 v{SS+u}, {u}, v{T+10}\nv_lshl_add_u32 v{SS+4+u}, v{SS+u}, 2, v{T+7}\nv_add_u32 v{SS+u}, 16384, v{SS+u}")
a("s_lshr_b32 s27, s34, 3\ns_mul_i32 s27, s27, 102400\ns_lshl_b32 s20, s22, 11\ns_add_u32 s28, s27, s20\ns_and_b32 s21, s34, 7\ns_lshl_b32 s20, s21, 7\ns_add_u32 s28, s28, s20")
a(f"s_lshl_b32 s20, s22, 9\ns_add_u32 s27, s27, s20\ns_lshl_b32 s20, s21, 6\ns_add_u32 s27, s27, s20\ns_add_u32 s27, s27, 98304\nv_lshlrev_b32 v{T+8}, 3, v{T+4}")
a(f"v_xor_b32 v{TD+1}, v{T+4}, v{U}\nv_lshlrev_b32 v{TD}, 7, v{T+5}\nv_lshl_add_u32 v{TD}, v{TD+1}, 4, v{TD}\nv_xor_b32 v{TD+1}, 64, v{TD}")
def table_dma(mt, s=27):
    a(f"s_add_u32 s{s}, s23, {4096*(mt & 1) + 65536*(mt >> 1)}\ns_mov_b32 m0, s{s}\ns_nop 0")
    for x in range(4): a(f"buffer_load_dwordx4 v{TD+(x&1)}, s[8:11], s{s} offen offset:{1024*x} lds")
a("s_cmp_lt_u32 s22, 4\ns_cbranch_scc1 P_np")
table_dma(2, 21); table_dma(3, 21)
a("s_waitcnt vmcnt(8)\ns_branch P_c9")
a("P_np:")
a("s_cmp_lg_u32 s22, 0\ns_cbranch_scc1 P_c0")
nonce_get()
a(f"v_mov_b32 v{AD}, s64\nv_mov_b32 v{AD+1}, s65\nv_mov_b32 v{AD+2}, s64\nv_mov_b32 v{AD+3}, s65\ns_mov_b64 exec, 0xff\ns_waitcnt vmcnt(0)")
a(f"buffer_store_dwordx4 {rg(AD,4)}, v1, s[12:15], s75 offen {SC}\ns_mov_b64 exec, -1")
a("s_mov_b32 s35, 4097\ns_branch P_c9\nP_c0:\ns_waitcnt vmcnt(0)\nP_c9:")
stamp()
for u in range(8): a(f"ds_read_b32 v{RD+u}, v{LA_+u}")
for u in range(8): a(f"ds_read_b32 v{RD+8+u}, v{LA_+u} offset:256")
for u in range(4): a(f"ds_read_b32 v{SS+8+u}, v{SS+4+u} offset:384")
def conv(k):
    for u in range(8):
        a(f"v_lshl_add_u32 v{RD+8*k+u}, v{RD+8*k+u}, 4, v{SL+u}")
    for d in range(4):
        a(f"v_lshl_or_b32 v{PK+4*k+d}, v{RD+8*k+2*d+1}, 16, v{RD+8*k+2*d}")
a("s_waitcnt lgkmcnt(12)")
conv(0)
a(f"buffer_store_dwordx4 {rg(PK,4)}, v{T+9}, s[12:15], s28 offen {SC}")
a("s_waitcnt lgkmcnt(0)")
nonce_load()
a("s_lshl_b32 s20, s25, 3\ns_add_u32 s48, s48, s20\ns_addc_u32 s49, s49, 0\ns_add_u32 s50, s50, s20\ns_addc_u32 s51, s51, 0")
a("s_load_dwordx2 s[70:71], s[48:49], 0\ns_load_dwordx2 s[72:73], s[50:51], 0")
conv(1)
for u in range(4): a(f"v_lshrrev_b32 v{SS+4+u}, 1, v{SS+8+u}\nv_lshl_add_u32 v{SS+8+u}, v{SS+8+u}, 2, v{SS+u}\nv_and_b32 v{SS+4+u}, 2, v{SS+4+u}\nv_xor_b32 v{SS+8+u}, v{SS+8+u}, v{SS+4+u}")
a(f"v_lshl_or_b32 v{SS+4}, v{SS+9}, 16, v{SS+8}\nv_lshl_or_b32 v{SS+5}, v{SS+11}, 16, v{SS+10}")
a(f"s_add_u32 s28, s28, 65536\ns_mov_b32 exec_hi, 0\nbuffer_store_dwordx4 {rg(PK+4,4)}, v{T+9}, s[12:15], s28 offen {SC}")
a(f"s_mov_b64 exec, 0xff\nbuffer_store_dwordx2 {rg(SS+4,2)}, v{T+8}, s[12:15], s27 offen {SC}\ns_mov_b64 exec, -1")
a("s_mov_b32 s36, s31\ns_mov_b32 s37, s26\ns_mov_b32 s38, s75")
if O("nounit", 0) == 1: a("s_mov_b32 s35, 4097")
if O("nounit", 0) == 2: a("s_cmp_ge_u32 s22, 2\ns_cselect_b32 s35, 4097, s35")
table_dma(0)
nonce_get()
a(f"s_lshr_b32 s31, s34, 3\ns_lshl_b32 s31, s31, 9\ns_and_b32 s20, s34, 7\ns_lshl_b32 s20, s20, 6\ns_add_u32 s31, s31, s20\ns_lshl_b32 s20, s22, 3\ns_add_u32 s31, s31, s20\ns_add_u32 s31, s31, {FI}")
a("s_waitcnt vmcnt(0)")
stamp()
flag_store(31)
a("s_lshr_b32 s20, s22, 2\ns_add_u32 s20, s20, 1\ns_lshl_b32 s20, s20, 8\ns_add_u32 s20, s20, s34")
a("s_lshr_b32 s21, s20, 5\ns_lshl_b32 s21, s21, 17\ns_bfe_u32 s39, s20, 0x30002\ns_lshl_b32 s39, s39, 12\ns_add_u32 s21, s21, s39\ns_and_b32 s39, s20, 3\ns_lshl_b32 s39, s39, 7\ns_add_u32 s21, s21, s39")
a("s_and_b32 s39, s22, 3\ns_lshl_b32 s39, s39, 10\ns_add_u32 s21, s21, s39\ns_add_u32 s46, s46, s21\ns_addc_u32 s47, s47, 0")
for f4 in range(4):
    for r in range(2): a(f"s_load_dword s3, s[46:47], {f4*32768 + r*512}")
def pl_op(sreg, tmp, addr): return f"buffer_load_dwordx2 {rg(tmp,2)}, v{addr}, s[12:15], s{sreg} offen {SC}"
def poll_load(sreg, tmp, addr): a(pl_op(sreg, tmp, addr))
def poll_check(sreg, tmp, addr, first_wait=0, slp=None):
    l = newlab("Q_")
    a(f"s_mov_b32 s20, 0\ns_waitcnt vmcnt({first_wait})")
    a(f"{l}:")
    a(f"v_cmp_ne_u64 vcc, s[64:65], {rg(tmp,2)}\ns_cbranch_vccz {l}ok")
    a(f"s_sleep {SLEEP if slp is None else slp}")
    poll_load(sreg, tmp, addr)
    a(f"s_add_u32 s20, s20, 1\ns_waitcnt vmcnt(0)\ns_cmp_lt_u32 s20, 0x8000\ns_cbranch_scc1 {l}")
    a(f"{l}ok:")
a("s_cmp_lt_u32 s22, 4\ns_cbranch_scc1 P_g")
a(f"s_and_b32 s21, s24, 1\ns_lshr_b32 s68, s25, 4\ns_lshl_b32 s68, s68, 14\ns_lshl_b32 s20, s21, 12\ns_add_u32 s68, s68, s20\ns_and_b32 s20, s22, 3\ns_lshl_b32 s20, s20, 10\ns_add_u32 s68, s68, s20\ns_add_u32 s68, s68, {FE}")
a(f"s_lshl_b32 s69, s25, 16\ns_lshl_b32 s21, s21, 13\ns_add_u32 s69, s69, s21\ns_add_u32 s69, s69, s20\ns_add_u32 s69, s69, {WFR}\ns_add_u32 s74, s69, 4096")
a(f"v_and_b32 v{IX+8}, 7, v0\nv_lshlrev_b32 v{IX+8}, 7, v{IX+8}")
poll_load(68, IX+10, IX+8)
table_dma(1)
poll_check(68, IX+10, IX+8, 4)
stamp("z1")
a(f"buffer_load_dwordx4 {rg(IX,4)}, v1, s[12:15], s69 offen {SC}\nbuffer_load_dwordx4 {rg(IX+4,4)}, v1, s[12:15], s74 offen {SC}")
a("s_branch P_e")
a("P_g:")
for mt in range(1, 4): table_dma(mt)
a("P_e:")
a(f"v_bfe_u32 v{T+2}, v0, 4, 1\nv_lshlrev_b32 v{T+2}, 1, v{T+2}\nv_bfe_u32 v{T}, v0, 2, 2\nv_mov_b32 v{T+1}, 0x3f80")
a(f"v_cmp_eq_u32 vcc, v{T+2}, v{T}\nv_add_u32 v{T+2}, 1, v{T+2}\ns_nop 0\nv_cndmask_b32 v{SEL}, 0, v{T+1}, vcc\nv_cmp_eq_u32 vcc, v{T+2}, v{T}")
a(f"v_mov_b32 v{SEL+1}, v{SEL}\nv_and_b32 v{T+2}, 3, v0\nv_cndmask_b32 v{SEL+2}, 0, v{T+1}, vcc\nv_mul_u32_u24 v{SIDX}, 0x5555, v{T+2}\nv_mov_b32 v{SEL+3}, v{SEL+2}")
PI = T + 3
def pi_ops(d, t): return [f"v_and_b32 v{d}, 24, v0", f"v_and_b32 v{t}, 3, v0", f"v_lshl_add_u32 v{d}, v{t}, 1, v{d}", f"v_bfe_u32 v{t}, v0, 2, 1", f"v_add_u32 v{d}, v{d}, v{t}"]
for o in pi_ops(PI, T): a(o)
a(f"v_lshrrev_b32 v{T}, 5, v0\nv_bfe_u32 v{T+1}, v{PI}, 1, 3\nv_xor_b32 v{T+1}, v{T+1}, v{T}\nv_lshlrev_b32 v{PI}, 7, v{PI}\nv_lshl_add_u32 v{PI}, v{T+1}, 4, v{PI}\nv_add_u32 v{FR}, s23, v{PI}")
for ks in range(1, 4): a(f"v_xor_b32 v{FR+ks}, {32*ks}, v{FR}")
for ks in range(4): a(f"v_add_u32 v{FR+4+ks}, 0x10000, v{FR+ks}")
a(f"v_add_u32 v{POOL+12}, s33, v1\nv_add_u32 v{POOL+13}, {XB}, v1\nv_lshlrev_b32 v{AD}, 3, v0")
a("s_and_b32 s21, s24, 1\ns_xor_b32 s20, s24, 1\ns_lshl_b32 s28, s20, 3\ns_add_u32 s28, s28, s22\ns_mul_i32 s28, s28, 102400\ns_lshl_b32 s27, s21, 14\ns_add_u32 s28, s28, s27")
a(f"s_lshl_b32 s68, s20, 3\ns_add_u32 s68, s68, s22\ns_lshl_b32 s68, s68, 9\ns_add_u32 s68, s68, {FI}\ns_xor_b32 s31, s68, 4096")
a(f"s_lshl_b32 s75, s24, 6\ns_lshl_b32 s27, s22, 3\ns_add_u32 s75, s75, s27\ns_lshl_b32 s75, s75, 6\ns_add_u32 s75, s75, s25\ns_lshl_b32 s75, s75, 8\ns_add_u32 s75, s75, {PART}")
a(f"s_lshr_b32 s29, s25, 4\ns_lshl_b32 s39, s29, 14\ns_lshl_b32 s29, s29, 11\ns_and_b32 s27, s22, 3\ns_lshl_b32 s27, s27, 9\ns_add_u32 s29, s29, s27\ns_add_u32 s29, s29, {FW + 256}")
a(f"s_lshl_b32 s27, s27, 1\ns_add_u32 s39, s39, s27\ns_lshl_b32 s27, s21, 12\ns_add_u32 s39, s39, s27\ns_add_u32 s39, s39, {FE + 8192}")
a(f"s_lshl_b32 s26, s25, 16\ns_lshl_b32 s27, s22, 10\ns_add_u32 s26, s26, s27\ns_lshl_b32 s27, s21, 13\ns_add_u32 s26, s26, s27\ns_add_u32 s26, s26, {WFR + 16384}")
a("s_lshl_b32 s48, s70, 16\ns_and_b32 s49, s70, 0xffff0000\ns_lshl_b32 s50, s71, 16\ns_and_b32 s51, s71, 0xffff0000")
for x in range(16): a(f"v_mov_b64 {rg(ACC+2*x,2)}, 0")
for x in range(16): a(f"v_mov_b64 {rg(ACC+32+2*x,2)}, s[{48+2*(x&1)}:{49+2*(x&1)}]")
a("s_waitcnt vmcnt(0)")
stamp()
a("s_cmp_lt_u32 s22, 4\ns_cbranch_scc1 P_h")
a(f"ds_write_b128 v{POOL+12}, {rg(IX,4)} offset:1024\nds_write_b128 v{POOL+12}, {rg(IX+4,4)} offset:2048")
a("P_h:")
for mt in range(4):
    for ks in range(4):
        a(f"ds_read_b128 {rg(TAB+16*mt+4*ks,4)}, v{FR+4*(mt>>1)+ks} offset:{4096*(mt&1)}")
a(f"v_mov_b32 v{POOL+14}, 163836\nv_mov_b32 v{POOL+15}, 0\nds_write_b32 v{POOL+14}, v{POOL+15}")
a("s_waitcnt lgkmcnt(0)\ns_barrier")
stamp()
for x in (0, 4, 1, 5, 2, 6, 3, 7):
    a(f"ds_read_b128 {rg(WF+4*x,4)}, v{POOL+13} offset:{XS*(4 + (x&3)) + 1024 + 1024*(x>>2)}")
poll_load(68, IX, AD)
poll_load(31, IX+2, AD)
a("s_cmp_ge_u32 s35, 800\ns_cbranch_scc1 P_u0")
w1_loads(36)
a("P_u0:")
a("s_and_b32 s21, s24, 1\ns_lshl_b32 s21, s21, 1\ns_sub_u32 s21, s21, 1\ns_mul_i32 s46, s21, 819200\ns_sub_u32 s47, 16384, s46\ns_sub_u32 s46, s46, 16384")
def tg_mfma(mt, ks, e, d):
    c = "0" if ks == 0 else rg(d, 16)
    return f"v_mfma_f32_32x32x16_bf16 {rg(d,16)}, {rg(TAB+16*mt+4*ks,4)}, {rg(WF+16*e+4*ks,4)}, {c}"
def wr_op(r, reg):
    off = r*256 if r < 32 else 57472 + (r-32)*256
    pre = ["s_mov_b32 m0, s30", "s_nop 0"] if r == 32 else []
    return pre + [f"ds_write_addtid_b32 v{reg} offset:{off}"]
a("s_mov_b32 m0, s23")
PD = [(POOL+16, POOL+32)] * 4
PO = [POOL+16] * 4
IXAT = O("ixat", 3); UPAT = O("upat", 2); FE_ = O("fe", 0)
pend = []
for mt in range(4):
    d0, d1 = PD[mt]
    seq = [(ks, e) for ks in range(4) for e in range(2)]
    if mt == UPAT and UPAT < IXAT:
        a("s_cmp_ge_u32 s35, 800\ns_cbranch_scc1 P_k2\ns_waitcnt vmcnt(0)")
        w1_process(POOL, WR_, 37)
        a("P_k2:")
    if mt == IXAT:
        if UPAT < IXAT and FE_:
            a("s_cmp_lt_u32 s35, 800\ns_cbranch_scc1 P_u2\ns_waitcnt vmcnt(0)\nP_u2:")
            poll_check(68, IX, AD, 4)
            poll_check(31, IX+2, AD, 4)
        elif UPAT < IXAT:
            a("s_waitcnt vmcnt(0)\ns_cmp_ge_u32 s35, 800\ns_cbranch_scc1 P_k4\ns_cmp_lg_u32 s22, 1\ns_cbranch_scc1 P_k3")
            for o in line_flag_ops(38, IX+4): a(o)
            a("s_branch P_k4\nP_k3:")
            flag_store(38, IX+4)
            a("P_k4:\ns_mov_b32 s35, 4096")
            poll_check(68, IX, AD, 1)
            poll_check(31, IX+2, AD, 1)
        else:
            a("s_cmp_lt_u32 s35, 800\ns_cbranch_scc1 P_u2\ns_waitcnt vmcnt(0)\nP_u2:")
            poll_check(68, IX, AD, 8)
            poll_check(31, IX+2, AD, 8)
        stamp("y1")
        for x in range(4):
            a(f"buffer_load_dwordx4 {rg(IX+4*x,4)}, v1, s[12:15], s28 offen offset:{1024*x} {SC}")
        a("s_add_u32 s28, s28, 4096")
        TCH = O("tch", 0)
        if TCH:
            a(f"v_bfe_u32 v{U+6}, v0, 3, 1\nv_mul_u32_u24 v{VT}, 819200, v{U+6}\nv_lshrrev_b32 v{U+6}, 4, v0\nv_lshl_add_u32 v{VT}, v{U+6}, 15, v{VT}\nv_and_b32 v{U+6}, 7, v0\nv_lshl_add_u32 v{VT}, v{U+6}, 7, v{VT}")
            a("s_and_b32 s20, s24, 2\ns_lshl_b32 s20, s20, 3\ns_add_u32 s20, s20, s22\ns_mul_i32 s20, s20, 102400\ns_and_b32 s21, s24, 1\ns_lshl_b32 s21, s21, 14\ns_add_u32 s20, s20, s21\ns_lshr_b32 s21, s2, 4\ns_lshl_b32 s21, s21, 10\ns_add_u32 s20, s20, s21")
            a(f"s_mov_b32 exec_hi, 0xffff\nbuffer_load_dword v{U+7}, v{VT}, s[12:15], s20 offen {SC}\ns_mov_b64 exec, -1")
        a(f"s_cmp_lg_u32 s22, {FIN}\ns_cbranch_scc1 P_f")
        srd(a, 4, 40, 16384*26)
        a(f"s_mov_b32 m0, {XWL}\ns_mul_i32 s20, s34, 1664\nbuffer_load_dwordx4 v1, s[4:7], s20 offen lds\nbuffer_load_dwordx4 v1, s[4:7], s20 offen offset:1024 lds")
        srd(a, 4, 44, 2)
        a(f"s_mov_b32 m0, {XWL+2048}\nv_mov_b32 v{VT}, 0\nbuffer_load_ushort v{VT}, s[4:7], 0 offen lds")
        srd(a, 4, 52, 2)
        a(f"s_mov_b32 m0, {XWL+2304}\ns_nop 0\nbuffer_load_ushort v{VT}, s[4:7], 0 offen lds")
        srd(a, 4, 42, 26)
        a(f"s_mov_b32 m0, {XWL+2560}\nv_lshlrev_b32 v{VT}, 1, v0\nbuffer_load_ushort v{VT}, s[4:7], 0 offen lds\ns_mov_b32 m0, s{30 if mt == 3 else 23}")
        a("P_f:")
    if mt == UPAT and UPAT >= IXAT:
        a("s_cmp_ge_u32 s35, 800\ns_cbranch_scc1 P_k2\ns_waitcnt vmcnt(%d)" % (4 + TCH))
        w1_process(POOL, WR_, 37)
        a("P_k2:")
    for n, (ks, e) in enumerate(seq):
        if mt == 0: a(f"s_waitcnt lgkmcnt({7 - n})")
        a(tg_mfma(mt, ks, e, d0 if e == 0 else d1))
        take = (len(pend) + (7 - n)) // (8 - n)
        for o in pend[:take]: a(o)
        pend = pend[take:]
    a("s_nop 11")
    wrs = [wr_op(16*mt + r, PO[mt] + r) for r in range(16)]
    LATE = O("late", 0) if mt < 3 else 0
    for r in range(16):
        a(f"v_cvt_pk_bf16_f32 v{PO[mt]+r}, v{d0+r}, v{d1+r}")
        if 1 <= r <= 16 - LATE:
            for o in wrs[r-1]: a(o)
    if LATE == 0:
        for o in wrs[15]: a(o)
    pend = [o for w in wrs[16 - LATE:] for o in w] if LATE else []
stamp("y2")
for o in pend: a(o)
if FE_:
    a("s_cmp_ge_u32 s35, 800\ns_cbranch_scc1 P_k4\ns_waitcnt vmcnt(0)\ns_cmp_lg_u32 s22, 1\ns_cbranch_scc1 P_k3")
    for o in line_flag_ops(38, POOL): a(o)
    a("s_branch P_k4\nP_k3:")
    flag_store(38, POOL)
    a("P_k4:\ns_mov_b32 s35, 4096")
a(f"s_cmp_lt_u32 s35, 800\ns_cbranch_scc1 P_m7\ns_cmp_eq_u32 s22, {FIN}\ns_cbranch_scc1 P_m7\ns_waitcnt vmcnt({3+TCH})\nP_m7:\ns_waitcnt vmcnt({7+TCH})")
stamp()

PAT = opts.get("pat", "SACMRL")
def pre_ops():
    ops = [f"v_lshlrev_b32_sdwa v{GD + 2*x}, 3, v{IX + x//2} dst_sel:DWORD dst_unused:UNUSED_PAD src0_sel:DWORD src1_sel:WORD_{x&1}" for x in range(8)]
    return ops + [f"buffer_load_dwordx4 {rg(IX,4)}, v1, s[12:15], s28 offen {SC}"]
U0 = O("u0", 36)
BIGQ = [TAB + 28 + 4*q for q in range(9)] + [WF + 4*q for q in range(4)] + [POOL + 28 + 4*q for q in range(5)]
def gather_phase(nunits, mf, cv, extra, acc_of, head, tail=None):
    NB = nunits * 2; last = nunits == 36
    def ixreg(u): return BIGQ[u - U0] if last and u >= U0 else IX + 4*(u & 3)
    log = [("ix", u) for u in range(5)]
    def vm_wait(tag):
        idx = len(log) - 1 - log[::-1].index(tag)
        a(f"s_waitcnt vmcnt({len(log) - 1 - idx})")
    def A(b):
        if b >= NB: return
        u = b // 2
        if b % 2 == 0: vm_wait(("ix", u))
        for x in range(4):
            d = ixreg(u) + 2*(b & 1) + x//2
            a(f"v_lshlrev_b32_sdwa v{GD + (8*b) % 16 + 2*x}, 3, v{d} dst_sel:DWORD dst_unused:UNUSED_PAD src0_sel:DWORD src1_sel:WORD_{x&1}")
    def R(b):
        if b >= NB: return
        for x in range(4):
            q = GD + (8*b) % 16 + 2*x
            a(f"ds_read_b64 {rg(q,2)}, v{q}")
    def L(b):
        u = b // 2
        if b >= NB or b % 2 == 0 or (last and u + 4 >= min(nunits, U0)): return
        if last and u + 4 >= 32:
            for h in range(2):
                a(f"buffer_load_dwordx2 {rg(IX+4*(u&3)+2*h,2)}, v{VT}, s[12:15], s28 offen offset:{1024*(u&3)+512*h} {SC}")
                log.append(("ix", u + 4))
        else:
            a(f"buffer_load_dwordx4 {rg(IX+4*(u&3),4)}, v1, s[12:15], s28 offen offset:{1024*(u&3)} {SC}")
            log.append(("ix", u + 4))
        if u & 3 == 3:
            a("s_add_u32 s28, s28, 4096")
            if u + 4 == 15: a("s_add_u32 s28, s28, s46")
            if u + 4 == 31: a("s_add_u32 s28, s28, s47")
    def emit(ops):
        for o in ops:
            if o == "SYNC": continue
            if isinstance(o, str) and o.startswith("STAMP"):
                stamp(o[6:]); continue
            if isinstance(o, tuple) and o[0] == "WAIT": vm_wait(o[1])
            elif isinstance(o, tuple):
                a(o[0]); log.append(o[1])
            else: a(o)
    sync = sorted(b for b, ops in extra.items() if "s_barrier" in ops or "SYNC" in ops) + [NB - 1]
    pr = {}; lo = 0
    for hi in sync:
        for q in range(4): pr[lo + ((hi + 1 - lo) * q) // 4] = 3 - q
        lo = hi + 1
    head()
    R(0); R(1)
    for b in range(NB):
        if b in pr and b: a(f"s_setprio {pr[b]}")
        nb = b + 2
        for ch in PAT:
            if ch == "S":
                a(f"s_waitcnt lgkmcnt({min(NB, nb) * 4 - 4*(b+1)})")
                if tail and b == NB - 1: tail()
                a(f"v_smfmac_f32_16x16x64_bf16 {rg(ACC+4*acc_of(b),4)}, {rg(SEL,4)}, {rg(GD + (8*b) % 16, 8)}, v{SIDX}")
            elif ch == "A": A(nb)
            elif ch == "R": R(nb)
            elif ch == "M": emit(mf.get(b, []))
            elif ch == "C": emit(cv.get(b, []))
            elif ch == "L": L(nb)
        emit(extra.get(b, []))
    return log, vm_wait
pad(PADPRO)
for o in pre_ops(): a(o)
g_start = len(a.lines)
RAW = POOL
P16, P32 = POOL + 16, POOL + 32
def add(d, b, ops): d.setdefault(b, []).extend(ops)
def cvt(d, x, y): return f"v_cvt_pk_bf16_f32 v{d}, v{x}, v{y}"
def selfpack(d, s): return [cvt(d + q, s + 2*q, s + 2*q + 1) for q in range(8)]
def combine(d):
    ops = []
    for q in range(7, -1, -1):
        ops += [f"v_perm_b32 v{d+2*q+1}, v{d+q}, v{T8+q}, s67", f"v_perm_b32 v{d+2*q}, v{d+q}, v{T8+q}, s66"]
    return ops
def tgen(start, per, nv):
    mf = {}; cv = {}; cur = [start]
    def M(ops):
        for i in range(0, len(ops), per):
            add(mf, cur[0], ops[i:i+per]); cur[0] += 1
    def V(ops, adv=True):
        b = cur[0] + 1
        for i in range(0, len(ops), nv):
            add(cv, b, ops[i:i+nv]); b += 1
        if adv: cur[0] = b - 1
    M([tg_mfma(0, ks, e, (P16, P32)[e]) for ks in range(4) for e in range(2)])
    V([cvt(POOL + r, P16 + r, P32 + r) for r in range(16)])
    M([tg_mfma(1, ks, e, (P16, P32)[e]) for ks in range(4) for e in range(2)])
    V([cvt(P16 + r, P16 + r, P32 + r) for r in range(16)])
    M([tg_mfma(2, ks, 0, P32) for ks in range(4)])
    V(selfpack(T8, P32))
    M([tg_mfma(3, ks, 0, P32) for ks in range(4)])
    V(selfpack(P32, P32), adv=False)
    M([tg_mfma(2, ks, 1, WF) for ks in range(4)])
    V(selfpack(WF, WF) + combine(WF) + [f"v_mov_b32 v{T8+q}, v{P32+q}" for q in range(8)])
    M([tg_mfma(3, ks, 1, P32) for ks in range(4)])
    lastm = cur[0]
    V(selfpack(P32, P32) + combine(P32))
    print("tile generation: last MFMA batch", lastm - 1, "ends at", cur[0])
    assert cur[0] <= 63
    return mf, cv, lastm
SRC = [POOL + r for r in range(32)] + [WF + r for r in range(16)] + [P32 + r for r in range(16)]
NX = WF + 16
def g_tail():
    a("s_barrier"); cyc()
    a("s_setprio 3")
    for r in range(4):
        for o in wr_op(r, SRC[r]): a(o)
PA = O("pa", 50)
def w_phase(tag, vm_wait, pre, wr, early=()):
    po = pre_ops(); fill = list(pre) + ["IXW"] + po[:8]
    for o in early: a(o)
    F0 = O("wf0", 8)
    for r in range(4, 64):
        if r % 16 == 0: a(f"s_setprio {3 - r // 16}")
        if r == 52: a(f"s_cmp_eq_u32 s22, 7\ns_cbranch_scc1 {tag}")
        for o in wr_op(r, SRC[r]): a(o)
        if r >= F0 and fill:
            o = fill.pop(0)
            if o == "IXW": vm_wait(("ix", 32))
            else: a(o)
        if r == PA:
            assert not fill
            a("s_waitcnt vmcnt(0)")
            for o in wr: a(o)
            a(po[8])
    a(f"{tag}:")
def part_off(d, t): return [f"v_lshrrev_b32 v{d}, 3, v0", f"v_lshlrev_b32 v{d}, 14, v{d}", f"v_and_b32 v{t}, 7, v0", f"v_lshl_add_u32 v{d}, v{t}, 4, v{d}"]
def wf_reads(ad): return [f"ds_read_b128 {rg(WF+4*x,4)}, v{ad} offset:{XS*x}" for x in (0, 4, 1, 5, 2, 6, 3, 7)]
PB = O("pb", 6); RB = O("rb", 10); XBAT = O("xb", 17); BB = O("bb", 20)
extra = {}
add(extra, PB, [f"v_min_u32 v{RAW+2}, 7, v0", f"v_lshlrev_b32 v{RAW+2}, 7, v{RAW+2}", (pl_op(39, RAW, RAW+2), ("wfl", 0))])
add(extra, RB, [("WAIT", ("wfl", 0)), f"v_cmp_ne_u64 vcc, s[64:65], {rg(RAW,2)}", "s_cbranch_vccnz W_slow" if O("nounit", 0) != 1 else "s_nop 0", "W_back:",
                (f"buffer_load_dwordx4 {rg(RAW,4)}, v1, s[12:15], s26 offen {SC}", ("raw", 0)), "s_add_u32 s26, s26, 16384"])
CB0 = O("cb0", 1); C1 = 163836
add(extra, XBAT, [f"v_add_u32 v{RAW+4}, s33, v1", ("WAIT", ("raw", 0)), f"ds_write_b128 v{RAW+4}, {rg(RAW,4)}"])
if CB0:
    add(extra, XBAT, [f"v_mov_b32 v{RAW+6}, {C1}", f"v_mov_b32 v{RAW+7}, 1", "s_mov_b64 exec, 1", f"ds_add_u32 v{RAW+6}, v{RAW+7}", "s_mov_b64 exec, -1", "SYNC"])
    add(extra, BB - 2, [f"ds_read_b32 v{RAW+7}, v{RAW+6}"])
    add(extra, BB, [f"v_add_u32 v{RAW+4}, {XB}, v1", f"v_readfirstlane_b32 s20, v{RAW+7}", "s_cmp_lt_u32 s20, 8", "s_cbranch_scc1 J_slow", "J_back:"] + wf_reads(RAW+4))
else:
    add(extra, BB, [f"v_add_u32 v{RAW+4}, {XB}, v1", "s_barrier"] + wf_reads(RAW+4))
add(extra, BB + 1, [f"v_min_u32 v{T8+2}, 17, v0", f"v_lshlrev_b32 v{T8+2}, 3, v{T8+2}", (pl_op(29, T8, T8+2), ("wf2", 0))])
add(extra, BB + 9, [("WAIT", ("wf2", 0)), f"v_cmp_ne_u64 vcc, s[64:65], {rg(T8,2)}", "s_cbranch_vccnz Z_slow" if not O("nounit", 0) else "s_nop 0", "Z_back:"])
mf, cv, lastm = tgen(BB + 3, O("per0", 2), O("nv0", 5))
add(extra, max(lastm, 54), [(f"buffer_load_dwordx4 {rg(NX,4)}, v1, s[12:15], s26 offen {SC}", ("nx", 0)), "s_mov_b32 m0, s23"])
def g0_head():
    a("s_setprio 3\ns_waitcnt lgkmcnt(0)\ns_barrier"); cyc()
    stamp("g0")
    a("s_cmp_lt_u32 s35, 800\ns_cbranch_scc1 L_first\nL_G1:")
_, vw = gather_phase(32, mf, cv, extra, lambda b: b // 4, g0_head, g_tail)
w_phase("W_e0", vw, [f"v_add_u32 v{T8+7}, s33, v1", f"v_add_u32 v{T8+6}, {XB}, v1"] + part_off(T8+4, T8+5) + [f"v_mov_b32 v{T8+x}, -1" for x in range(4)] +
        ["s_xor_b32 s27, s34, 64", "s_lshl_b32 s3, s27, 15", "s_lshl_b32 s20, s22, 12", "s_add_u32 s3, s3, s20", f"s_add_u32 s3, s3, {HX}",
         "s_lshl_b32 s38, s27, 11", "s_lshl_b32 s20, s22, 8", "s_add_u32 s38, s38, s20", f"s_add_u32 s38, s38, {FX}", "s_xor_b32 s39, s38, 0x20000", "s_xor_b32 s37, s3, 0x200000"],
        [f"ds_write_b128 v{T8+7}, {rg(NX,4)}",
         f"buffer_store_dwordx4 {rg(T8,4)}, v{T8+4}, s[12:15], s75 offen {SC}", f"buffer_store_dwordx4 {rg(T8,4)}, v{T8+4}, s[12:15], s75 offen offset:128 {SC}",
         "s_mov_b64 exec, 0xffff", f"buffer_store_dwordx4 {rg(T8,4)}, v1, s[12:15], s38 offen {SC}", "s_mov_b64 exec, -1"])
mf, cv, lastm = tgen(O("ts1", 2), O("per1", 1), O("nv1", 5))
extra = {}
add(extra, 2, [f"s_lshl_b32 s26, s25, 16", "s_lshl_b32 s27, s22, 10", "s_add_u32 s26, s26, s27", f"s_add_u32 s26, s26, {WFR + 6*8192}"])
add(extra, max(lastm, 54), [f"v_and_b32 v{NX}, 0x27f, v1", (f"buffer_load_dwordx4 {rg(NX,4)}, v{NX}, s[12:15], s26 offen {SC}", ("nx", 0)), "s_mov_b32 m0, s23"])
def g1_head():
    a("s_setprio 3\ns_waitcnt lgkmcnt(0)\ns_barrier"); cyc()
    stamp("g1")
    for o in wf_reads(T8+6): a(o)
_, vw = gather_phase(32, mf, cv, extra, lambda b: b // 4, g1_head, g_tail)
A0 = T8 + 4; XW = POOL
mid = [f"v_lshrrev_b32 v{T8}, 5, v0", f"v_lshlrev_b32 v{T8}, 7, v{T8}", f"v_and_b32 v{T8+1}, 7, v0", f"v_lshl_add_u32 v{T8}, v{T8+1}, 4, v{T8}",
       "s_lshl_b32 s20, s22, 8", f"s_add_u32 s20, s20, {PADR}", f"v_add_u32 v{T8}, s20, v{T8}",
       f"v_and_b32 v{A0}, 1, v0", f"v_lshlrev_b32 v{A0}, 10, v{A0}", f"v_bfe_u32 v{A0+1}, v0, 1, 1", f"v_lshl_add_u32 v{A0}, v{A0+1}, 4, v{A0}",
       f"v_bfe_u32 v{A0+1}, v0, 3, 1", f"v_lshl_add_u32 v{A0}, v{A0+1}, 5, v{A0}", f"v_bfe_u32 v{A0+1}, v0, 2, 1", f"v_lshl_add_u32 v{A0}, v{A0+1}, 6, v{A0}",
       f"v_lshrrev_b32 v{A0+1}, 5, v0", f"v_lshl_add_u32 v{A0}, v{A0+1}, 7, v{A0}", f"v_add_u32 v{A0}, {PADR}, v{A0}",
       f"v_mov_b32 v{T8+2}, {PADR + 2048}", f"v_mov_b32 v{T8+1}, 0", f"ds_write_b32 v{T8+2}, v{T8+1}",
       "s_and_b32 s27, s24, 1", "s_xor_b32 s27, s27, 1", "s_lshl_b32 s47, s27, 14", f"v_lshlrev_b32 v{VT}, 3, v0"]
F2OPS = ["s_cmp_lg_u32 s22, 0", "s_cbranch_scc1 G_nf2", "s_lshl_b32 s31, s34, 3", f"s_add_u32 s31, s31, {F2}"] + flag_ops(31, T8) + ["G_nf2:"]
w_phase("W_e1", vw, mid, [f"ds_write_b128 v{T8}, {rg(NX,4)}"])
XW = WF + 16
a(f"s_cmp_lg_u32 s22, {FIN}\ns_cbranch_scc1 L_Glast")
a(f"v_and_b32 v{T8}, 7, v0\nv_bfe_u32 v{T8+1}, v0, 3, 1\nv_lshl_add_u32 v{T8}, v{T8+1}, 5, v{T8}\nv_lshrrev_b32 v{T8+1}, 4, v0\nv_lshl_add_u32 v{T8}, v{T8+1}, 3, v{T8}\nv_mul_u32_u24 v{T8}, 26, v{T8}\nv_add_u32 v{T8}, {XWL}, v{T8}\nv_mov_b32 v{T8+1}, {XWL+2048}\nv_lshl_add_u32 v{T8+2}, v0, 2, v{T8+1}")
for k in range(13): a(f"ds_read_u16_d16_hi v{XW+k}, v{T8} offset:{2*k}")
a(f"ds_read_u16_d16_hi v{XW+13}, v{T8+1}\nds_read_u16_d16_hi v{XW+14}, v{T8+1} offset:256\nds_read_u16_d16_hi v{XW+15}, v{T8+2} offset:512")
a("L_Glast:")
HR = TAB + 20
extra = {}; mf = {}; cv = {}
BB = 0
add(extra, 0, F2OPS)
VSP = T8 + 6
add(cv, BB + 1, pi_ops(VSP, VSP+1) + [f"v_lshlrev_b32 v{VSP}, 5, v{VSP}"])
add(cv, BB + 2, [f"v_lshrrev_b32 v{A0}, 5, v0", f"v_bfe_u32 v{VSP+1}, v0, 1, 1", f"v_xor_b32 v{VSP+1}, v{VSP+1}, v{A0}", f"v_lshl_add_u32 v{VSP}, v{VSP+1}, 4, v{VSP}",
                 "s_lshl_b32 s31, s22, 11", "s_add_u32 s31, s31, 131072", f"v_add_u32 v{VSP}, s31, v{VSP}"])
S0 = BB + 3
for mt in range(4):
    d = POOL + 16*(mt % 3)
    for ks in range(4):
        add(mf, S0 + 4*mt + ks, [f"v_mfma_f32_32x32x16_bf16 {rg(d,16)}, {rg(WF+4*ks,4)}, {rg(TAB+16*mt+4*ks,4)}, {'0' if ks == 0 else rg(d,16)}"])
    add(cv, S0 + 4*mt + 5, [cvt(d + x, d + 2*x, d + 2*x + 1) for x in range(4)])
    add(extra, S0 + 4*mt + 5, [f"ds_write_b128 v{VSP}, {rg(d,4)} offset:{(32*(mt & 1) + 512*(mt >> 1)) * 32}"])
if O("nosp", 0): mf = {}; extra = {k: [o for o in v if "ds_write_b128" not in str(o)] for k, v in extra.items()}
CB = O("cb", 0)
C2 = PADR + 2048
if CB:
    add(extra, S0 + 17, [f"v_mov_b32 v{A0}, {C2}", f"v_mov_b32 v{A0+1}, 1", "s_mov_b64 exec, 1", f"ds_add_u32 v{A0}, v{A0+1}", "s_mov_b64 exec, -1"])
    add(extra, 57, [f"ds_read_b32 v{A0+1}, v{A0}"])
    add(extra, 60, [f"v_readfirstlane_b32 s20, v{A0+1}", "s_cmp_lt_u32 s20, 8", "s_cbranch_scc1 K_slow", "K_back:"])
elif not O("nomb", 0): add(extra, O("mbat", 58), ["s_barrier"])
for t in range(4):
    b = 8*t + 9; s = ACC + 8*t
    add(cv, b, [cvt(s + x, s + 2*x, s + 2*x + 1) for x in range(4)])
    add(extra, b, [(f"buffer_store_dwordx4 {rg(s,4)}, v1, s[12:15], s3 offen offset:{1024*t} {SC}" if not O("nohs", 0) else f"buffer_load_dword v{HR+8}, v1, s[60:63], 0 offen", ("hs", t))])
def hl_op(t): return f"buffer_load_dwordx4 {rg(ACC+8*t+4,4)}, v1, s[12:15], s37 offen offset:{1024*t} {SC}"
NA = O("na", 2)
FA, PA_, CA, SA = O("fa", 8*NA + 7), O("pa1", 40), O("ca", 45), O("sa", 4)
FB, PB_, CB_ = O("fb", 39), O("pb1", 56), O("cb1", 61)
add(extra, FA, [("WAIT", ("hs", NA - 1)) if not O("hstrict", 0) else "s_waitcnt vmcnt(0)"] + line_flag_ops(38, HR + 4, ("fl", 0)) + ["s_add_u32 s38, s38, 128"])
if NA < 4: add(extra, FB, [("WAIT", ("hs", 3)) if not O("hstrict", 0) else "s_waitcnt vmcnt(0)"] + line_flag_ops(38, HR + 4, ("fl", 1)))
add(extra, PA_, [f"v_mov_b32 v{HR+2}, 0", (pl_op(39, HR, HR+2), ("hp", 0))])
add(extra, CA, [("WAIT", ("hp", 0)), f"v_cmp_ne_u64 vcc, s[64:65], {rg(HR,2)}", "s_cbranch_vccnz H_slow", "H_back:", "s_add_u32 s39, s39, 128"])
for t in range(NA): add(extra, CA + SA*t, [(hl_op(t), ("hl", t))])
if NA < 4: add(extra, PB_, [(pl_op(39, HR, HR+2), ("hp", 1))])
if NA == 4: add(extra, CB_, ["I_back:"])
else: add(extra, CB_, [("WAIT", ("hp", 1)), f"v_cmp_ne_u64 vcc, s[64:65], {rg(HR,2)}", "s_cbranch_vccnz I_slow", "I_back:"] + [(hl_op(t), ("hl", t)) for t in range(NA, 4)])
Y = TAB; K = ACC + 32
def epi(s):
    r = ACC + 8*(s >> 1) + 4 + 2*(s & 1); t = POOL + 24
    w = [("WAIT", ("hl", s >> 1))] if s % 2 == 0 else []
    return w + [f"v_lshlrev_b32 v{t}, 16, v{r}", f"v_and_b32 v{t+1}, s27, v{r}", f"v_lshlrev_b32 v{t+2}, 16, v{r+1}", f"v_and_b32 v{t+3}, s27, v{r+1}",
            f"v_pk_add_f32 {rg(t,2)}, {rg(t,2)}, {rg(K+4*s,2)}", f"v_pk_add_f32 {rg(t+2,2)}, {rg(t+2,2)}, {rg(K+4*s+2,2)}",
            cvt(POOL+2*s, t, t+1), cvt(POOL+2*s+1, t+2, t+3),
            f"v_pk_max_i16 v{POOL+2*s}, v{POOL+2*s}, 0", f"v_pk_max_i16 v{POOL+2*s+1}, v{POOL+2*s+1}, 0",
            f"v_dot2_f32_bf16 v{POOL+16+s}, v{POOL+2*s}, s72, 0", f"v_dot2_f32_bf16 v{POOL+16+s}, v{POOL+2*s+1}, s73, v{POOL+16+s}"]
def epi2(s): return [f"v_min_u32 v{POOL+16+s}, s33, v{POOL+16+s}"]
st0 = f"buffer_store_dwordx4 {rg(POOL+16,4)}, v{Y+14}, s[12:15], s75 offen {SC}"
st1 = f"buffer_store_dwordx4 {rg(POOL+20,4)}, v{Y+14}, s[12:15], s75 offen offset:128 {SC}"
add(extra, 62, ["s_mov_b32 s33, -2", "s_mov_b32 s27, 0xffff0000"])
add(extra, O("f2at", 35), ["s_lshl_b32 s31, s24, 9", f"s_add_u32 s31, s31, {F2}", f"v_lshlrev_b32 v{Y+18}, 3, v0", (pl_op(31, Y+16, Y+18), ("f2", 0))])
add(cv, 58, part_off(Y+14, Y+15) + [f"v_lshlrev_b32 v{Y+12}, 2, v0", f"v_add_u32 v{Y+12}, {PADR}, v{Y+12}"])
add(cv, 59, ["s_lshl_b32 s29, s34, 14", "s_lshl_b32 s20, s22, 11", "s_add_u32 s29, s29, s20", f"s_add_u32 s29, s29, {PART}", "s_lshl_b32 s20, s22, 8", f"v_add_u32 v{Y+13}, s20, v{Y+12}",
             f"v_and_b32 v{Y+10}, 7, v0", f"v_bfe_u32 v{Y+11}, v0, 3, 1", f"v_lshl_add_u32 v{Y+10}, v{Y+11}, 5, v{Y+10}"])
add(cv, 60, [f"v_lshrrev_b32 v{Y+11}, 4, v0", f"v_lshl_add_u32 v{Y+10}, v{Y+11}, 3, v{Y+10}", "s_lshl_b32 s20, s34, 6", f"v_add_u32 v{Y+10}, s20, v{Y+10}", f"v_lshlrev_b32 v{Y+10}, 1, v{Y+10}",
             "s_mov_b32 s8, s54", "s_and_b32 s9, s55, 0xffff", "s_mov_b32 s10, 32768", "s_mov_b32 s11, 0x00020000"])
for s in range(7): add(cv, 65 + s, epi(s) + (epi2(s-1) if s else []))
add(extra, 69, [(st0, ("st", 0))])
add(extra, 36, ["STAMP b33"]); add(extra, 59, ["STAMP b60"])
if CYC == 1:
    add(extra, 61, cyc_ops())
    add(extra, 30, cyc_ops())
if CYC == 2:
    for b in [int(x) for x in opts.get("at", "8,16,24,30,32,38,40,49,51,58,63,65").split(",")]: add(extra, b, cyc_ops())
if U0 < 36:
    B0 = O("b0", S0 + 18); BR = O("br", 1)
    add(extra, B0 - 1, ["s_lshl_b32 s21, s24, 3", "s_add_u32 s21, s21, s22", "s_mul_i32 s21, s21, 102400", "s_add_u32 s36, s21, 98304", "s_and_b32 s20, s24, 1", "s_lshl_b32 s20, s20, 14",
                        "s_add_u32 s21, s21, s20", f"s_add_u32 s21, s21, {65536 + 4096*((U0-16)//4)}"])
    for u in range(U0, 36):
        b = B0 + (u - U0) // BR; q = BIGQ[u - U0]
        if u < 32:
            add(extra, b, [(f"buffer_load_dwordx4 {rg(q,4)}, v1, s[12:15], s21 offen offset:{1024*(u&3)} {SC}", ("ix", u))] + (["s_add_u32 s21, s21, 4096"] if u & 3 == 3 else []))
        else:
            add(extra, b, [(f"buffer_load_dwordx2 {rg(q+2*h,2)}, v{VT}, s[12:15], s36 offen offset:{1024*(u&3)+512*h} {SC}", ("ix", u)) for h in range(2)])
def gl_head():
    a("s_setprio 3\ns_waitcnt lgkmcnt(0)\ns_barrier"); cyc()
    stamp("gl")
    for x in range(4): a(f"ds_read_b128 {rg(WF+4*x,4)}, v{A0} offset:{256*x}")
gather_phase(36, mf, cv, extra, lambda b: b // 4 if b < 64 else b - 56, gl_head)
cyc()
stamp()
for o in epi(7) + epi2(6): a(o)
a("s_nop 1")
for o in epi2(7): a(o)
a(st1)
VW = T8
a(f"s_mov_b32 s20, 0\ns_cmp_lg_u32 s22, {FIN}\ns_cbranch_scc1 R_f2")
for k in range(16): a(f"v_and_b32 v{XW+k}, s27, v{XW+k}")
a("s_nop 0")
for k in range(13): a(f"v_readlane_b32 s{36+k}, v{XW+15}, {k}")
a(f"v_readfirstlane_b32 s74, v{XW+14}\nv_mul_f32 v{VW}, s36, v{XW}")
for k in range(1, 13): a(f"v_fmac_f32 v{VW}, s{36+k}, v{XW+k}")
rnd(VW); a(f"v_add_f32 v{VW}, v{VW}, v{XW+13}"); rnd(VW)
a("R_f2:")
a(f"s_waitcnt vmcnt(0)\nv_cmp_ne_u64 vcc, s[64:65], {rg(Y+16,2)}\ns_cbranch_vccz R_f2ok")
a(f"s_sleep 1\n{pl_op(31, Y+16, Y+18)}\ns_add_u32 s20, s20, 1\ns_cmp_lt_u32 s20, 0x8000\ns_cbranch_scc1 R_f2")
a("R_f2ok:")
a("s_mov_b32 s20, 0")
a("R_poll:")
a(f"buffer_load_dwordx4 {rg(Y,4)}, v1, s[12:15], s29 offen {SC}\nbuffer_load_dwordx4 {rg(Y+4,4)}, v1, s[12:15], s29 offen offset:1024 {SC}")
a("s_add_u32 s20, s20, 1\ns_waitcnt vmcnt(0)")
a(f"v_max3_u32 v{Y+8}, v{Y}, v{Y+1}, v{Y+2}\nv_max3_u32 v{Y+9}, v{Y+3}, v{Y+4}, v{Y+5}\nv_max3_u32 v{Y+8}, v{Y+8}, v{Y+6}, v{Y+7}\nv_max_u32 v{Y+8}, v{Y+8}, v{Y+9}")
a(f"v_cmp_eq_u32 vcc, -1, v{Y+8}\ns_cbranch_vccz R_ok")
if O("rmask", 0): a("s_mov_b64 exec, vcc")
a(f"s_sleep {RSLEEP}\ns_cmp_lt_u32 s20, 0x8000\ns_cbranch_scc1 R_poll")
a("R_ok:")
if O("rmask", 0): a("s_mov_b64 exec, -1")
stamp("y3")
for x in range(4): a(f"v_add_f32 v{Y+x}, v{Y+x}, v{Y+4+x}")
a(f"s_nop 0\nv_permlane32_swap_b32 v{Y}, v{Y+2}\nv_permlane32_swap_b32 v{Y+1}, v{Y+3}\ns_nop 0\nv_add_f32 v{Y}, v{Y}, v{Y+2}\nv_add_f32 v{Y+1}, v{Y+1}, v{Y+3}\ns_nop 1\nv_permlane16_swap_b32 v{Y}, v{Y+1}\ns_nop 0\nv_add_f32 v{Y}, v{Y}, v{Y+1}")
a(f"ds_write_b32 v{Y+13}, v{Y}\ns_waitcnt lgkmcnt(0)\ns_barrier")
a(f"s_cmp_lg_u32 s22, {FIN}\ns_cbranch_scc1 M_fin")
for k in range(8): a(f"ds_read_b32 v{Y+k}, v{Y+12} offset:{256*k}")
a("s_waitcnt lgkmcnt(0)")
a(f"v_add_f32 v{Y}, v{Y}, v{Y+1}\nv_add_f32 v{Y+2}, v{Y+2}, v{Y+3}\nv_add_f32 v{Y+4}, v{Y+4}, v{Y+5}\nv_add_f32 v{Y+6}, v{Y+6}, v{Y+7}\nv_add_f32 v{Y}, v{Y}, v{Y+2}\nv_add_f32 v{Y+4}, v{Y+4}, v{Y+6}\nv_add_f32 v{Y}, v{Y}, v{Y+4}")
rnd(Y); a(f"v_add_f32 v{Y}, s74, v{Y}"); rnd(Y)
a(f"v_add_f32 v{Y}, v{Y}, v{VW}"); rnd(Y)
a(f"v_mul_f32 v{Y}, 0xbfb8aa3b, v{Y}\nv_exp_f32 v{Y}, v{Y}\ns_nop 0\nv_add_f32 v{Y}, 1.0, v{Y}\nv_rcp_f32 v{Y}, v{Y}\ns_nop 0\nv_cvt_pk_bf16_f32 v{Y}, v{Y}, v{Y}")
a(f"buffer_store_short v{Y}, v{Y+10}, s[8:11], 0 offen sc0 sc1")
a("M_fin:")
PROBE = O("probe", -1)
if PROBE >= 0:
    a(f"s_cmp_lg_u32 s22, {SW}\ns_cbranch_scc1 M_end\ns_waitcnt vmcnt(0)")
    if O("pwg", -1) >= 0: a(f"s_cmp_lg_u32 s2, {O('pwg', 0)}\ns_cbranch_scc1 M_end")
    stamp()
    a(f"s_waitcnt lgkmcnt(0)\ns_sub_u32 s20, s{76+2*PROBE}, s64\ns_mul_i32 s20, s20, {O('gain', 10)}\ns_add_u32 s20, s20, 4000")
    a("PRB:\ns_memrealtime s[32:33]\ns_waitcnt lgkmcnt(0)\ns_sub_u32 s32, s32, s64\ns_cmp_lt_i32 s32, s20\ns_cbranch_scc1 PRB")
elif STAMP:
    a(f"s_cmp_lg_u32 s22, {SW}\ns_cbranch_scc1 M_end\ns_waitcnt vmcnt(0)")
    stamp()
    a("s_waitcnt lgkmcnt(0)")
    n = nst[0]
    if O("mt", 0):
        for k in range(n - 1, -1, -1): a(f"s_sub_u32 s{76+2*k}, s{76+2*k}, s76\ns_mov_b32 s{77+2*k}, 0")
    if CYC:
        n = 13
        for k in range(1, 12): a(f"s_sub_u32 s{76+2*k}, s{76+2*k}, s{78+2*k}\ns_mov_b32 s{77+2*k}, 0")
        a("s_mov_b32 s76, 0\ns_mov_b32 s77, 0\ns_mov_b32 s100, 0\ns_mov_b32 s101, 0")
    elif PADPRO: a("s_mov_b32 s76, s64\ns_and_b32 s77, s65, 0x7fffffff")
    a(f"s_mul_i32 s31, s2, {8*n}\ns_add_u32 s31, s31, 0x8000000\nv_mov_b32 v2, 0")
    for k in range(n):
        a(f"v_mov_b32 v4, s{76+2*k}\nv_mov_b32 v5, s{77+2*k}\nbuffer_store_dwordx2 v[4:5], v2, s[12:15], s31 offen offset:{8*k}\ns_waitcnt vmcnt(0)")
    print("nstamps", n)
a("M_end:\ns_endpgm")
a("L_first:")
a("s_waitcnt vmcnt(0)\ns_cmp_lg_u32 s22, 1\ns_cbranch_scc1 L_f2")
for o in line_flag_ops(38, WF): a(o)
a("s_branch L_G1\nL_f2:")
flag_store(38, WF)
a("s_branch L_G1")
for tg, sr, t in (("W", 39, RAW), ("Z", 29, T8), ("H", 39, HR), ("I", 39, HR)):
    a(f"{tg}_slow:")
    poll_check(sr, t, t+2, 63, O("hsleep", 1))
    a(f"s_branch {tg}_back")
def cnt_slow(tag, ad):
    a(f"{tag}_slow:\ns_mov_b32 s21, 0\n{tag}_l:\nds_read_b32 v{ad+1}, v{ad}\ns_add_u32 s21, s21, 1\ns_waitcnt lgkmcnt(0)\nv_readfirstlane_b32 s20, v{ad+1}")
    a(f"s_cmp_ge_u32 s20, 8\ns_cbranch_scc1 {tag}_back\ns_cmp_lt_u32 s21, 0x100000\ns_cbranch_scc1 {tag}_l\ns_branch {tag}_back")
if CB: cnt_slow("K", A0)
if CB0: cnt_slow("J", RAW+6)
a("C_end:\ns_endpgm")
L = a.lines
errs = hazard.check_all(L[st:], "main")
a.raw(kernel_desc(MAIN, 256, 102, 256))
for e in sorted(set(errs))[:5]: print("HAZARD", e)
open(sys.argv[1], "w").write(a.text())
```
